```python
import torch

def _softmax(x, axis=-1):
    return torch.softmax(x, dim=axis)
def _gelu(x):
    return torch.nn.functional.gelu(x, approximate="tanh")
def _silu(x):
    return torch.nn.functional.silu(x)
def _sigmoid(x):
    return torch.sigmoid(x)
def _layernorm(x, axis=-1, eps=1e-5):
    m = x.mean(dim=axis, keepdim=True)
    v = x.var(dim=axis, keepdim=True, unbiased=False)
    return (x - m) / torch.sqrt(v + eps)
def _scatter_add(tgt, idx, src, axis=0):
    return tgt.clone().index_add_(axis, idx, src)
def _segment_sum(src, seg, n):
    out = torch.zeros((n,) + src.shape[1:], dtype=src.dtype)
    return out.index_add_(0, seg, src)
def _pad(x, pw):
    flat = tuple(v for pair in reversed(pw) for v in pair)
    return torch.nn.functional.pad(x, flat)

kernel_name = 'recurrent_scan__mha_block_cached__geglu_ffn__decode'

def setup_inputs():

    _w = (lambda a: (lambda t: t.to(torch.bfloat16) if t.is_floating_point() else t)(torch.as_tensor(a)))
    def _A_setup():
        B, Sq, D = 2, 1, 512
        H, Sk, Dh = 32, 8192, 128
        return {
            "x": _w((lambda *s: torch.randn(*s, dtype=torch.bfloat16) * 0.05)(B, Sq, D)),
            "k_cache": _w((lambda *s: torch.randn(*s, dtype=torch.bfloat16) * 1.6)(B, H, Sk, Dh)),
            "v_cache": _w((lambda *s: torch.randn(*s, dtype=torch.bfloat16) * 0.2)(B, H, Sk, Dh)),
            "wq": _w((lambda *s: torch.randn(*s, dtype=torch.bfloat16) * 1.6)(D, H * Dh) * (D ** -0.5)),
            "wo": _w((lambda *s: torch.randn(*s, dtype=torch.bfloat16) * 0.2)(H * Dh, D) * ((H * Dh) ** -0.5)),
        }
    _A_in = _A_setup()

    def _B_setup():
        B, S, D, F = 2, 1, 512, 1376
        return {
            "x": _w((lambda *s: torch.randn(*s, dtype=torch.bfloat16) * 0.05)(B, S, D)),
            "w_gate": _w((lambda *s: torch.randn(*s, dtype=torch.bfloat16) * 0.1)(D, F)),
            "w_up": _w((lambda *s: torch.randn(*s, dtype=torch.bfloat16) * 0.1)(D, F)),
            "w_down": _w((lambda *s: torch.randn(*s, dtype=torch.bfloat16) * 0.1)(F, D)),
        }
    _B_in = _B_setup()

    return {
        "A_x": _A_in["x"],
        "A_k_cache": _A_in["k_cache"],
        "A_v_cache": _A_in["v_cache"],
        "A_wq": _A_in["wq"],
        "A_wo": _A_in["wo"],
        "B_x": _B_in["x"],
        "B_w_gate": _B_in["w_gate"],
        "B_w_up": _B_in["w_up"],
        "B_w_down": _B_in["w_down"],
    }

def reference(A_x, A_k_cache, A_v_cache, A_wq, A_wo, B_x, B_w_gate, B_w_up, B_w_down):
    def _A_ref(x, k_cache, v_cache, wq, wo):
        B, Sq, D = x.shape
        H, Dh = 32, 128
        q = (lambda x, *d: x.permute(*d))((x @ wq).reshape(B, Sq, H, Dh), 0, 2, 1, 3)
        scores = torch.einsum("bhqd,bhkd->bhqk", q, k_cache) * (Dh ** -0.5)
        p = _softmax(scores, axis=-1)
        o = torch.einsum("bhqk,bhkd->bhqd", p, v_cache)
        return (lambda x, *d: x.permute(*d))(o, 0, 2, 1, 3).reshape(B, Sq, H * Dh) @ wo

    def _B_ref(x, w_gate, w_up, w_down):
        return (_gelu(x @ w_gate) * (x @ w_up)) @ w_down

    x = A_x
    xn = _layernorm(x, axis=-1)
    s = _A_ref(xn, A_k_cache, A_v_cache, A_wq, A_wo)
    g = _silu(_B_ref(xn, B_w_gate, B_w_up, B_w_down))
    return x + s * g
```

```python
import re

TRANS = ("v_exp_f32", "v_log_f32", "v_rcp_f32", "v_rsq_f32", "v_sqrt_f32", "v_sin_f32", "v_cos_f32")


def split_ops(s):
    out, depth, cur = [], 0, ""
    for ch in s:
        if ch == "[":
            depth += 1
        if ch == "]":
            depth -= 1
        if ch == "," and depth == 0:
            out.append(cur.strip())
            cur = ""
        else:
            cur += ch
    if cur.strip():
        out.append(cur.strip())
    return out


def regs_of(tok):
    tok = tok.strip()
    tok = tok.split()[0] if tok else tok
    tok = tok.lstrip("-")
    m = re.fullmatch(r"abs\((.*)\)", tok)
    if m:
        tok = m.group(1)
    m = re.fullmatch(r"\|(.*)\|", tok)
    if m:
        tok = m.group(1)
    m = re.fullmatch(r"([vsa])(\d+)", tok)
    if m:
        return {(m.group(1), int(m.group(2)))}
    m = re.fullmatch(r"([vsa])\[(\d+):(\d+)\]", tok)
    if m:
        return {(m.group(1), i) for i in range(int(m.group(2)), int(m.group(3)) + 1)}
    if tok == "vcc":
        return {("s", 106), ("s", 107)}
    if tok == "exec":
        return {("s", 126), ("s", 127)}
    return set()


class Ins:
    def __init__(self, text):
        self.text = text
        t = text.split(";")[0].strip()
        self.label = t.endswith(":")
        self.directive = t.startswith(".") or not t
        self.mn = t.split()[0] if t else ""
        rest = t[len(self.mn):].strip()
        ops = split_ops(rest) if rest else []
        self.ops = ops
        mn = self.mn
        self.w = set()
        self.r = set()
        self.kind = "other"
        self.states = 1
        self.dpp = bool(re.search(r"quad_perm|row_|wave_", t))
        self.srcC = set()
        if self.label or self.directive:
            self.states = 0
            return
        if mn == "s_nop":
            self.states = int(ops[0], 0) + 1
            self.kind = "salu"
            return
        R = [regs_of(o) for o in ops]
        if mn.startswith("v_mfma"):
            self.kind = "mfma"
            self.w = R[0]
            self.r = R[1] | R[2] | R[3]
            self.srcAB = R[1] | R[2]
            self.srcC = R[3]
        elif mn.startswith("v_"):
            self.kind = "valu"
            if "permlane" in mn and "swap" in mn:
                self.w = R[0] | R[1]
                self.r = R[0] | R[1]
            elif mn.startswith("v_cmp"):
                self.w = R[0]
                self.r = set().union(*R[1:])
            else:
                self.w = R[0]
                self.r = set().union(*R[1:]) if len(R) > 1 else set()
                if mn.startswith("v_fmac") or mn.startswith("v_dot2c") or self.dpp:
                    self.r |= R[0]
            self.trans = any(mn.startswith(x) for x in TRANS)
            if self.dpp:
                self.dppsrc = R[1]
        elif mn.startswith("buffer_") or mn.startswith("global_"):
            self.kind = "vmem"
            if "load" in mn:
                self.w = R[0]
                self.r = set().union(*R[1:])
            else:
                self.r = set().union(*R)
                self.data = R[0]
                if "atomic" in mn and "sc0" in t:
                    self.w = R[0]
            self.wide = ("store" in mn) and ("x4" in mn or "x3" in mn)
        elif mn.startswith("ds_"):
            self.kind = "ds"
            if "read" in mn or "permute" in mn or "swizzle" in mn:
                self.w = R[0]
                self.r = set().union(*R[1:])
            else:
                self.r = set().union(*R)
        elif mn.startswith("s_"):
            self.kind = "salu"
            if ops and not mn.startswith("s_cmp") and not mn.startswith("s_cbranch") and not mn.startswith("s_waitcnt"):
                self.w = R[0]
                self.r = set().union(*R[1:]) if len(R) > 1 else set()


def need(p, c):
    n = 0
    pv = {x for x in p.w if x[0] in "va"}
    ps = {x for x in p.w if x[0] == "s"}
    if p.kind == "valu":
        if c.kind == "mfma" and pv & c.r:
            n = max(n, 2)
        if c.kind == "valu":
            if c.dpp and pv & c.dppsrc:
                n = max(n, 2)
            if "permlane" in c.mn and pv & c.r:
                n = max(n, 2)
            if ("readlane" in c.mn or "readfirstlane" in c.mn) and pv & c.r:
                n = max(n, 1)
            if p.trans and pv & c.r:
                n = max(n, 1)
            if ps & c.r:
                n = max(n, 4 if ("readlane" in c.mn or "writelane" in c.mn) else 2)
        if c.kind in ("vmem", "ds") and p.trans and pv & c.r:
            n = max(n, 1)
        if c.kind == "vmem" and ps & c.r:
            n = max(n, 5)
        if c.kind == "salu" and ps & c.r:
            n = max(n, 1)
    if p.kind == "mfma":
        if c.kind == "mfma":
            if pv & c.srcAB:
                n = max(n, 8)
            if pv & c.srcC and c.srcC != pv:
                n = max(n, 6)
            if pv & c.w and c.srcC != pv:
                n = max(n, 8)
        elif c.kind in ("valu", "vmem", "ds"):
            if pv & (c.r | c.w):
                n = max(n, 8)
            if c.kind == "valu" and p.srcC & c.w:
                n = max(n, 3)
    if p.kind == "vmem" and getattr(p, "wide", False):
        if p.data & c.w:
            n = max(n, 2)
    return n


class Asm:
    def __init__(self):
        self.lines = []
        self.uid = 0

    def __call__(self, text):
        for t in text.split("\n"):
            if t.strip():
                self.lines.append(t.strip())

    def label(self, name):
        self.lines.append(name + ":")

    def newlabel(self, base):
        self.uid += 1
        return f"L_{base}_{self.uid}"

    def finish(self):
        out = []
        hist = []
        for t in self.lines:
            ins = Ins(t)
            if ins.label or ins.directive:
                out.append(t if ins.label or t.startswith(".") else t)
                continue
            req = 0
            dist = 0
            for p in reversed(hist):
                nn = need(p, ins)
                if nn > dist:
                    req = max(req, nn - dist)
                dist += p.states
                if dist >= 12:
                    break
            while req > 0:
                k = min(req, 16)
                nop = Ins(f"s_nop {k-1}")
                out.append("    " + nop.text)
                hist.append(nop)
                req -= k
            out.append("    " + t)
            hist.append(ins)
            if len(hist) > 16:
                hist = hist[-16:]
        return "\n".join(out) + "\n"
```

```python
import sys
sys.path.insert(0, "work")
from asmlib import Asm

NAME = "recurrent_scan__mha_block_cached__geglu_ffn__decode"

QP, GP, YP, OP, DP, ML, CNT = 0, 1024, 2048, 3072, 3584, 3968, 4032
L_XN, L_QV, L_PART, L_PML, L_VEC1, L_VEC0, L_TOTAL = 0, 4096, 4352, 6400, 6656, 7168, 8192

LOG2E = 0x3FB8AA3B
NLOG2E = 0xBFB8AA3B
SCALE = 0x3DB504F3

sX, sK, sV, sWQ, sWO, sBX, sWG, sWU, sWD, sOUT, sDBG, sWS = 4, 6, 8, 10, 12, 14, 16, 18, 20, 22, 24, 26
sH, sB, sS, sLW, sPID = 28, 29, 30, 31, 32
sL2E = 33
SRD_A, SRD_B, SRD_C, SRD_WS, SRD_D = 36, 40, 44, 48, 52
sT0, sT1, sT2, sT3, sT4, sT5 = 56, 57, 58, 59, 60, 61
sCNT = 62
sOFF = 63
sEX = 64
sIT = 66
sST = 70
vLANE, vJ, vG = 1, 2, 3
vMASK = 4
vT, vU, vW, vP, vM, vMN, vL, vKO, vVO, vA0, vA1, vA2 = 8, 9, 10, 11, 12, 13, 14, 15, 16, 17, 18, 19
vS, vACC, vPB0, vPB1, vQB = 20, 24, 28, 32, 36
vWIN = 52
TA, TB, TC = 52, 116, 180


def srd(a, d, ptr, nbytes):
    a(f"s_mov_b32 s{d}, s{ptr}")
    a(f"s_and_b32 s{d+1}, s{ptr+1}, 0xffff")
    if isinstance(nbytes, int):
        a(f"s_mov_b32 s{d+2}, {nbytes:#x}")
    else:
        a(f"s_mov_b32 s{d+2}, {nbytes}")
    a(f"s_mov_b32 s{d+3}, 0x20000")


def R(b, n=4):
    return f"v[{b}:{b+n-1}]"


def SR(b, n=4):
    return f"s[{b}:{b+n-1}]"


DPPM = "row_mask:0xf bank_mask:0xf"


def allreduce(a, regs, tmps, op="v_add_f32", quad=True):
    steps = []
    if quad:
        steps += ["quad_perm:[1,0,3,2]", "quad_perm:[2,3,0,1]"]
    steps += ["row_ror:4", "row_ror:8"]
    for st in steps:
        for r in regs:
            a(f"{op}_dpp v{r}, v{r}, v{r} {st} {DPPM}")
    for sw in ("v_permlane16_swap_b32", "v_permlane32_swap_b32"):
        for r, t in zip(regs, tmps):
            a(f"v_mov_b32 v{t}, v{r}")
        for r, t in zip(regs, tmps):
            a(f"{sw} v{r}, v{t}")
        for r, t in zip(regs, tmps):
            a(f"{op} v{r}, v{r}, v{t}")


def rne(a, regs):
    for r in regs:
        a(f"v_cvt_pk_bf16_f32 v{r}, v{r}, v{r}")
    for r in regs:
        a(f"v_and_b32 v{r}, 0xffff0000, v{r}")


def tile_gemv(a, tbase, vaddr_lds, lds_off, waits=None):
    for k in range(4):
        a(f"ds_read_b128 {R(vQB+4*k)}, v{vaddr_lds} offset:{lds_off+16*k}")
    a("s_waitcnt lgkmcnt(0)")

    def build(t):
        pb = vPB0 if t % 2 == 0 else vPB1
        for r in range(4):
            a(f"v_and_b32 v{pb+r}, v{vQB+t}, v{vMASK+r}")
    build(0)
    for t in range(16):
        if t + 1 < 16:
            build(t + 1)
        pb = vPB0 if t % 2 == 0 else vPB1
        if waits and t in waits:
            a(f"s_waitcnt vmcnt({waits[t]})")
        c = "0" if t == 0 else R(vACC)
        a(f"v_mfma_f32_16x16x32_bf16 {R(vACC)}, {R(tbase+4*t)}, {R(pb)}, {c}")


def sanitize(a, base, n=4):
    for r in range(n):
        a(f"v_min_u32 v{base+r}, -2, v{base+r}")


def poll(a, issue, regs, sleep=0, name="poll"):
    top = a.newlabel(name)
    done = a.newlabel(name + "d")
    a(f"s_mov_b32 s{sCNT}, 0x40000")
    a.label(top)
    issue()
    a("s_waitcnt vmcnt(0)")
    rs = list(regs)
    a(f"v_max_u32 v{vT}, v{rs[0]}, v{rs[1]}" if len(rs) > 1 else f"v_mov_b32 v{vT}, v{rs[0]}")
    rest = rs[2:]
    while rest:
        if len(rest) >= 2:
            a(f"v_max3_u32 v{vT}, v{vT}, v{rest[0]}, v{rest[1]}")
            rest = rest[2:]
        else:
            a(f"v_max_u32 v{vT}, v{vT}, v{rest[0]}")
            rest = rest[1:]
    a(f"v_cmp_eq_u32 vcc, -1, v{vT}")
    a(f"s_cbranch_vccz {done}")
    a(f"s_sub_u32 s{sCNT}, s{sCNT}, 1")
    a(f"s_cbranch_scc1 {done}")
    if sleep:
        a(f"s_sleep {sleep}")
    a(f"s_branch {top}")
    a.label(done)


def gen(NB=6, DD=2, STAMP=False, NSTAT=32):
    a = Asm()
    stamps = {"n": 0}

    def stamp(k):
        if STAMP:
            a(f"s_memrealtime s[{sST+2*k}:{sST+2*k+1}]")

    def stamp_flush(nst):
        if not STAMP:
            return
        a(f"s_memrealtime s[{sST+2}:{sST+3}]")
        a("s_waitcnt lgkmcnt(0)")
        a("s_mov_b64 exec, -1")
        srd(a, SRD_D, sWS, 0x4000000)
        a(f"s_mul_i32 s{sT0}, s2, 6")
        a(f"s_add_u32 s{sT0}, s{sT0}, s3")
        a(f"s_lshl_b32 s{sT1}, s{sT0}, 6")
        a(f"s_lshl_b32 s{sT0}, s{sT0}, 4")
        a(f"s_add_u32 s{sT0}, s{sT0}, 0x10000000")
        a(f"s_add_u32 s{sT1}, s{sT1}, 0x11000000")
        a(f"s_getreg_b32 s{sT2}, hwreg(HW_REG_XCC_ID)")
        a(f"s_and_b32 s{sT2}, s{sT2}, 15")
        a(f"s_lshl_b32 s{sT2}, s{sT2}, 28")
        a(f"s_or_b32 s{sT2}, s{sST+1}, s{sT2}")
        a(f"v_mov_b32 v20, s{sST}")
        a(f"v_mov_b32 v21, s{sT2}")
        a(f"v_mov_b32 v22, s{sST+2}")
        a(f"v_mov_b32 v23, s{sST+3}")
        a("v_mov_b32 v17, 0")
        for k in range(8):
            a(f"v_mov_b32 v{24+k}, s{sST+2*k}")
        a(f"v_cmp_eq_u32 vcc, 0, v{vLANE}")
        a(f"s_and_saveexec_b64 s[{sEX}:{sEX+1}], vcc")
        a(f"buffer_store_dwordx4 v[20:23], v17, {SR(SRD_D)}, s{sT0} offen")
        a(f"buffer_store_dwordx4 v[24:27], v17, {SR(SRD_D)}, s{sT1} offen")
        a(f"buffer_store_dwordx4 v[28:31], v17, {SR(SRD_D)}, s{sT1} offen offset:16")

    a.label(f"{NAME}_kernel")
    a("s_cmp_ge_u32 s2, 256")
    a("s_cbranch_scc1 L_end")
    if STAMP:
        for k in range(8):
            a(f"s_mov_b64 s[{sST+2*k}:{sST+2*k+1}], 0")
    stamp(0)
    a("s_load_dwordx16 s[4:19], s[0:1], 0")
    a("s_load_dwordx8 s[20:27], s[0:1], 64")
    a("v_lshrrev_b32 v2, 6, v0")
    a(f"v_and_b32 v{vLANE}, 63, v0")
    a("v_readfirstlane_b32 s3, v2")
    a(f"v_and_b32 v{vJ}, 15, v{vLANE}")
    a(f"v_lshrrev_b32 v{vG}, 4, v{vLANE}")
    a(f"s_lshr_b32 s{sH}, s2, 3")
    a(f"s_and_b32 s{sT0}, s2, 7")
    a(f"s_bcnt1_i32_b32 s{sB}, s{sT0}")
    a(f"s_and_b32 s{sB}, s{sB}, 1")
    a(f"s_lshr_b32 s{sS}, s{sT0}, 1")
    a(f"s_lshl_b32 s{sPID}, s{sB}, 2")
    a(f"s_add_u32 s{sPID}, s{sPID}, s{sS}")
    a(f"s_lshl_b32 s{sLW}, s{sH}, 3")
    a(f"s_add_u32 s{sLW}, s{sLW}, s{sPID}")
    a(f"s_mov_b32 s{sL2E}, {LOG2E:#x}")

    def masks():
        a(f"v_and_b32 v{vT}, 1, v{vLANE}")
        a(f"v_lshlrev_b32 v{vT}, 4, v{vT}")
        a(f"v_mov_b32 v{vU}, 0xffff")
        a(f"v_lshlrev_b32 v{vU}, v{vT}, v{vU}")
        a(f"v_bfe_u32 v{vT}, v{vLANE}, 1, 2")
        for r in range(4):
            a(f"v_cmp_eq_u32 vcc, {r}, v{vT}")
            a(f"v_cndmask_b32 v{vMASK+r}, 0, v{vU}, vcc")

    a("s_cmp_eq_u32 s3, 0")
    a("s_cbranch_scc1 L_A0")
    a("s_cmp_eq_u32 s3, 1")
    a("s_cbranch_scc1 L_A1")

    a(f"v_and_b32 v{vT}, 3, v{vLANE}")
    a(f"v_lshlrev_b32 v{vKO}, 4, v{vT}")
    a(f"v_bfe_u32 v{vT}, v{vLANE}, 2, 2")
    a(f"v_lshl_add_u32 v{vKO}, v{vT}, 8, v{vKO}")
    a(f"v_lshl_add_u32 v{vKO}, v{vG}, 6, v{vKO}")
    a(f"v_lshlrev_b32 v{vVO}, 4, v{vLANE}")
    a(f"s_lshl_b32 s{sT0}, s{sB}, 5")
    a(f"s_add_u32 s{sT0}, s{sT0}, s{sH}")
    a(f"s_lshl_b32 s{sOFF}, s{sT0}, 21")
    a(f"s_lshl_b32 s{sT0}, s{sS}, 2")
    a(f"s_add_u32 s{sT0}, s{sT0}, s3")
    a(f"s_sub_u32 s{sT0}, s{sT0}, 2")
    a(f"s_lshl_b32 s{sT0}, s{sT0}, 12")
    a(f"s_add_u32 s{sOFF}, s{sOFF}, s{sT0}")
    a("s_waitcnt lgkmcnt(0)")
    srd(a, SRD_A, sK, 0x8000000)
    srd(a, SRD_B, sV, 0x8000000)

    fifo = []

    def kreg(slot, m):
        return vWIN + 32 * slot + 4 * m

    def vreg(slot, m):
        return vWIN + 32 * slot + 16 + 4 * m

    def issueK(slot):
        for m in range(4):
            a(f"buffer_load_dwordx4 {R(kreg(slot, m))}, v{vKO}, {SR(SRD_A)}, s{sOFF} offen offset:{1024*m} nt")
            fifo.append(("K", slot))

    def issueV(slot):
        for m in range(4):
            a(f"buffer_load_dwordx4 {R(vreg(slot, m))}, v{vVO}, {SR(SRD_B)}, s{sOFF} offen offset:{1024*m} nt")
            fifo.append(("V", slot))
        a(f"s_add_u32 s{sOFF}, s{sOFF}, 0x10000")

    def waitfor(tag):
        last = max(i for i, t in enumerate(fifo) if t == tag)
        n = len(fifo) - 1 - last
        a(f"s_waitcnt vmcnt({n})")
        del fifo[:last + 1]

    slow_paths = []

    def process(slot, refill):
        waitfor(("K", slot))
        for m in range(4):
            c = "0" if m == 0 else R(vS)
            a(f"v_mfma_f32_16x16x32_bf16 {R(vS)}, {R(kreg(slot, m))}, {R(vQB+4*m)}, {c}")
        if refill:
            issueK(slot)
        a(f"v_mov_b32_dpp v{vT}, v{vS} quad_perm:[0,0,0,0] {DPPM}")
        for e in range(1, 4):
            a(f"v_add_f32_dpp v{vT}, v{vS+e}, v{vT} quad_perm:[{e},{e},{e},{e}] {DPPM}")
        rne(a, [vT])
        a(f"v_mul_f32 v{vT}, {SCALE:#x}, v{vT}")
        rne(a, [vT])
        a(f"v_cmp_gt_f32 vcc, v{vT}, v{vM}")
        slow = a.newlabel("slow")
        back = a.newlabel("back")
        slow_paths.append((slow, back))
        a(f"s_cbranch_vccnz {slow}")
        a.label(back)
        a(f"v_fma_f32 v{vT}, v{vT}, s{sL2E}, v{vMN}")
        a(f"v_exp_f32 v{vT}, v{vT}")
        a(f"v_add_f32 v{vL}, v{vL}, v{vT}")
        a(f"v_cvt_pk_bf16_f32 v{vP}, v{vT}, v{vT}")
        waitfor(("V", slot))

        def build(m):
            pb = vPB0 if m % 2 == 0 else vPB1
            for r in range(4):
                a(f"v_and_b32_dpp v{pb+r}, v{vP}, v{vMASK+r} row_newbcast:{4*m} {DPPM}")
        build(0)
        for m in range(4):
            if m + 1 < 4:
                build(m + 1)
            pb = vPB0 if m % 2 == 0 else vPB1
            a(f"v_mfma_f32_16x16x32_bf16 {R(vACC)}, {R(vreg(slot, m))}, {R(pb)}, {R(vACC)}")
        if refill:
            issueV(slot)

    for n in range(NB):
        issueK(n)
        issueV(n)
    masks()
    for r in range(4):
        a(f"v_mov_b32 v{vACC+r}, 0")
    a(f"v_mov_b32 v{vL}, 0")
    a(f"v_mov_b32 v{vM}, 0xff800000")
    a(f"v_mov_b32 v{vMN}, 0")
    a(f"v_and_b32 v{vT}, 3, v{vJ}")
    a(f"v_lshl_add_u32 v{vT}, v{vG}, 2, v{vT}")
    a(f"v_lshlrev_b32 v{vA0}, 4, v{vT}")
    a(f"v_lshrrev_b32 v{vA1}, 2, v{vJ}")
    a("s_barrier")
    stamp(2)
    a(f"ds_read_b128 {R(vS)}, v{vA0} offset:{L_QV}")
    a("s_waitcnt lgkmcnt(0)")
    for m in range(4):
        a(f"v_cmp_eq_u32 vcc, {m}, v{vA1}")
        for r in range(4):
            a(f"v_cndmask_b32 v{vQB+4*m+r}, 0, v{vS+r}, vcc")
    for k in range(NB):
        process(k, refill=(k < DD))
    niter = (NSTAT - NB - DD) // DD
    assert niter * DD == NSTAT - NB - DD
    a(f"s_mov_b32 s{sIT}, {niter}")
    state0 = list(fifo)
    a.label("L_loop")
    for k in range(DD):
        process(k, refill=True)
    assert fifo == state0, (fifo, state0)
    a(f"s_sub_u32 s{sIT}, s{sIT}, 1")
    a(f"s_cmp_lg_u32 s{sIT}, 0")
    a("s_cbranch_scc1 L_loop")
    for k in range(DD):
        process(k, refill=False)
    stamp(3)
    allreduce(a, [vL], [vW], quad=False)
    a(f"v_lshlrev_b32 v{vA0}, 3, v{vG}")
    a(f"v_add_u32 v{vA0}, v{vA0}, v{vJ}")
    a(f"v_lshlrev_b32 v{vA0}, 4, v{vA0}")
    a(f"s_sub_u32 s{sT0}, s3, 2")
    a(f"s_lshl_b32 s{sT1}, s{sT0}, 9")
    a(f"v_add_u32 v{vA0}, s{sT1}, v{vA0}")
    a(f"s_lshl_b32 s{sT1}, s{sT0}, 3")
    a(f"v_mov_b32 v{vA1}, s{sT1}")
    a(f"v_mov_b32 v{vMN}, v{vL}")
    a(f"v_cmp_gt_u32 vcc, 8, v{vJ}")
    a(f"s_and_saveexec_b64 s[{sEX}:{sEX+1}], vcc")
    a(f"ds_write_b128 v{vA0}, {R(vACC)} offset:{L_PART}")
    a(f"ds_write_b64 v{vA1}, v[{vM}:{vMN}] offset:{L_PML}")
    a("s_waitcnt lgkmcnt(0)")
    a("s_barrier")
    stamp_flush(4)
    a("s_endpgm")
    for slow, back in slow_paths:
        a.label(slow)
        a("s_nop 1")
        a(f"v_max_f32_dpp v{vU}, v{vT}, v{vT} row_ror:4 {DPPM}")
        a(f"v_max_f32_dpp v{vU}, v{vU}, v{vU} row_ror:8 {DPPM}")
        a(f"v_mov_b32 v{vW}, v{vU}")
        a(f"v_permlane16_swap_b32 v{vU}, v{vW}")
        a(f"v_max_f32 v{vU}, v{vU}, v{vW}")
        a(f"v_mov_b32 v{vW}, v{vU}")
        a(f"v_permlane32_swap_b32 v{vU}, v{vW}")
        a(f"v_max3_f32 v{vU}, v{vU}, v{vW}, v{vM}")
        a(f"v_sub_f32 v{vW}, v{vM}, v{vU}")
        a(f"v_mul_f32 v{vW}, s{sL2E}, v{vW}")
        a(f"v_exp_f32 v{vW}, v{vW}")
        a(f"v_mov_b32 v{vM}, v{vU}")
        a(f"v_mul_f32 v{vMN}, {NLOG2E:#x}, v{vU}")
        for r in range(4):
            a(f"v_mul_f32 v{vACC+r}, v{vACC+r}, v{vW}")
        a(f"v_mul_f32 v{vL}, v{vL}, v{vW}")
        a(f"s_branch {back}")

    a.label("L_A0")
    a("s_setprio 3")
    a(f"v_lshlrev_b32 v{vVO}, 4, v{vLANE}")
    for r in range(4):
        a(f"v_mov_b32 v{vS+r}, -1")
    a(f"s_lshl_b32 s{sOFF}, s{sLW}, 12")
    a(f"v_lshlrev_b32 v{vA0}, 17, v{vG}")
    a(f"v_lshl_add_u32 v{vA0}, v{vJ}, 4, v{vA0}")
    a(f"s_lshl_b32 s{sT0}, s{sPID}, 19")
    a(f"s_lshl_b32 s{sT1}, s{sH}, 8")
    a(f"s_add_u32 s{sT0}, s{sT0}, s{sT1}")
    a("s_waitcnt lgkmcnt(0)")
    srd(a, SRD_WS, sWS, 0x100000)
    for k in range(4):
        a(f"buffer_store_dwordx4 {R(vS)}, v{vVO}, {SR(SRD_WS)}, s{sOFF} offen offset:{1024*k} sc1")
    srd(a, SRD_A, sX, 2048)
    a(f"buffer_load_dwordx4 {R(vPB0)}, v{vVO}, {SR(SRD_A)}, 0 offen")
    a(f"buffer_load_dwordx4 {R(vPB1)}, v{vVO}, {SR(SRD_A)}, 0 offen offset:1024")
    srd(a, SRD_B, sWQ, 0x400000)
    for t in range(16):
        a(f"buffer_load_dwordx4 {R(TA+4*t)}, v{vA0}, {SR(SRD_B)}, s{sT0} offen nt")
        if t < 15:
            a(f"s_add_u32 s{sT0}, s{sT0}, 8192")
    srd(a, SRD_D, sDBG, 256)
    a(f"v_mov_b32 v{vA1}, s{sLW}")
    a(f"v_mov_b32 v{vA2}, 1")
    masks()
    a(f"v_cmp_eq_u32 vcc, 0, v{vLANE}")
    a(f"s_and_saveexec_b64 s[{sEX}:{sEX+1}], vcc")
    a("s_waitcnt vmcnt(18)")
    a(f"buffer_store_byte v{vA2}, v{vA1}, {SR(SRD_D)}, 0 offen sc1")
    a("s_mov_b64 exec, -1")
    a("s_waitcnt vmcnt(17)")
    stamp(2)
    X = [TB + i for i in range(16)]
    for bb, src in ((0, vPB0), (1, vPB1)):
        for k in range(4):
            a(f"v_lshlrev_b32 v{X[bb*8+2*k]}, 16, v{src+k}")
            a(f"v_and_b32 v{X[bb*8+2*k+1]}, 0xffff0000, v{src+k}")
    S0, S1, Tm0, Tm1 = TB + 16, TB + 17, TB + 18, TB + 19
    Dv = [TB + 20 + i for i in range(16)]
    for bb, s in ((0, S0), (1, S1)):
        a(f"v_add_f32 v{s}, v{X[bb*8]}, v{X[bb*8+1]}")
    for k in range(2, 8):
        for bb, s in ((0, S0), (1, S1)):
            a(f"v_add_f32 v{s}, v{s}, v{X[bb*8+k]}")
    allreduce(a, [S0, S1], [Tm0, Tm1])
    a(f"v_mul_f32 v{S0}, 0x3b000000, v{S0}")
    a(f"v_mul_f32 v{S1}, 0x3b000000, v{S1}")
    V0, V1 = TB + 36, TB + 37
    for bb, s in ((0, S0), (1, S1)):
        for k in range(8):
            a(f"v_sub_f32 v{Dv[bb*8+k]}, v{X[bb*8+k]}, v{s}")
    for bb, v in ((0, V0), (1, V1)):
        a(f"v_mul_f32 v{v}, v{Dv[bb*8]}, v{Dv[bb*8]}")
    for k in range(1, 8):
        for bb, v in ((0, V0), (1, V1)):
            a(f"v_fmac_f32 v{v}, v{Dv[bb*8+k]}, v{Dv[bb*8+k]}")
    allreduce(a, [V0, V1], [Tm0, Tm1])
    a(f"v_mul_f32 v{V0}, 0x3b000000, v{V0}")
    a(f"v_mul_f32 v{V1}, 0x3b000000, v{V1}")
    rne(a, [S0, S1, V0, V1])
    a(f"v_add_f32 v{V0}, 0x3727c5ac, v{V0}")
    a(f"v_add_f32 v{V1}, 0x3727c5ac, v{V1}")
    rne(a, [V0, V1])
    a(f"v_sqrt_f32 v{V0}, v{V0}")
    a(f"v_sqrt_f32 v{V1}, v{V1}")
    rne(a, [V0, V1])
    a(f"v_rcp_f32 v{V0}, v{V0}")
    a(f"v_rcp_f32 v{V1}, v{V1}")
    for bb, s in ((0, S0), (1, S1)):
        for k in range(8):
            a(f"v_sub_f32 v{Dv[bb*8+k]}, v{X[bb*8+k]}, v{s}")
    rne(a, Dv)
    for bb, v in ((0, V0), (1, V1)):
        for k in range(8):
            a(f"v_mul_f32 v{Dv[bb*8+k]}, v{Dv[bb*8+k]}, v{v}")
    for d in Dv:
        a(f"v_cvt_pk_bf16_f32 v{d}, v{d}, v{d}")
    a(f"v_lshlrev_b32 v{vA1}, 5, v{vLANE}")
    for bb in range(2):
        for k in range(2):
            a(f"ds_write_b128 v{vA1}, {R(Dv[bb*8+4*k])} offset:{L_XN + bb*2048 + 16*k}")
    a(f"v_lshrrev_b32 v{vT}, 3, v{vJ}")
    a(f"v_lshlrev_b32 v{vKO}, 11, v{vT}")
    a(f"v_lshl_add_u32 v{vKO}, v{vG}, 6, v{vKO}")
    a(f"s_lshl_b32 s{sT0}, s{sPID}, 8")
    a(f"v_add_u32 v{vA1}, s{sT0}, v{vKO}")
    a("s_waitcnt lgkmcnt(0)")
    tile_gemv(a, TA, vA1, L_XN, waits={0: 13, 4: 9, 8: 5, 12: 1})
    sanitize(a, vACC)
    a(f"buffer_store_dwordx4 {R(vACC)}, v{vVO}, {SR(SRD_WS)}, s{sOFF} offen offset:{QP} sc1")
    stamp(3)
    a(f"s_cmp_ge_u32 s{sLW}, 88")
    a(f"s_cselect_b32 s{sT0}, 88, 0")
    a(f"s_cselect_b32 s{SRD_B}, s{sWU}, s{sWG}")
    a(f"s_cselect_b32 s{SRD_B+1}, s{sWU+1}, s{sWG+1}")
    a(f"s_and_b32 s{SRD_B+1}, s{SRD_B+1}, 0xffff")
    a(f"s_sub_u32 s{sT0}, s{sLW}, s{sT0}")
    a(f"s_cmp_lt_u32 s{sLW}, 176")
    a(f"s_cselect_b32 s{SRD_B+2}, {512*2752}, 0")
    a(f"s_mov_b32 s{SRD_B+3}, 0x20000")
    a(f"s_lshr_b32 s{sT1}, s{sT0}, 3")
    a(f"s_and_b32 s{sT2}, s{sT0}, 7")
    a(f"s_mul_i32 s{sT3}, s{sT2}, {64*2752}")
    a(f"s_lshl_b32 s{sT4}, s{sT1}, 8")
    a(f"s_add_u32 s{sT3}, s{sT3}, s{sT4}")
    a(f"v_mul_u32_u24 v{vA0}, {16*2752}, v{vG}")
    a(f"v_lshl_add_u32 v{vA0}, v{vJ}, 4, v{vA0}")
    a(f"s_lshl_b32 s{sT4}, s{sT1}, 4")
    a(f"v_add_u32 v{vT}, s{sT4}, v{vJ}")
    a(f"v_cmp_gt_u32 vcc, 172, v{vT}")
    a(f"v_mov_b32 v{vU}, 0x40000000")
    a(f"v_cndmask_b32 v{vA0}, v{vU}, v{vA0}, vcc")
    for t in range(16):
        a(f"buffer_load_dwordx4 {R(TB+4*t)}, v{vA0}, {SR(SRD_B)}, s{sT3} offen nt")
        if t < 15:
            a(f"s_add_u32 s{sT3}, s{sT3}, 2752")
    srd(a, SRD_C, sWD, 1376 * 1024)
    a(f"s_cmp_ge_u32 s{sLW}, 168")
    a(f"s_cselect_b32 s{SRD_C+2}, {1376*1024}, 0")
    a(f"s_sub_u32 s{sT0}, s{sLW}, 168")
    a(f"s_and_b32 s{sT0}, s{sT0}, 0xff")
    a(f"s_lshr_b32 s{sT4}, s{sT0}, 2")
    a(f"s_and_b32 s{sT5}, s{sT0}, 3")
    a(f"s_lshl_b32 s{sT3}, s{sT4}, 16")
    a(f"s_lshl_b32 s{sT0}, s{sT5}, 8")
    a(f"s_add_u32 s{sT3}, s{sT3}, s{sT0}")
    a(f"v_lshlrev_b32 v{vA0}, 14, v{vG}")
    a(f"v_lshl_add_u32 v{vA0}, v{vJ}, 4, v{vA0}")
    for t in range(16):
        if t % 4 == 0 and t:
            a(f"s_add_u32 s{sT3}, s{sT3}, 4096")
        a(f"buffer_load_dwordx4 {R(TC+4*t)}, v{vA0}, {SR(SRD_C)}, s{sT3} offen offset:{1024*(t%4)} nt")
    a("s_barrier")
    a("s_setprio 0")
    a(f"s_cmp_ge_u32 s{sLW}, 176")
    a("s_cbranch_scc1 L_A0_noffn1")
    a(f"s_lshl_b32 s{sT0}, s{sT2}, 8")
    a(f"v_add_u32 v{vA1}, s{sT0}, v{vKO}")
    tile_gemv(a, TB, vA1, L_XN, waits={0: 16})
    sanitize(a, vACC)
    a(f"buffer_store_dwordx4 {R(vACC)}, v{vVO}, {SR(SRD_WS)}, s{sOFF} offen offset:{GP} sc1")
    a.label("L_A0_noffn1")
    a(f"s_cmp_lt_u32 s{sLW}, 168")
    a("s_cbranch_scc1 L_A0_noffn2")
    a(f"v_lshrrev_b32 v{vT}, 5, v{vLANE}")
    a(f"v_mul_u32_u24 v{vA0}, {88*4096}, v{vT}")
    a(f"v_and_b32 v{vT}, 31, v{vLANE}")
    a(f"v_lshl_add_u32 v{vA0}, v{vT}, 4, v{vA0}")
    a(f"s_lshr_b32 s{sT0}, s{sT4}, 1")
    a(f"s_lshl_b32 s{sT0}, s{sT0}, 15")
    a(f"s_and_b32 s{sT1}, s{sT4}, 1")
    a(f"s_lshl_b32 s{sT1}, s{sT1}, 9")
    a(f"s_add_u32 s{sT0}, s{sT0}, s{sT1}")

    def issue_gp():
        a(f"s_mov_b32 s{sT1}, s{sT0}")
        for t in range(8):
            a(f"buffer_load_dwordx4 {R(TA+4*t)}, v{vA0}, {SR(SRD_WS)}, s{sT1} offen offset:{GP} sc1")
            if t < 7:
                a(f"s_add_u32 s{sT1}, s{sT1}, 4096")
    poll(a, issue_gp, range(TA, TA + 32), sleep=16, name="gp")
    for t in range(1, 8):
        for r in range(4):
            a(f"v_add_f32 v{TA+r}, v{TA+r}, v{TA+4*t+r}")
    G = [TA + r for r in range(4)]
    Uu = [TA + 4 + r for r in range(4)]
    E = [TA + 8 + r for r in range(4)]
    rne(a, G)
    for r in range(4):
        a(f"v_mov_b32 v{Uu[r]}, v{G[r]}")
    for r in range(4):
        a(f"v_permlane32_swap_b32 v{G[r]}, v{Uu[r]}")
    a(f"s_mov_b32 s{sT0}, 0xbdd2d3e8")
    a(f"v_mov_b32 v{vU}, 0xc0135761")
    for r in range(4):
        a(f"v_mul_f32 v{E[r]}, v{G[r]}, v{G[r]}")
    for r in range(4):
        a(f"v_fma_f32 v{E[r]}, v{E[r]}, s{sT0}, v{vU}")
    for r in range(4):
        a(f"v_mul_f32 v{E[r]}, v{E[r]}, v{G[r]}")
    for r in range(4):
        a(f"v_exp_f32 v{E[r]}, v{E[r]}")
    for r in range(4):
        a(f"v_add_f32 v{E[r]}, 1.0, v{E[r]}")
    for r in range(4):
        a(f"v_rcp_f32 v{E[r]}, v{E[r]}")
    for r in range(4):
        a(f"v_mul_f32 v{G[r]}, v{G[r]}, v{E[r]}")
    rne(a, G)
    for r in range(4):
        a(f"v_mul_f32 v{G[r]}, v{G[r]}, v{Uu[r]}")
    for r in range(4):
        a(f"v_cvt_pk_bf16_f32 v{G[r]}, v{G[r]}, v{G[r]}")
    a(f"v_lshrrev_b32 v{vT}, 3, v{vJ}")
    a(f"v_lshlrev_b32 v{vA0}, 8, v{vT}")
    a(f"v_and_b32 v{vT}, 1, v{vG}")
    a(f"v_lshl_add_u32 v{vA0}, v{vT}, 7, v{vA0}")
    a(f"v_and_b32 v{vT}, 7, v{vJ}")
    a(f"v_lshl_add_u32 v{vA0}, v{vT}, 2, v{vA0}")
    for r in range(4):
        a(f"ds_write_b32 v{vA0}, v{G[r]} offset:{L_VEC0 + 32*r}")
    a(f"v_lshrrev_b32 v{vT}, 3, v{vJ}")
    a(f"v_lshlrev_b32 v{vA1}, 8, v{vT}")
    a(f"v_lshl_add_u32 v{vA1}, v{vG}, 6, v{vA1}")
    a("s_waitcnt lgkmcnt(0)")
    tile_gemv(a, TC, vA1, L_VEC0)
    sanitize(a, vACC)
    a(f"v_lshlrev_b32 v{vA0}, 12, v{vLANE}")
    a(f"s_lshl_b32 s{sT0}, s{sT5}, 18")
    a(f"s_lshl_b32 s{sT1}, s{sT4}, 4")
    a(f"s_add_u32 s{sT0}, s{sT0}, s{sT1}")
    a(f"buffer_store_dwordx4 {R(vACC)}, v{vA0}, {SR(SRD_WS)}, s{sT0} offen offset:{DP} sc1")
    a.label("L_A0_noffn2")
    a(f"s_lshr_b32 s{sT0}, s{sLW}, 6")
    a(f"s_lshl_b32 s{sT0}, s{sT0}, 7")
    a(f"s_bfe_u32 s{sT1}, s{sLW}, 0x20004")
    a(f"s_lshl_b32 s{sT1}, s{sT1}, 5")
    a(f"s_add_u32 s{sT0}, s{sT0}, s{sT1}")
    a(f"s_bfe_u32 s{sT1}, s{sLW}, 0x10003")
    a(f"s_lshl_b32 s{sT1}, s{sT1}, 9")
    a(f"s_add_u32 s{sT0}, s{sT0}, s{sT1}")
    a(f"s_and_b32 s{sT1}, s{sLW}, 7")
    a(f"s_add_u32 s{sT0}, s{sT0}, s{sT1}")
    a(f"v_and_b32 v{vT}, 3, v{vLANE}")
    a(f"v_lshlrev_b32 v{vT}, 3, v{vT}")
    a(f"v_add_u32 v{vT}, s{sT0}, v{vT}")
    a(f"v_lshlrev_b32 v{vA2}, 1, v{vT}")
    a(f"buffer_load_ushort v{vP}, v{vA2}, {SR(SRD_A)}, 0 offen")
    for r in range(4):
        a(f"v_mov_b32 v{TA+r}, 0")
    a(f"v_cmp_gt_u32 vcc, 22, v{vLANE}")
    a(f"s_and_saveexec_b64 s[{sEX}:{sEX+1}], vcc")

    def issue_dp():
        a(f"buffer_load_dwordx4 {R(TA)}, v{vVO}, {SR(SRD_WS)}, s{sOFF} offen offset:{DP} sc1")
    poll(a, issue_dp, range(TA, TA + 4), sleep=16, name="dp")
    a("s_mov_b64 exec, -1")

    def reduce_select(dst):
        allreduce(a, [TA + r for r in range(4)], [TA + 4 + r for r in range(4)])
        a(f"v_and_b32 v{vT}, 3, v{vLANE}")
        a(f"v_mov_b32 v{dst}, v{TA}")
        for r in range(1, 4):
            a(f"v_cmp_eq_u32 vcc, {r}, v{vT}")
            a(f"v_cndmask_b32 v{dst}, v{dst}, v{TA+r}, vcc")
    reduce_select(vM)
    rne(a, [vM])
    a(f"v_mul_f32 v{vU}, {NLOG2E:#x}, v{vM}")
    a(f"v_exp_f32 v{vU}, v{vU}")
    a(f"v_add_f32 v{vU}, 1.0, v{vU}")
    a(f"v_rcp_f32 v{vU}, v{vU}")
    a(f"v_mul_f32 v{vM}, v{vM}, v{vU}")
    rne(a, [vM])
    a(f"v_lshlrev_b32 v{vP}, 16, v{vP}")
    srd(a, SRD_B, sOUT, 2048)
    stamp(4)
    a("s_setprio 3")
    a("s_barrier")
    stamp(5)

    def issue_yp():
        a(f"buffer_load_dwordx4 {R(TA)}, v{vVO}, {SR(SRD_WS)}, s{sOFF} offen offset:{YP} sc1")
    poll(a, issue_yp, range(TA, TA + 4), sleep=0, name="yp")
    stamp(6)
    reduce_select(vL)
    rne(a, [vL])
    a(f"v_mul_f32 v{vL}, v{vL}, v{vM}")
    rne(a, [vL])
    a(f"v_add_f32 v{vL}, v{vL}, v{vP}")
    a(f"v_cvt_pk_bf16_f32 v{vL}, v{vL}, v{vL}")
    a(f"v_cmp_gt_u32 vcc, 4, v{vLANE}")
    a(f"s_and_saveexec_b64 s[{sEX}:{sEX+1}], vcc")
    a(f"buffer_store_short v{vL}, v{vA2}, {SR(SRD_B)}, 0 offen")
    stamp_flush(7)
    a("s_endpgm")

    a.label("L_A1")
    a("s_setprio 3")
    a(f"v_lshlrev_b32 v{vVO}, 2, v{vLANE}")
    a(f"s_lshl_b32 s{sOFF}, s{sLW}, 12")
    a(f"v_lshlrev_b32 v{vA0}, 14, v{vG}")
    a(f"v_lshl_add_u32 v{vA0}, v{vJ}, 4, v{vA0}")
    a(f"s_lshl_b32 s{sT0}, s{sH}, 17")
    a(f"s_lshl_b32 s{sT1}, s{sB}, 16")
    a(f"s_add_u32 s{sT0}, s{sT0}, s{sT1}")
    a(f"s_lshl_b32 s{sT1}, s{sS}, 8")
    a(f"s_add_u32 s{sT0}, s{sT0}, s{sT1}")
    a("s_waitcnt lgkmcnt(0)")
    srd(a, SRD_WS, sWS, 0x100000)
    srd(a, SRD_D, sDBG, 256)
    srd(a, SRD_B, sWO, 0x400000)
    for t in range(16):
        if t % 4 == 0 and t:
            a(f"s_add_u32 s{sT0}, s{sT0}, 4096")
        a(f"buffer_load_dwordx4 {R(TA+4*t)}, v{vA0}, {SR(SRD_B)}, s{sT0} offen offset:{1024*(t%4)} nt")
    masks()
    a(f"v_lshrrev_b32 v{vT}, 5, v{vLANE}")
    a(f"v_lshlrev_b32 v{vA1}, 12, v{vT}")
    a(f"v_bfe_u32 v{vT}, v{vLANE}, 3, 2")
    a(f"v_lshl_add_u32 v{vA1}, v{vT}, 8, v{vA1}")
    a(f"v_lshlrev_b32 v{vA2}, 6, v{vT}")
    a(f"v_and_b32 v{vT}, 7, v{vLANE}")
    a(f"v_lshl_add_u32 v{vA1}, v{vT}, 4, v{vA1}")
    a(f"v_lshl_add_u32 v{vA2}, v{vT}, 1, v{vA2}")
    a(f"s_lshl_b32 s{sT0}, s{sH}, 15")
    a(f"s_lshl_b32 s{sT1}, s{sB}, 7")
    a(f"s_add_u32 s{sT0}, s{sT0}, s{sT1}")
    ftop = a.newlabel("flag")
    fdone = a.newlabel("flagd")
    a(f"s_mov_b32 s{sCNT}, 0x40000")
    a(f"s_mov_b32 s{sT2}, 0x01010101")
    a.label(ftop)
    a(f"buffer_load_dword v{vT}, v{vVO}, {SR(SRD_D)}, 0 offen sc1")
    a("s_waitcnt vmcnt(0)")
    a(f"v_cmp_ne_u32 vcc, s{sT2}, v{vT}")
    a(f"s_cbranch_vccz {fdone}")
    a(f"s_sub_u32 s{sCNT}, s{sCNT}, 1")
    a(f"s_cbranch_scc1 {fdone}")
    a("s_sleep 2")
    a(f"s_branch {ftop}")
    a.label(fdone)
    stamp(2)

    def issue_qp():
        a(f"s_mov_b32 s{sT1}, s{sT0}")
        for t in range(4):
            a(f"buffer_load_dwordx4 {R(TB+4*t)}, v{vA1}, {SR(SRD_WS)}, s{sT1} offen offset:{QP} sc1")
            if t < 3:
                a(f"s_add_u32 s{sT1}, s{sT1}, 8192")
    poll(a, issue_qp, range(TB, TB + 16), sleep=1, name="qp")
    stamp(3)
    for t in range(1, 4):
        for r in range(4):
            a(f"v_add_f32 v{TB+r}, v{TB+r}, v{TB+4*t+r}")
    for r in range(4):
        a(f"v_mov_b32 v{TB+4+r}, v{TB+r}")
    for r in range(4):
        a(f"v_permlane32_swap_b32 v{TB+r}, v{TB+4+r}")
    for r in range(4):
        a(f"v_add_f32 v{TB+r}, v{TB+r}, v{TB+4+r}")
    for r in range(4):
        a(f"v_cvt_pk_bf16_f32 v{TB+r}, v{TB+r}, v{TB+r}")
    for r in range(4):
        a(f"ds_write_b16 v{vA2}, v{TB+r} offset:{L_QV + 16*r}")
    a("s_waitcnt lgkmcnt(0)")
    a("s_barrier")
    a(f"v_and_b32 v{vT}, 31, v{vLANE}")
    a(f"v_lshlrev_b32 v{vVO}, 4, v{vT}")
    a(f"v_mov_b32 v{vKO}, 0")
    a(f"v_add_u32 v{vA0}, {OP}, v{vVO}")
    a(f"v_mov_b32 v{vU}, {ML}")
    a(f"v_cmp_gt_u32 vcc, 32, v{vLANE}")
    a(f"s_mov_b64 s[{sEX}:{sEX+1}], vcc")
    a(f"v_cndmask_b32 v{vA0}, v{vU}, v{vA0}, vcc")
    a(f"s_lshl_b32 s{sT1}, s{sB}, 8")
    a(f"s_add_u32 s{sT1}, s{sT1}, {OP}")
    a(f"v_lshlrev_b32 v{vA1}, 4, v{vJ}")
    a(f"v_add_u32 v{vA1}, s{sT1}, v{vA1}")
    a(f"v_cndmask_b32 v{vA1}, v{vU}, v{vA1}, vcc")
    a(f"v_and_b32 v{vT}, 1, v{vG}")
    a(f"v_lshl_add_u32 v{vA1}, v{vT}, 14, v{vA1}")
    a(f"v_lshlrev_b32 v{vA2}, 8, v{vT}")
    a(f"v_bfe_u32 v{vT}, v{vLANE}, 3, 1")
    a(f"v_lshl_add_u32 v{vA2}, v{vT}, 7, v{vA2}")
    a(f"v_and_b32 v{vT}, 7, v{vLANE}")
    a(f"v_lshl_add_u32 v{vA2}, v{vT}, 2, v{vA2}")
    a(f"v_lshrrev_b32 v{vT}, 3, v{vJ}")
    a(f"v_lshlrev_b32 v{vP}, 8, v{vT}")
    a(f"v_lshl_add_u32 v{vP}, v{vG}, 6, v{vP}")
    a(f"v_lshlrev_b32 v{vL}, 12, v{vLANE}")
    a(f"s_lshl_b32 s{sT2}, s{sS}, 18")
    a(f"s_lshl_b32 s{sT3}, s{sH}, 5")
    a(f"s_add_u32 s{sT2}, s{sT2}, s{sT3}")
    a(f"s_lshl_b32 s{sT3}, s{sB}, 4")
    a(f"s_add_u32 s{sT2}, s{sT2}, s{sT3}")
    a(f"s_lshl_b32 s{sT0}, s{sH}, 15")
    a("s_barrier")
    stamp(4)
    MLr = TC
    a(f"ds_read_b128 {R(MLr)}, v{vKO} offset:{L_PML}")
    a(f"ds_read_b128 {R(MLr+4)}, v{vKO} offset:{L_PML+16}")
    for w in range(4):
        a(f"ds_read_b128 {R(TB+4*w)}, v{vVO} offset:{L_PART + 512*w}")

    def combine(ms, ls, os_, F, outm, outl):
        a(f"v_max_f32 v{outm}, v{ms[0]}, v{ms[1]}")
        a(f"v_max3_f32 v{outm}, v{outm}, v{ms[2]}, v{ms[3]}")
        for w in range(4):
            a(f"v_sub_f32 v{F+w}, v{ms[w]}, v{outm}")
        for w in range(4):
            a(f"v_mul_f32 v{F+w}, s{sL2E}, v{F+w}")
        for w in range(4):
            a(f"v_exp_f32 v{F+w}, v{F+w}")
        a(f"v_mul_f32 v{outl}, v{F}, v{ls[0]}")
        for w in range(1, 4):
            a(f"v_fmac_f32 v{outl}, v{F+w}, v{ls[w]}")

    def combine_o(os_, F):
        for r in range(4):
            a(f"v_mul_f32 v{os_[0]+r}, v{F}, v{os_[0]+r}")
        for w in range(1, 4):
            for r in range(4):
                a(f"v_fmac_f32 v{os_[0]+r}, v{F+w}, v{os_[w]+r}")
    F = TC + 8
    a("s_waitcnt lgkmcnt(4)")
    combine([MLr + 2 * w for w in range(4)], [MLr + 2 * w + 1 for w in range(4)], None, F, vM, vMN)
    a("s_waitcnt lgkmcnt(0)")
    combine_o([TB + 4 * w for w in range(4)], F)
    for r in range(4):
        src = vM if r % 2 == 0 else vMN
        a(f"v_cndmask_b32 v{TB+r}, v{src}, v{TB+r}, s[{sEX}:{sEX+1}]")
    sanitize(a, TB)
    a(f"v_cmp_gt_u32 vcc, 33, v{vLANE}")
    a(f"s_and_saveexec_b64 s[{sT4}:{sT5}], vcc")
    a(f"buffer_store_dwordx4 {R(TB)}, v{vA0}, {SR(SRD_WS)}, s{sOFF} offen sc1")
    a("s_mov_b64 exec, -1")
    stamp(5)
    GB = TB + 16

    def issue_op():
        a(f"s_mov_b32 s{sT1}, s{sT0}")
        for t in range(4):
            a(f"buffer_load_dwordx4 {R(GB+4*t)}, v{vA1}, {SR(SRD_WS)}, s{sT1} offen sc1")
            if t < 3:
                a(f"s_add_u32 s{sT1}, s{sT1}, 4096")
    poll(a, issue_op, range(GB, GB + 16), sleep=0, name="op")
    stamp(6)
    for t in range(4):
        a(f"v_mov_b32 v{MLr+2*t}, v{GB+4*t}")
        a(f"v_mov_b32 v{MLr+2*t+1}, v{GB+4*t+1}")
    for t in range(4):
        a(f"v_permlane32_swap_b32 v{GB+4*t}, v{MLr+2*t}")
        a(f"v_permlane32_swap_b32 v{GB+4*t+1}, v{MLr+2*t+1}")
    combine([MLr + 2 * w for w in range(4)], [MLr + 2 * w + 1 for w in range(4)], None, F, vM, vMN)
    a(f"v_rcp_f32 v{vMN}, v{vMN}")
    combine_o([GB + 4 * w for w in range(4)], F)
    for r in range(4):
        a(f"v_mul_f32 v{GB+r}, v{GB+r}, v{vMN}")
    for r in range(4):
        a(f"v_cvt_pk_bf16_f32 v{GB+r}, v{GB+r}, v{GB+r}")
    a(f"s_mov_b64 exec, s[{sEX}:{sEX+1}]")
    for r in range(4):
        a(f"ds_write_b32 v{vA2}, v{GB+r} offset:{L_VEC1 + 32*r}")
    a("s_mov_b64 exec, -1")
    a("s_waitcnt lgkmcnt(0)")
    tile_gemv(a, TA, vP, L_VEC1)
    sanitize(a, vACC)
    a(f"buffer_store_dwordx4 {R(vACC)}, v{vL}, {SR(SRD_WS)}, s{sT2} offen offset:{YP} sc1")
    stamp_flush(7)
    a.label("L_end")
    a("s_endpgm")

    body = a.finish()
    hdr = open("cdna_kernels/" + NAME + ".s.ref").read().split("; @launch")[0]
    nv = max(vWIN + 32 * NB, TC + 64)
    txt = hdr + f"; @launch grid=(256,1,1) block=(384,1,1) lds={L_TOTAL}\n"
    txt += '.amdgcn_target "amdgcn-amd-amdhsa--gfx950"\n.text\n'
    txt += f".globl {NAME}_kernel\n.p2align 8\n.type {NAME}_kernel,@function\n"
    txt += body
    txt += f""".section .rodata,"a"
.p2align 6
.amdhsa_kernel {NAME}_kernel
  .amdhsa_next_free_vgpr {nv}
  .amdhsa_next_free_sgpr 96
  .amdhsa_accum_offset {(nv+3)//4*4}
  .amdhsa_group_segment_fixed_size 0
  .amdhsa_kernarg_size 96
  .amdhsa_user_sgpr_count 2
  .amdhsa_user_sgpr_kernarg_segment_ptr 1
  .amdhsa_system_sgpr_workgroup_id_x 1
  .amdhsa_float_denorm_mode_32 3
.end_amdhsa_kernel
"""
    return txt


if __name__ == "__main__":
    out = sys.argv[1]
    kw = eval("dict(" + (sys.argv[2] if len(sys.argv) > 2 else "") + ")")
    open(out, "w").write(gen(**kw))
```

```python
import sys
sys.path.insert(0, "work")
from asmlib import Asm

NAME = "recurrent_scan__mha_block_cached__geglu_ffn__decode"

QP, GP, YP, OP, DP, ML, CNT = 0, 1024, 2048, 3072, 3584, 3968, 4032
QP2 = 0x100000
GEN = 0x200000
WSZ = 0x201000
L_XN, L_QV, L_PART, L_PML, L_VEC1, L_VEC0, L_TOTAL = 0, 4096, 4352, 6400, 6656, 7168, 8192

LOG2E = 0x3FB8AA3B
NLOG2E = 0xBFB8AA3B
SCALE = 0x3DB504F3

sX, sK, sV, sWQ, sWO, sBX, sWG, sWU, sWD, sOUT, sDBG, sWS = 4, 6, 8, 10, 12, 14, 16, 18, 20, 22, 24, 26
sH, sB, sS, sLW, sPID = 28, 29, 30, 31, 32
sL2E = 33
SRD_A, SRD_B, SRD_C, SRD_WS, SRD_D = 36, 40, 44, 48, 52
sT0, sT1, sT2, sT3, sT4, sT5 = 56, 57, 58, 59, 60, 61
sCNT = 62
sOFF = 63
sEX = 64
sIT = 66
sTAG, sGEN = 34, 35
sST = 70
vLANE, vJ, vG = 1, 2, 3
vMASK = 4
vT, vU, vW, vP, vM, vMN, vL, vKO, vVO, vA0, vA1, vA2 = 8, 9, 10, 11, 12, 13, 14, 15, 16, 17, 18, 19
vS, vACC, vPB0, vPB1, vQB = 20, 24, 28, 32, 36
vWIN = 52
TA, TB, TC = 52, 116, 180


def srd(a, d, ptr, nbytes):
    a(f"s_mov_b32 s{d}, s{ptr}")
    a(f"s_and_b32 s{d+1}, s{ptr+1}, 0xffff")
    if isinstance(nbytes, int):
        a(f"s_mov_b32 s{d+2}, {nbytes:#x}")
    else:
        a(f"s_mov_b32 s{d+2}, {nbytes}")
    a(f"s_mov_b32 s{d+3}, 0x20000")


def R(b, n=4):
    return f"v[{b}:{b+n-1}]"


def SR(b, n=4):
    return f"s[{b}:{b+n-1}]"


DPPM = "row_mask:0xf bank_mask:0xf"


def allreduce(a, regs, tmps, op="v_add_f32", quad=True):
    steps = []
    if quad:
        steps += ["quad_perm:[1,0,3,2]", "quad_perm:[2,3,0,1]"]
    steps += ["row_ror:4", "row_ror:8"]
    for st in steps:
        for r in regs:
            a(f"{op}_dpp v{r}, v{r}, v{r} {st} {DPPM}")
    for sw in ("v_permlane16_swap_b32", "v_permlane32_swap_b32"):
        for r, t in zip(regs, tmps):
            a(f"v_mov_b32 v{t}, v{r}")
        for r, t in zip(regs, tmps):
            a(f"{sw} v{r}, v{t}")
        for r, t in zip(regs, tmps):
            a(f"{op} v{r}, v{r}, v{t}")


def rne(a, regs):
    for r in regs:
        a(f"v_cvt_pk_bf16_f32 v{r}, v{r}, v{r}")
    for r in regs:
        a(f"v_and_b32 v{r}, 0xffff0000, v{r}")


def tile_gemv(a, tbase, vaddr_lds, lds_off, waits=None):
    for k in range(4):
        a(f"ds_read_b128 {R(vQB+4*k)}, v{vaddr_lds} offset:{lds_off+16*k}")
    a("s_waitcnt lgkmcnt(0)")

    def build(t):
        pb = vPB0 if t % 2 == 0 else vPB1
        for r in range(4):
            a(f"v_and_b32 v{pb+r}, v{vQB+t}, v{vMASK+r}")
    build(0)
    for t in range(16):
        if t + 1 < 16:
            build(t + 1)
        pb = vPB0 if t % 2 == 0 else vPB1
        if waits and t in waits:
            a(f"s_waitcnt vmcnt({waits[t]})")
        c = "0" if t == 0 else R(vACC)
        a(f"v_mfma_f32_16x16x32_bf16 {R(vACC)}, {R(tbase+4*t)}, {R(pb)}, {c}")


def sanitize(a, base, n=4):
    for r in range(n):
        a(f"v_min_u32 v{base+r}, -2, v{base+r}")


def poll(a, issue, regs, sleep=0, name="poll"):
    top = a.newlabel(name)
    done = a.newlabel(name + "d")
    a(f"s_mov_b32 s{sCNT}, 0x40000")
    a.label(top)
    issue()
    a("s_waitcnt vmcnt(0)")
    rs = list(regs)
    a(f"v_max_u32 v{vT}, v{rs[0]}, v{rs[1]}" if len(rs) > 1 else f"v_mov_b32 v{vT}, v{rs[0]}")
    rest = rs[2:]
    while rest:
        if len(rest) >= 2:
            a(f"v_max3_u32 v{vT}, v{vT}, v{rest[0]}, v{rest[1]}")
            rest = rest[2:]
        else:
            a(f"v_max_u32 v{vT}, v{vT}, v{rest[0]}")
            rest = rest[1:]
    a(f"v_cmp_eq_u32 vcc, -1, v{vT}")
    a(f"s_cbranch_vccz {done}")
    a(f"s_sub_u32 s{sCNT}, s{sCNT}, 1")
    a(f"s_cbranch_scc1 {done}")
    if sleep:
        a(f"s_sleep {sleep}")
    a(f"s_branch {top}")
    a.label(done)


def gen(DD=3, STAMP=False, NSTAT=22, INFL=16, NL=4, EXP=0, SG=0, EARLY=0, PSL=64, QSL=0, CPF=3, RCL=0, ANUM=8):
    a = Asm()
    stamps = {"n": 0}

    def stamp(k, grp=0):
        if STAMP and (k < 2 or grp == -1 or grp == SG):
            a(f"s_memrealtime s[{sST+2*k}:{sST+2*k+1}]")

    def stamp_flush(nst):
        if not STAMP:
            return
        a(f"s_memrealtime s[{sST+2}:{sST+3}]")
        a("s_waitcnt lgkmcnt(0)")
        a("s_mov_b64 exec, -1")
        srd(a, SRD_D, sWS, 0x20000000)
        a(f"s_mul_i32 s{sT0}, s2, 6")
        a(f"s_add_u32 s{sT0}, s{sT0}, s3")
        a(f"s_lshl_b32 s{sT1}, s{sT0}, 6")
        a(f"s_lshl_b32 s{sT0}, s{sT0}, 4")
        a(f"s_add_u32 s{sT0}, s{sT0}, 0x10000000")
        a(f"s_add_u32 s{sT1}, s{sT1}, 0x11000000")
        a(f"s_getreg_b32 s{sT2}, hwreg(HW_REG_XCC_ID)")
        a(f"s_and_b32 s{sT2}, s{sT2}, 15")
        a(f"s_lshl_b32 s{sT2}, s{sT2}, 28")
        a(f"s_or_b32 s{sT2}, s{sST+1}, s{sT2}")
        a(f"v_mov_b32 v20, s{sST}")
        a(f"v_mov_b32 v21, s{sT2}")
        a(f"v_mov_b32 v22, s{sST+2}")
        a(f"v_mov_b32 v23, s{sST+3}")
        a("v_mov_b32 v17, 0")
        for k in range(8):
            a(f"v_mov_b32 v{24+k}, s{sST+2*k}")
        a(f"v_cmp_eq_u32 vcc, 0, v{vLANE}")
        a(f"s_and_saveexec_b64 s[{sEX}:{sEX+1}], vcc")
        a(f"buffer_store_dwordx4 v[20:23], v17, {SR(SRD_D)}, s{sT0} offen")
        a(f"buffer_store_dwordx4 v[24:27], v17, {SR(SRD_D)}, s{sT1} offen")
        a(f"buffer_store_dwordx4 v[28:31], v17, {SR(SRD_D)}, s{sT1} offen offset:16")

    a.label(f"{NAME}_kernel")
    a("s_cmp_ge_u32 s2, 256")
    a("s_cbranch_scc1 L_end")
    if STAMP:
        for k in range(8):
            a(f"s_mov_b64 s[{sST+2*k}:{sST+2*k+1}], 0")
    stamp(0)
    a("s_load_dwordx16 s[4:19], s[0:1], 0")
    a("s_load_dwordx8 s[20:27], s[0:1], 64")
    a("v_lshrrev_b32 v2, 6, v0")
    a(f"v_and_b32 v{vLANE}, 63, v0")
    a("v_readfirstlane_b32 s3, v2")
    a(f"v_and_b32 v{vJ}, 15, v{vLANE}")
    a(f"v_lshrrev_b32 v{vG}, 4, v{vLANE}")
    a(f"s_bfe_u32 s{sH}, s2, 0x50002")
    a(f"s_lshr_b32 s{sB}, s2, 7")
    a(f"s_and_b32 s{sS}, s2, 3")
    a(f"s_lshl_b32 s{sPID}, s{sB}, 2")
    a(f"s_add_u32 s{sPID}, s{sPID}, s{sS}")
    a(f"s_lshl_b32 s{sLW}, s{sH}, 3")
    a(f"s_add_u32 s{sLW}, s{sLW}, s{sPID}")
    a(f"s_mov_b32 s{sL2E}, {LOG2E:#x}")

    def masks():
        a(f"v_and_b32 v{vT}, 1, v{vLANE}")
        a(f"v_lshlrev_b32 v{vT}, 4, v{vT}")
        a(f"v_mov_b32 v{vU}, 0xffff")
        a(f"v_lshlrev_b32 v{vU}, v{vT}, v{vU}")
        a(f"v_bfe_u32 v{vT}, v{vLANE}, 1, 2")
        for r in range(4):
            a(f"v_cmp_eq_u32 vcc, {r}, v{vT}")
            a(f"v_cndmask_b32 v{vMASK+r}, 0, v{vU}, vcc")

    def flagpoll(nd, soff, vaddr, sleep, lane0):
        ftop = a.newlabel("flag")
        fdone = a.newlabel("flagd")
        a(f"s_mov_b32 s{sCNT}, 0x40000")
        a(f"s_mov_b32 s{sIT}, 0x01010101")
        if lane0:
            a("s_mov_b64 exec, 1")
        a.label(ftop)
        if nd == 2:
            a(f"buffer_load_dwordx2 v[{vT}:{vU}], v{vaddr}, {SR(SRD_D)}, {soff} offen sc1")
            a("s_waitcnt vmcnt(0)")
            a(f"v_and_b32 v{vT}, v{vT}, v{vU}")
        else:
            a(f"buffer_load_dword v{vT}, v{vaddr}, {SR(SRD_D)}, {soff} offen sc1")
            a("s_waitcnt vmcnt(0)")
        a(f"v_cmp_ne_u32 vcc, s{sIT}, v{vT}")
        a(f"s_cbranch_vccz {fdone}")
        a(f"s_sub_u32 s{sCNT}, s{sCNT}, 1")
        a(f"s_cbranch_scc1 {fdone}")
        a(f"s_sleep {sleep}")
        a(f"s_branch {ftop}")
        a.label(fdone)
        if lane0:
            a("s_mov_b64 exec, -1")

    a("s_cmp_eq_u32 s3, 0")
    a("s_cbranch_scc1 L_A0")
    a("s_cmp_eq_u32 s3, 1")
    a("s_cbranch_scc1 L_A1")

    if CPF:
        a(f"s_getpc_b64 s[{sT0}:{sT1}]")
        a.label("L_pc")
        a(f"s_sub_u32 s{sT0}, s{sT0}, L_pc-{NAME}_kernel")
        a(f"s_subb_u32 s{sT1}, s{sT1}, 0")
        a(f"v_subrev_u32 v{vT}, 128, v0")
        a(f"v_lshlrev_b32 v{vT}, 4, v{vT}")
        for k in range(CPF):
            a(f"v_min_u32 v{vU}, L_codeend-{NAME}_kernel-16, v{vT}")
            a(f"global_load_dwordx4 {R(vWIN+4*k)}, v{vU}, s[{sT0}:{sT1}]")
            a(f"v_add_u32 v{vT}, 4096, v{vT}")
    a(f"v_and_b32 v{vT}, 3, v{vLANE}")
    a(f"v_lshlrev_b32 v{vKO}, 4, v{vT}")
    a(f"v_bfe_u32 v{vT}, v{vLANE}, 2, 2")
    a(f"v_lshl_add_u32 v{vKO}, v{vT}, 8, v{vKO}")
    a(f"v_lshl_add_u32 v{vKO}, v{vG}, 6, v{vKO}")
    a(f"v_lshlrev_b32 v{vVO}, 4, v{vLANE}")
    a(f"s_lshl_b32 s{sT0}, s{sB}, 5")
    a(f"s_add_u32 s{sT0}, s{sT0}, s{sH}")
    a(f"s_lshl_b32 s{sOFF}, s{sT0}, 21")
    a(f"s_lshl_b32 s{sT0}, s{sS}, 2")
    a(f"s_add_u32 s{sT0}, s{sT0}, s3")
    a(f"s_sub_u32 s{sT0}, s{sT0}, 2")
    a(f"s_lshl_b32 s{sT0}, s{sT0}, 12")
    a(f"s_add_u32 s{sOFF}, s{sOFF}, s{sT0}")
    a("s_waitcnt lgkmcnt(0)")
    srd(a, SRD_A, sK, 0x8000000)
    srd(a, SRD_B, sV, 0x8000000)

    fifo = []
    sSL = [86 + k for k in range(DD)]
    sDYN, sNS, sCA, sCP, sCV = 90, 91, 67, 68, 69
    assert not RCL or (NSTAT - DD - NL) % DD == 0
    sRET = 92
    vCL = [vWIN + 32 * (DD + 1) + k for k in range(DD)]
    vCA = vCL[-1] + 1
    NDYN = 512 - 16 * NSTAT
    BAD = 0x40000000

    def kreg(slot, m):
        return vWIN + 32 * slot + 4 * m

    def vreg(slot, m):
        return vWIN + 32 * slot + 16 + 4 * m

    def issueK(slot, so):
        for m in range(4):
            a(f"buffer_load_dwordx4 {R(kreg(slot, m))}, v{vKO}, {SR(SRD_A)}, s{so} offen offset:{1024*m} nt")
            fifo.append(("K", slot))

    def issueV(slot, so):
        for m in range(4):
            a(f"buffer_load_dwordx4 {R(vreg(slot, m))}, v{vVO}, {SR(SRD_B)}, s{so} offen offset:{1024*m} nt")
            fifo.append(("V", slot))

    def issueC(slot):
        if EXP & 4:
            a(f"v_mov_b32 v{vCL[slot]}, -8")
            return
        if RCL and slot:
            return
        a(f"v_mov_b32 v{vCL[slot]}, {DD if RCL else 1}")
        a(f"buffer_atomic_add v{vCL[slot]}, v{vCA}, {SR(SRD_WS)}, s{sCP} offen sc0 sc1")
        fifo.append(("C", slot))

    def waitfor(tag):
        last = max(i for i, t in enumerate(fifo) if t == tag)
        n = len(fifo) - 1 - last
        assert n < 64
        a(f"s_waitcnt vmcnt({n})")
        del fifo[:last + 1]

    def process(slot, fromlds=False):
        if fromlds:
            for m in range(8):
                a(f"ds_read_b128 {R(kreg(slot, m))}, v{vA2} offset:{1024*m}")
            a(f"v_add_u32 v{vA2}, 0x2000, v{vA2}")
            a("s_waitcnt lgkmcnt(4)")
        else:
            a(f"s_cmp_ge_u32 s{sSL[slot]}, {BAD:#x}")
            a("s_cbranch_scc1 L_sdone")
            waitfor(("K", slot))
        for m in range(4):
            c = "0" if m == 0 else R(vS)
            if not EXP & 2:
                a(f"v_mfma_f32_16x16x32_bf16 {R(vS)}, {R(kreg(slot, m))}, {R(vQB+4*m)}, {c}")
        if not fromlds:
            so = sSL[slot]
            if not RCL or slot == 0:
                a(f"v_readfirstlane_b32 s{sCV}, v{vCL[slot]}")
            a(f"s_add_u32 s{sCV}, s{sCV}, 1")
            a(f"s_lshl_b32 s{sT1}, s{sCV}, 12")
            a(f"s_add_u32 s{sT1}, s{sT1}, s{sDYN}")
            a(f"s_cmp_lt_u32 s{sCV}, {NDYN}")
            a(f"s_cselect_b32 s{sT1}, s{sT1}, {BAD:#x}")
            a(f"s_sub_i32 s{sNS}, s{sNS}, 1")
            a(f"s_cmp_ge_i32 s{sNS}, 0")
            a(f"s_cselect_b32 s{so}, s{sOFF}, s{sT1}")
            a(f"s_add_u32 s{sOFF}, s{sOFF}, 0x10000")
            a(f"s_cmp_lt_i32 s{sNS}, {DD}")
            a(f"s_cselect_b32 s{sCP}, s{sCA}, {BAD:#x}")
            issueC(slot)
            issueK(slot, so)
        if not EXP & 2:
            a(f"v_mov_b32_dpp v{vT}, v{vS} quad_perm:[0,0,0,0] {DPPM}")
            for e in range(1, 4):
                a(f"v_add_f32_dpp v{vT}, v{vS+e}, v{vT} quad_perm:[{e},{e},{e},{e}] {DPPM}")
            rne(a, [vT])
            a(f"v_mul_f32 v{vT}, {SCALE:#x}, v{vT}")
            rne(a, [vT])
            a(f"v_cmp_gt_f32 vcc, v{vT}, v{vM}")
            back = a.newlabel("back")
            a(f"s_cbranch_vccz {back}")
            a(f"s_call_b64 s[{sRET}:{sRET+1}], L_slow")
            a.label(back)
            a(f"v_fma_f32 v{vT}, v{vT}, s{sL2E}, v{vMN}")
            a(f"v_exp_f32 v{vT}, v{vT}")
            a(f"v_add_f32 v{vL}, v{vL}, v{vT}")
            a(f"v_cvt_pk_bf16_f32 v{vP}, v{vT}, v{vT}")
        if fromlds:
            a("s_waitcnt lgkmcnt(0)")
        else:
            waitfor(("V", slot))

        def build(m):
            pb = vPB0 if m % 2 == 0 else vPB1
            for r in range(4):
                a(f"v_and_b32_dpp v{pb+r}, v{vP}, v{vMASK+r} row_newbcast:{4*m} {DPPM}")
        if not EXP & 2:
            build(0)
            for m in range(4):
                if m + 1 < 4:
                    build(m + 1)
                pb = vPB0 if m % 2 == 0 else vPB1
                a(f"v_mfma_f32_16x16x32_bf16 {R(vACC)}, {R(vreg(slot, m))}, {R(pb)}, {R(vACC)}")
        if not fromlds:
            issueV(slot, so)

    srd(a, SRD_WS, sWS, WSZ)
    a(f"s_sub_u32 s{sT5}, s3, 2")
    a(f"s_mul_i32 s{sT5}, s{sT5}, {NL*8192}")
    a(f"s_add_u32 s{sT5}, s{sT5}, {L_TOTAL}")
    a(f"v_add_u32 v{vA2}, s{sT5}, v{vVO}")
    a(f"v_mov_b32 v{vCA}, {BAD:#x}")
    a(f"v_cmp_eq_u32 vcc, 0, v{vLANE}")
    a(f"v_cndmask_b32 v{vCA}, v{vCA}, 0, vcc")
    a(f"s_mov_b32 s{sCP}, {BAD:#x}")
    a("s_waitcnt vmcnt(0)")
    a("s_barrier")
    nfl = 0
    for k in range(DD):
        a(f"s_mov_b32 s{sSL[k]}, s{sOFF}")
        a(f"s_add_u32 s{sOFF}, s{sOFF}, 0x10000")
        for fn in (issueK, issueV):
            if nfl >= INFL:
                a(f"s_waitcnt vmcnt({INFL-4})")
                nfl -= 4
            if fn is issueK:
                issueC(k)
            fn(k, sSL[k])
            nfl += 4
    masks()
    a(f"s_andn2_b32 s{sCA}, s{sLW}, 3")
    a(f"s_lshl_b32 s{sCA}, s{sCA}, 12")
    a(f"s_add_u32 s{sCA}, s{sCA}, {CNT}")
    if not NDYN:
        a(f"s_mov_b32 s{sCA}, {BAD:#x}")
    a(f"s_lshl_b32 s{sT0}, s{sB}, 5")
    a(f"s_add_u32 s{sT0}, s{sT0}, s{sH}")
    a(f"s_lshl_b32 s{sDYN}, s{sT0}, 21")
    a(f"s_add_u32 s{sDYN}, s{sDYN}, {16*NSTAT*4096}")
    a(f"s_mov_b32 s{sNS}, {NSTAT - DD - NL}")
    for r in range(4):
        a(f"v_mov_b32 v{vACC+r}, 0")
    a(f"v_mov_b32 v{vL}, 0")
    a(f"v_mov_b32 v{vM}, 0xff800000")
    a(f"v_mov_b32 v{vMN}, 0")
    a(f"v_and_b32 v{vT}, 3, v{vJ}")
    a(f"v_lshl_add_u32 v{vT}, v{vG}, 2, v{vT}")
    a(f"v_lshlrev_b32 v{vA0}, 4, v{vT}")
    a(f"v_lshrrev_b32 v{vA1}, 2, v{vJ}")
    if NL:
        a(f"s_mov_b32 s{sIT}, {NL}")
        a.label("L_lpro")
        for which in "KV":
            a(f"s_mov_b32 m0, s{sT5}")
            a(f"s_waitcnt vmcnt({INFL-4})")
            for m in range(4):
                if which == "K":
                    a(f"buffer_load_dwordx4 v{vKO}, {SR(SRD_A)}, s{sOFF} offen offset:{1024*m} nt lds")
                else:
                    a(f"buffer_load_dwordx4 v{vVO}, {SR(SRD_B)}, s{sOFF} offen offset:{1024*m} nt lds")
            a(f"s_add_u32 s{sT5}, s{sT5}, 4096")
        a(f"s_add_u32 s{sOFF}, s{sOFF}, 0x10000")
        a(f"s_sub_u32 s{sIT}, s{sIT}, 1")
        a(f"s_cmp_lg_u32 s{sIT}, 0")
        a("s_cbranch_scc1 L_lpro")
    a(f"s_mov_b32 s{sIT}, {NL}")
    a("s_barrier")
    stamp(2, -1)
    a(f"ds_read_b128 {R(vS)}, v{vA0} offset:{L_QV}")
    a("s_waitcnt lgkmcnt(0)")
    for m in range(4):
        a(f"v_cmp_eq_u32 vcc, {m}, v{vA1}")
        for r in range(4):
            a(f"v_cndmask_b32 v{vQB+4*m+r}, 0, v{vS+r}, vcc")
    state0 = list(fifo)
    a.label("L_loop")
    for k in range(DD):
        process(k)
    assert fifo == state0, (fifo, state0)
    if STAMP:
        n0 = NSTAT - DD - NL
        for k, rounds in ((5, 9 // DD), (6, 15 // DD), (7, 21 // DD)):
            lb = a.newlabel("ps")
            a(f"s_cmp_lg_i32 s{sNS}, {n0 - rounds*DD}")
            a(f"s_cbranch_scc1 {lb}")
            stamp(k, -1)
            a.label(lb)
    if NL:
        a(f"s_cmp_eq_u32 s{sIT}, 0")
        a("s_cbranch_scc1 L_loop")
        a(f"s_waitcnt vmcnt({len(fifo)})")
        a.label("L_lloop")
        process(DD, fromlds=True)
        a(f"s_sub_u32 s{sIT}, s{sIT}, 1")
        a(f"s_cmp_lg_u32 s{sIT}, 0")
        a("s_cbranch_scc1 L_lloop")
        stamp(4, -1)
    a("s_branch L_loop")
    a.label("L_slow")
    a(f"v_max_f32_dpp v{vU}, v{vT}, v{vT} row_ror:4 {DPPM}")
    a(f"v_max_f32_dpp v{vU}, v{vU}, v{vU} row_ror:8 {DPPM}")
    a(f"v_mov_b32 v{vW}, v{vU}")
    a(f"v_permlane16_swap_b32 v{vU}, v{vW}")
    a(f"v_max_f32 v{vU}, v{vU}, v{vW}")
    a(f"v_mov_b32 v{vW}, v{vU}")
    a(f"v_permlane32_swap_b32 v{vU}, v{vW}")
    a(f"v_max3_f32 v{vU}, v{vU}, v{vW}, v{vM}")
    a(f"v_sub_f32 v{vW}, v{vM}, v{vU}")
    a(f"v_mul_f32 v{vW}, s{sL2E}, v{vW}")
    a(f"v_exp_f32 v{vW}, v{vW}")
    a(f"v_mov_b32 v{vM}, v{vU}")
    a(f"v_mul_f32 v{vMN}, {NLOG2E:#x}, v{vU}")
    for r in range(4):
        a(f"v_mul_f32 v{vACC+r}, v{vACC+r}, v{vW}")
    a(f"v_mul_f32 v{vL}, v{vL}, v{vW}")
    a(f"s_setpc_b64 s[{sRET}:{sRET+1}]")
    a.label("L_sdone")
    stamp(3, -1)
    allreduce(a, [vL], [vW], quad=False)
    a(f"v_lshlrev_b32 v{vA0}, 3, v{vG}")
    a(f"v_add_u32 v{vA0}, v{vA0}, v{vJ}")
    a(f"v_lshlrev_b32 v{vA0}, 4, v{vA0}")
    a(f"s_sub_u32 s{sT0}, s3, 2")
    a(f"s_lshl_b32 s{sT1}, s{sT0}, 9")
    a(f"v_add_u32 v{vA0}, s{sT1}, v{vA0}")
    a(f"s_lshl_b32 s{sT1}, s{sT0}, 3")
    a(f"v_mov_b32 v{vA1}, s{sT1}")
    a(f"v_mov_b32 v{vMN}, v{vL}")
    a(f"v_cmp_gt_u32 vcc, 8, v{vJ}")
    a(f"s_and_saveexec_b64 s[{sEX}:{sEX+1}], vcc")
    a(f"ds_write_b128 v{vA0}, {R(vACC)} offset:{L_PART}")
    a(f"ds_write_b64 v{vA1}, v[{vM}:{vMN}] offset:{L_PML}")
    a("s_waitcnt lgkmcnt(0)")
    a("s_barrier")
    stamp_flush(4)
    a("s_endpgm")

    def load_tag():
        a(f"s_mov_b32 s{sT2}, {GEN:#x}")
        a(f"s_load_dword s{sTAG}, s[{sWS}:{sWS+1}], s{sT2}")

    def make_tag():
        a(f"s_add_u32 s{sGEN}, s{sTAG}, 1")
        a(f"s_or_b32 s{sTAG}, s{sGEN}, 0x80000000")

    def publish_pair(src, voff, soff, off):
        a(f"s_add_u32 s{sIT}, s{soff}, {QP2:#x}")
        for r in range(4):
            a(f"v_xor_b32 v{vS+r}, s{sTAG}, v{src+r}")
        a(f"buffer_store_dwordx4 {R(src)}, v{voff}, {SR(SRD_WS)}, s{soff} offen offset:{off} sc1")
        a(f"buffer_store_dwordx4 {R(vS)}, v{voff}, {SR(SRD_WS)}, s{sIT} offen offset:{off} sc1")

    def gather_pairs(dst, n, voff, soff, step, off, sleep, name):
        top = a.newlabel(name)
        done = a.newlabel(name + "d")
        a(f"s_mov_b32 s{sCNT}, 0x40000")
        a.label(top)
        a(f"s_mov_b32 s{sT1}, s{soff}")
        for t in range(n):
            a(f"s_add_u32 s{sIT}, s{sT1}, {QP2:#x}")
            a(f"buffer_load_dwordx4 {R(dst+4*t)}, v{voff}, {SR(SRD_WS)}, s{sT1} offen offset:{off} sc1")
            a(f"buffer_load_dwordx4 {R(dst+4*n+4*t)}, v{voff}, {SR(SRD_WS)}, s{sIT} offen offset:{off} sc1")
            if t < n - 1:
                a(f"s_add_u32 s{sT1}, s{sT1}, {step}")
        a("s_waitcnt vmcnt(0)")
        m = dst + 4 * n
        for r in range(4 * n):
            a(f"v_xor_b32 v{m+r}, v{m+r}, v{dst+r}")
        a(f"v_and_b32 v{vT}, v{m}, v{m+1}")
        a(f"v_or_b32 v{vU}, v{m}, v{m+1}")
        for r in range(2, 4 * n, 2):
            a(f"v_or3_b32 v{vU}, v{vU}, v{m+r}, v{m+r+1}")
            a(f"v_and_b32 v{m+r}, v{m+r}, v{m+r+1}")
            a(f"v_and_b32 v{vT}, v{vT}, v{m+r}")
        a(f"v_cmp_ne_u32 vcc, s{sTAG}, v{vT}")
        a(f"v_cmp_ne_u32 s[{sT2}:{sT3}], s{sTAG}, v{vU}")
        a(f"s_or_b64 vcc, vcc, s[{sT2}:{sT3}]")
        a(f"s_cbranch_vccz {done}")
        a(f"s_sub_u32 s{sCNT}, s{sCNT}, 1")
        a(f"s_cbranch_scc1 {done}")
        if sleep:
            a(f"s_sleep {sleep}")
        a(f"s_branch {top}")
        a.label(done)

    a.label("L_A0")
    if EXP & 8:
        a("s_endpgm")
    a("s_setprio 3")
    a(f"v_lshlrev_b32 v{vVO}, 4, v{vLANE}")
    for r in range(4):
        a(f"v_mov_b32 v{vS+r}, -1")
    a(f"s_lshl_b32 s{sOFF}, s{sLW}, 12")
    a(f"v_lshlrev_b32 v{vA0}, 17, v{vG}")
    a(f"v_lshl_add_u32 v{vA0}, v{vJ}, 4, v{vA0}")
    a(f"s_lshl_b32 s{sT0}, s{sPID}, 19")
    a(f"s_lshl_b32 s{sT1}, s{sH}, 8")
    a(f"s_add_u32 s{sT0}, s{sT0}, s{sT1}")
    a("s_waitcnt lgkmcnt(0)")
    srd(a, SRD_A, sX, 2048)
    a(f"buffer_load_dwordx4 {R(vPB0)}, v{vVO}, {SR(SRD_A)}, 0 offen")
    a(f"buffer_load_dwordx4 {R(vPB1)}, v{vVO}, {SR(SRD_A)}, 0 offen offset:1024")
    srd(a, SRD_WS, sWS, WSZ)
    load_tag()
    a(f"buffer_store_dwordx4 {R(vS)}, v{vVO}, {SR(SRD_WS)}, s{sOFF} offen offset:{YP} sc1")
    a("s_mov_b32 exec_hi, 0xff000000")
    a(f"buffer_store_dwordx4 {R(vS)}, v{vVO}, {SR(SRD_WS)}, s{sOFF} offen offset:{OP} sc1")
    a("s_mov_b64 exec, -1")
    srd(a, SRD_B, sWQ, 0x400000)
    for t in range(16):
        a(f"buffer_load_dwordx4 {R(TA+4*t)}, v{vA0}, {SR(SRD_B)}, s{sT0} offen nt")
        if t < 15:
            a(f"s_add_u32 s{sT0}, s{sT0}, 8192")
    masks()
    a("s_waitcnt vmcnt(18)")
    stamp(2)
    X = [TC + i for i in range(16)]
    for bb, src in ((0, vPB0), (1, vPB1)):
        for k in range(4):
            a(f"v_lshlrev_b32 v{X[bb*8+2*k]}, 16, v{src+k}")
            a(f"v_and_b32 v{X[bb*8+2*k+1]}, 0xffff0000, v{src+k}")
    S0, S1, Tm0, Tm1 = TC + 16, TC + 17, TC + 18, TC + 19
    Dv = [TC + 20 + i for i in range(16)]
    for bb, s in ((0, S0), (1, S1)):
        a(f"v_add_f32 v{s}, v{X[bb*8]}, v{X[bb*8+1]}")
    for k in range(2, 8):
        for bb, s in ((0, S0), (1, S1)):
            a(f"v_add_f32 v{s}, v{s}, v{X[bb*8+k]}")
    allreduce(a, [S0, S1], [Tm0, Tm1])
    a(f"v_mul_f32 v{S0}, 0x3b000000, v{S0}")
    a(f"v_mul_f32 v{S1}, 0x3b000000, v{S1}")
    V0, V1 = TC + 36, TC + 37
    for bb, s in ((0, S0), (1, S1)):
        for k in range(8):
            a(f"v_sub_f32 v{Dv[bb*8+k]}, v{X[bb*8+k]}, v{s}")
    for bb, v in ((0, V0), (1, V1)):
        a(f"v_mul_f32 v{v}, v{Dv[bb*8]}, v{Dv[bb*8]}")
    for k in range(1, 8):
        for bb, v in ((0, V0), (1, V1)):
            a(f"v_fmac_f32 v{v}, v{Dv[bb*8+k]}, v{Dv[bb*8+k]}")
    allreduce(a, [V0, V1], [Tm0, Tm1])
    a(f"v_mul_f32 v{V0}, 0x3b000000, v{V0}")
    a(f"v_mul_f32 v{V1}, 0x3b000000, v{V1}")
    rne(a, [S0, S1, V0, V1])
    a(f"v_add_f32 v{V0}, 0x3727c5ac, v{V0}")
    a(f"v_add_f32 v{V1}, 0x3727c5ac, v{V1}")
    rne(a, [V0, V1])
    a(f"v_sqrt_f32 v{V0}, v{V0}")
    a(f"v_sqrt_f32 v{V1}, v{V1}")
    rne(a, [V0, V1])
    a(f"v_rcp_f32 v{V0}, v{V0}")
    a(f"v_rcp_f32 v{V1}, v{V1}")
    for bb, s in ((0, S0), (1, S1)):
        for k in range(8):
            a(f"v_sub_f32 v{Dv[bb*8+k]}, v{X[bb*8+k]}, v{s}")
    rne(a, Dv)
    for bb, v in ((0, V0), (1, V1)):
        for k in range(8):
            a(f"v_mul_f32 v{Dv[bb*8+k]}, v{Dv[bb*8+k]}, v{v}")
    for d in Dv:
        a(f"v_cvt_pk_bf16_f32 v{d}, v{d}, v{d}")
    a(f"v_lshlrev_b32 v{vA1}, 5, v{vLANE}")
    for bb in range(2):
        for k in range(2):
            a(f"ds_write_b128 v{vA1}, {R(Dv[bb*8+4*k])} offset:{L_XN + bb*2048 + 16*k}")
    a(f"s_cmp_ge_u32 s{sLW}, 88")
    a(f"s_cselect_b32 s{sT0}, 88, 0")
    a(f"s_cselect_b32 s{SRD_C}, s{sWU}, s{sWG}")
    a(f"s_cselect_b32 s{SRD_C+1}, s{sWU+1}, s{sWG+1}")
    a(f"s_and_b32 s{SRD_C+1}, s{SRD_C+1}, 0xffff")
    a(f"s_sub_u32 s{sT0}, s{sLW}, s{sT0}")
    a(f"s_cmp_lt_u32 s{sLW}, 176")
    a(f"s_cselect_b32 s{SRD_C+2}, {512*2752}, 0")
    a(f"s_mov_b32 s{SRD_C+3}, 0x20000")
    a(f"s_lshr_b32 s{sT1}, s{sT0}, 3")
    a(f"s_and_b32 s{sT5}, s{sT0}, 7")
    a(f"s_mul_i32 s{sT3}, s{sT5}, {64*2752}")
    a(f"s_lshl_b32 s{sT4}, s{sT1}, 8")
    a(f"s_add_u32 s{sT3}, s{sT3}, s{sT4}")
    a(f"v_mul_u32_u24 v{vA0}, {16*2752}, v{vG}")
    a(f"v_lshl_add_u32 v{vA0}, v{vJ}, 4, v{vA0}")
    a(f"s_lshl_b32 s{sT4}, s{sT1}, 4")
    a(f"v_add_u32 v{vT}, s{sT4}, v{vJ}")
    a(f"v_cmp_gt_u32 vcc, 172, v{vT}")
    a(f"v_mov_b32 v{vU}, 0x40000000")
    a(f"v_cndmask_b32 v{vA0}, v{vU}, v{vA0}, vcc")
    for t in range(16):
        a(f"buffer_load_dwordx4 {R(TB+4*t)}, v{vA0}, {SR(SRD_C)}, s{sT3} offen nt")
        if t < 15:
            a(f"s_add_u32 s{sT3}, s{sT3}, 2752")
    a(f"v_lshrrev_b32 v{vT}, 3, v{vJ}")
    a(f"v_lshlrev_b32 v{vKO}, 11, v{vT}")
    a(f"v_lshl_add_u32 v{vKO}, v{vG}, 6, v{vKO}")
    a(f"s_lshl_b32 s{sT0}, s{sPID}, 8")
    a(f"v_add_u32 v{vA1}, s{sT0}, v{vKO}")
    a("s_waitcnt lgkmcnt(0)")
    make_tag()
    if EARLY:
        a("s_barrier")
    tile_gemv(a, TA, vA1, L_XN, waits={0: 28, 4: 24, 8: 20, 12: 16})
    publish_pair(vACC, vVO, sOFF, QP)
    if not EARLY:
        a("s_barrier")
    stamp(3)
    a(f"s_cmp_ge_u32 s{sLW}, 176")
    a("s_cbranch_scc1 L_A0_noffn1")
    a(f"s_lshl_b32 s{sT0}, s{sT5}, 8")
    a(f"v_add_u32 v{vA1}, s{sT0}, v{vKO}")
    tile_gemv(a, TB, vA1, L_XN, waits={0: 2})
    publish_pair(vACC, vVO, sOFF, GP)
    a.label("L_A0_noffn1")
    stamp(4)
    a("s_setprio 0")
    a(f"s_lshr_b32 s{sT0}, s{sLW}, 6")
    a(f"s_lshl_b32 s{sT0}, s{sT0}, 7")
    a(f"s_bfe_u32 s{sT1}, s{sLW}, 0x20004")
    a(f"s_lshl_b32 s{sT1}, s{sT1}, 5")
    a(f"s_add_u32 s{sT0}, s{sT0}, s{sT1}")
    a(f"s_bfe_u32 s{sT1}, s{sLW}, 0x10003")
    a(f"s_lshl_b32 s{sT1}, s{sT1}, 9")
    a(f"s_add_u32 s{sT0}, s{sT0}, s{sT1}")
    a(f"s_and_b32 s{sT1}, s{sLW}, 7")
    a(f"s_add_u32 s{sT0}, s{sT0}, s{sT1}")
    a(f"v_and_b32 v{vT}, 3, v{vLANE}")
    a(f"v_lshlrev_b32 v{vT}, 3, v{vT}")
    a(f"v_add_u32 v{vT}, s{sT0}, v{vT}")
    a(f"v_lshlrev_b32 v{vA2}, 1, v{vT}")
    a(f"buffer_load_ushort v{vP}, v{vA2}, {SR(SRD_A)}, 0 offen")
    for r in range(4):
        a(f"v_mov_b32 v{TA+r}, 0")
    a("s_barrier")
    a("s_mov_b32 exec_lo, 0x3fffff")
    a("s_mov_b32 exec_hi, 0")
    a(f"s_sleep {PSL}")
    gather_pairs(TA, 1, vVO, sOFF, 0, DP, PSL, "dp")
    a("s_mov_b64 exec, -1")
    stamp(5)

    def reduce_select(dst):
        allreduce(a, [TA + r for r in range(4)], [TA + 4 + r for r in range(4)])
        a(f"v_and_b32 v{vT}, 3, v{vLANE}")
        a(f"v_mov_b32 v{dst}, v{TA}")
        for r in range(1, 4):
            a(f"v_cmp_eq_u32 vcc, {r}, v{vT}")
            a(f"v_cndmask_b32 v{dst}, v{dst}, v{TA+r}, vcc")
    reduce_select(vM)
    rne(a, [vM])
    a(f"v_mul_f32 v{vU}, {NLOG2E:#x}, v{vM}")
    a(f"v_exp_f32 v{vU}, v{vU}")
    a(f"v_add_f32 v{vU}, 1.0, v{vU}")
    a(f"v_rcp_f32 v{vU}, v{vU}")
    a(f"v_mul_f32 v{vM}, v{vM}, v{vU}")
    rne(a, [vM])
    a(f"v_lshlrev_b32 v{vP}, 16, v{vP}")
    srd(a, SRD_B, sOUT, 2048)
    stamp(6)
    a("s_setprio 3")
    a("s_barrier")

    def issue_yp():
        a(f"buffer_load_dwordx4 {R(TA)}, v{vVO}, {SR(SRD_WS)}, s{sOFF} offen offset:{YP} sc1")
    poll(a, issue_yp, range(TA, TA + 4), sleep=0, name="yp")
    stamp(7)
    reduce_select(vL)
    rne(a, [vL])
    a(f"v_mul_f32 v{vL}, v{vL}, v{vM}")
    rne(a, [vL])
    a(f"v_add_f32 v{vL}, v{vL}, v{vP}")
    a(f"v_cvt_pk_bf16_f32 v{vL}, v{vL}, v{vL}")
    a(f"v_cmp_gt_u32 vcc, 4, v{vLANE}")
    a(f"s_and_saveexec_b64 s[{sEX}:{sEX+1}], vcc")
    a(f"buffer_store_short v{vL}, v{vA2}, {SR(SRD_B)}, 0 offen")
    a(f"s_cmp_lg_u32 s{sLW}, 0")
    a("s_cbranch_scc1 L_A0_nogen")
    a("s_mov_b64 exec, 1")
    a(f"v_mov_b32 v{vT}, s{sGEN}")
    a(f"v_mov_b32 v{vU}, {GEN:#x}")
    a(f"buffer_store_dword v{vT}, v{vU}, {SR(SRD_WS)}, 0 offen sc1")
    a.label("L_A0_nogen")
    stamp_flush(7)
    a("s_endpgm")

    a.label("L_A1")
    if EXP & 8:
        a("s_endpgm")
    a("s_setprio 2")
    masks()
    a(f"s_lshl_b32 s{sOFF}, s{sLW}, 12")
    a(f"v_lshlrev_b32 v{vA0}, 14, v{vG}")
    a(f"v_lshl_add_u32 v{vA0}, v{vJ}, 4, v{vA0}")
    a(f"s_lshl_b32 s{sT0}, s{sH}, 17")
    a(f"s_lshl_b32 s{sT1}, s{sB}, 16")
    a(f"s_add_u32 s{sT0}, s{sT0}, s{sT1}")
    a(f"s_lshl_b32 s{sT1}, s{sS}, 8")
    a(f"s_add_u32 s{sT0}, s{sT0}, s{sT1}")
    a(f"v_lshrrev_b32 v{vT}, 5, v{vLANE}")
    a(f"v_lshlrev_b32 v{vA1}, 12, v{vT}")
    a(f"v_bfe_u32 v{vT}, v{vLANE}, 3, 2")
    a(f"v_lshl_add_u32 v{vA1}, v{vT}, 8, v{vA1}")
    a(f"v_lshlrev_b32 v{vA2}, 6, v{vT}")
    a(f"v_and_b32 v{vT}, 7, v{vLANE}")
    a(f"v_lshl_add_u32 v{vA1}, v{vT}, 4, v{vA1}")
    a(f"v_lshl_add_u32 v{vA2}, v{vT}, 1, v{vA2}")
    a(f"s_sub_u32 s{sT1}, s{sLW}, 168")
    a(f"s_and_b32 s{sT1}, s{sT1}, 0xff")
    a(f"s_lshr_b32 s{sT4}, s{sT1}, 2")
    a(f"s_and_b32 s{sT5}, s{sT1}, 3")
    a(f"s_lshl_b32 s{sT3}, s{sT4}, 16")
    a(f"s_lshl_b32 s{sT1}, s{sT5}, 8")
    a(f"s_add_u32 s{sT3}, s{sT3}, s{sT1}")
    a("s_waitcnt lgkmcnt(0)")
    srd(a, SRD_WS, sWS, WSZ)
    load_tag()
    srd(a, SRD_B, sWO, 0x400000)
    srd(a, SRD_C, sWD, 1376 * 1024)
    a(f"s_cmp_ge_u32 s{sLW}, 168")
    a(f"s_cselect_b32 s{SRD_C+2}, {1376*1024}, 0")
    a("s_waitcnt lgkmcnt(0)")
    make_tag()
    for t in range(16):
        if t % 4 == 0 and t:
            a(f"s_add_u32 s{sT0}, s{sT0}, 4096")
        a(f"buffer_load_dwordx4 {R(TA+4*t)}, v{vA0}, {SR(SRD_B)}, s{sT0} offen offset:{1024*(t%4)} nt")
    for t in range(16):
        if t % 4 == 0 and t:
            a(f"s_add_u32 s{sT3}, s{sT3}, 4096")
        a(f"buffer_load_dwordx4 {R(TB+4*t)}, v{vA0}, {SR(SRD_C)}, s{sT3} offen offset:{1024*(t%4)} nt")
    a(f"s_lshl_b32 s{sT0}, s{sH}, 15")
    a(f"s_lshl_b32 s{sT1}, s{sB}, 7")
    a(f"s_add_u32 s{sT0}, s{sT0}, s{sT1}")
    a("s_barrier")
    stamp(2, -1)
    if QSL:
        a(f"s_sleep {QSL}")
    gather_pairs(TC, 4, vA1, sT0, 8192, QP, 1, "qp")
    stamp(3, -1)
    for t in range(1, 4):
        for r in range(4):
            a(f"v_add_f32 v{TC+r}, v{TC+r}, v{TC+4*t+r}")
    for r in range(4):
        a(f"v_mov_b32 v{TC+4+r}, v{TC+r}")
    for r in range(4):
        a(f"v_permlane32_swap_b32 v{TC+r}, v{TC+4+r}")
    for r in range(4):
        a(f"v_add_f32 v{TC+r}, v{TC+r}, v{TC+4+r}")
    for r in range(4):
        a(f"v_cvt_pk_bf16_f32 v{TC+r}, v{TC+r}, v{TC+r}")
    for r in range(4):
        a(f"ds_write_b16 v{vA2}, v{TC+r} offset:{L_QV + 16*r}")
    a("s_waitcnt lgkmcnt(0)")
    a("s_barrier")
    a("s_setprio 0")
    a(f"v_lshrrev_b32 v{vT}, 3, v{vJ}")
    a(f"v_lshlrev_b32 v{vP}, 8, v{vT}")
    a(f"v_lshl_add_u32 v{vP}, v{vG}, 6, v{vP}")
    a(f"v_lshlrev_b32 v{vL}, 12, v{vLANE}")
    a(f"s_cmp_lt_u32 s{sLW}, 168")
    a("s_cbranch_scc1 L_A1_noffn2")
    a(f"v_lshrrev_b32 v{vT}, 5, v{vLANE}")
    a(f"v_mul_u32_u24 v{vA0}, {88*4096}, v{vT}")
    a(f"v_and_b32 v{vT}, 31, v{vLANE}")
    a(f"v_lshl_add_u32 v{vA0}, v{vT}, 4, v{vA0}")
    a(f"s_lshr_b32 s{sT0}, s{sT4}, 1")
    a(f"s_lshl_b32 s{sT0}, s{sT0}, 15")
    a(f"s_and_b32 s{sT1}, s{sT4}, 1")
    a(f"s_lshl_b32 s{sT1}, s{sT1}, 9")
    a(f"s_add_u32 s{sT0}, s{sT0}, s{sT1}")
    gather_pairs(TC, 8, vA0, sT0, 4096, GP, 32, "gp")
    for t in range(1, 8):
        for r in range(4):
            a(f"v_add_f32 v{TC+r}, v{TC+r}, v{TC+4*t+r}")
    G = [TC + r for r in range(4)]
    Uu = [TC + 4 + r for r in range(4)]
    E = [TC + 8 + r for r in range(4)]
    rne(a, G)
    for r in range(4):
        a(f"v_mov_b32 v{Uu[r]}, v{G[r]}")
    for r in range(4):
        a(f"v_permlane32_swap_b32 v{G[r]}, v{Uu[r]}")
    a(f"s_mov_b32 s{sT0}, 0xbdd2d3e8")
    a(f"v_mov_b32 v{vU}, 0xc0135761")
    for r in range(4):
        a(f"v_mul_f32 v{E[r]}, v{G[r]}, v{G[r]}")
    for r in range(4):
        a(f"v_fma_f32 v{E[r]}, v{E[r]}, s{sT0}, v{vU}")
    for r in range(4):
        a(f"v_mul_f32 v{E[r]}, v{E[r]}, v{G[r]}")
    for r in range(4):
        a(f"v_exp_f32 v{E[r]}, v{E[r]}")
    for r in range(4):
        a(f"v_add_f32 v{E[r]}, 1.0, v{E[r]}")
    for r in range(4):
        a(f"v_rcp_f32 v{E[r]}, v{E[r]}")
    for r in range(4):
        a(f"v_mul_f32 v{G[r]}, v{G[r]}, v{E[r]}")
    rne(a, G)
    for r in range(4):
        a(f"v_mul_f32 v{G[r]}, v{G[r]}, v{Uu[r]}")
    for r in range(4):
        a(f"v_cvt_pk_bf16_f32 v{G[r]}, v{G[r]}, v{G[r]}")
    a(f"v_lshrrev_b32 v{vT}, 3, v{vJ}")
    a(f"v_lshlrev_b32 v{vA0}, 8, v{vT}")
    a(f"v_and_b32 v{vT}, 1, v{vG}")
    a(f"v_lshl_add_u32 v{vA0}, v{vT}, 7, v{vA0}")
    a(f"v_and_b32 v{vT}, 7, v{vJ}")
    a(f"v_lshl_add_u32 v{vA0}, v{vT}, 2, v{vA0}")
    for r in range(4):
        a(f"ds_write_b32 v{vA0}, v{G[r]} offset:{L_VEC1 + 32*r}")
    a("s_waitcnt lgkmcnt(0)")
    tile_gemv(a, TB, vP, L_VEC1)
    a(f"s_lshl_b32 s{sT0}, s{sT5}, 18")
    a(f"s_lshl_b32 s{sT1}, s{sT4}, 4")
    a(f"s_add_u32 s{sT0}, s{sT0}, s{sT1}")
    publish_pair(vACC, vL, sT0, DP)
    a.label("L_A1_noffn2")
    stamp(7, -1)
    if EXP & 512:
        a(f"s_andn2_b32 s{sT0}, s{sLW}, 3")
        a(f"s_lshl_b32 s{sT0}, s{sT0}, 12")
        a(f"s_add_u32 s{sT0}, s{sT0}, {CNT}")
        a(f"v_mov_b32 v{vA0}, 0")
        a("s_mov_b64 exec, 1")
        a(f"s_mov_b32 s{sCNT}, {ANUM}")
        stamp(2, -1)
        a.label("L_exp512")
        a(f"v_mov_b32 v{vT}, 1")
        if EXP & 1024:
            a(f"buffer_load_dword v{vT}, v{vA0}, {SR(SRD_WS)}, s{sT0} offen sc1")
        else:
            a(f"buffer_atomic_add v{vT}, v{vA0}, {SR(SRD_WS)}, s{sT0} offen sc0 sc1")
        a("s_waitcnt vmcnt(0)")
        a(f"s_sub_u32 s{sCNT}, s{sCNT}, 1")
        a(f"s_cmp_lg_u32 s{sCNT}, 0")
        a("s_cbranch_scc1 L_exp512")
        stamp(3, -1)
        a("s_mov_b64 exec, -1")
    a(f"v_and_b32 v{vT}, 31, v{vLANE}")
    a(f"v_lshlrev_b32 v{vVO}, 4, v{vT}")
    a(f"v_mov_b32 v{vKO}, 0")
    a(f"v_add_u32 v{vA0}, {OP}, v{vVO}")
    a(f"v_mov_b32 v{vU}, {ML}")
    a(f"v_cmp_gt_u32 vcc, 32, v{vLANE}")
    a(f"s_mov_b64 s[{sEX}:{sEX+1}], vcc")
    a(f"v_cndmask_b32 v{vA0}, v{vU}, v{vA0}, vcc")
    a(f"s_lshl_b32 s{sT1}, s{sB}, 8")
    a(f"s_add_u32 s{sT1}, s{sT1}, {OP}")
    a(f"v_lshlrev_b32 v{vA1}, 4, v{vJ}")
    a(f"v_add_u32 v{vA1}, s{sT1}, v{vA1}")
    a(f"v_cndmask_b32 v{vA1}, v{vU}, v{vA1}, vcc")
    a(f"v_and_b32 v{vT}, 1, v{vG}")
    a(f"v_lshl_add_u32 v{vA1}, v{vT}, 14, v{vA1}")
    a(f"v_lshlrev_b32 v{vA2}, 8, v{vT}")
    a(f"v_bfe_u32 v{vT}, v{vLANE}, 3, 1")
    a(f"v_lshl_add_u32 v{vA2}, v{vT}, 7, v{vA2}")
    a(f"v_and_b32 v{vT}, 7, v{vLANE}")
    a(f"v_lshl_add_u32 v{vA2}, v{vT}, 2, v{vA2}")
    a(f"s_lshl_b32 s{sT2}, s{sS}, 18")
    a(f"s_lshl_b32 s{sT3}, s{sH}, 5")
    a(f"s_add_u32 s{sT2}, s{sT2}, s{sT3}")
    a(f"s_lshl_b32 s{sT3}, s{sB}, 4")
    a(f"s_add_u32 s{sT2}, s{sT2}, s{sT3}")
    a(f"s_lshl_b32 s{sT0}, s{sH}, 15")
    a("s_setprio 3")
    a("s_barrier")
    stamp(4, -1)
    MLr = TC
    a(f"ds_read_b128 {R(MLr)}, v{vKO} offset:{L_PML}")
    a(f"ds_read_b128 {R(MLr+4)}, v{vKO} offset:{L_PML+16}")
    for w in range(4):
        a(f"ds_read_b128 {R(TB+4*w)}, v{vVO} offset:{L_PART + 512*w}")

    def combine(ms, ls, F, outm, outl):
        a(f"v_max_f32 v{outm}, v{ms[0]}, v{ms[1]}")
        a(f"v_max3_f32 v{outm}, v{outm}, v{ms[2]}, v{ms[3]}")
        for w in range(4):
            a(f"v_sub_f32 v{F+w}, v{ms[w]}, v{outm}")
        for w in range(4):
            a(f"v_mul_f32 v{F+w}, s{sL2E}, v{F+w}")
        for w in range(4):
            a(f"v_exp_f32 v{F+w}, v{F+w}")
        a(f"v_mul_f32 v{outl}, v{F}, v{ls[0]}")
        for w in range(1, 4):
            a(f"v_fmac_f32 v{outl}, v{F+w}, v{ls[w]}")

    def combine_o(os_, F):
        for r in range(4):
            a(f"v_mul_f32 v{os_[0]+r}, v{F}, v{os_[0]+r}")
        for w in range(1, 4):
            for r in range(4):
                a(f"v_fmac_f32 v{os_[0]+r}, v{F+w}, v{os_[w]+r}")
    F = TC + 8
    a("s_waitcnt lgkmcnt(4)")
    combine([MLr + 2 * w for w in range(4)], [MLr + 2 * w + 1 for w in range(4)], F, vM, vMN)
    a("s_waitcnt lgkmcnt(0)")
    combine_o([TB + 4 * w for w in range(4)], F)
    for r in range(4):
        src = vM if r % 2 == 0 else vMN
        a(f"v_cndmask_b32 v{TB+r}, v{src}, v{TB+r}, s[{sEX}:{sEX+1}]")
    sanitize(a, TB)
    a(f"v_cmp_gt_u32 vcc, 33, v{vLANE}")
    a(f"s_and_saveexec_b64 s[{sT4}:{sT5}], vcc")
    a(f"buffer_store_dwordx4 {R(TB)}, v{vA0}, {SR(SRD_WS)}, s{sOFF} offen sc1")
    a("s_mov_b64 exec, -1")
    stamp(5, -1)
    GB = TB + 16

    def issue_op():
        a(f"s_mov_b32 s{sT1}, s{sT0}")
        for t in range(4):
            a(f"buffer_load_dwordx4 {R(GB+4*t)}, v{vA1}, {SR(SRD_WS)}, s{sT1} offen sc1")
            if t < 3:
                a(f"s_add_u32 s{sT1}, s{sT1}, 4096")
    poll(a, issue_op, range(GB, GB + 16), sleep=0, name="op")
    stamp(6, -1)
    for t in range(4):
        a(f"v_mov_b32 v{MLr+2*t}, v{GB+4*t}")
        a(f"v_mov_b32 v{MLr+2*t+1}, v{GB+4*t+1}")
    for t in range(4):
        a(f"v_permlane32_swap_b32 v{GB+4*t}, v{MLr+2*t}")
        a(f"v_permlane32_swap_b32 v{GB+4*t+1}, v{MLr+2*t+1}")
    combine([MLr + 2 * w for w in range(4)], [MLr + 2 * w + 1 for w in range(4)], F, vM, vMN)
    a(f"v_rcp_f32 v{vMN}, v{vMN}")
    combine_o([GB + 4 * w for w in range(4)], F)
    for r in range(4):
        a(f"v_mul_f32 v{GB+r}, v{GB+r}, v{vMN}")
    for r in range(4):
        a(f"v_cvt_pk_bf16_f32 v{GB+r}, v{GB+r}, v{GB+r}")
    a(f"s_mov_b64 exec, s[{sEX}:{sEX+1}]")
    for r in range(4):
        a(f"ds_write_b32 v{vA2}, v{GB+r} offset:{L_VEC1 + 32*r}")
    a("s_mov_b64 exec, -1")
    a("s_waitcnt lgkmcnt(0)")
    tile_gemv(a, TA, vP, L_VEC1)
    sanitize(a, vACC)
    a(f"buffer_store_dwordx4 {R(vACC)}, v{vL}, {SR(SRD_WS)}, s{sT2} offen offset:{YP} sc1")
    stamp_flush(7)
    a.label("L_end")
    a("s_endpgm")
    a.label("L_codeend")

    body = a.finish()
    hdr = open("cdna_kernels/" + NAME + ".s.ref").read().split("; @launch")[0]
    nv = 244
    txt = hdr + f"; @launch grid=(256,1,1) block=(384,1,1) lds={L_TOTAL + 4*NL*8192}\n"
    txt += '.amdgcn_target "amdgcn-amd-amdhsa--gfx950"\n.text\n'
    txt += f".globl {NAME}_kernel\n.p2align 8\n.type {NAME}_kernel,@function\n"
    txt += body
    txt += f""".section .rodata,"a"
.p2align 6
.amdhsa_kernel {NAME}_kernel
  .amdhsa_next_free_vgpr {nv}
  .amdhsa_next_free_sgpr 96
  .amdhsa_accum_offset {(nv+3)//4*4}
  .amdhsa_group_segment_fixed_size 0
  .amdhsa_kernarg_size 96
  .amdhsa_user_sgpr_count 2
  .amdhsa_user_sgpr_kernarg_segment_ptr 1
  .amdhsa_system_sgpr_workgroup_id_x 1
  .amdhsa_float_denorm_mode_32 3
.end_amdhsa_kernel
"""
    return txt


if __name__ == "__main__":
    out = sys.argv[1]
    kw = eval("dict(" + (sys.argv[2] if len(sys.argv) > 2 else "") + ")")
    open(out, "w").write(gen(**kw))
```

```python
import sys
sys.path.insert(0, "work")
from asmlib import Asm

NAME = "recurrent_scan__mha_block_cached__geglu_ffn__decode"

QP, GP, YP, OP, DP, ML, CNT = 0, 1024, 2048, 3072, 3584, 3968, 4032
QP2 = 0x100000
GEN = 0x200000
WSZ = 0x201000
L_XN, L_QV, L_PART, L_PML, L_VEC1, L_VEC0, L_TOTAL = 0, 4096, 4352, 6400, 6656, 7168, 8192

LOG2E = 0x3FB8AA3B
NLOG2E = 0xBFB8AA3B
SCALE = 0x3DB504F3

sX, sK, sV, sWQ, sWO, sBX, sWG, sWU, sWD, sOUT, sDBG, sWS = 4, 6, 8, 10, 12, 14, 16, 18, 20, 22, 24, 26
sH, sB, sS, sLW, sPID = 28, 29, 30, 31, 32
sL2E = 33
SRD_A, SRD_B, SRD_C, SRD_WS, SRD_D = 36, 40, 44, 48, 52
sT0, sT1, sT2, sT3, sT4, sT5 = 56, 57, 58, 59, 60, 61
sCNT = 62
sOFF = 63
sEX = 64
sIT = 66
sTAG, sGEN = 34, 35
sST = 70
vLANE, vJ, vG = 1, 2, 3
vMASK = 4
vT, vU, vW, vP, vM, vMN, vL, vKO, vVO, vA0, vA1, vA2 = 8, 9, 10, 11, 12, 13, 14, 15, 16, 17, 18, 19
vS, vACC, vPB0, vPB1, vQB = 20, 24, 28, 32, 36
vWIN = 52
TA, TB, TC = 52, 116, 180


def srd(a, d, ptr, nbytes):
    a(f"s_mov_b32 s{d}, s{ptr}")
    a(f"s_and_b32 s{d+1}, s{ptr+1}, 0xffff")
    if isinstance(nbytes, int):
        a(f"s_mov_b32 s{d+2}, {nbytes:#x}")
    else:
        a(f"s_mov_b32 s{d+2}, {nbytes}")
    a(f"s_mov_b32 s{d+3}, 0x20000")


def R(b, n=4):
    return f"v[{b}:{b+n-1}]"


def SR(b, n=4):
    return f"s[{b}:{b+n-1}]"


DPPM = "row_mask:0xf bank_mask:0xf"


def allreduce(a, regs, tmps, op="v_add_f32", quad=True):
    steps = []
    if quad:
        steps += ["quad_perm:[1,0,3,2]", "quad_perm:[2,3,0,1]"]
    steps += ["row_ror:4", "row_ror:8"]
    for st in steps:
        for r in regs:
            a(f"{op}_dpp v{r}, v{r}, v{r} {st} {DPPM}")
    for sw in ("v_permlane16_swap_b32", "v_permlane32_swap_b32"):
        for r, t in zip(regs, tmps):
            a(f"v_mov_b32 v{t}, v{r}")
        for r, t in zip(regs, tmps):
            a(f"{sw} v{r}, v{t}")
        for r, t in zip(regs, tmps):
            a(f"{op} v{r}, v{r}, v{t}")


def rne(a, regs):
    for r in regs:
        a(f"v_cvt_pk_bf16_f32 v{r}, v{r}, v{r}")
    for r in regs:
        a(f"v_and_b32 v{r}, 0xffff0000, v{r}")


def tile_gemv(a, tbase, vaddr_lds, lds_off, waits=None):
    for k in range(4):
        a(f"ds_read_b128 {R(vQB+4*k)}, v{vaddr_lds} offset:{lds_off+16*k}")
    a("s_waitcnt lgkmcnt(0)")

    def build(t):
        pb = vPB0 if t % 2 == 0 else vPB1
        for r in range(4):
            a(f"v_and_b32 v{pb+r}, v{vQB+t}, v{vMASK+r}")
    build(0)
    for t in range(16):
        if t + 1 < 16:
            build(t + 1)
        pb = vPB0 if t % 2 == 0 else vPB1
        if waits and t in waits:
            a(f"s_waitcnt vmcnt({waits[t]})")
        c = "0" if t == 0 else R(vACC)
        a(f"v_mfma_f32_16x16x32_bf16 {R(vACC)}, {R(tbase+4*t)}, {R(pb)}, {c}")


def sanitize(a, base, n=4):
    for r in range(n):
        a(f"v_min_u32 v{base+r}, -2, v{base+r}")


def poll(a, issue, regs, sleep=0, name="poll"):
    top = a.newlabel(name)
    done = a.newlabel(name + "d")
    a(f"s_mov_b32 s{sCNT}, 0x40000")
    a.label(top)
    issue()
    a("s_waitcnt vmcnt(0)")
    rs = list(regs)
    a(f"v_max_u32 v{vT}, v{rs[0]}, v{rs[1]}" if len(rs) > 1 else f"v_mov_b32 v{vT}, v{rs[0]}")
    rest = rs[2:]
    while rest:
        if len(rest) >= 2:
            a(f"v_max3_u32 v{vT}, v{vT}, v{rest[0]}, v{rest[1]}")
            rest = rest[2:]
        else:
            a(f"v_max_u32 v{vT}, v{vT}, v{rest[0]}")
            rest = rest[1:]
    a(f"v_cmp_eq_u32 vcc, -1, v{vT}")
    a(f"s_cbranch_vccz {done}")
    a(f"s_sub_u32 s{sCNT}, s{sCNT}, 1")
    a(f"s_cbranch_scc1 {done}")
    if sleep:
        a(f"s_sleep {sleep}")
    a(f"s_branch {top}")
    a.label(done)


def gen(DD=3, STAMP=False, NSTAT=22, INFL=16, NL=4, EXP=0, SG=0, EARLY=0, PSL=64, QSL=0, CPF=3, RCL=0, ANUM=8, POL='nt', WPOL='nt'):
    a = Asm()
    stamps = {"n": 0}

    def stamp(k, grp=0):
        if STAMP and (k < 2 or grp == -1 or grp == SG):
            a(f"s_memrealtime s[{sST+2*k}:{sST+2*k+1}]")

    def stamp_flush(nst):
        if not STAMP:
            return
        a(f"s_memrealtime s[{sST+2}:{sST+3}]")
        a("s_waitcnt lgkmcnt(0)")
        a("s_mov_b64 exec, -1")
        srd(a, SRD_D, sWS, 0x20000000)
        a(f"s_mul_i32 s{sT0}, s2, 6")
        a(f"s_add_u32 s{sT0}, s{sT0}, s3")
        a(f"s_lshl_b32 s{sT1}, s{sT0}, 6")
        a(f"s_lshl_b32 s{sT0}, s{sT0}, 4")
        a(f"s_add_u32 s{sT0}, s{sT0}, 0x10000000")
        a(f"s_add_u32 s{sT1}, s{sT1}, 0x11000000")
        a(f"s_getreg_b32 s{sT2}, hwreg(HW_REG_XCC_ID)")
        a(f"s_and_b32 s{sT2}, s{sT2}, 15")
        a(f"s_lshl_b32 s{sT2}, s{sT2}, 28")
        a(f"s_or_b32 s{sT2}, s{sST+1}, s{sT2}")
        a(f"v_mov_b32 v20, s{sST}")
        a(f"v_mov_b32 v21, s{sT2}")
        a(f"v_mov_b32 v22, s{sST+2}")
        a(f"v_mov_b32 v23, s{sST+3}")
        a("v_mov_b32 v17, 0")
        for k in range(8):
            a(f"v_mov_b32 v{24+k}, s{sST+2*k}")
        a(f"v_cmp_eq_u32 vcc, 0, v{vLANE}")
        a(f"s_and_saveexec_b64 s[{sEX}:{sEX+1}], vcc")
        a(f"buffer_store_dwordx4 v[20:23], v17, {SR(SRD_D)}, s{sT0} offen")
        a(f"buffer_store_dwordx4 v[24:27], v17, {SR(SRD_D)}, s{sT1} offen")
        a(f"buffer_store_dwordx4 v[28:31], v17, {SR(SRD_D)}, s{sT1} offen offset:16")

    a.label(f"{NAME}_kernel")
    a("s_cmp_ge_u32 s2, 256")
    a("s_cbranch_scc1 L_end")
    if STAMP:
        for k in range(8):
            a(f"s_mov_b64 s[{sST+2*k}:{sST+2*k+1}], 0")
    stamp(0)
    a("s_load_dwordx16 s[4:19], s[0:1], 0")
    a("s_load_dwordx8 s[20:27], s[0:1], 64")
    a("v_lshrrev_b32 v2, 6, v0")
    a(f"v_and_b32 v{vLANE}, 63, v0")
    a("v_readfirstlane_b32 s3, v2")
    a(f"v_and_b32 v{vJ}, 15, v{vLANE}")
    a(f"v_lshrrev_b32 v{vG}, 4, v{vLANE}")
    a(f"s_bfe_u32 s{sH}, s2, 0x50002")
    a(f"s_lshr_b32 s{sB}, s2, 7")
    a(f"s_and_b32 s{sS}, s2, 3")
    a(f"s_lshl_b32 s{sPID}, s{sB}, 2")
    a(f"s_add_u32 s{sPID}, s{sPID}, s{sS}")
    a(f"s_lshl_b32 s{sLW}, s{sH}, 3")
    a(f"s_add_u32 s{sLW}, s{sLW}, s{sPID}")
    a(f"s_mov_b32 s{sL2E}, {LOG2E:#x}")

    def masks():
        a(f"v_and_b32 v{vT}, 1, v{vLANE}")
        a(f"v_lshlrev_b32 v{vT}, 4, v{vT}")
        a(f"v_mov_b32 v{vU}, 0xffff")
        a(f"v_lshlrev_b32 v{vU}, v{vT}, v{vU}")
        a(f"v_bfe_u32 v{vT}, v{vLANE}, 1, 2")
        for r in range(4):
            a(f"v_cmp_eq_u32 vcc, {r}, v{vT}")
            a(f"v_cndmask_b32 v{vMASK+r}, 0, v{vU}, vcc")

    def flagpoll(nd, soff, vaddr, sleep, lane0):
        ftop = a.newlabel("flag")
        fdone = a.newlabel("flagd")
        a(f"s_mov_b32 s{sCNT}, 0x40000")
        a(f"s_mov_b32 s{sIT}, 0x01010101")
        if lane0:
            a("s_mov_b64 exec, 1")
        a.label(ftop)
        if nd == 2:
            a(f"buffer_load_dwordx2 v[{vT}:{vU}], v{vaddr}, {SR(SRD_D)}, {soff} offen sc1")
            a("s_waitcnt vmcnt(0)")
            a(f"v_and_b32 v{vT}, v{vT}, v{vU}")
        else:
            a(f"buffer_load_dword v{vT}, v{vaddr}, {SR(SRD_D)}, {soff} offen sc1")
            a("s_waitcnt vmcnt(0)")
        a(f"v_cmp_ne_u32 vcc, s{sIT}, v{vT}")
        a(f"s_cbranch_vccz {fdone}")
        a(f"s_sub_u32 s{sCNT}, s{sCNT}, 1")
        a(f"s_cbranch_scc1 {fdone}")
        a(f"s_sleep {sleep}")
        a(f"s_branch {ftop}")
        a.label(fdone)
        if lane0:
            a("s_mov_b64 exec, -1")

    a("s_cmp_eq_u32 s3, 0")
    a("s_cbranch_scc1 L_A0")
    a("s_cmp_eq_u32 s3, 1")
    a("s_cbranch_scc1 L_A1")

    if CPF:
        a(f"s_getpc_b64 s[{sT0}:{sT1}]")
        a.label("L_pc")
        a(f"s_sub_u32 s{sT0}, s{sT0}, L_pc-{NAME}_kernel")
        a(f"s_subb_u32 s{sT1}, s{sT1}, 0")
        a(f"v_subrev_u32 v{vT}, 128, v0")
        a(f"v_lshlrev_b32 v{vT}, 4, v{vT}")
        for k in range(CPF):
            a(f"v_min_u32 v{vU}, L_codeend-{NAME}_kernel-16, v{vT}")
            a(f"global_load_dwordx4 {R(vWIN+4*k)}, v{vU}, s[{sT0}:{sT1}]")
            a(f"v_add_u32 v{vT}, 4096, v{vT}")
    a(f"v_and_b32 v{vT}, 3, v{vLANE}")
    a(f"v_lshlrev_b32 v{vKO}, 4, v{vT}")
    a(f"v_bfe_u32 v{vT}, v{vLANE}, 2, 2")
    a(f"v_lshl_add_u32 v{vKO}, v{vT}, 8, v{vKO}")
    a(f"v_lshl_add_u32 v{vKO}, v{vG}, 6, v{vKO}")
    a(f"v_lshlrev_b32 v{vVO}, 4, v{vLANE}")
    a(f"s_lshl_b32 s{sT0}, s{sB}, 5")
    a(f"s_add_u32 s{sT0}, s{sT0}, s{sH}")
    a(f"s_lshl_b32 s{sOFF}, s{sT0}, 21")
    a(f"s_lshl_b32 s{sT0}, s{sS}, 2")
    a(f"s_add_u32 s{sT0}, s{sT0}, s3")
    a(f"s_sub_u32 s{sT0}, s{sT0}, 2")
    a(f"s_lshl_b32 s{sT0}, s{sT0}, 12")
    a(f"s_add_u32 s{sOFF}, s{sOFF}, s{sT0}")
    a("s_waitcnt lgkmcnt(0)")
    srd(a, SRD_A, sK, 0x8000000)
    srd(a, SRD_B, sV, 0x8000000)

    fifo = []
    sSL = [86 + k for k in range(DD)]
    sDYN, sNS, sCA, sCP, sCV = 90, 91, 67, 68, 69
    assert not RCL or (NSTAT - DD - NL) % DD == 0
    sRET = 92
    vCL = [vWIN + 32 * (DD + 1) + k for k in range(DD)]
    vCA = vCL[-1] + 1
    NDYN = 512 - 16 * NSTAT
    BAD = 0x40000000

    def kreg(slot, m):
        return vWIN + 32 * slot + 4 * m

    def vreg(slot, m):
        return vWIN + 32 * slot + 16 + 4 * m

    def issueK(slot, so):
        for m in range(4):
            a(f"buffer_load_dwordx4 {R(kreg(slot, m))}, v{vKO}, {SR(SRD_A)}, s{so} offen offset:{1024*m} {POL}")
            fifo.append(("K", slot))

    def issueV(slot, so):
        for m in range(4):
            a(f"buffer_load_dwordx4 {R(vreg(slot, m))}, v{vVO}, {SR(SRD_B)}, s{so} offen offset:{1024*m} {POL}")
            fifo.append(("V", slot))

    def issueC(slot):
        if EXP & 4:
            a(f"v_mov_b32 v{vCL[slot]}, -8")
            return
        if RCL and slot:
            return
        a(f"v_mov_b32 v{vCL[slot]}, {DD if RCL else 1}")
        a(f"buffer_atomic_add v{vCL[slot]}, v{vCA}, {SR(SRD_WS)}, s{sCP} offen sc0 sc1")
        fifo.append(("C", slot))

    def waitfor(tag):
        last = max(i for i, t in enumerate(fifo) if t == tag)
        n = len(fifo) - 1 - last
        assert n < 64
        a(f"s_waitcnt vmcnt({n})")
        del fifo[:last + 1]

    def process(slot, fromlds=False):
        if fromlds:
            for m in range(8):
                a(f"ds_read_b128 {R(kreg(slot, m))}, v{vA2} offset:{1024*m}")
            a(f"v_add_u32 v{vA2}, 0x2000, v{vA2}")
            a("s_waitcnt lgkmcnt(4)")
        else:
            a(f"s_cmp_ge_u32 s{sSL[slot]}, {BAD:#x}")
            a("s_cbranch_scc1 L_sdone")
            waitfor(("K", slot))
        for m in range(4):
            c = "0" if m == 0 else R(vS)
            if not EXP & 2:
                a(f"v_mfma_f32_16x16x32_bf16 {R(vS)}, {R(kreg(slot, m))}, {R(vQB+4*m)}, {c}")
        if not fromlds:
            so = sSL[slot]
            if not RCL or slot == 0:
                a(f"v_readfirstlane_b32 s{sCV}, v{vCL[slot]}")
            a(f"s_add_u32 s{sCV}, s{sCV}, 1")
            a(f"s_lshl_b32 s{sT1}, s{sCV}, 12")
            a(f"s_add_u32 s{sT1}, s{sT1}, s{sDYN}")
            a(f"s_cmp_lt_u32 s{sCV}, {NDYN}")
            a(f"s_cselect_b32 s{sT1}, s{sT1}, {BAD:#x}")
            a(f"s_sub_i32 s{sNS}, s{sNS}, 1")
            a(f"s_cmp_ge_i32 s{sNS}, 0")
            a(f"s_cselect_b32 s{so}, s{sOFF}, s{sT1}")
            a(f"s_add_u32 s{sOFF}, s{sOFF}, 0x10000")
            a(f"s_cmp_lt_i32 s{sNS}, {DD}")
            a(f"s_cselect_b32 s{sCP}, s{sCA}, {BAD:#x}")
            issueC(slot)
            issueK(slot, so)
        if not EXP & 2:
            a(f"v_mov_b32_dpp v{vT}, v{vS} quad_perm:[0,0,0,0] {DPPM}")
            for e in range(1, 4):
                a(f"v_add_f32_dpp v{vT}, v{vS+e}, v{vT} quad_perm:[{e},{e},{e},{e}] {DPPM}")
            rne(a, [vT])
            a(f"v_mul_f32 v{vT}, {SCALE:#x}, v{vT}")
            rne(a, [vT])
            a(f"v_cmp_gt_f32 vcc, v{vT}, v{vM}")
            back = a.newlabel("back")
            a(f"s_cbranch_vccz {back}")
            a(f"s_call_b64 s[{sRET}:{sRET+1}], L_slow")
            a.label(back)
            a(f"v_fma_f32 v{vT}, v{vT}, s{sL2E}, v{vMN}")
            a(f"v_exp_f32 v{vT}, v{vT}")
            a(f"v_add_f32 v{vL}, v{vL}, v{vT}")
            a(f"v_cvt_pk_bf16_f32 v{vP}, v{vT}, v{vT}")
        if fromlds:
            a("s_waitcnt lgkmcnt(0)")
        else:
            waitfor(("V", slot))

        def build(m):
            pb = vPB0 if m % 2 == 0 else vPB1
            for r in range(4):
                a(f"v_and_b32_dpp v{pb+r}, v{vP}, v{vMASK+r} row_newbcast:{4*m} {DPPM}")
        if not EXP & 2:
            build(0)
            for m in range(4):
                if m + 1 < 4:
                    build(m + 1)
                pb = vPB0 if m % 2 == 0 else vPB1
                a(f"v_mfma_f32_16x16x32_bf16 {R(vACC)}, {R(vreg(slot, m))}, {R(pb)}, {R(vACC)}")
        if not fromlds:
            issueV(slot, so)

    srd(a, SRD_WS, sWS, WSZ)
    a(f"s_sub_u32 s{sT5}, s3, 2")
    a(f"s_mul_i32 s{sT5}, s{sT5}, {NL*8192}")
    a(f"s_add_u32 s{sT5}, s{sT5}, {L_TOTAL}")
    a(f"v_add_u32 v{vA2}, s{sT5}, v{vVO}")
    a(f"v_mov_b32 v{vCA}, {BAD:#x}")
    a(f"v_cmp_eq_u32 vcc, 0, v{vLANE}")
    a(f"v_cndmask_b32 v{vCA}, v{vCA}, 0, vcc")
    a(f"s_mov_b32 s{sCP}, {BAD:#x}")
    a("s_waitcnt vmcnt(0)")
    a("s_barrier")
    nfl = 0
    for k in range(DD):
        a(f"s_mov_b32 s{sSL[k]}, s{sOFF}")
        a(f"s_add_u32 s{sOFF}, s{sOFF}, 0x10000")
        for fn in (issueK, issueV):
            if nfl >= INFL:
                a(f"s_waitcnt vmcnt({INFL-4})")
                nfl -= 4
            if fn is issueK:
                issueC(k)
            fn(k, sSL[k])
            nfl += 4
    masks()
    a(f"s_andn2_b32 s{sCA}, s{sLW}, 3")
    a(f"s_lshl_b32 s{sCA}, s{sCA}, 12")
    a(f"s_add_u32 s{sCA}, s{sCA}, {CNT}")
    if not NDYN:
        a(f"s_mov_b32 s{sCA}, {BAD:#x}")
    a(f"s_lshl_b32 s{sT0}, s{sB}, 5")
    a(f"s_add_u32 s{sT0}, s{sT0}, s{sH}")
    a(f"s_lshl_b32 s{sDYN}, s{sT0}, 21")
    a(f"s_add_u32 s{sDYN}, s{sDYN}, {16*NSTAT*4096}")
    a(f"s_mov_b32 s{sNS}, {NSTAT - DD - NL}")
    for r in range(4):
        a(f"v_mov_b32 v{vACC+r}, 0")
    a(f"v_mov_b32 v{vL}, 0")
    a(f"v_mov_b32 v{vM}, 0xff800000")
    a(f"v_mov_b32 v{vMN}, 0")
    a(f"v_and_b32 v{vT}, 3, v{vJ}")
    a(f"v_lshl_add_u32 v{vT}, v{vG}, 2, v{vT}")
    a(f"v_lshlrev_b32 v{vA0}, 4, v{vT}")
    a(f"v_lshrrev_b32 v{vA1}, 2, v{vJ}")
    if NL:
        a(f"s_mov_b32 s{sIT}, {NL}")
        a.label("L_lpro")
        for which in "KV":
            a(f"s_mov_b32 m0, s{sT5}")
            a(f"s_waitcnt vmcnt({INFL-4})")
            for m in range(4):
                if which == "K":
                    a(f"buffer_load_dwordx4 v{vKO}, {SR(SRD_A)}, s{sOFF} offen offset:{1024*m} {POL} lds")
                else:
                    a(f"buffer_load_dwordx4 v{vVO}, {SR(SRD_B)}, s{sOFF} offen offset:{1024*m} {POL} lds")
            a(f"s_add_u32 s{sT5}, s{sT5}, 4096")
        a(f"s_add_u32 s{sOFF}, s{sOFF}, 0x10000")
        a(f"s_sub_u32 s{sIT}, s{sIT}, 1")
        a(f"s_cmp_lg_u32 s{sIT}, 0")
        a("s_cbranch_scc1 L_lpro")
    a(f"s_mov_b32 s{sIT}, {NL}")
    a("s_barrier")
    stamp(2, -1)
    a(f"ds_read_b128 {R(vS)}, v{vA0} offset:{L_QV}")
    a("s_waitcnt lgkmcnt(0)")
    for m in range(4):
        a(f"v_cmp_eq_u32 vcc, {m}, v{vA1}")
        for r in range(4):
            a(f"v_cndmask_b32 v{vQB+4*m+r}, 0, v{vS+r}, vcc")
    state0 = list(fifo)
    a.label("L_loop")
    for k in range(DD):
        process(k)
    assert fifo == state0, (fifo, state0)
    if STAMP:
        n0 = NSTAT - DD - NL
        for k, rounds in ((5, 9 // DD), (6, 15 // DD), (7, 21 // DD)):
            lb = a.newlabel("ps")
            a(f"s_cmp_lg_i32 s{sNS}, {n0 - rounds*DD}")
            a(f"s_cbranch_scc1 {lb}")
            stamp(k, -1)
            a.label(lb)
    if NL:
        a(f"s_cmp_eq_u32 s{sIT}, 0")
        a("s_cbranch_scc1 L_loop")
        a(f"s_waitcnt vmcnt({len(fifo)})")
        a.label("L_lloop")
        process(DD, fromlds=True)
        a(f"s_sub_u32 s{sIT}, s{sIT}, 1")
        a(f"s_cmp_lg_u32 s{sIT}, 0")
        a("s_cbranch_scc1 L_lloop")
        stamp(4, -1)
    a("s_branch L_loop")
    a.label("L_slow")
    a(f"v_max_f32_dpp v{vU}, v{vT}, v{vT} row_ror:4 {DPPM}")
    a(f"v_max_f32_dpp v{vU}, v{vU}, v{vU} row_ror:8 {DPPM}")
    a(f"v_mov_b32 v{vW}, v{vU}")
    a(f"v_permlane16_swap_b32 v{vU}, v{vW}")
    a(f"v_max_f32 v{vU}, v{vU}, v{vW}")
    a(f"v_mov_b32 v{vW}, v{vU}")
    a(f"v_permlane32_swap_b32 v{vU}, v{vW}")
    a(f"v_max3_f32 v{vU}, v{vU}, v{vW}, v{vM}")
    a(f"v_sub_f32 v{vW}, v{vM}, v{vU}")
    a(f"v_mul_f32 v{vW}, s{sL2E}, v{vW}")
    a(f"v_exp_f32 v{vW}, v{vW}")
    a(f"v_mov_b32 v{vM}, v{vU}")
    a(f"v_mul_f32 v{vMN}, {NLOG2E:#x}, v{vU}")
    for r in range(4):
        a(f"v_mul_f32 v{vACC+r}, v{vACC+r}, v{vW}")
    a(f"v_mul_f32 v{vL}, v{vL}, v{vW}")
    a(f"s_setpc_b64 s[{sRET}:{sRET+1}]")
    a.label("L_sdone")
    stamp(3, -1)
    allreduce(a, [vL], [vW], quad=False)
    a(f"v_lshlrev_b32 v{vA0}, 3, v{vG}")
    a(f"v_add_u32 v{vA0}, v{vA0}, v{vJ}")
    a(f"v_lshlrev_b32 v{vA0}, 4, v{vA0}")
    a(f"s_sub_u32 s{sT0}, s3, 2")
    a(f"s_lshl_b32 s{sT1}, s{sT0}, 9")
    a(f"v_add_u32 v{vA0}, s{sT1}, v{vA0}")
    a(f"s_lshl_b32 s{sT1}, s{sT0}, 3")
    a(f"v_mov_b32 v{vA1}, s{sT1}")
    a(f"v_mov_b32 v{vMN}, v{vL}")
    a(f"v_cmp_gt_u32 vcc, 8, v{vJ}")
    a(f"s_and_saveexec_b64 s[{sEX}:{sEX+1}], vcc")
    a(f"ds_write_b128 v{vA0}, {R(vACC)} offset:{L_PART}")
    a(f"ds_write_b64 v{vA1}, v[{vM}:{vMN}] offset:{L_PML}")
    a("s_waitcnt lgkmcnt(0)")
    a("s_barrier")
    stamp_flush(4)
    a("s_endpgm")

    def load_tag():
        a(f"s_mov_b32 s{sT2}, {GEN:#x}")
        a(f"s_load_dword s{sTAG}, s[{sWS}:{sWS+1}], s{sT2}")

    def make_tag():
        a(f"s_add_u32 s{sGEN}, s{sTAG}, 1")
        a(f"s_or_b32 s{sTAG}, s{sGEN}, 0x80000000")

    def publish_pair(src, voff, soff, off):
        a(f"s_add_u32 s{sIT}, s{soff}, {QP2:#x}")
        for r in range(4):
            a(f"v_xor_b32 v{vS+r}, s{sTAG}, v{src+r}")
        a(f"buffer_store_dwordx4 {R(src)}, v{voff}, {SR(SRD_WS)}, s{soff} offen offset:{off} sc1")
        a(f"buffer_store_dwordx4 {R(vS)}, v{voff}, {SR(SRD_WS)}, s{sIT} offen offset:{off} sc1")

    def gather_pairs(dst, n, voff, soff, step, off, sleep, name):
        top = a.newlabel(name)
        done = a.newlabel(name + "d")
        a(f"s_mov_b32 s{sCNT}, 0x40000")
        a.label(top)
        a(f"s_mov_b32 s{sT1}, s{soff}")
        for t in range(n):
            a(f"s_add_u32 s{sIT}, s{sT1}, {QP2:#x}")
            a(f"buffer_load_dwordx4 {R(dst+4*t)}, v{voff}, {SR(SRD_WS)}, s{sT1} offen offset:{off} sc1")
            a(f"buffer_load_dwordx4 {R(dst+4*n+4*t)}, v{voff}, {SR(SRD_WS)}, s{sIT} offen offset:{off} sc1")
            if t < n - 1:
                a(f"s_add_u32 s{sT1}, s{sT1}, {step}")
        a("s_waitcnt vmcnt(0)")
        m = dst + 4 * n
        for r in range(4 * n):
            a(f"v_xor_b32 v{m+r}, v{m+r}, v{dst+r}")
        a(f"v_and_b32 v{vT}, v{m}, v{m+1}")
        a(f"v_or_b32 v{vU}, v{m}, v{m+1}")
        for r in range(2, 4 * n, 2):
            a(f"v_or3_b32 v{vU}, v{vU}, v{m+r}, v{m+r+1}")
            a(f"v_and_b32 v{m+r}, v{m+r}, v{m+r+1}")
            a(f"v_and_b32 v{vT}, v{vT}, v{m+r}")
        a(f"v_cmp_ne_u32 vcc, s{sTAG}, v{vT}")
        a(f"v_cmp_ne_u32 s[{sT2}:{sT3}], s{sTAG}, v{vU}")
        a(f"s_or_b64 vcc, vcc, s[{sT2}:{sT3}]")
        a(f"s_cbranch_vccz {done}")
        a(f"s_sub_u32 s{sCNT}, s{sCNT}, 1")
        a(f"s_cbranch_scc1 {done}")
        if sleep:
            a(f"s_sleep {sleep}")
        a(f"s_branch {top}")
        a.label(done)

    a.label("L_A0")
    if EXP & 8:
        a("s_endpgm")
    a("s_setprio 3")
    a(f"v_lshlrev_b32 v{vVO}, 4, v{vLANE}")
    for r in range(4):
        a(f"v_mov_b32 v{vS+r}, -1")
    a(f"s_lshl_b32 s{sOFF}, s{sLW}, 12")
    a(f"v_lshlrev_b32 v{vA0}, 17, v{vG}")
    a(f"v_lshl_add_u32 v{vA0}, v{vJ}, 4, v{vA0}")
    a(f"s_lshl_b32 s{sT0}, s{sPID}, 19")
    a(f"s_lshl_b32 s{sT1}, s{sH}, 8")
    a(f"s_add_u32 s{sT0}, s{sT0}, s{sT1}")
    a("s_waitcnt lgkmcnt(0)")
    srd(a, SRD_A, sX, 2048)
    a(f"buffer_load_dwordx4 {R(vPB0)}, v{vVO}, {SR(SRD_A)}, 0 offen")
    a(f"buffer_load_dwordx4 {R(vPB1)}, v{vVO}, {SR(SRD_A)}, 0 offen offset:1024")
    srd(a, SRD_WS, sWS, WSZ)
    load_tag()
    a(f"buffer_store_dwordx4 {R(vS)}, v{vVO}, {SR(SRD_WS)}, s{sOFF} offen offset:{YP} sc1")
    a("s_mov_b32 exec_hi, 0xff000000")
    a(f"buffer_store_dwordx4 {R(vS)}, v{vVO}, {SR(SRD_WS)}, s{sOFF} offen offset:{OP} sc1")
    a("s_mov_b64 exec, -1")
    srd(a, SRD_B, sWQ, 0x400000)
    for t in range(16):
        a(f"buffer_load_dwordx4 {R(TA+4*t)}, v{vA0}, {SR(SRD_B)}, s{sT0} offen {WPOL}")
        if t < 15:
            a(f"s_add_u32 s{sT0}, s{sT0}, 8192")
    masks()
    a("s_waitcnt vmcnt(18)")
    stamp(2)
    X = [TC + i for i in range(16)]
    for bb, src in ((0, vPB0), (1, vPB1)):
        for k in range(4):
            a(f"v_lshlrev_b32 v{X[bb*8+2*k]}, 16, v{src+k}")
            a(f"v_and_b32 v{X[bb*8+2*k+1]}, 0xffff0000, v{src+k}")
    S0, S1, Tm0, Tm1 = TC + 16, TC + 17, TC + 18, TC + 19
    Dv = [TC + 20 + i for i in range(16)]
    for bb, s in ((0, S0), (1, S1)):
        a(f"v_add_f32 v{s}, v{X[bb*8]}, v{X[bb*8+1]}")
    for k in range(2, 8):
        for bb, s in ((0, S0), (1, S1)):
            a(f"v_add_f32 v{s}, v{s}, v{X[bb*8+k]}")
    allreduce(a, [S0, S1], [Tm0, Tm1])
    a(f"v_mul_f32 v{S0}, 0x3b000000, v{S0}")
    a(f"v_mul_f32 v{S1}, 0x3b000000, v{S1}")
    V0, V1 = TC + 36, TC + 37
    for bb, s in ((0, S0), (1, S1)):
        for k in range(8):
            a(f"v_sub_f32 v{Dv[bb*8+k]}, v{X[bb*8+k]}, v{s}")
    for bb, v in ((0, V0), (1, V1)):
        a(f"v_mul_f32 v{v}, v{Dv[bb*8]}, v{Dv[bb*8]}")
    for k in range(1, 8):
        for bb, v in ((0, V0), (1, V1)):
            a(f"v_fmac_f32 v{v}, v{Dv[bb*8+k]}, v{Dv[bb*8+k]}")
    allreduce(a, [V0, V1], [Tm0, Tm1])
    a(f"v_mul_f32 v{V0}, 0x3b000000, v{V0}")
    a(f"v_mul_f32 v{V1}, 0x3b000000, v{V1}")
    rne(a, [S0, S1, V0, V1])
    a(f"v_add_f32 v{V0}, 0x3727c5ac, v{V0}")
    a(f"v_add_f32 v{V1}, 0x3727c5ac, v{V1}")
    rne(a, [V0, V1])
    a(f"v_sqrt_f32 v{V0}, v{V0}")
    a(f"v_sqrt_f32 v{V1}, v{V1}")
    rne(a, [V0, V1])
    a(f"v_rcp_f32 v{V0}, v{V0}")
    a(f"v_rcp_f32 v{V1}, v{V1}")
    for bb, s in ((0, S0), (1, S1)):
        for k in range(8):
            a(f"v_sub_f32 v{Dv[bb*8+k]}, v{X[bb*8+k]}, v{s}")
    rne(a, Dv)
    for bb, v in ((0, V0), (1, V1)):
        for k in range(8):
            a(f"v_mul_f32 v{Dv[bb*8+k]}, v{Dv[bb*8+k]}, v{v}")
    for d in Dv:
        a(f"v_cvt_pk_bf16_f32 v{d}, v{d}, v{d}")
    a(f"v_lshlrev_b32 v{vA1}, 5, v{vLANE}")
    for bb in range(2):
        for k in range(2):
            a(f"ds_write_b128 v{vA1}, {R(Dv[bb*8+4*k])} offset:{L_XN + bb*2048 + 16*k}")
    a(f"s_cmp_ge_u32 s{sLW}, 88")
    a(f"s_cselect_b32 s{sT0}, 88, 0")
    a(f"s_cselect_b32 s{SRD_C}, s{sWU}, s{sWG}")
    a(f"s_cselect_b32 s{SRD_C+1}, s{sWU+1}, s{sWG+1}")
    a(f"s_and_b32 s{SRD_C+1}, s{SRD_C+1}, 0xffff")
    a(f"s_sub_u32 s{sT0}, s{sLW}, s{sT0}")
    a(f"s_cmp_lt_u32 s{sLW}, 176")
    a(f"s_cselect_b32 s{SRD_C+2}, {512*2752}, 0")
    a(f"s_mov_b32 s{SRD_C+3}, 0x20000")
    a(f"s_lshr_b32 s{sT1}, s{sT0}, 3")
    a(f"s_and_b32 s{sT5}, s{sT0}, 7")
    a(f"s_mul_i32 s{sT3}, s{sT5}, {64*2752}")
    a(f"s_lshl_b32 s{sT4}, s{sT1}, 8")
    a(f"s_add_u32 s{sT3}, s{sT3}, s{sT4}")
    a(f"v_mul_u32_u24 v{vA0}, {16*2752}, v{vG}")
    a(f"v_lshl_add_u32 v{vA0}, v{vJ}, 4, v{vA0}")
    a(f"s_lshl_b32 s{sT4}, s{sT1}, 4")
    a(f"v_add_u32 v{vT}, s{sT4}, v{vJ}")
    a(f"v_cmp_gt_u32 vcc, 172, v{vT}")
    a(f"v_mov_b32 v{vU}, 0x40000000")
    a(f"v_cndmask_b32 v{vA0}, v{vU}, v{vA0}, vcc")
    for t in range(16):
        a(f"buffer_load_dwordx4 {R(TB+4*t)}, v{vA0}, {SR(SRD_C)}, s{sT3} offen {WPOL}")
        if t < 15:
            a(f"s_add_u32 s{sT3}, s{sT3}, 2752")
    a(f"v_lshrrev_b32 v{vT}, 3, v{vJ}")
    a(f"v_lshlrev_b32 v{vKO}, 11, v{vT}")
    a(f"v_lshl_add_u32 v{vKO}, v{vG}, 6, v{vKO}")
    a(f"s_lshl_b32 s{sT0}, s{sPID}, 8")
    a(f"v_add_u32 v{vA1}, s{sT0}, v{vKO}")
    a("s_waitcnt lgkmcnt(0)")
    make_tag()
    if EARLY:
        a("s_barrier")
    tile_gemv(a, TA, vA1, L_XN, waits={0: 28, 4: 24, 8: 20, 12: 16})
    publish_pair(vACC, vVO, sOFF, QP)
    if not EARLY:
        a("s_barrier")
    stamp(3)
    a(f"s_cmp_ge_u32 s{sLW}, 176")
    a("s_cbranch_scc1 L_A0_noffn1")
    a(f"s_lshl_b32 s{sT0}, s{sT5}, 8")
    a(f"v_add_u32 v{vA1}, s{sT0}, v{vKO}")
    tile_gemv(a, TB, vA1, L_XN, waits={0: 2})
    publish_pair(vACC, vVO, sOFF, GP)
    a.label("L_A0_noffn1")
    stamp(4)
    a("s_setprio 0")
    a(f"s_lshr_b32 s{sT0}, s{sLW}, 6")
    a(f"s_lshl_b32 s{sT0}, s{sT0}, 7")
    a(f"s_bfe_u32 s{sT1}, s{sLW}, 0x20004")
    a(f"s_lshl_b32 s{sT1}, s{sT1}, 5")
    a(f"s_add_u32 s{sT0}, s{sT0}, s{sT1}")
    a(f"s_bfe_u32 s{sT1}, s{sLW}, 0x10003")
    a(f"s_lshl_b32 s{sT1}, s{sT1}, 9")
    a(f"s_add_u32 s{sT0}, s{sT0}, s{sT1}")
    a(f"s_and_b32 s{sT1}, s{sLW}, 7")
    a(f"s_add_u32 s{sT0}, s{sT0}, s{sT1}")
    a(f"v_and_b32 v{vT}, 3, v{vLANE}")
    a(f"v_lshlrev_b32 v{vT}, 3, v{vT}")
    a(f"v_add_u32 v{vT}, s{sT0}, v{vT}")
    a(f"v_lshlrev_b32 v{vA2}, 1, v{vT}")
    a(f"buffer_load_ushort v{vP}, v{vA2}, {SR(SRD_A)}, 0 offen")
    for r in range(4):
        a(f"v_mov_b32 v{TA+r}, 0")
    a("s_barrier")
    a("s_mov_b32 exec_lo, 0x3fffff")
    a("s_mov_b32 exec_hi, 0")
    a(f"s_sleep {PSL}")
    gather_pairs(TA, 1, vVO, sOFF, 0, DP, PSL, "dp")
    a("s_mov_b64 exec, -1")
    stamp(5)

    def reduce_select(dst):
        allreduce(a, [TA + r for r in range(4)], [TA + 4 + r for r in range(4)])
        a(f"v_and_b32 v{vT}, 3, v{vLANE}")
        a(f"v_mov_b32 v{dst}, v{TA}")
        for r in range(1, 4):
            a(f"v_cmp_eq_u32 vcc, {r}, v{vT}")
            a(f"v_cndmask_b32 v{dst}, v{dst}, v{TA+r}, vcc")
    reduce_select(vM)
    rne(a, [vM])
    a(f"v_mul_f32 v{vU}, {NLOG2E:#x}, v{vM}")
    a(f"v_exp_f32 v{vU}, v{vU}")
    a(f"v_add_f32 v{vU}, 1.0, v{vU}")
    a(f"v_rcp_f32 v{vU}, v{vU}")
    a(f"v_mul_f32 v{vM}, v{vM}, v{vU}")
    rne(a, [vM])
    a(f"v_lshlrev_b32 v{vP}, 16, v{vP}")
    srd(a, SRD_B, sOUT, 2048)
    stamp(6)
    a("s_setprio 3")
    a("s_barrier")

    def issue_yp():
        a(f"buffer_load_dwordx4 {R(TA)}, v{vVO}, {SR(SRD_WS)}, s{sOFF} offen offset:{YP} sc1")
    poll(a, issue_yp, range(TA, TA + 4), sleep=0, name="yp")
    stamp(7)
    reduce_select(vL)
    rne(a, [vL])
    a(f"v_mul_f32 v{vL}, v{vL}, v{vM}")
    rne(a, [vL])
    a(f"v_add_f32 v{vL}, v{vL}, v{vP}")
    a(f"v_cvt_pk_bf16_f32 v{vL}, v{vL}, v{vL}")
    a(f"v_cmp_gt_u32 vcc, 4, v{vLANE}")
    a(f"s_and_saveexec_b64 s[{sEX}:{sEX+1}], vcc")
    a(f"buffer_store_short v{vL}, v{vA2}, {SR(SRD_B)}, 0 offen")
    a(f"s_cmp_lg_u32 s{sLW}, 0")
    a("s_cbranch_scc1 L_A0_nogen")
    a("s_mov_b64 exec, 1")
    a(f"v_mov_b32 v{vT}, s{sGEN}")
    a(f"v_mov_b32 v{vU}, {GEN:#x}")
    a(f"buffer_store_dword v{vT}, v{vU}, {SR(SRD_WS)}, 0 offen sc1")
    a.label("L_A0_nogen")
    stamp_flush(7)
    a("s_endpgm")

    a.label("L_A1")
    if EXP & 8:
        a("s_endpgm")
    a("s_setprio 2")
    masks()
    a(f"s_lshl_b32 s{sOFF}, s{sLW}, 12")
    a(f"v_lshlrev_b32 v{vA0}, 14, v{vG}")
    a(f"v_lshl_add_u32 v{vA0}, v{vJ}, 4, v{vA0}")
    a(f"s_lshl_b32 s{sT0}, s{sH}, 17")
    a(f"s_lshl_b32 s{sT1}, s{sB}, 16")
    a(f"s_add_u32 s{sT0}, s{sT0}, s{sT1}")
    a(f"s_lshl_b32 s{sT1}, s{sS}, 8")
    a(f"s_add_u32 s{sT0}, s{sT0}, s{sT1}")
    a(f"v_lshrrev_b32 v{vT}, 5, v{vLANE}")
    a(f"v_lshlrev_b32 v{vA1}, 12, v{vT}")
    a(f"v_bfe_u32 v{vT}, v{vLANE}, 3, 2")
    a(f"v_lshl_add_u32 v{vA1}, v{vT}, 8, v{vA1}")
    a(f"v_lshlrev_b32 v{vA2}, 6, v{vT}")
    a(f"v_and_b32 v{vT}, 7, v{vLANE}")
    a(f"v_lshl_add_u32 v{vA1}, v{vT}, 4, v{vA1}")
    a(f"v_lshl_add_u32 v{vA2}, v{vT}, 1, v{vA2}")
    a(f"s_sub_u32 s{sT1}, s{sLW}, 168")
    a(f"s_and_b32 s{sT1}, s{sT1}, 0xff")
    a(f"s_lshr_b32 s{sT4}, s{sT1}, 2")
    a(f"s_and_b32 s{sT5}, s{sT1}, 3")
    a(f"s_lshl_b32 s{sT3}, s{sT4}, 16")
    a(f"s_lshl_b32 s{sT1}, s{sT5}, 8")
    a(f"s_add_u32 s{sT3}, s{sT3}, s{sT1}")
    a("s_waitcnt lgkmcnt(0)")
    srd(a, SRD_WS, sWS, WSZ)
    load_tag()
    srd(a, SRD_B, sWO, 0x400000)
    srd(a, SRD_C, sWD, 1376 * 1024)
    a(f"s_cmp_ge_u32 s{sLW}, 168")
    a(f"s_cselect_b32 s{SRD_C+2}, {1376*1024}, 0")
    a("s_waitcnt lgkmcnt(0)")
    make_tag()
    for t in range(16):
        if t % 4 == 0 and t:
            a(f"s_add_u32 s{sT0}, s{sT0}, 4096")
        a(f"buffer_load_dwordx4 {R(TA+4*t)}, v{vA0}, {SR(SRD_B)}, s{sT0} offen offset:{1024*(t%4)} {WPOL}")
    for t in range(16):
        if t % 4 == 0 and t:
            a(f"s_add_u32 s{sT3}, s{sT3}, 4096")
        a(f"buffer_load_dwordx4 {R(TB+4*t)}, v{vA0}, {SR(SRD_C)}, s{sT3} offen offset:{1024*(t%4)} {WPOL}")
    a(f"s_lshl_b32 s{sT0}, s{sH}, 15")
    a(f"s_lshl_b32 s{sT1}, s{sB}, 7")
    a(f"s_add_u32 s{sT0}, s{sT0}, s{sT1}")
    a("s_barrier")
    stamp(2, -1)
    if QSL:
        a(f"s_sleep {QSL}")
    gather_pairs(TC, 4, vA1, sT0, 8192, QP, 1, "qp")
    stamp(3, -1)
    for t in range(1, 4):
        for r in range(4):
            a(f"v_add_f32 v{TC+r}, v{TC+r}, v{TC+4*t+r}")
    for r in range(4):
        a(f"v_mov_b32 v{TC+4+r}, v{TC+r}")
    for r in range(4):
        a(f"v_permlane32_swap_b32 v{TC+r}, v{TC+4+r}")
    for r in range(4):
        a(f"v_add_f32 v{TC+r}, v{TC+r}, v{TC+4+r}")
    for r in range(4):
        a(f"v_cvt_pk_bf16_f32 v{TC+r}, v{TC+r}, v{TC+r}")
    for r in range(4):
        a(f"ds_write_b16 v{vA2}, v{TC+r} offset:{L_QV + 16*r}")
    a("s_waitcnt lgkmcnt(0)")
    a("s_barrier")
    a("s_setprio 0")
    a(f"v_lshrrev_b32 v{vT}, 3, v{vJ}")
    a(f"v_lshlrev_b32 v{vP}, 8, v{vT}")
    a(f"v_lshl_add_u32 v{vP}, v{vG}, 6, v{vP}")
    a(f"v_lshlrev_b32 v{vL}, 12, v{vLANE}")
    a(f"s_cmp_lt_u32 s{sLW}, 168")
    a("s_cbranch_scc1 L_A1_noffn2")
    a(f"v_lshrrev_b32 v{vT}, 5, v{vLANE}")
    a(f"v_mul_u32_u24 v{vA0}, {88*4096}, v{vT}")
    a(f"v_and_b32 v{vT}, 31, v{vLANE}")
    a(f"v_lshl_add_u32 v{vA0}, v{vT}, 4, v{vA0}")
    a(f"s_lshr_b32 s{sT0}, s{sT4}, 1")
    a(f"s_lshl_b32 s{sT0}, s{sT0}, 15")
    a(f"s_and_b32 s{sT1}, s{sT4}, 1")
    a(f"s_lshl_b32 s{sT1}, s{sT1}, 9")
    a(f"s_add_u32 s{sT0}, s{sT0}, s{sT1}")
    gather_pairs(TC, 8, vA0, sT0, 4096, GP, 32, "gp")
    for t in range(1, 8):
        for r in range(4):
            a(f"v_add_f32 v{TC+r}, v{TC+r}, v{TC+4*t+r}")
    G = [TC + r for r in range(4)]
    Uu = [TC + 4 + r for r in range(4)]
    E = [TC + 8 + r for r in range(4)]
    rne(a, G)
    for r in range(4):
        a(f"v_mov_b32 v{Uu[r]}, v{G[r]}")
    for r in range(4):
        a(f"v_permlane32_swap_b32 v{G[r]}, v{Uu[r]}")
    a(f"s_mov_b32 s{sT0}, 0xbdd2d3e8")
    a(f"v_mov_b32 v{vU}, 0xc0135761")
    for r in range(4):
        a(f"v_mul_f32 v{E[r]}, v{G[r]}, v{G[r]}")
    for r in range(4):
        a(f"v_fma_f32 v{E[r]}, v{E[r]}, s{sT0}, v{vU}")
    for r in range(4):
        a(f"v_mul_f32 v{E[r]}, v{E[r]}, v{G[r]}")
    for r in range(4):
        a(f"v_exp_f32 v{E[r]}, v{E[r]}")
    for r in range(4):
        a(f"v_add_f32 v{E[r]}, 1.0, v{E[r]}")
    for r in range(4):
        a(f"v_rcp_f32 v{E[r]}, v{E[r]}")
    for r in range(4):
        a(f"v_mul_f32 v{G[r]}, v{G[r]}, v{E[r]}")
    rne(a, G)
    for r in range(4):
        a(f"v_mul_f32 v{G[r]}, v{G[r]}, v{Uu[r]}")
    for r in range(4):
        a(f"v_cvt_pk_bf16_f32 v{G[r]}, v{G[r]}, v{G[r]}")
    a(f"v_lshrrev_b32 v{vT}, 3, v{vJ}")
    a(f"v_lshlrev_b32 v{vA0}, 8, v{vT}")
    a(f"v_and_b32 v{vT}, 1, v{vG}")
    a(f"v_lshl_add_u32 v{vA0}, v{vT}, 7, v{vA0}")
    a(f"v_and_b32 v{vT}, 7, v{vJ}")
    a(f"v_lshl_add_u32 v{vA0}, v{vT}, 2, v{vA0}")
    for r in range(4):
        a(f"ds_write_b32 v{vA0}, v{G[r]} offset:{L_VEC1 + 32*r}")
    a("s_waitcnt lgkmcnt(0)")
    tile_gemv(a, TB, vP, L_VEC1)
    a(f"s_lshl_b32 s{sT0}, s{sT5}, 18")
    a(f"s_lshl_b32 s{sT1}, s{sT4}, 4")
    a(f"s_add_u32 s{sT0}, s{sT0}, s{sT1}")
    publish_pair(vACC, vL, sT0, DP)
    a.label("L_A1_noffn2")
    stamp(7, -1)
    if EXP & 512:
        a(f"s_andn2_b32 s{sT0}, s{sLW}, 3")
        a(f"s_lshl_b32 s{sT0}, s{sT0}, 12")
        a(f"s_add_u32 s{sT0}, s{sT0}, {CNT}")
        a(f"v_mov_b32 v{vA0}, 0")
        a("s_mov_b64 exec, 1")
        a(f"s_mov_b32 s{sCNT}, {ANUM}")
        stamp(2, -1)
        a.label("L_exp512")
        a(f"v_mov_b32 v{vT}, 1")
        if EXP & 1024:
            a(f"buffer_load_dword v{vT}, v{vA0}, {SR(SRD_WS)}, s{sT0} offen sc1")
        else:
            a(f"buffer_atomic_add v{vT}, v{vA0}, {SR(SRD_WS)}, s{sT0} offen sc0 sc1")
        a("s_waitcnt vmcnt(0)")
        a(f"s_sub_u32 s{sCNT}, s{sCNT}, 1")
        a(f"s_cmp_lg_u32 s{sCNT}, 0")
        a("s_cbranch_scc1 L_exp512")
        stamp(3, -1)
        a("s_mov_b64 exec, -1")
    a(f"v_and_b32 v{vT}, 31, v{vLANE}")
    a(f"v_lshlrev_b32 v{vVO}, 4, v{vT}")
    a(f"v_mov_b32 v{vKO}, 0")
    a(f"v_add_u32 v{vA0}, {OP}, v{vVO}")
    a(f"v_mov_b32 v{vU}, {ML}")
    a(f"v_cmp_gt_u32 vcc, 32, v{vLANE}")
    a(f"s_mov_b64 s[{sEX}:{sEX+1}], vcc")
    a(f"v_cndmask_b32 v{vA0}, v{vU}, v{vA0}, vcc")
    a(f"s_lshl_b32 s{sT1}, s{sB}, 8")
    a(f"s_add_u32 s{sT1}, s{sT1}, {OP}")
    a(f"v_lshlrev_b32 v{vA1}, 4, v{vJ}")
    a(f"v_add_u32 v{vA1}, s{sT1}, v{vA1}")
    a(f"v_cndmask_b32 v{vA1}, v{vU}, v{vA1}, vcc")
    a(f"v_and_b32 v{vT}, 1, v{vG}")
    a(f"v_lshl_add_u32 v{vA1}, v{vT}, 14, v{vA1}")
    a(f"v_lshlrev_b32 v{vA2}, 8, v{vT}")
    a(f"v_bfe_u32 v{vT}, v{vLANE}, 3, 1")
    a(f"v_lshl_add_u32 v{vA2}, v{vT}, 7, v{vA2}")
    a(f"v_and_b32 v{vT}, 7, v{vLANE}")
    a(f"v_lshl_add_u32 v{vA2}, v{vT}, 2, v{vA2}")
    a(f"s_lshl_b32 s{sT2}, s{sS}, 18")
    a(f"s_lshl_b32 s{sT3}, s{sH}, 5")
    a(f"s_add_u32 s{sT2}, s{sT2}, s{sT3}")
    a(f"s_lshl_b32 s{sT3}, s{sB}, 4")
    a(f"s_add_u32 s{sT2}, s{sT2}, s{sT3}")
    a(f"s_lshl_b32 s{sT0}, s{sH}, 15")
    a("s_setprio 3")
    a("s_barrier")
    stamp(4, -1)
    MLr = TC
    a(f"ds_read_b128 {R(MLr)}, v{vKO} offset:{L_PML}")
    a(f"ds_read_b128 {R(MLr+4)}, v{vKO} offset:{L_PML+16}")
    for w in range(4):
        a(f"ds_read_b128 {R(TB+4*w)}, v{vVO} offset:{L_PART + 512*w}")

    def combine(ms, ls, F, outm, outl):
        a(f"v_max_f32 v{outm}, v{ms[0]}, v{ms[1]}")
        a(f"v_max3_f32 v{outm}, v{outm}, v{ms[2]}, v{ms[3]}")
        for w in range(4):
            a(f"v_sub_f32 v{F+w}, v{ms[w]}, v{outm}")
        for w in range(4):
            a(f"v_mul_f32 v{F+w}, s{sL2E}, v{F+w}")
        for w in range(4):
            a(f"v_exp_f32 v{F+w}, v{F+w}")
        a(f"v_mul_f32 v{outl}, v{F}, v{ls[0]}")
        for w in range(1, 4):
            a(f"v_fmac_f32 v{outl}, v{F+w}, v{ls[w]}")

    def combine_o(os_, F):
        for r in range(4):
            a(f"v_mul_f32 v{os_[0]+r}, v{F}, v{os_[0]+r}")
        for w in range(1, 4):
            for r in range(4):
                a(f"v_fmac_f32 v{os_[0]+r}, v{F+w}, v{os_[w]+r}")
    F = TC + 8
    a("s_waitcnt lgkmcnt(4)")
    combine([MLr + 2 * w for w in range(4)], [MLr + 2 * w + 1 for w in range(4)], F, vM, vMN)
    a("s_waitcnt lgkmcnt(0)")
    combine_o([TB + 4 * w for w in range(4)], F)
    for r in range(4):
        src = vM if r % 2 == 0 else vMN
        a(f"v_cndmask_b32 v{TB+r}, v{src}, v{TB+r}, s[{sEX}:{sEX+1}]")
    sanitize(a, TB)
    a(f"v_cmp_gt_u32 vcc, 33, v{vLANE}")
    a(f"s_and_saveexec_b64 s[{sT4}:{sT5}], vcc")
    a(f"buffer_store_dwordx4 {R(TB)}, v{vA0}, {SR(SRD_WS)}, s{sOFF} offen sc1")
    a("s_mov_b64 exec, -1")
    stamp(5, -1)
    GB = TB + 16

    def issue_op():
        a(f"s_mov_b32 s{sT1}, s{sT0}")
        for t in range(4):
            a(f"buffer_load_dwordx4 {R(GB+4*t)}, v{vA1}, {SR(SRD_WS)}, s{sT1} offen sc1")
            if t < 3:
                a(f"s_add_u32 s{sT1}, s{sT1}, 4096")
    poll(a, issue_op, range(GB, GB + 16), sleep=0, name="op")
    stamp(6, -1)
    for t in range(4):
        a(f"v_mov_b32 v{MLr+2*t}, v{GB+4*t}")
        a(f"v_mov_b32 v{MLr+2*t+1}, v{GB+4*t+1}")
    for t in range(4):
        a(f"v_permlane32_swap_b32 v{GB+4*t}, v{MLr+2*t}")
        a(f"v_permlane32_swap_b32 v{GB+4*t+1}, v{MLr+2*t+1}")
    combine([MLr + 2 * w for w in range(4)], [MLr + 2 * w + 1 for w in range(4)], F, vM, vMN)
    a(f"v_rcp_f32 v{vMN}, v{vMN}")
    combine_o([GB + 4 * w for w in range(4)], F)
    for r in range(4):
        a(f"v_mul_f32 v{GB+r}, v{GB+r}, v{vMN}")
    for r in range(4):
        a(f"v_cvt_pk_bf16_f32 v{GB+r}, v{GB+r}, v{GB+r}")
    a(f"s_mov_b64 exec, s[{sEX}:{sEX+1}]")
    for r in range(4):
        a(f"ds_write_b32 v{vA2}, v{GB+r} offset:{L_VEC1 + 32*r}")
    a("s_mov_b64 exec, -1")
    a("s_waitcnt lgkmcnt(0)")
    tile_gemv(a, TA, vP, L_VEC1)
    sanitize(a, vACC)
    a(f"buffer_store_dwordx4 {R(vACC)}, v{vL}, {SR(SRD_WS)}, s{sT2} offen offset:{YP} sc1")
    stamp_flush(7)
    a.label("L_end")
    a("s_endpgm")
    a.label("L_codeend")

    body = a.finish()
    hdr = open("cdna_kernels/" + NAME + ".s.ref").read().split("; @launch")[0]
    nv = 244
    txt = hdr + f"; @launch grid=(256,1,1) block=(384,1,1) lds={L_TOTAL + 4*NL*8192}\n"
    txt += '.amdgcn_target "amdgcn-amd-amdhsa--gfx950"\n.text\n'
    txt += f".globl {NAME}_kernel\n.p2align 8\n.type {NAME}_kernel,@function\n"
    txt += body
    txt += f""".section .rodata,"a"
.p2align 6
.amdhsa_kernel {NAME}_kernel
  .amdhsa_next_free_vgpr {nv}
  .amdhsa_next_free_sgpr 96
  .amdhsa_accum_offset {(nv+3)//4*4}
  .amdhsa_group_segment_fixed_size 0
  .amdhsa_kernarg_size 96
  .amdhsa_user_sgpr_count 2
  .amdhsa_user_sgpr_kernarg_segment_ptr 1
  .amdhsa_system_sgpr_workgroup_id_x 1
  .amdhsa_float_denorm_mode_32 3
.end_amdhsa_kernel
"""
    return txt


if __name__ == "__main__":
    out = sys.argv[1]
    kw = eval("dict(" + (sys.argv[2] if len(sys.argv) > 2 else "") + ")")
    open(out, "w").write(gen(**kw))
```

```python
import sys
sys.path.insert(0, "work")
from asmlib import Asm

NAME = "recurrent_scan__mha_block_cached__geglu_ffn__decode"

QP, GP, YP, OP, DP, ML, CNT = 0, 1024, 2048, 3072, 3584, 3968, 4032
QP2 = 0x100000
GEN = 0x200000
WSZ = 0x201000
L_XN, L_QV, L_PART, L_PML, L_VEC1, L_VEC0, L_TOTAL = 0, 4096, 4352, 6400, 6656, 7168, 8192

LOG2E = 0x3FB8AA3B
NLOG2E = 0xBFB8AA3B
SCALE = 0x3DB504F3

sX, sK, sV, sWQ, sWO, sBX, sWG, sWU, sWD, sOUT, sDBG, sWS = 4, 6, 8, 10, 12, 14, 16, 18, 20, 22, 24, 26
sH, sB, sS, sLW, sPID = 28, 29, 30, 31, 32
sL2E = 33
SRD_A, SRD_B, SRD_C, SRD_WS, SRD_D = 36, 40, 44, 48, 52
sT0, sT1, sT2, sT3, sT4, sT5 = 56, 57, 58, 59, 60, 61
sCNT = 62
sOFF = 63
sEX = 64
sIT = 66
sTAG, sGEN = 34, 35
sST = 70
vLANE, vJ, vG = 1, 2, 3
vMASK = 4
vT, vU, vW, vP, vM, vMN, vL, vKO, vVO, vA0, vA1, vA2 = 8, 9, 10, 11, 12, 13, 14, 15, 16, 17, 18, 19
vS, vACC, vPB0, vPB1, vQB = 20, 24, 28, 32, 36
vWIN = 52
TA, TB, TC = 52, 116, 180


def srd(a, d, ptr, nbytes):
    a(f"s_mov_b32 s{d}, s{ptr}")
    a(f"s_and_b32 s{d+1}, s{ptr+1}, 0xffff")
    if isinstance(nbytes, int):
        a(f"s_mov_b32 s{d+2}, {nbytes:#x}")
    else:
        a(f"s_mov_b32 s{d+2}, {nbytes}")
    a(f"s_mov_b32 s{d+3}, 0x20000")


def R(b, n=4):
    return f"v[{b}:{b+n-1}]"


def SR(b, n=4):
    return f"s[{b}:{b+n-1}]"


DPPM = "row_mask:0xf bank_mask:0xf"


def allreduce(a, regs, tmps, op="v_add_f32", quad=True):
    steps = []
    if quad:
        steps += ["quad_perm:[1,0,3,2]", "quad_perm:[2,3,0,1]"]
    steps += ["row_ror:4", "row_ror:8"]
    for st in steps:
        for r in regs:
            a(f"{op}_dpp v{r}, v{r}, v{r} {st} {DPPM}")
    for sw in ("v_permlane16_swap_b32", "v_permlane32_swap_b32"):
        for r, t in zip(regs, tmps):
            a(f"v_mov_b32 v{t}, v{r}")
        for r, t in zip(regs, tmps):
            a(f"{sw} v{r}, v{t}")
        for r, t in zip(regs, tmps):
            a(f"{op} v{r}, v{r}, v{t}")


def rne(a, regs):
    for r in regs:
        a(f"v_cvt_pk_bf16_f32 v{r}, v{r}, v{r}")
    for r in regs:
        a(f"v_and_b32 v{r}, 0xffff0000, v{r}")


def tile_gemv(a, tbase, vaddr_lds, lds_off, waits=None):
    for k in range(4):
        a(f"ds_read_b128 {R(vQB+4*k)}, v{vaddr_lds} offset:{lds_off+16*k}")
    a("s_waitcnt lgkmcnt(0)")

    def build(t):
        pb = vPB0 if t % 2 == 0 else vPB1
        for r in range(4):
            a(f"v_and_b32 v{pb+r}, v{vQB+t}, v{vMASK+r}")
    build(0)
    for t in range(16):
        if t + 1 < 16:
            build(t + 1)
        pb = vPB0 if t % 2 == 0 else vPB1
        if waits and t in waits:
            a(f"s_waitcnt vmcnt({waits[t]})")
        c = "0" if t == 0 else R(vACC)
        a(f"v_mfma_f32_16x16x32_bf16 {R(vACC)}, {R(tbase+4*t)}, {R(pb)}, {c}")


def sanitize(a, base, n=4):
    for r in range(n):
        a(f"v_min_u32 v{base+r}, -2, v{base+r}")


def poll(a, issue, regs, sleep=0, name="poll"):
    top = a.newlabel(name)
    done = a.newlabel(name + "d")
    a(f"s_mov_b32 s{sCNT}, 0x40000")
    a.label(top)
    issue()
    a("s_waitcnt vmcnt(0)")
    rs = list(regs)
    a(f"v_max_u32 v{vT}, v{rs[0]}, v{rs[1]}" if len(rs) > 1 else f"v_mov_b32 v{vT}, v{rs[0]}")
    rest = rs[2:]
    while rest:
        if len(rest) >= 2:
            a(f"v_max3_u32 v{vT}, v{vT}, v{rest[0]}, v{rest[1]}")
            rest = rest[2:]
        else:
            a(f"v_max_u32 v{vT}, v{vT}, v{rest[0]}")
            rest = rest[1:]
    a(f"v_cmp_eq_u32 vcc, -1, v{vT}")
    a(f"s_cbranch_vccz {done}")
    a(f"s_sub_u32 s{sCNT}, s{sCNT}, 1")
    a(f"s_cbranch_scc1 {done}")
    if sleep:
        a(f"s_sleep {sleep}")
    a(f"s_branch {top}")
    a.label(done)


def gen(DD=3, STAMP=False, NSTAT=22, INFL=16, NL=4, EXP=0, SG=0, EARLY=0, PSL=64, QSL=0, CPF=3, RCL=0, ANUM=8, POL='nt', WPOL='nt', DBGST=0):
    a = Asm()
    stamps = {"n": 0}

    def stamp(k, grp=0):
        if STAMP and (k < 2 or grp == -1 or grp == SG):
            a(f"s_memrealtime s[{sST+2*k}:{sST+2*k+1}]")

    def stamp_flush(nst):
        if not STAMP:
            return
        a(f"s_memrealtime s[{sST+2}:{sST+3}]")
        a("s_waitcnt lgkmcnt(0)")
        a("s_mov_b64 exec, -1")
        if DBGST:
            srd(a, SRD_D, sDBG, 256)
            a("s_mov_b64 exec, 1")
            a(f"s_min_u32 s{sT0}, s3, 2")
            a(f"s_mul_i32 s{sT0}, s{sT0}, 20")
            a("v_mov_b32 v17, 0")
            a(f"s_not_b32 s{sT1}, s{sST}")
            a(f"v_mov_b32 v20, s{sT1}")
            a(f"buffer_atomic_umax v20, v17, {SR(SRD_D)}, 0 offen sc1")
            for k in range(5):
                a(f"v_mov_b32 v{21+k}, s{sST+2*(k+1)}")
                a(f"buffer_atomic_umax v{21+k}, v17, {SR(SRD_D)}, s{sT0} offen offset:{4+4*k} sc1")
            return
        srd(a, SRD_D, sWS, 0x20000000)
        a(f"s_mul_i32 s{sT0}, s2, 6")
        a(f"s_add_u32 s{sT0}, s{sT0}, s3")
        a(f"s_lshl_b32 s{sT1}, s{sT0}, 6")
        a(f"s_lshl_b32 s{sT0}, s{sT0}, 4")
        a(f"s_add_u32 s{sT0}, s{sT0}, 0x10000000")
        a(f"s_add_u32 s{sT1}, s{sT1}, 0x11000000")
        a(f"s_getreg_b32 s{sT2}, hwreg(HW_REG_XCC_ID)")
        a(f"s_and_b32 s{sT2}, s{sT2}, 15")
        a(f"s_lshl_b32 s{sT2}, s{sT2}, 28")
        a(f"s_or_b32 s{sT2}, s{sST+1}, s{sT2}")
        a(f"v_mov_b32 v20, s{sST}")
        a(f"v_mov_b32 v21, s{sT2}")
        a(f"v_mov_b32 v22, s{sST+2}")
        a(f"v_mov_b32 v23, s{sST+3}")
        a("v_mov_b32 v17, 0")
        for k in range(8):
            a(f"v_mov_b32 v{24+k}, s{sST+2*k}")
        a(f"v_cmp_eq_u32 vcc, 0, v{vLANE}")
        a(f"s_and_saveexec_b64 s[{sEX}:{sEX+1}], vcc")
        a(f"buffer_store_dwordx4 v[20:23], v17, {SR(SRD_D)}, s{sT0} offen")
        a(f"buffer_store_dwordx4 v[24:27], v17, {SR(SRD_D)}, s{sT1} offen")
        a(f"buffer_store_dwordx4 v[28:31], v17, {SR(SRD_D)}, s{sT1} offen offset:16")

    a.label(f"{NAME}_kernel")
    a("s_cmp_ge_u32 s2, 256")
    a("s_cbranch_scc1 L_end")
    if STAMP:
        for k in range(8):
            a(f"s_mov_b64 s[{sST+2*k}:{sST+2*k+1}], 0")
    stamp(0)
    a("s_load_dwordx16 s[4:19], s[0:1], 0")
    a("s_load_dwordx8 s[20:27], s[0:1], 64")
    a("v_lshrrev_b32 v2, 6, v0")
    a(f"v_and_b32 v{vLANE}, 63, v0")
    a("v_readfirstlane_b32 s3, v2")
    a(f"v_and_b32 v{vJ}, 15, v{vLANE}")
    a(f"v_lshrrev_b32 v{vG}, 4, v{vLANE}")
    a(f"s_bfe_u32 s{sH}, s2, 0x50002")
    a(f"s_lshr_b32 s{sB}, s2, 7")
    a(f"s_and_b32 s{sS}, s2, 3")
    a(f"s_lshl_b32 s{sPID}, s{sB}, 2")
    a(f"s_add_u32 s{sPID}, s{sPID}, s{sS}")
    a(f"s_lshl_b32 s{sLW}, s{sH}, 3")
    a(f"s_add_u32 s{sLW}, s{sLW}, s{sPID}")
    a(f"s_mov_b32 s{sL2E}, {LOG2E:#x}")

    def masks():
        a(f"v_and_b32 v{vT}, 1, v{vLANE}")
        a(f"v_lshlrev_b32 v{vT}, 4, v{vT}")
        a(f"v_mov_b32 v{vU}, 0xffff")
        a(f"v_lshlrev_b32 v{vU}, v{vT}, v{vU}")
        a(f"v_bfe_u32 v{vT}, v{vLANE}, 1, 2")
        for r in range(4):
            a(f"v_cmp_eq_u32 vcc, {r}, v{vT}")
            a(f"v_cndmask_b32 v{vMASK+r}, 0, v{vU}, vcc")

    def flagpoll(nd, soff, vaddr, sleep, lane0):
        ftop = a.newlabel("flag")
        fdone = a.newlabel("flagd")
        a(f"s_mov_b32 s{sCNT}, 0x40000")
        a(f"s_mov_b32 s{sIT}, 0x01010101")
        if lane0:
            a("s_mov_b64 exec, 1")
        a.label(ftop)
        if nd == 2:
            a(f"buffer_load_dwordx2 v[{vT}:{vU}], v{vaddr}, {SR(SRD_D)}, {soff} offen sc1")
            a("s_waitcnt vmcnt(0)")
            a(f"v_and_b32 v{vT}, v{vT}, v{vU}")
        else:
            a(f"buffer_load_dword v{vT}, v{vaddr}, {SR(SRD_D)}, {soff} offen sc1")
            a("s_waitcnt vmcnt(0)")
        a(f"v_cmp_ne_u32 vcc, s{sIT}, v{vT}")
        a(f"s_cbranch_vccz {fdone}")
        a(f"s_sub_u32 s{sCNT}, s{sCNT}, 1")
        a(f"s_cbranch_scc1 {fdone}")
        a(f"s_sleep {sleep}")
        a(f"s_branch {ftop}")
        a.label(fdone)
        if lane0:
            a("s_mov_b64 exec, -1")

    a("s_cmp_eq_u32 s3, 0")
    a("s_cbranch_scc1 L_A0")
    a("s_cmp_eq_u32 s3, 1")
    a("s_cbranch_scc1 L_A1")

    if CPF:
        a(f"s_getpc_b64 s[{sT0}:{sT1}]")
        a.label("L_pc")
        a(f"s_sub_u32 s{sT0}, s{sT0}, L_pc-{NAME}_kernel")
        a(f"s_subb_u32 s{sT1}, s{sT1}, 0")
        a(f"v_subrev_u32 v{vT}, 128, v0")
        a(f"v_lshlrev_b32 v{vT}, 4, v{vT}")
        for k in range(CPF):
            a(f"v_min_u32 v{vU}, L_codeend-{NAME}_kernel-16, v{vT}")
            a(f"global_load_dwordx4 {R(vWIN+4*k)}, v{vU}, s[{sT0}:{sT1}]")
            a(f"v_add_u32 v{vT}, 4096, v{vT}")
    a(f"v_and_b32 v{vT}, 3, v{vLANE}")
    a(f"v_lshlrev_b32 v{vKO}, 4, v{vT}")
    a(f"v_bfe_u32 v{vT}, v{vLANE}, 2, 2")
    a(f"v_lshl_add_u32 v{vKO}, v{vT}, 8, v{vKO}")
    a(f"v_lshl_add_u32 v{vKO}, v{vG}, 6, v{vKO}")
    a(f"v_lshlrev_b32 v{vVO}, 4, v{vLANE}")
    a(f"s_lshl_b32 s{sT0}, s{sB}, 5")
    a(f"s_add_u32 s{sT0}, s{sT0}, s{sH}")
    a(f"s_lshl_b32 s{sOFF}, s{sT0}, 21")
    a(f"s_lshl_b32 s{sT0}, s{sS}, 2")
    a(f"s_add_u32 s{sT0}, s{sT0}, s3")
    a(f"s_sub_u32 s{sT0}, s{sT0}, 2")
    a(f"s_lshl_b32 s{sT0}, s{sT0}, 12")
    a(f"s_add_u32 s{sOFF}, s{sOFF}, s{sT0}")
    a("s_waitcnt lgkmcnt(0)")
    srd(a, SRD_A, sK, 0x8000000)
    srd(a, SRD_B, sV, 0x8000000)

    fifo = []
    sSL = [86 + k for k in range(DD)]
    sDYN, sNS, sCA, sCP, sCV = 90, 91, 67, 68, 69
    assert not RCL or (NSTAT - DD - NL) % DD == 0
    sRET = 92
    vCL = [vWIN + 32 * (DD + 1) + k for k in range(DD)]
    vCA = vCL[-1] + 1
    NDYN = 512 - 16 * NSTAT
    BAD = 0x40000000

    def kreg(slot, m):
        return vWIN + 32 * slot + 4 * m

    def vreg(slot, m):
        return vWIN + 32 * slot + 16 + 4 * m

    def issueK(slot, so):
        for m in range(4):
            a(f"buffer_load_dwordx4 {R(kreg(slot, m))}, v{vKO}, {SR(SRD_A)}, s{so} offen offset:{1024*m} {POL}")
            fifo.append(("K", slot))

    def issueV(slot, so):
        for m in range(4):
            a(f"buffer_load_dwordx4 {R(vreg(slot, m))}, v{vVO}, {SR(SRD_B)}, s{so} offen offset:{1024*m} {POL}")
            fifo.append(("V", slot))

    def issueC(slot):
        if EXP & 4:
            a(f"v_mov_b32 v{vCL[slot]}, -8")
            return
        if RCL and slot:
            return
        a(f"v_mov_b32 v{vCL[slot]}, {DD if RCL else 1}")
        a(f"buffer_atomic_add v{vCL[slot]}, v{vCA}, {SR(SRD_WS)}, s{sCP} offen sc0 sc1")
        fifo.append(("C", slot))

    def waitfor(tag):
        last = max(i for i, t in enumerate(fifo) if t == tag)
        n = len(fifo) - 1 - last
        assert n < 64
        a(f"s_waitcnt vmcnt({n})")
        del fifo[:last + 1]

    def process(slot, fromlds=False):
        if fromlds:
            for m in range(8):
                a(f"ds_read_b128 {R(kreg(slot, m))}, v{vA2} offset:{1024*m}")
            a(f"v_add_u32 v{vA2}, 0x2000, v{vA2}")
            a("s_waitcnt lgkmcnt(4)")
        else:
            a(f"s_cmp_ge_u32 s{sSL[slot]}, {BAD:#x}")
            a("s_cbranch_scc1 L_sdone")
            waitfor(("K", slot))
        for m in range(4):
            c = "0" if m == 0 else R(vS)
            if not EXP & 2:
                a(f"v_mfma_f32_16x16x32_bf16 {R(vS)}, {R(kreg(slot, m))}, {R(vQB+4*m)}, {c}")
        if not fromlds:
            so = sSL[slot]
            if not RCL or slot == 0:
                a(f"v_readfirstlane_b32 s{sCV}, v{vCL[slot]}")
            a(f"s_add_u32 s{sCV}, s{sCV}, 1")
            a(f"s_lshl_b32 s{sT1}, s{sCV}, 12")
            a(f"s_add_u32 s{sT1}, s{sT1}, s{sDYN}")
            a(f"s_cmp_lt_u32 s{sCV}, {NDYN}")
            a(f"s_cselect_b32 s{sT1}, s{sT1}, {BAD:#x}")
            a(f"s_sub_i32 s{sNS}, s{sNS}, 1")
            a(f"s_cmp_ge_i32 s{sNS}, 0")
            a(f"s_cselect_b32 s{so}, s{sOFF}, s{sT1}")
            a(f"s_add_u32 s{sOFF}, s{sOFF}, 0x10000")
            a(f"s_cmp_lt_i32 s{sNS}, {DD}")
            a(f"s_cselect_b32 s{sCP}, s{sCA}, {BAD:#x}")
            issueC(slot)
            issueK(slot, so)
        if not EXP & 2:
            a(f"v_mov_b32_dpp v{vT}, v{vS} quad_perm:[0,0,0,0] {DPPM}")
            for e in range(1, 4):
                a(f"v_add_f32_dpp v{vT}, v{vS+e}, v{vT} quad_perm:[{e},{e},{e},{e}] {DPPM}")
            rne(a, [vT])
            a(f"v_mul_f32 v{vT}, {SCALE:#x}, v{vT}")
            rne(a, [vT])
            a(f"v_cmp_gt_f32 vcc, v{vT}, v{vM}")
            back = a.newlabel("back")
            a(f"s_cbranch_vccz {back}")
            a(f"s_call_b64 s[{sRET}:{sRET+1}], L_slow")
            a.label(back)
            a(f"v_fma_f32 v{vT}, v{vT}, s{sL2E}, v{vMN}")
            a(f"v_exp_f32 v{vT}, v{vT}")
            a(f"v_add_f32 v{vL}, v{vL}, v{vT}")
            a(f"v_cvt_pk_bf16_f32 v{vP}, v{vT}, v{vT}")
        if fromlds:
            a("s_waitcnt lgkmcnt(0)")
        else:
            waitfor(("V", slot))

        def build(m):
            pb = vPB0 if m % 2 == 0 else vPB1
            for r in range(4):
                a(f"v_and_b32_dpp v{pb+r}, v{vP}, v{vMASK+r} row_newbcast:{4*m} {DPPM}")
        if not EXP & 2:
            build(0)
            for m in range(4):
                if m + 1 < 4:
                    build(m + 1)
                pb = vPB0 if m % 2 == 0 else vPB1
                a(f"v_mfma_f32_16x16x32_bf16 {R(vACC)}, {R(vreg(slot, m))}, {R(pb)}, {R(vACC)}")
        if not fromlds:
            issueV(slot, so)

    srd(a, SRD_WS, sWS, WSZ)
    a(f"s_sub_u32 s{sT5}, s3, 2")
    a(f"s_mul_i32 s{sT5}, s{sT5}, {NL*8192}")
    a(f"s_add_u32 s{sT5}, s{sT5}, {L_TOTAL}")
    a(f"v_add_u32 v{vA2}, s{sT5}, v{vVO}")
    a(f"v_mov_b32 v{vCA}, {BAD:#x}")
    a(f"v_cmp_eq_u32 vcc, 0, v{vLANE}")
    a(f"v_cndmask_b32 v{vCA}, v{vCA}, 0, vcc")
    a(f"s_mov_b32 s{sCP}, {BAD:#x}")
    a("s_waitcnt vmcnt(0)")
    a("s_barrier")
    nfl = 0
    for k in range(DD):
        a(f"s_mov_b32 s{sSL[k]}, s{sOFF}")
        a(f"s_add_u32 s{sOFF}, s{sOFF}, 0x10000")
        for fn in (issueK, issueV):
            if nfl >= INFL:
                a(f"s_waitcnt vmcnt({INFL-4})")
                nfl -= 4
            if fn is issueK:
                issueC(k)
            fn(k, sSL[k])
            nfl += 4
    masks()
    a(f"s_andn2_b32 s{sCA}, s{sLW}, 3")
    a(f"s_lshl_b32 s{sCA}, s{sCA}, 12")
    a(f"s_add_u32 s{sCA}, s{sCA}, {CNT}")
    if not NDYN:
        a(f"s_mov_b32 s{sCA}, {BAD:#x}")
    a(f"s_lshl_b32 s{sT0}, s{sB}, 5")
    a(f"s_add_u32 s{sT0}, s{sT0}, s{sH}")
    a(f"s_lshl_b32 s{sDYN}, s{sT0}, 21")
    a(f"s_add_u32 s{sDYN}, s{sDYN}, {16*NSTAT*4096}")
    a(f"s_mov_b32 s{sNS}, {NSTAT - DD - NL}")
    for r in range(4):
        a(f"v_mov_b32 v{vACC+r}, 0")
    a(f"v_mov_b32 v{vL}, 0")
    a(f"v_mov_b32 v{vM}, 0xff800000")
    a(f"v_mov_b32 v{vMN}, 0")
    a(f"v_and_b32 v{vT}, 3, v{vJ}")
    a(f"v_lshl_add_u32 v{vT}, v{vG}, 2, v{vT}")
    a(f"v_lshlrev_b32 v{vA0}, 4, v{vT}")
    a(f"v_lshrrev_b32 v{vA1}, 2, v{vJ}")
    if NL:
        a(f"s_mov_b32 s{sIT}, {NL}")
        a.label("L_lpro")
        for which in "KV":
            a(f"s_mov_b32 m0, s{sT5}")
            a(f"s_waitcnt vmcnt({INFL-4})")
            for m in range(4):
                if which == "K":
                    a(f"buffer_load_dwordx4 v{vKO}, {SR(SRD_A)}, s{sOFF} offen offset:{1024*m} {POL} lds")
                else:
                    a(f"buffer_load_dwordx4 v{vVO}, {SR(SRD_B)}, s{sOFF} offen offset:{1024*m} {POL} lds")
            a(f"s_add_u32 s{sT5}, s{sT5}, 4096")
        a(f"s_add_u32 s{sOFF}, s{sOFF}, 0x10000")
        a(f"s_sub_u32 s{sIT}, s{sIT}, 1")
        a(f"s_cmp_lg_u32 s{sIT}, 0")
        a("s_cbranch_scc1 L_lpro")
    a(f"s_mov_b32 s{sIT}, {NL}")
    a("s_barrier")
    stamp(2, -1)
    a(f"ds_read_b128 {R(vS)}, v{vA0} offset:{L_QV}")
    a("s_waitcnt lgkmcnt(0)")
    for m in range(4):
        a(f"v_cmp_eq_u32 vcc, {m}, v{vA1}")
        for r in range(4):
            a(f"v_cndmask_b32 v{vQB+4*m+r}, 0, v{vS+r}, vcc")
    state0 = list(fifo)
    a.label("L_loop")
    for k in range(DD):
        process(k)
    assert fifo == state0, (fifo, state0)
    if STAMP:
        n0 = NSTAT - DD - NL
        for k, rounds in ((5, 9 // DD), (6, 15 // DD), (7, 21 // DD)):
            lb = a.newlabel("ps")
            a(f"s_cmp_lg_i32 s{sNS}, {n0 - rounds*DD}")
            a(f"s_cbranch_scc1 {lb}")
            stamp(k, -1)
            a.label(lb)
    if NL:
        a(f"s_cmp_eq_u32 s{sIT}, 0")
        a("s_cbranch_scc1 L_loop")
        a(f"s_waitcnt vmcnt({len(fifo)})")
        a.label("L_lloop")
        process(DD, fromlds=True)
        a(f"s_sub_u32 s{sIT}, s{sIT}, 1")
        a(f"s_cmp_lg_u32 s{sIT}, 0")
        a("s_cbranch_scc1 L_lloop")
        stamp(4, -1)
    a("s_branch L_loop")
    a.label("L_slow")
    a(f"v_max_f32_dpp v{vU}, v{vT}, v{vT} row_ror:4 {DPPM}")
    a(f"v_max_f32_dpp v{vU}, v{vU}, v{vU} row_ror:8 {DPPM}")
    a(f"v_mov_b32 v{vW}, v{vU}")
    a(f"v_permlane16_swap_b32 v{vU}, v{vW}")
    a(f"v_max_f32 v{vU}, v{vU}, v{vW}")
    a(f"v_mov_b32 v{vW}, v{vU}")
    a(f"v_permlane32_swap_b32 v{vU}, v{vW}")
    a(f"v_max3_f32 v{vU}, v{vU}, v{vW}, v{vM}")
    a(f"v_sub_f32 v{vW}, v{vM}, v{vU}")
    a(f"v_mul_f32 v{vW}, s{sL2E}, v{vW}")
    a(f"v_exp_f32 v{vW}, v{vW}")
    a(f"v_mov_b32 v{vM}, v{vU}")
    a(f"v_mul_f32 v{vMN}, {NLOG2E:#x}, v{vU}")
    for r in range(4):
        a(f"v_mul_f32 v{vACC+r}, v{vACC+r}, v{vW}")
    a(f"v_mul_f32 v{vL}, v{vL}, v{vW}")
    a(f"s_setpc_b64 s[{sRET}:{sRET+1}]")
    a.label("L_sdone")
    stamp(3, -1)
    allreduce(a, [vL], [vW], quad=False)
    a(f"v_lshlrev_b32 v{vA0}, 3, v{vG}")
    a(f"v_add_u32 v{vA0}, v{vA0}, v{vJ}")
    a(f"v_lshlrev_b32 v{vA0}, 4, v{vA0}")
    a(f"s_sub_u32 s{sT0}, s3, 2")
    a(f"s_lshl_b32 s{sT1}, s{sT0}, 9")
    a(f"v_add_u32 v{vA0}, s{sT1}, v{vA0}")
    a(f"s_lshl_b32 s{sT1}, s{sT0}, 3")
    a(f"v_mov_b32 v{vA1}, s{sT1}")
    a(f"v_mov_b32 v{vMN}, v{vL}")
    a(f"v_cmp_gt_u32 vcc, 8, v{vJ}")
    a(f"s_and_saveexec_b64 s[{sEX}:{sEX+1}], vcc")
    a(f"ds_write_b128 v{vA0}, {R(vACC)} offset:{L_PART}")
    a(f"ds_write_b64 v{vA1}, v[{vM}:{vMN}] offset:{L_PML}")
    a("s_waitcnt lgkmcnt(0)")
    a("s_barrier")
    stamp_flush(4)
    a("s_endpgm")

    def load_tag():
        a(f"s_mov_b32 s{sT2}, {GEN:#x}")
        a(f"s_load_dword s{sTAG}, s[{sWS}:{sWS+1}], s{sT2}")

    def make_tag():
        a(f"s_add_u32 s{sGEN}, s{sTAG}, 1")
        a(f"s_or_b32 s{sTAG}, s{sGEN}, 0x80000000")

    def publish_pair(src, voff, soff, off):
        a(f"s_add_u32 s{sIT}, s{soff}, {QP2:#x}")
        for r in range(4):
            a(f"v_xor_b32 v{vS+r}, s{sTAG}, v{src+r}")
        a(f"buffer_store_dwordx4 {R(src)}, v{voff}, {SR(SRD_WS)}, s{soff} offen offset:{off} sc1")
        a(f"buffer_store_dwordx4 {R(vS)}, v{voff}, {SR(SRD_WS)}, s{sIT} offen offset:{off} sc1")

    def gather_pairs(dst, n, voff, soff, step, off, sleep, name):
        top = a.newlabel(name)
        done = a.newlabel(name + "d")
        a(f"s_mov_b32 s{sCNT}, 0x40000")
        a.label(top)
        a(f"s_mov_b32 s{sT1}, s{soff}")
        for t in range(n):
            a(f"s_add_u32 s{sIT}, s{sT1}, {QP2:#x}")
            a(f"buffer_load_dwordx4 {R(dst+4*t)}, v{voff}, {SR(SRD_WS)}, s{sT1} offen offset:{off} sc1")
            a(f"buffer_load_dwordx4 {R(dst+4*n+4*t)}, v{voff}, {SR(SRD_WS)}, s{sIT} offen offset:{off} sc1")
            if t < n - 1:
                a(f"s_add_u32 s{sT1}, s{sT1}, {step}")
        a("s_waitcnt vmcnt(0)")
        m = dst + 4 * n
        for r in range(4 * n):
            a(f"v_xor_b32 v{m+r}, v{m+r}, v{dst+r}")
        a(f"v_and_b32 v{vT}, v{m}, v{m+1}")
        a(f"v_or_b32 v{vU}, v{m}, v{m+1}")
        for r in range(2, 4 * n, 2):
            a(f"v_or3_b32 v{vU}, v{vU}, v{m+r}, v{m+r+1}")
            a(f"v_and_b32 v{m+r}, v{m+r}, v{m+r+1}")
            a(f"v_and_b32 v{vT}, v{vT}, v{m+r}")
        a(f"v_cmp_ne_u32 vcc, s{sTAG}, v{vT}")
        a(f"v_cmp_ne_u32 s[{sT2}:{sT3}], s{sTAG}, v{vU}")
        a(f"s_or_b64 vcc, vcc, s[{sT2}:{sT3}]")
        a(f"s_cbranch_vccz {done}")
        a(f"s_sub_u32 s{sCNT}, s{sCNT}, 1")
        a(f"s_cbranch_scc1 {done}")
        if sleep:
            a(f"s_sleep {sleep}")
        a(f"s_branch {top}")
        a.label(done)

    a.label("L_A0")
    if EXP & 8:
        a("s_endpgm")
    a("s_setprio 3")
    a(f"v_lshlrev_b32 v{vVO}, 4, v{vLANE}")
    for r in range(4):
        a(f"v_mov_b32 v{vS+r}, -1")
    a(f"s_lshl_b32 s{sOFF}, s{sLW}, 12")
    a(f"v_lshlrev_b32 v{vA0}, 17, v{vG}")
    a(f"v_lshl_add_u32 v{vA0}, v{vJ}, 4, v{vA0}")
    a(f"s_lshl_b32 s{sT0}, s{sPID}, 19")
    a(f"s_lshl_b32 s{sT1}, s{sH}, 8")
    a(f"s_add_u32 s{sT0}, s{sT0}, s{sT1}")
    a("s_waitcnt lgkmcnt(0)")
    srd(a, SRD_A, sX, 2048)
    a(f"buffer_load_dwordx4 {R(vPB0)}, v{vVO}, {SR(SRD_A)}, 0 offen")
    a(f"buffer_load_dwordx4 {R(vPB1)}, v{vVO}, {SR(SRD_A)}, 0 offen offset:1024")
    srd(a, SRD_WS, sWS, WSZ)
    load_tag()
    a(f"buffer_store_dwordx4 {R(vS)}, v{vVO}, {SR(SRD_WS)}, s{sOFF} offen offset:{YP} sc1")
    a("s_mov_b32 exec_hi, 0xff000000")
    a(f"buffer_store_dwordx4 {R(vS)}, v{vVO}, {SR(SRD_WS)}, s{sOFF} offen offset:{OP} sc1")
    a("s_mov_b64 exec, -1")
    srd(a, SRD_B, sWQ, 0x400000)
    for t in range(16):
        a(f"buffer_load_dwordx4 {R(TA+4*t)}, v{vA0}, {SR(SRD_B)}, s{sT0} offen {WPOL}")
        if t < 15:
            a(f"s_add_u32 s{sT0}, s{sT0}, 8192")
    masks()
    a("s_waitcnt vmcnt(18)")
    stamp(2)
    X = [TC + i for i in range(16)]
    for bb, src in ((0, vPB0), (1, vPB1)):
        for k in range(4):
            a(f"v_lshlrev_b32 v{X[bb*8+2*k]}, 16, v{src+k}")
            a(f"v_and_b32 v{X[bb*8+2*k+1]}, 0xffff0000, v{src+k}")
    S0, S1, Tm0, Tm1 = TC + 16, TC + 17, TC + 18, TC + 19
    Dv = [TC + 20 + i for i in range(16)]
    for bb, s in ((0, S0), (1, S1)):
        a(f"v_add_f32 v{s}, v{X[bb*8]}, v{X[bb*8+1]}")
    for k in range(2, 8):
        for bb, s in ((0, S0), (1, S1)):
            a(f"v_add_f32 v{s}, v{s}, v{X[bb*8+k]}")
    allreduce(a, [S0, S1], [Tm0, Tm1])
    a(f"v_mul_f32 v{S0}, 0x3b000000, v{S0}")
    a(f"v_mul_f32 v{S1}, 0x3b000000, v{S1}")
    V0, V1 = TC + 36, TC + 37
    for bb, s in ((0, S0), (1, S1)):
        for k in range(8):
            a(f"v_sub_f32 v{Dv[bb*8+k]}, v{X[bb*8+k]}, v{s}")
    for bb, v in ((0, V0), (1, V1)):
        a(f"v_mul_f32 v{v}, v{Dv[bb*8]}, v{Dv[bb*8]}")
    for k in range(1, 8):
        for bb, v in ((0, V0), (1, V1)):
            a(f"v_fmac_f32 v{v}, v{Dv[bb*8+k]}, v{Dv[bb*8+k]}")
    allreduce(a, [V0, V1], [Tm0, Tm1])
    a(f"v_mul_f32 v{V0}, 0x3b000000, v{V0}")
    a(f"v_mul_f32 v{V1}, 0x3b000000, v{V1}")
    rne(a, [S0, S1, V0, V1])
    a(f"v_add_f32 v{V0}, 0x3727c5ac, v{V0}")
    a(f"v_add_f32 v{V1}, 0x3727c5ac, v{V1}")
    rne(a, [V0, V1])
    a(f"v_sqrt_f32 v{V0}, v{V0}")
    a(f"v_sqrt_f32 v{V1}, v{V1}")
    rne(a, [V0, V1])
    a(f"v_rcp_f32 v{V0}, v{V0}")
    a(f"v_rcp_f32 v{V1}, v{V1}")
    for bb, s in ((0, S0), (1, S1)):
        for k in range(8):
            a(f"v_sub_f32 v{Dv[bb*8+k]}, v{X[bb*8+k]}, v{s}")
    rne(a, Dv)
    for bb, v in ((0, V0), (1, V1)):
        for k in range(8):
            a(f"v_mul_f32 v{Dv[bb*8+k]}, v{Dv[bb*8+k]}, v{v}")
    for d in Dv:
        a(f"v_cvt_pk_bf16_f32 v{d}, v{d}, v{d}")
    a(f"v_lshlrev_b32 v{vA1}, 5, v{vLANE}")
    for bb in range(2):
        for k in range(2):
            a(f"ds_write_b128 v{vA1}, {R(Dv[bb*8+4*k])} offset:{L_XN + bb*2048 + 16*k}")
    a(f"s_cmp_ge_u32 s{sLW}, 88")
    a(f"s_cselect_b32 s{sT0}, 88, 0")
    a(f"s_cselect_b32 s{SRD_C}, s{sWU}, s{sWG}")
    a(f"s_cselect_b32 s{SRD_C+1}, s{sWU+1}, s{sWG+1}")
    a(f"s_and_b32 s{SRD_C+1}, s{SRD_C+1}, 0xffff")
    a(f"s_sub_u32 s{sT0}, s{sLW}, s{sT0}")
    a(f"s_cmp_lt_u32 s{sLW}, 176")
    a(f"s_cselect_b32 s{SRD_C+2}, {512*2752}, 0")
    a(f"s_mov_b32 s{SRD_C+3}, 0x20000")
    a(f"s_lshr_b32 s{sT1}, s{sT0}, 3")
    a(f"s_and_b32 s{sT5}, s{sT0}, 7")
    a(f"s_mul_i32 s{sT3}, s{sT5}, {64*2752}")
    a(f"s_lshl_b32 s{sT4}, s{sT1}, 8")
    a(f"s_add_u32 s{sT3}, s{sT3}, s{sT4}")
    a(f"v_mul_u32_u24 v{vA0}, {16*2752}, v{vG}")
    a(f"v_lshl_add_u32 v{vA0}, v{vJ}, 4, v{vA0}")
    a(f"s_lshl_b32 s{sT4}, s{sT1}, 4")
    a(f"v_add_u32 v{vT}, s{sT4}, v{vJ}")
    a(f"v_cmp_gt_u32 vcc, 172, v{vT}")
    a(f"v_mov_b32 v{vU}, 0x40000000")
    a(f"v_cndmask_b32 v{vA0}, v{vU}, v{vA0}, vcc")
    for t in range(16):
        a(f"buffer_load_dwordx4 {R(TB+4*t)}, v{vA0}, {SR(SRD_C)}, s{sT3} offen {WPOL}")
        if t < 15:
            a(f"s_add_u32 s{sT3}, s{sT3}, 2752")
    a(f"v_lshrrev_b32 v{vT}, 3, v{vJ}")
    a(f"v_lshlrev_b32 v{vKO}, 11, v{vT}")
    a(f"v_lshl_add_u32 v{vKO}, v{vG}, 6, v{vKO}")
    a(f"s_lshl_b32 s{sT0}, s{sPID}, 8")
    a(f"v_add_u32 v{vA1}, s{sT0}, v{vKO}")
    a("s_waitcnt lgkmcnt(0)")
    make_tag()
    if EARLY:
        a("s_barrier")
    tile_gemv(a, TA, vA1, L_XN, waits={0: 28, 4: 24, 8: 20, 12: 16})
    publish_pair(vACC, vVO, sOFF, QP)
    if not EARLY:
        a("s_barrier")
    stamp(3)
    a(f"s_cmp_ge_u32 s{sLW}, 176")
    a("s_cbranch_scc1 L_A0_noffn1")
    a(f"s_lshl_b32 s{sT0}, s{sT5}, 8")
    a(f"v_add_u32 v{vA1}, s{sT0}, v{vKO}")
    tile_gemv(a, TB, vA1, L_XN, waits={0: 2})
    publish_pair(vACC, vVO, sOFF, GP)
    a.label("L_A0_noffn1")
    stamp(4)
    a("s_setprio 0")
    a(f"s_lshr_b32 s{sT0}, s{sLW}, 6")
    a(f"s_lshl_b32 s{sT0}, s{sT0}, 7")
    a(f"s_bfe_u32 s{sT1}, s{sLW}, 0x20004")
    a(f"s_lshl_b32 s{sT1}, s{sT1}, 5")
    a(f"s_add_u32 s{sT0}, s{sT0}, s{sT1}")
    a(f"s_bfe_u32 s{sT1}, s{sLW}, 0x10003")
    a(f"s_lshl_b32 s{sT1}, s{sT1}, 9")
    a(f"s_add_u32 s{sT0}, s{sT0}, s{sT1}")
    a(f"s_and_b32 s{sT1}, s{sLW}, 7")
    a(f"s_add_u32 s{sT0}, s{sT0}, s{sT1}")
    a(f"v_and_b32 v{vT}, 3, v{vLANE}")
    a(f"v_lshlrev_b32 v{vT}, 3, v{vT}")
    a(f"v_add_u32 v{vT}, s{sT0}, v{vT}")
    a(f"v_lshlrev_b32 v{vA2}, 1, v{vT}")
    a(f"buffer_load_ushort v{vP}, v{vA2}, {SR(SRD_A)}, 0 offen")
    for r in range(4):
        a(f"v_mov_b32 v{TA+r}, 0")
    a("s_barrier")
    a("s_mov_b32 exec_lo, 0x3fffff")
    a("s_mov_b32 exec_hi, 0")
    a(f"s_sleep {PSL}")
    gather_pairs(TA, 1, vVO, sOFF, 0, DP, PSL, "dp")
    a("s_mov_b64 exec, -1")
    stamp(5)

    def reduce_select(dst):
        allreduce(a, [TA + r for r in range(4)], [TA + 4 + r for r in range(4)])
        a(f"v_and_b32 v{vT}, 3, v{vLANE}")
        a(f"v_mov_b32 v{dst}, v{TA}")
        for r in range(1, 4):
            a(f"v_cmp_eq_u32 vcc, {r}, v{vT}")
            a(f"v_cndmask_b32 v{dst}, v{dst}, v{TA+r}, vcc")
    reduce_select(vM)
    rne(a, [vM])
    a(f"v_mul_f32 v{vU}, {NLOG2E:#x}, v{vM}")
    a(f"v_exp_f32 v{vU}, v{vU}")
    a(f"v_add_f32 v{vU}, 1.0, v{vU}")
    a(f"v_rcp_f32 v{vU}, v{vU}")
    a(f"v_mul_f32 v{vM}, v{vM}, v{vU}")
    rne(a, [vM])
    a(f"v_lshlrev_b32 v{vP}, 16, v{vP}")
    srd(a, SRD_B, sOUT, 2048)
    stamp(6)
    a("s_setprio 3")
    a("s_barrier")

    def issue_yp():
        a(f"buffer_load_dwordx4 {R(TA)}, v{vVO}, {SR(SRD_WS)}, s{sOFF} offen offset:{YP} sc1")
    poll(a, issue_yp, range(TA, TA + 4), sleep=0, name="yp")
    stamp(7)
    reduce_select(vL)
    rne(a, [vL])
    a(f"v_mul_f32 v{vL}, v{vL}, v{vM}")
    rne(a, [vL])
    a(f"v_add_f32 v{vL}, v{vL}, v{vP}")
    a(f"v_cvt_pk_bf16_f32 v{vL}, v{vL}, v{vL}")
    a(f"v_cmp_gt_u32 vcc, 4, v{vLANE}")
    a(f"s_and_saveexec_b64 s[{sEX}:{sEX+1}], vcc")
    a(f"buffer_store_short v{vL}, v{vA2}, {SR(SRD_B)}, 0 offen")
    a(f"s_cmp_lg_u32 s{sLW}, 0")
    a("s_cbranch_scc1 L_A0_nogen")
    a("s_mov_b64 exec, 1")
    a(f"v_mov_b32 v{vT}, s{sGEN}")
    a(f"v_mov_b32 v{vU}, {GEN:#x}")
    a(f"buffer_store_dword v{vT}, v{vU}, {SR(SRD_WS)}, 0 offen sc1")
    a.label("L_A0_nogen")
    stamp_flush(7)
    a("s_endpgm")

    a.label("L_A1")
    if EXP & 8:
        a("s_endpgm")
    a("s_setprio 2")
    masks()
    a(f"s_lshl_b32 s{sOFF}, s{sLW}, 12")
    a(f"v_lshlrev_b32 v{vA0}, 14, v{vG}")
    a(f"v_lshl_add_u32 v{vA0}, v{vJ}, 4, v{vA0}")
    a(f"s_lshl_b32 s{sT0}, s{sH}, 17")
    a(f"s_lshl_b32 s{sT1}, s{sB}, 16")
    a(f"s_add_u32 s{sT0}, s{sT0}, s{sT1}")
    a(f"s_lshl_b32 s{sT1}, s{sS}, 8")
    a(f"s_add_u32 s{sT0}, s{sT0}, s{sT1}")
    a(f"v_lshrrev_b32 v{vT}, 5, v{vLANE}")
    a(f"v_lshlrev_b32 v{vA1}, 12, v{vT}")
    a(f"v_bfe_u32 v{vT}, v{vLANE}, 3, 2")
    a(f"v_lshl_add_u32 v{vA1}, v{vT}, 8, v{vA1}")
    a(f"v_lshlrev_b32 v{vA2}, 6, v{vT}")
    a(f"v_and_b32 v{vT}, 7, v{vLANE}")
    a(f"v_lshl_add_u32 v{vA1}, v{vT}, 4, v{vA1}")
    a(f"v_lshl_add_u32 v{vA2}, v{vT}, 1, v{vA2}")
    a(f"s_sub_u32 s{sT1}, s{sLW}, 168")
    a(f"s_and_b32 s{sT1}, s{sT1}, 0xff")
    a(f"s_lshr_b32 s{sT4}, s{sT1}, 2")
    a(f"s_and_b32 s{sT5}, s{sT1}, 3")
    a(f"s_lshl_b32 s{sT3}, s{sT4}, 16")
    a(f"s_lshl_b32 s{sT1}, s{sT5}, 8")
    a(f"s_add_u32 s{sT3}, s{sT3}, s{sT1}")
    a("s_waitcnt lgkmcnt(0)")
    srd(a, SRD_WS, sWS, WSZ)
    load_tag()
    srd(a, SRD_B, sWO, 0x400000)
    srd(a, SRD_C, sWD, 1376 * 1024)
    a(f"s_cmp_ge_u32 s{sLW}, 168")
    a(f"s_cselect_b32 s{SRD_C+2}, {1376*1024}, 0")
    a("s_waitcnt lgkmcnt(0)")
    make_tag()
    for t in range(16):
        if t % 4 == 0 and t:
            a(f"s_add_u32 s{sT0}, s{sT0}, 4096")
        a(f"buffer_load_dwordx4 {R(TA+4*t)}, v{vA0}, {SR(SRD_B)}, s{sT0} offen offset:{1024*(t%4)} {WPOL}")
    for t in range(16):
        if t % 4 == 0 and t:
            a(f"s_add_u32 s{sT3}, s{sT3}, 4096")
        a(f"buffer_load_dwordx4 {R(TB+4*t)}, v{vA0}, {SR(SRD_C)}, s{sT3} offen offset:{1024*(t%4)} {WPOL}")
    a(f"s_lshl_b32 s{sT0}, s{sH}, 15")
    a(f"s_lshl_b32 s{sT1}, s{sB}, 7")
    a(f"s_add_u32 s{sT0}, s{sT0}, s{sT1}")
    a("s_barrier")
    stamp(2, -1)
    if QSL:
        a(f"s_sleep {QSL}")
    gather_pairs(TC, 4, vA1, sT0, 8192, QP, 1, "qp")
    stamp(3, -1)
    for t in range(1, 4):
        for r in range(4):
            a(f"v_add_f32 v{TC+r}, v{TC+r}, v{TC+4*t+r}")
    for r in range(4):
        a(f"v_mov_b32 v{TC+4+r}, v{TC+r}")
    for r in range(4):
        a(f"v_permlane32_swap_b32 v{TC+r}, v{TC+4+r}")
    for r in range(4):
        a(f"v_add_f32 v{TC+r}, v{TC+r}, v{TC+4+r}")
    for r in range(4):
        a(f"v_cvt_pk_bf16_f32 v{TC+r}, v{TC+r}, v{TC+r}")
    for r in range(4):
        a(f"ds_write_b16 v{vA2}, v{TC+r} offset:{L_QV + 16*r}")
    a("s_waitcnt lgkmcnt(0)")
    a("s_barrier")
    a("s_setprio 0")
    a(f"v_lshrrev_b32 v{vT}, 3, v{vJ}")
    a(f"v_lshlrev_b32 v{vP}, 8, v{vT}")
    a(f"v_lshl_add_u32 v{vP}, v{vG}, 6, v{vP}")
    a(f"v_lshlrev_b32 v{vL}, 12, v{vLANE}")
    a(f"s_cmp_lt_u32 s{sLW}, 168")
    a("s_cbranch_scc1 L_A1_noffn2")
    a(f"v_lshrrev_b32 v{vT}, 5, v{vLANE}")
    a(f"v_mul_u32_u24 v{vA0}, {88*4096}, v{vT}")
    a(f"v_and_b32 v{vT}, 31, v{vLANE}")
    a(f"v_lshl_add_u32 v{vA0}, v{vT}, 4, v{vA0}")
    a(f"s_lshr_b32 s{sT0}, s{sT4}, 1")
    a(f"s_lshl_b32 s{sT0}, s{sT0}, 15")
    a(f"s_and_b32 s{sT1}, s{sT4}, 1")
    a(f"s_lshl_b32 s{sT1}, s{sT1}, 9")
    a(f"s_add_u32 s{sT0}, s{sT0}, s{sT1}")
    gather_pairs(TC, 8, vA0, sT0, 4096, GP, 32, "gp")
    for t in range(1, 8):
        for r in range(4):
            a(f"v_add_f32 v{TC+r}, v{TC+r}, v{TC+4*t+r}")
    G = [TC + r for r in range(4)]
    Uu = [TC + 4 + r for r in range(4)]
    E = [TC + 8 + r for r in range(4)]
    rne(a, G)
    for r in range(4):
        a(f"v_mov_b32 v{Uu[r]}, v{G[r]}")
    for r in range(4):
        a(f"v_permlane32_swap_b32 v{G[r]}, v{Uu[r]}")
    a(f"s_mov_b32 s{sT0}, 0xbdd2d3e8")
    a(f"v_mov_b32 v{vU}, 0xc0135761")
    for r in range(4):
        a(f"v_mul_f32 v{E[r]}, v{G[r]}, v{G[r]}")
    for r in range(4):
        a(f"v_fma_f32 v{E[r]}, v{E[r]}, s{sT0}, v{vU}")
    for r in range(4):
        a(f"v_mul_f32 v{E[r]}, v{E[r]}, v{G[r]}")
    for r in range(4):
        a(f"v_exp_f32 v{E[r]}, v{E[r]}")
    for r in range(4):
        a(f"v_add_f32 v{E[r]}, 1.0, v{E[r]}")
    for r in range(4):
        a(f"v_rcp_f32 v{E[r]}, v{E[r]}")
    for r in range(4):
        a(f"v_mul_f32 v{G[r]}, v{G[r]}, v{E[r]}")
    rne(a, G)
    for r in range(4):
        a(f"v_mul_f32 v{G[r]}, v{G[r]}, v{Uu[r]}")
    for r in range(4):
        a(f"v_cvt_pk_bf16_f32 v{G[r]}, v{G[r]}, v{G[r]}")
    a(f"v_lshrrev_b32 v{vT}, 3, v{vJ}")
    a(f"v_lshlrev_b32 v{vA0}, 8, v{vT}")
    a(f"v_and_b32 v{vT}, 1, v{vG}")
    a(f"v_lshl_add_u32 v{vA0}, v{vT}, 7, v{vA0}")
    a(f"v_and_b32 v{vT}, 7, v{vJ}")
    a(f"v_lshl_add_u32 v{vA0}, v{vT}, 2, v{vA0}")
    for r in range(4):
        a(f"ds_write_b32 v{vA0}, v{G[r]} offset:{L_VEC1 + 32*r}")
    a("s_waitcnt lgkmcnt(0)")
    tile_gemv(a, TB, vP, L_VEC1)
    a(f"s_lshl_b32 s{sT0}, s{sT5}, 18")
    a(f"s_lshl_b32 s{sT1}, s{sT4}, 4")
    a(f"s_add_u32 s{sT0}, s{sT0}, s{sT1}")
    publish_pair(vACC, vL, sT0, DP)
    a.label("L_A1_noffn2")
    stamp(7, -1)
    if EXP & 512:
        a(f"s_andn2_b32 s{sT0}, s{sLW}, 3")
        a(f"s_lshl_b32 s{sT0}, s{sT0}, 12")
        a(f"s_add_u32 s{sT0}, s{sT0}, {CNT}")
        a(f"v_mov_b32 v{vA0}, 0")
        a("s_mov_b64 exec, 1")
        a(f"s_mov_b32 s{sCNT}, {ANUM}")
        stamp(2, -1)
        a.label("L_exp512")
        a(f"v_mov_b32 v{vT}, 1")
        if EXP & 1024:
            a(f"buffer_load_dword v{vT}, v{vA0}, {SR(SRD_WS)}, s{sT0} offen sc1")
        else:
            a(f"buffer_atomic_add v{vT}, v{vA0}, {SR(SRD_WS)}, s{sT0} offen sc0 sc1")
        a("s_waitcnt vmcnt(0)")
        a(f"s_sub_u32 s{sCNT}, s{sCNT}, 1")
        a(f"s_cmp_lg_u32 s{sCNT}, 0")
        a("s_cbranch_scc1 L_exp512")
        stamp(3, -1)
        a("s_mov_b64 exec, -1")
    a(f"v_and_b32 v{vT}, 31, v{vLANE}")
    a(f"v_lshlrev_b32 v{vVO}, 4, v{vT}")
    a(f"v_mov_b32 v{vKO}, 0")
    a(f"v_add_u32 v{vA0}, {OP}, v{vVO}")
    a(f"v_mov_b32 v{vU}, {ML}")
    a(f"v_cmp_gt_u32 vcc, 32, v{vLANE}")
    a(f"s_mov_b64 s[{sEX}:{sEX+1}], vcc")
    a(f"v_cndmask_b32 v{vA0}, v{vU}, v{vA0}, vcc")
    a(f"s_lshl_b32 s{sT1}, s{sB}, 8")
    a(f"s_add_u32 s{sT1}, s{sT1}, {OP}")
    a(f"v_lshlrev_b32 v{vA1}, 4, v{vJ}")
    a(f"v_add_u32 v{vA1}, s{sT1}, v{vA1}")
    a(f"v_cndmask_b32 v{vA1}, v{vU}, v{vA1}, vcc")
    a(f"v_and_b32 v{vT}, 1, v{vG}")
    a(f"v_lshl_add_u32 v{vA1}, v{vT}, 14, v{vA1}")
    a(f"v_lshlrev_b32 v{vA2}, 8, v{vT}")
    a(f"v_bfe_u32 v{vT}, v{vLANE}, 3, 1")
    a(f"v_lshl_add_u32 v{vA2}, v{vT}, 7, v{vA2}")
    a(f"v_and_b32 v{vT}, 7, v{vLANE}")
    a(f"v_lshl_add_u32 v{vA2}, v{vT}, 2, v{vA2}")
    a(f"s_lshl_b32 s{sT2}, s{sS}, 18")
    a(f"s_lshl_b32 s{sT3}, s{sH}, 5")
    a(f"s_add_u32 s{sT2}, s{sT2}, s{sT3}")
    a(f"s_lshl_b32 s{sT3}, s{sB}, 4")
    a(f"s_add_u32 s{sT2}, s{sT2}, s{sT3}")
    a(f"s_lshl_b32 s{sT0}, s{sH}, 15")
    a("s_setprio 3")
    a("s_barrier")
    stamp(4, -1)
    MLr = TC
    a(f"ds_read_b128 {R(MLr)}, v{vKO} offset:{L_PML}")
    a(f"ds_read_b128 {R(MLr+4)}, v{vKO} offset:{L_PML+16}")
    for w in range(4):
        a(f"ds_read_b128 {R(TB+4*w)}, v{vVO} offset:{L_PART + 512*w}")

    def combine(ms, ls, F, outm, outl):
        a(f"v_max_f32 v{outm}, v{ms[0]}, v{ms[1]}")
        a(f"v_max3_f32 v{outm}, v{outm}, v{ms[2]}, v{ms[3]}")
        for w in range(4):
            a(f"v_sub_f32 v{F+w}, v{ms[w]}, v{outm}")
        for w in range(4):
            a(f"v_mul_f32 v{F+w}, s{sL2E}, v{F+w}")
        for w in range(4):
            a(f"v_exp_f32 v{F+w}, v{F+w}")
        a(f"v_mul_f32 v{outl}, v{F}, v{ls[0]}")
        for w in range(1, 4):
            a(f"v_fmac_f32 v{outl}, v{F+w}, v{ls[w]}")

    def combine_o(os_, F):
        for r in range(4):
            a(f"v_mul_f32 v{os_[0]+r}, v{F}, v{os_[0]+r}")
        for w in range(1, 4):
            for r in range(4):
                a(f"v_fmac_f32 v{os_[0]+r}, v{F+w}, v{os_[w]+r}")
    F = TC + 8
    a("s_waitcnt lgkmcnt(4)")
    combine([MLr + 2 * w for w in range(4)], [MLr + 2 * w + 1 for w in range(4)], F, vM, vMN)
    a("s_waitcnt lgkmcnt(0)")
    combine_o([TB + 4 * w for w in range(4)], F)
    for r in range(4):
        src = vM if r % 2 == 0 else vMN
        a(f"v_cndmask_b32 v{TB+r}, v{src}, v{TB+r}, s[{sEX}:{sEX+1}]")
    sanitize(a, TB)
    a(f"v_cmp_gt_u32 vcc, 33, v{vLANE}")
    a(f"s_and_saveexec_b64 s[{sT4}:{sT5}], vcc")
    a(f"buffer_store_dwordx4 {R(TB)}, v{vA0}, {SR(SRD_WS)}, s{sOFF} offen sc1")
    a("s_mov_b64 exec, -1")
    stamp(5, -1)
    GB = TB + 16

    def issue_op():
        a(f"s_mov_b32 s{sT1}, s{sT0}")
        for t in range(4):
            a(f"buffer_load_dwordx4 {R(GB+4*t)}, v{vA1}, {SR(SRD_WS)}, s{sT1} offen sc1")
            if t < 3:
                a(f"s_add_u32 s{sT1}, s{sT1}, 4096")
    poll(a, issue_op, range(GB, GB + 16), sleep=0, name="op")
    stamp(6, -1)
    for t in range(4):
        a(f"v_mov_b32 v{MLr+2*t}, v{GB+4*t}")
        a(f"v_mov_b32 v{MLr+2*t+1}, v{GB+4*t+1}")
    for t in range(4):
        a(f"v_permlane32_swap_b32 v{GB+4*t}, v{MLr+2*t}")
        a(f"v_permlane32_swap_b32 v{GB+4*t+1}, v{MLr+2*t+1}")
    combine([MLr + 2 * w for w in range(4)], [MLr + 2 * w + 1 for w in range(4)], F, vM, vMN)
    a(f"v_rcp_f32 v{vMN}, v{vMN}")
    combine_o([GB + 4 * w for w in range(4)], F)
    for r in range(4):
        a(f"v_mul_f32 v{GB+r}, v{GB+r}, v{vMN}")
    for r in range(4):
        a(f"v_cvt_pk_bf16_f32 v{GB+r}, v{GB+r}, v{GB+r}")
    a(f"s_mov_b64 exec, s[{sEX}:{sEX+1}]")
    for r in range(4):
        a(f"ds_write_b32 v{vA2}, v{GB+r} offset:{L_VEC1 + 32*r}")
    a("s_mov_b64 exec, -1")
    a("s_waitcnt lgkmcnt(0)")
    tile_gemv(a, TA, vP, L_VEC1)
    sanitize(a, vACC)
    a(f"buffer_store_dwordx4 {R(vACC)}, v{vL}, {SR(SRD_WS)}, s{sT2} offen offset:{YP} sc1")
    stamp_flush(7)
    a.label("L_end")
    a("s_endpgm")
    a.label("L_codeend")

    body = a.finish()
    hdr = open("cdna_kernels/" + NAME + ".s.ref").read().split("; @launch")[0]
    nv = 244
    txt = hdr + f"; @launch grid=(256,1,1) block=(384,1,1) lds={L_TOTAL + 4*NL*8192}\n"
    txt += '.amdgcn_target "amdgcn-amd-amdhsa--gfx950"\n.text\n'
    txt += f".globl {NAME}_kernel\n.p2align 8\n.type {NAME}_kernel,@function\n"
    txt += body
    txt += f""".section .rodata,"a"
.p2align 6
.amdhsa_kernel {NAME}_kernel
  .amdhsa_next_free_vgpr {nv}
  .amdhsa_next_free_sgpr 96
  .amdhsa_accum_offset {(nv+3)//4*4}
  .amdhsa_group_segment_fixed_size 0
  .amdhsa_kernarg_size 96
  .amdhsa_user_sgpr_count 2
  .amdhsa_user_sgpr_kernarg_segment_ptr 1
  .amdhsa_system_sgpr_workgroup_id_x 1
  .amdhsa_float_denorm_mode_32 3
.end_amdhsa_kernel
"""
    return txt


if __name__ == "__main__":
    out = sys.argv[1]
    kw = eval("dict(" + (sys.argv[2] if len(sys.argv) > 2 else "") + ")")
    open(out, "w").write(gen(**kw))
```

```python
import sys
sys.path.insert(0, "work")
from asmlib import Asm

NAME = "recurrent_scan__mha_block_cached__geglu_ffn__decode"

QP, GP, YP, OP, ML, CNT = 0, 1024, 2048, 3072, 3584, 3840
DPB = 0x100000
YPB = 0x100000
GEN = 0x140000
WSZ = 0x200000
L_QF = 6464
L_XN, L_QV, L_PART, L_PML, L_VEC1, L_VEC0, L_TOTAL = 0, 4096, 4352, 6400, 6656, 7168, 8192

LOG2E = 0x3FB8AA3B
NLOG2E = 0xBFB8AA3B
SCALE = 0x3DB504F3

sX, sK, sV, sWQ, sWO, sBX, sWG, sWU, sWD, sOUT, sDBG, sWS = 4, 6, 8, 10, 12, 14, 16, 18, 20, 22, 24, 26
sH, sB, sS, sLW, sPID = 28, 29, 30, 31, 32
sL2E = 33
SRD_A, SRD_B, SRD_C, SRD_WS, SRD_D = 36, 40, 44, 48, 52
sT0, sT1, sT2, sT3, sT4, sT5 = 56, 57, 58, 59, 60, 61
sCNT = 62
sOFF = 63
sEX = 64
sIT = 66
sTAG, sGEN = 34, 35
sTMK = 67
sSEL = 96
sPM = 86
TBITS = 8
TMASK = (1 << TBITS) - 1
sST = 70
vLANE, vJ, vG = 1, 2, 3
vMASK = 4
vT, vU, vW, vP, vM, vMN, vL, vKO, vVO, vA0, vA1, vA2 = 8, 9, 10, 11, 12, 13, 14, 15, 16, 17, 18, 19
vS, vACC, vPB0, vPB1, vQB = 20, 24, 28, 32, 36
vWIN = 52
vTAG = 244
TA, TB, TC = 52, 116, 180


def srd(a, d, ptr, nbytes):
    a(f"s_mov_b32 s{d}, s{ptr}")
    a(f"s_and_b32 s{d+1}, s{ptr+1}, 0xffff")
    if isinstance(nbytes, int):
        a(f"s_mov_b32 s{d+2}, {nbytes:#x}")
    else:
        a(f"s_mov_b32 s{d+2}, {nbytes}")
    a(f"s_mov_b32 s{d+3}, 0x20000")


def R(b, n=4):
    return f"v[{b}:{b+n-1}]"


def SR(b, n=4):
    return f"s[{b}:{b+n-1}]"


DPPM = "row_mask:0xf bank_mask:0xf"


def allreduce(a, regs, tmps, op="v_add_f32", quad=True):
    steps = []
    if quad:
        steps += ["quad_perm:[1,0,3,2]", "quad_perm:[2,3,0,1]"]
    steps += ["row_ror:4", "row_ror:8"]
    for st in steps:
        for r in regs:
            a(f"{op}_dpp v{r}, v{r}, v{r} {st} {DPPM}")
    for sw in ("v_permlane16_swap_b32", "v_permlane32_swap_b32"):
        for r, t in zip(regs, tmps):
            a(f"v_mov_b32 v{t}, v{r}")
        for r, t in zip(regs, tmps):
            a(f"{sw} v{r}, v{t}")
        for r, t in zip(regs, tmps):
            a(f"{op} v{r}, v{r}, v{t}")


def rne(a, regs):
    for r in regs:
        a(f"v_cvt_pk_bf16_f32 v{r}, v{r}, v{r}")
    for r in regs:
        a(f"v_and_b32 v{r}, 0xffff0000, v{r}")


def tile_gemv(a, tbase, vaddr_lds, lds_off, waits=None):
    for k in range(4):
        a(f"ds_read_b128 {R(vQB+4*k)}, v{vaddr_lds} offset:{lds_off+16*k}")
    a("s_waitcnt lgkmcnt(0)")

    def build(t):
        pb = vPB0 if t % 2 == 0 else vPB1
        for r in range(4):
            a(f"v_and_b32 v{pb+r}, v{vQB+t}, v{vMASK+r}")
    build(0)
    for t in range(16):
        if t + 1 < 16:
            build(t + 1)
        pb = vPB0 if t % 2 == 0 else vPB1
        if waits and t in waits:
            a(f"s_waitcnt vmcnt({waits[t]})")
        c = "0" if t == 0 else R(vACC)
        a(f"v_mfma_f32_16x16x32_bf16 {R(vACC)}, {R(tbase+4*t)}, {R(pb)}, {c}")


def sanitize(a, base, n=4):
    for r in range(n):
        a(f"v_min_u32 v{base+r}, -2, v{base+r}")


def poll(a, issue, regs, sleep=0, name="poll"):
    top = a.newlabel(name)
    done = a.newlabel(name + "d")
    a(f"s_mov_b32 s{sCNT}, 0x40000")
    a.label(top)
    issue()
    a("s_waitcnt vmcnt(0)")
    rs = list(regs)
    a(f"v_max_u32 v{vT}, v{rs[0]}, v{rs[1]}" if len(rs) > 1 else f"v_mov_b32 v{vT}, v{rs[0]}")
    rest = rs[2:]
    while rest:
        if len(rest) >= 2:
            a(f"v_max3_u32 v{vT}, v{vT}, v{rest[0]}, v{rest[1]}")
            rest = rest[2:]
        else:
            a(f"v_max_u32 v{vT}, v{vT}, v{rest[0]}")
            rest = rest[1:]
    a(f"v_cmp_eq_u32 vcc, -1, v{vT}")
    a(f"s_cbranch_vccz {done}")
    a(f"s_sub_u32 s{sCNT}, s{sCNT}, 1")
    a(f"s_cbranch_scc1 {done}")
    if sleep:
        a(f"s_sleep {sleep}")
    a(f"s_branch {top}")
    a.label(done)


def gen(DD=3, STAMP=False, NSTAT=22, INFL=16, NL=4, EXP=0, SG=0, EARLY=0, PSL=64, QSL=0, CPF=3, RCL=0, ANUM=8, POL='nt', WPOL='nt', DBGST=0, GSL=64, PP=2, PGAP=8, ALPHA=0, YSL=0, OSL=0, PY=2, PAT=0):
    a = Asm()
    stamps = {"n": 0}

    def stamp(k, grp=0):
        if STAMP and (k < 2 or grp == -1 or grp == SG):
            a(f"s_memrealtime s[{sST+2*k}:{sST+2*k+1}]")

    def stamp_flush(nst):
        if not STAMP:
            return
        a(f"s_memrealtime s[{sST+2}:{sST+3}]")
        a("s_waitcnt lgkmcnt(0)")
        a("s_mov_b64 exec, -1")
        if DBGST:
            srd(a, SRD_D, sDBG, 256)
            a("s_mov_b64 exec, 1")
            a(f"s_min_u32 s{sT0}, s3, 2")
            a(f"s_mul_i32 s{sT0}, s{sT0}, 20")
            a("v_mov_b32 v17, 0")
            a(f"s_not_b32 s{sT1}, s{sST}")
            a(f"v_mov_b32 v20, s{sT1}")
            a(f"buffer_atomic_umax v20, v17, {SR(SRD_D)}, 0 offen sc1")
            for k in range(5):
                a(f"v_mov_b32 v{21+k}, s{sST+2*(k+1)}")
                a(f"buffer_atomic_umax v{21+k}, v17, {SR(SRD_D)}, s{sT0} offen offset:{4+4*k} sc1")
            return
        srd(a, SRD_D, sWS, 0x20000000)
        a(f"s_mul_i32 s{sT0}, s2, 6")
        a(f"s_add_u32 s{sT0}, s{sT0}, s3")
        a(f"s_lshl_b32 s{sT1}, s{sT0}, 6")
        a(f"s_lshl_b32 s{sT0}, s{sT0}, 4")
        a(f"s_add_u32 s{sT0}, s{sT0}, 0x10000000")
        a(f"s_add_u32 s{sT1}, s{sT1}, 0x11000000")
        a(f"s_getreg_b32 s{sT2}, hwreg(HW_REG_XCC_ID)")
        a(f"s_and_b32 s{sT2}, s{sT2}, 15")
        a(f"s_lshl_b32 s{sT2}, s{sT2}, 28")
        a(f"s_or_b32 s{sT2}, s{sST+1}, s{sT2}")
        a(f"v_mov_b32 v20, s{sST}")
        a(f"v_mov_b32 v21, s{sT2}")
        a(f"v_mov_b32 v22, s{sST+2}")
        a(f"v_mov_b32 v23, s{sST+3}")
        a("v_mov_b32 v17, 0")
        for k in range(8):
            a(f"v_mov_b32 v{24+k}, s{sST+2*k}")
        a(f"v_cmp_eq_u32 vcc, 0, v{vLANE}")
        a(f"s_and_saveexec_b64 s[{sEX}:{sEX+1}], vcc")
        a(f"buffer_store_dwordx4 v[20:23], v17, {SR(SRD_D)}, s{sT0} offen")
        a(f"buffer_store_dwordx4 v[24:27], v17, {SR(SRD_D)}, s{sT1} offen")
        a(f"buffer_store_dwordx4 v[28:31], v17, {SR(SRD_D)}, s{sT1} offen offset:16")

    a.label(f"{NAME}_kernel")
    a("s_cmp_ge_u32 s2, 256")
    a("s_cbranch_scc1 L_end")
    if STAMP:
        for k in range(8):
            a(f"s_mov_b64 s[{sST+2*k}:{sST+2*k+1}], 0")
    stamp(0)
    a("s_load_dwordx16 s[4:19], s[0:1], 0")
    a("s_load_dwordx8 s[20:27], s[0:1], 64")
    a("v_lshrrev_b32 v2, 6, v0")
    a(f"v_and_b32 v{vLANE}, 63, v0")
    a("v_readfirstlane_b32 s3, v2")
    a(f"v_and_b32 v{vJ}, 15, v{vLANE}")
    a(f"v_lshrrev_b32 v{vG}, 4, v{vLANE}")
    a(f"s_bfe_u32 s{sH}, s2, 0x50002")
    a(f"s_lshr_b32 s{sB}, s2, 7")
    a(f"s_and_b32 s{sS}, s2, 3")
    a(f"s_lshl_b32 s{sPID}, s{sB}, 2")
    a(f"s_add_u32 s{sPID}, s{sPID}, s{sS}")
    a(f"s_lshl_b32 s{sLW}, s{sH}, 3")
    a(f"s_add_u32 s{sLW}, s{sLW}, s{sPID}")
    a(f"s_mov_b32 s{sL2E}, {LOG2E:#x}")

    def masks():
        a(f"v_and_b32 v{vT}, 1, v{vLANE}")
        a(f"v_lshlrev_b32 v{vT}, 4, v{vT}")
        a(f"v_mov_b32 v{vU}, 0xffff")
        a(f"v_lshlrev_b32 v{vU}, v{vT}, v{vU}")
        a(f"v_bfe_u32 v{vT}, v{vLANE}, 1, 2")
        for r in range(4):
            a(f"v_cmp_eq_u32 vcc, {r}, v{vT}")
            a(f"v_cndmask_b32 v{vMASK+r}, 0, v{vU}, vcc")

    def flagpoll(nd, soff, vaddr, sleep, lane0):
        ftop = a.newlabel("flag")
        fdone = a.newlabel("flagd")
        a(f"s_mov_b32 s{sCNT}, 0x40000")
        a(f"s_mov_b32 s{sIT}, 0x01010101")
        if lane0:
            a("s_mov_b64 exec, 1")
        a.label(ftop)
        if nd == 2:
            a(f"buffer_load_dwordx2 v[{vT}:{vU}], v{vaddr}, {SR(SRD_D)}, {soff} offen sc1")
            a("s_waitcnt vmcnt(0)")
            a(f"v_and_b32 v{vT}, v{vT}, v{vU}")
        else:
            a(f"buffer_load_dword v{vT}, v{vaddr}, {SR(SRD_D)}, {soff} offen sc1")
            a("s_waitcnt vmcnt(0)")
        a(f"v_cmp_ne_u32 vcc, s{sIT}, v{vT}")
        a(f"s_cbranch_vccz {fdone}")
        a(f"s_sub_u32 s{sCNT}, s{sCNT}, 1")
        a(f"s_cbranch_scc1 {fdone}")
        a(f"s_sleep {sleep}")
        a(f"s_branch {ftop}")
        a.label(fdone)
        if lane0:
            a("s_mov_b64 exec, -1")

    a("s_cmp_eq_u32 s3, 0")
    a("s_cbranch_scc1 L_A0")
    a("s_cmp_eq_u32 s3, 1")
    a("s_cbranch_scc1 L_A1")

    if CPF:
        a(f"s_getpc_b64 s[{sT0}:{sT1}]")
        a.label("L_pc")
        a(f"s_sub_u32 s{sT0}, s{sT0}, L_pc-{NAME}_kernel")
        a(f"s_subb_u32 s{sT1}, s{sT1}, 0")
        a(f"v_subrev_u32 v{vT}, 128, v0")
        a(f"v_lshlrev_b32 v{vT}, 4, v{vT}")
        for k in range(CPF):
            a(f"v_min_u32 v{vU}, L_codeend-{NAME}_kernel-16, v{vT}")
            a(f"global_load_dwordx4 {R(vWIN+4*k)}, v{vU}, s[{sT0}:{sT1}]")
            a(f"v_add_u32 v{vT}, 4096, v{vT}")
    a(f"v_and_b32 v{vT}, 3, v{vLANE}")
    a(f"v_lshlrev_b32 v{vKO}, 4, v{vT}")
    a(f"v_bfe_u32 v{vT}, v{vLANE}, 2, 2")
    a(f"v_lshl_add_u32 v{vKO}, v{vT}, 8, v{vKO}")
    a(f"v_lshl_add_u32 v{vKO}, v{vG}, 6, v{vKO}")
    a(f"v_lshlrev_b32 v{vVO}, 4, v{vLANE}")
    a(f"s_lshl_b32 s{sT0}, s{sB}, 5")
    a(f"s_add_u32 s{sT0}, s{sT0}, s{sH}")
    a(f"s_lshl_b32 s{sOFF}, s{sT0}, 21")
    a(f"s_mul_i32 s{sT0}, s{sS}, {4 * NSTAT if PAT == 1 else 4}")
    a(f"s_add_u32 s{sT0}, s{sT0}, s3")
    a(f"s_sub_u32 s{sT0}, s{sT0}, 2")
    a(f"s_lshl_b32 s{sT0}, s{sT0}, 12")
    a(f"s_add_u32 s{sOFF}, s{sOFF}, s{sT0}")
    a("s_waitcnt lgkmcnt(0)")
    srd(a, SRD_A, sK, 0x8000000)
    srd(a, SRD_B, sV, 0x8000000)

    USTEP = 0x4000 if PAT == 1 else 0x10000
    fifo = []
    sSL = [86 + k for k in range(DD)]
    sDYN, sNS, sCA, sCP, sCV = 90, 91, 67, 68, 69
    assert not RCL or (NSTAT % DD == 0 and NL % DD == 0)
    sRET = 92
    sCPs = [94 + k for k in range(DD)]
    assert not (ALPHA and RCL)
    vCL = [vWIN + 32 * (DD + 1) + k for k in range(DD)]
    vCA = vCL[-1] + 1
    NDYN = 512 - 16 * NSTAT
    BAD = 0x40000000

    def kreg(slot, m):
        return vWIN + 32 * slot + 4 * m

    def vreg(slot, m):
        return vWIN + 32 * slot + 16 + 4 * m

    def issueK(slot, so):
        for m in range(4):
            a(f"buffer_load_dwordx4 {R(kreg(slot, m))}, v{vKO}, {SR(SRD_A)}, s{so} offen offset:{1024*m} {POL}")
            fifo.append(("K", slot))

    def issueV(slot, so):
        for m in range(4):
            a(f"buffer_load_dwordx4 {R(vreg(slot, m))}, v{vVO}, {SR(SRD_B)}, s{so} offen offset:{1024*m} {POL}")
            fifo.append(("V", slot))

    def issueC(slot):
        if EXP & 4:
            a(f"v_mov_b32 v{vCL[slot]}, -8")
            return
        if RCL and slot:
            return
        a(f"v_mov_b32 v{vCL[slot]}, {DD if RCL else 1}")
        a(f"buffer_atomic_add v{vCL[slot]}, v{vCA}, {SR(SRD_WS)}, s{sCPs[slot]} offen sc0 sc1")
        fifo.append(("C", slot))

    def waitfor(tag):
        last = max(i for i, t in enumerate(fifo) if t == tag)
        n = len(fifo) - 1 - last
        assert n < 64
        a(f"s_waitcnt vmcnt({n})")
        del fifo[:last + 1]

    def process(slot, fromlds=False):
        if fromlds:
            for m in range(8):
                a(f"ds_read_b128 {R(kreg(slot, m))}, v{vA2} offset:{1024*m}")
            a(f"v_add_u32 v{vA2}, 0x2000, v{vA2}")
            a("s_waitcnt lgkmcnt(4)")
        else:
            a(f"s_cmp_ge_u32 s{sSL[slot]}, {BAD:#x}")
            a("s_cbranch_scc1 L_sdone")
            waitfor(("K", slot))
        for m in range(4):
            c = "0" if m == 0 else R(vS)
            if not EXP & 2:
                a(f"v_mfma_f32_16x16x32_bf16 {R(vS)}, {R(kreg(slot, m))}, {R(vQB+4*m)}, {c}")
        if not fromlds:
            so = sSL[slot]
            if not RCL or slot == 0:
                a(f"v_readfirstlane_b32 s{sCV}, v{vCL[slot]}")
            a(f"s_add_u32 s{sCV}, s{sCV}, 1")
            a(f"s_lshl_b32 s{sT1}, s{sCV}, 12")
            a(f"s_add_u32 s{sT1}, s{sT1}, s{sDYN}")
            a(f"s_cmp_lt_u32 s{sCV}, {NDYN}")
            a(f"s_cselect_b32 s{sT1}, s{sT1}, {BAD:#x}")
            if ALPHA:
                a(f"s_max_u32 s{sT1}, s{sT1}, s{sCPs[slot]}")
            a(f"s_sub_i32 s{sNS}, s{sNS}, 1")
            a(f"s_cmp_ge_i32 s{sNS}, 0")
            a(f"s_cselect_b32 s{so}, s{sOFF}, s{sT1}")
            a(f"s_add_u32 s{sOFF}, s{sOFF}, {USTEP:#x}")
            if ALPHA:
                a(f"s_mul_i32 s{sT2}, s{sCV}, {16 + ALPHA}")
                a(f"s_mul_i32 s{sT3}, s{sNS}, {16 * ALPHA}")
                a(f"s_add_i32 s{sT2}, s{sT2}, s{sT3}")
                a(f"s_cmp_lt_i32 s{sNS}, 0")
                a(f"s_cselect_b32 s{sT2}, s{sT2}, 0")
                a(f"s_cmp_gt_i32 s{sT2}, {16*(NDYN-1) - ALPHA + 16*ALPHA*(DD-1)}")
                a(f"s_cselect_b32 s{sCA}, {BAD:#x}, s{sCA}")
            a(f"s_cmp_lt_i32 s{sNS}, {DD}")
            a(f"s_cselect_b32 s{sCPs[slot]}, s{sCA}, {BAD:#x}")
            issueC(slot)
            issueK(slot, so)
        if not EXP & 2:
            a(f"v_mov_b32_dpp v{vT}, v{vS} quad_perm:[0,0,0,0] {DPPM}")
            for e in range(1, 4):
                a(f"v_add_f32_dpp v{vT}, v{vS+e}, v{vT} quad_perm:[{e},{e},{e},{e}] {DPPM}")
            rne(a, [vT])
            a(f"v_mul_f32 v{vT}, {SCALE:#x}, v{vT}")
            rne(a, [vT])
            a(f"v_cmp_gt_f32 vcc, v{vT}, v{vM}")
            back = a.newlabel("back")
            a(f"s_cbranch_vccz {back}")
            a(f"s_call_b64 s[{sRET}:{sRET+1}], L_slow")
            a.label(back)
            a(f"v_fma_f32 v{vT}, v{vT}, s{sL2E}, v{vMN}")
            a(f"v_exp_f32 v{vT}, v{vT}")
            a(f"v_add_f32 v{vL}, v{vL}, v{vT}")
            a(f"v_cvt_pk_bf16_f32 v{vP}, v{vT}, v{vT}")
        if fromlds:
            a("s_waitcnt lgkmcnt(0)")
        else:
            waitfor(("V", slot))

        def build(m):
            pb = vPB0 if m % 2 == 0 else vPB1
            for r in range(4):
                a(f"v_and_b32_dpp v{pb+r}, v{vP}, v{vMASK+r} row_newbcast:{4*m} {DPPM}")
        if not EXP & 2:
            build(0)
            for m in range(4):
                if m + 1 < 4:
                    build(m + 1)
                pb = vPB0 if m % 2 == 0 else vPB1
                a(f"v_mfma_f32_16x16x32_bf16 {R(vACC)}, {R(vreg(slot, m))}, {R(pb)}, {R(vACC)}")
        if not fromlds:
            issueV(slot, so)

    srd(a, SRD_WS, sWS, WSZ)
    a(f"s_sub_u32 s{sT5}, s3, 2")
    a(f"s_mul_i32 s{sT5}, s{sT5}, {NL*8192}")
    a(f"s_add_u32 s{sT5}, s{sT5}, {L_TOTAL}")
    a(f"v_add_u32 v{vA2}, s{sT5}, v{vVO}")
    a(f"v_mov_b32 v{vCA}, {BAD:#x}")
    a(f"v_cmp_eq_u32 vcc, 0, v{vLANE}")
    a(f"v_cndmask_b32 v{vCA}, v{vCA}, 0, vcc")
    for k in range(DD):
        a(f"s_mov_b32 s{sCPs[k]}, {BAD:#x}")
    if EXP & 8:
        a(f"v_mov_b32 v{vW}, 0")
        a(f"v_mov_b32 v{vT}, 1")
        a(f"ds_write_b32 v{vW}, v{vT} offset:{L_QF}")
        a("s_waitcnt lgkmcnt(0)")
    a("s_waitcnt vmcnt(0)")
    a("s_barrier")
    nfl = 0
    for k in range(DD):
        a(f"s_mov_b32 s{sSL[k]}, s{sOFF}")
        a(f"s_add_u32 s{sOFF}, s{sOFF}, {USTEP:#x}")
        for fn in (issueK, issueV):
            if nfl >= INFL:
                a(f"s_waitcnt vmcnt({INFL-4})")
                nfl -= 4
            if fn is issueK:
                issueC(k)
            fn(k, sSL[k])
            nfl += 4
    masks()
    a(f"s_andn2_b32 s{sCA}, s{sLW}, 3")
    a(f"s_lshl_b32 s{sCA}, s{sCA}, 12")
    a(f"s_add_u32 s{sCA}, s{sCA}, {CNT}")
    if not NDYN:
        a(f"s_mov_b32 s{sCA}, {BAD:#x}")
    a(f"s_lshl_b32 s{sT0}, s{sB}, 5")
    a(f"s_add_u32 s{sT0}, s{sT0}, s{sH}")
    a(f"s_lshl_b32 s{sDYN}, s{sT0}, 21")
    a(f"s_add_u32 s{sDYN}, s{sDYN}, {16*NSTAT*4096}")
    a(f"s_mov_b32 s{sNS}, {NSTAT - DD}")
    for r in range(4):
        a(f"v_mov_b32 v{vACC+r}, 0")
    a(f"v_mov_b32 v{vL}, 0")
    a(f"v_mov_b32 v{vM}, 0xff800000")
    a(f"v_mov_b32 v{vMN}, 0")
    a(f"v_and_b32 v{vT}, 3, v{vJ}")
    a(f"v_lshl_add_u32 v{vT}, v{vG}, 2, v{vT}")
    a(f"v_lshlrev_b32 v{vA0}, 4, v{vT}")
    a(f"v_lshrrev_b32 v{vA1}, 2, v{vJ}")
    a(f"s_mov_b32 s{sIT}, 0")
    a(f"v_mov_b32 v{vW}, 0")
    a.label("L_lpro")
    a(f"ds_read_b32 v{vT}, v{vW} offset:{L_QF}")
    a("s_waitcnt lgkmcnt(0)")
    a(f"v_cmp_ne_u32 vcc, 0, v{vT}")
    a("s_cbranch_vccnz L_qready")
    a(f"s_cmp_lt_u32 s{sIT}, {NL}")
    a("s_cbranch_scc1 L_lgo")
    a("s_sleep 1")
    a("s_branch L_lpro")
    a.label("L_lgo")
    for rep in range(DD if RCL else 1):
        for which in "KV":
            a(f"s_mov_b32 m0, s{sT5}")
            a(f"s_waitcnt vmcnt({INFL-4})")
            for m in range(4):
                if which == "K":
                    a(f"buffer_load_dwordx4 v{vKO}, {SR(SRD_A)}, s{sOFF} offen offset:{1024*m} {POL} lds")
                else:
                    a(f"buffer_load_dwordx4 v{vVO}, {SR(SRD_B)}, s{sOFF} offen offset:{1024*m} {POL} lds")
            a(f"s_add_u32 s{sT5}, s{sT5}, 4096")
        a(f"s_add_u32 s{sOFF}, s{sOFF}, {USTEP:#x}")
        a(f"s_add_u32 s{sIT}, s{sIT}, 1")
        a(f"s_sub_u32 s{sNS}, s{sNS}, 1")
    a("s_branch L_lpro")
    a.label("L_qready")
    stamp(2, -1)
    a(f"ds_read_b128 {R(vS)}, v{vA0} offset:{L_QV}")
    a("s_waitcnt lgkmcnt(0)")
    for m in range(4):
        a(f"v_cmp_eq_u32 vcc, {m}, v{vA1}")
        for r in range(4):
            a(f"v_cndmask_b32 v{vQB+4*m+r}, 0, v{vS+r}, vcc")
    state0 = list(fifo)
    a.label("L_loop")
    for k in range(DD):
        process(k)
    assert fifo == state0, (fifo, state0)
    if STAMP:
        for k, done in ((5, 11), (6, 17), (7, 23)):
            lb = a.newlabel("ps")
            a(f"s_cmp_gt_i32 s{sNS}, {NSTAT - DD - done}")
            a(f"s_cbranch_scc1 {lb}")
            a(f"s_cmp_lg_u32 s{sST+2*k}, 0")
            a(f"s_cbranch_scc1 {lb}")
            stamp(k, -1)
            a("s_waitcnt lgkmcnt(0)")
            a.label(lb)
    if NL:
        a(f"s_cmp_eq_u32 s{sIT}, 0")
        a("s_cbranch_scc1 L_loop")
        a(f"s_waitcnt vmcnt({len(fifo)})")
        a.label("L_lloop")
        process(DD, fromlds=True)
        a(f"s_sub_u32 s{sIT}, s{sIT}, 1")
        a(f"s_cmp_lg_u32 s{sIT}, 0")
        a("s_cbranch_scc1 L_lloop")
        stamp(4, -1)
    a("s_branch L_loop")
    a.label("L_slow")
    a(f"v_max_f32_dpp v{vU}, v{vT}, v{vT} row_ror:4 {DPPM}")
    a(f"v_max_f32_dpp v{vU}, v{vU}, v{vU} row_ror:8 {DPPM}")
    a(f"v_mov_b32 v{vW}, v{vU}")
    a(f"v_permlane16_swap_b32 v{vU}, v{vW}")
    a(f"v_max_f32 v{vU}, v{vU}, v{vW}")
    a(f"v_mov_b32 v{vW}, v{vU}")
    a(f"v_permlane32_swap_b32 v{vU}, v{vW}")
    a(f"v_max3_f32 v{vU}, v{vU}, v{vW}, v{vM}")
    a(f"v_sub_f32 v{vW}, v{vM}, v{vU}")
    a(f"v_mul_f32 v{vW}, s{sL2E}, v{vW}")
    a(f"v_exp_f32 v{vW}, v{vW}")
    a(f"v_mov_b32 v{vM}, v{vU}")
    a(f"v_mul_f32 v{vMN}, {NLOG2E:#x}, v{vU}")
    for r in range(4):
        a(f"v_mul_f32 v{vACC+r}, v{vACC+r}, v{vW}")
    a(f"v_mul_f32 v{vL}, v{vL}, v{vW}")
    a(f"s_setpc_b64 s[{sRET}:{sRET+1}]")
    a.label("L_sdone")
    stamp(3, -1)
    allreduce(a, [vL], [vW], quad=False)
    a(f"v_lshlrev_b32 v{vA0}, 3, v{vG}")
    a(f"v_add_u32 v{vA0}, v{vA0}, v{vJ}")
    a(f"v_lshlrev_b32 v{vA0}, 4, v{vA0}")
    a(f"s_sub_u32 s{sT0}, s3, 2")
    a(f"s_lshl_b32 s{sT1}, s{sT0}, 9")
    a(f"v_add_u32 v{vA0}, s{sT1}, v{vA0}")
    a(f"s_lshl_b32 s{sT1}, s{sT0}, 3")
    a(f"v_mov_b32 v{vA1}, s{sT1}")
    a(f"v_mov_b32 v{vMN}, v{vL}")
    a(f"v_cmp_gt_u32 vcc, 8, v{vJ}")
    a(f"s_and_saveexec_b64 s[{sEX}:{sEX+1}], vcc")
    a(f"ds_write_b128 v{vA0}, {R(vACC)} offset:{L_PART}")
    a(f"ds_write_b64 v{vA1}, v[{vM}:{vMN}] offset:{L_PML}")
    a("s_waitcnt lgkmcnt(0)")
    a("s_barrier")
    stamp_flush(4)
    a("s_endpgm")

    def load_tag():
        a(f"s_mov_b32 s{sT2}, {GEN:#x}")
        a(f"s_load_dword s{sTAG}, s[{sWS}:{sWS+1}], s{sT2}")

    def make_tag():
        a(f"s_add_u32 s{sGEN}, s{sTAG}, 1")
        a(f"s_mov_b32 s{sTMK}, 0xff")
        a(f"v_and_b32 v{vTAG}, s{sGEN}, v{vTAG}")
        a(f"v_and_b32 v{vTAG+1}, s{sGEN}, v{vTAG+1}")

    def pre_tag():
        a(f"v_mov_b32 v{vTAG}, 0xff")
        a(f"v_mov_b32 v{vTAG+1}, 7")

    def publish(src, voff, soff, off, fine=False):
        mk, tg = ("7", vTAG + 1) if fine else (f"s{sTMK}", vTAG)
        for r in range(4):
            a(f"v_bfi_b32 v{src+r}, {mk}, v{tg}, v{src+r}")
        a(f"buffer_store_dwordx4 {R(src)}, v{voff}, {SR(SRD_WS)}, s{soff} offen offset:{off} sc1")

    def gather(dst, n, voff, soff, step, off, sleep, name, lanes="-1", fine=False, lastmask=None):
        mk, tg = ("7", vTAG + 1) if fine else (f"s{sTMK}", vTAG)
        top = a.newlabel(name)
        done = a.newlabel(name + "d")
        a(f"s_mov_b32 s{sCNT}, 0x40000")
        a(f"s_mov_b32 s{sPM}, {(1 << n) - 1}")
        if lanes != "-1":
            a(f"s_mov_b64 exec, {lanes}")
        a.label(top)
        if n > 1:
            a(f"s_mov_b32 s{sT1}, s{soff}")
        for t in range(n):
            sk = a.newlabel(name + "s")
            if n > 1:
                a(f"s_bitcmp1_b32 s{sPM}, {t}")
                a(f"s_cbranch_scc0 {sk}")
            if lastmask and t == n - 1:
                a(f"s_mov_b32 exec_hi, {lastmask:#x}")
            a(f"buffer_load_dwordx4 {R(dst+4*t)}, v{voff}, {SR(SRD_WS)}, s{sT1 if n > 1 else soff} offen offset:{off} sc1")
            if lastmask and t == n - 1:
                a("s_mov_b32 exec_hi, -1")
            a.label(sk)
            if t < n - 1:
                a(f"s_add_u32 s{sT1}, s{sT1}, {step}")
        a("s_waitcnt vmcnt(0)")
        for t in range(n):
            d = dst + 4 * t
            sk = a.newlabel(name + "c")
            if n > 1:
                a(f"s_bitcmp1_b32 s{sPM}, {t}")
                a(f"s_cbranch_scc0 {sk}")
            if lastmask and t == n - 1:
                a(f"s_mov_b32 exec_hi, {lastmask:#x}")
            for r in range(4):
                a(f"v_xor_b32 v{d+r}, v{d+r}, v{tg}")
            a(f"v_or3_b32 v{vT}, v{d}, v{d+1}, v{d+2}")
            a(f"v_or_b32 v{vT}, v{vT}, v{d+3}")
            a(f"v_and_b32 v{vT}, {mk}, v{vT}")
            a(f"v_cmp_ne_u32 vcc, 0, v{vT}")
            if lastmask and t == n - 1:
                a("s_mov_b32 exec_hi, -1")
            if n > 1:
                a(f"s_cbranch_vccnz {sk}")
                a(f"s_bitset0_b32 s{sPM}, {t}")
                a.label(sk)
        if n > 1:
            a(f"s_cmp_eq_u32 s{sPM}, 0")
            a(f"s_cbranch_scc1 {done}")
        else:
            a(f"s_cbranch_vccz {done}")
        a(f"s_sub_u32 s{sCNT}, s{sCNT}, 1")
        a(f"s_cbranch_scc1 {done}")
        if sleep:
            a(f"s_sleep {sleep}")
        a(f"s_branch {top}")
        a.label(done)
        if lanes != "-1":
            a("s_mov_b64 exec, -1")

    def gatherP(fin, bufs, n, voff, soff, step, off, name, gap):
        P = len(bufs)
        top = a.newlabel(name)
        done = a.newlabel(name + "d")
        a(f"s_mov_b32 s{sCNT}, 0x40000")
        a(f"s_mov_b32 s{sPM}, {(1 << n) - 1}")
        for t in range(n):
            a(f"s_add_u32 s{sPM+1+t}, s{soff}, {t*step}")

        def issue(bf):
            for t in range(n):
                a(f"buffer_load_dwordx4 {R(bf+4*t)}, v{voff}, {SR(SRD_WS)}, s{sPM+1+t} offen offset:{off} sc1")
        for p in range(P - 1):
            issue(bufs[p])
            a(f"s_sleep {gap}")
        a.label(top)
        for p in range(P):
            issue(bufs[(p + P - 1) % P])
            a(f"s_waitcnt vmcnt({n*(P-1)})")
            bf = bufs[p]
            for t in range(n):
                d = bf + 4 * t
                sk = a.newlabel(name + "c")
                if n > 1:
                    a(f"s_bitcmp1_b32 s{sPM}, {t}")
                    a(f"s_cbranch_scc0 {sk}")
                for r in range(4):
                    a(f"v_xor_b32 v{fin+4*t+r}, v{d+r}, v{vTAG}")
                a(f"v_or3_b32 v{vT}, v{fin+4*t}, v{fin+4*t+1}, v{fin+4*t+2}")
                a(f"v_or_b32 v{vT}, v{vT}, v{fin+4*t+3}")
                a(f"v_and_b32 v{vT}, s{sTMK}, v{vT}")
                a(f"v_cmp_ne_u32 vcc, 0, v{vT}")
                if n > 1:
                    a(f"s_cbranch_vccnz {sk}")
                    a(f"s_bitset0_b32 s{sPM}, {t}")
                    a(f"s_mov_b32 s{sPM+1+t}, 0x40000000")
                    a.label(sk)
                else:
                    a(f"s_cbranch_vccz {done}")
            if n > 1:
                a(f"s_cmp_eq_u32 s{sPM}, 0")
                a(f"s_cbranch_scc1 {done}")
        a(f"s_sub_u32 s{sCNT}, s{sCNT}, 1")
        a(f"s_cbranch_scc0 {top}")
        a.label(done)

    a.label("L_A0")
    if EXP & 8:
        a("s_endpgm")
    a("s_setprio 3")
    pre_tag()
    a(f"v_lshlrev_b32 v{vVO}, 4, v{vLANE}")
    for r in range(4):
        a(f"v_mov_b32 v{vS+r}, -1")
    a(f"s_lshl_b32 s{sOFF}, s{sLW}, 12")
    a(f"v_lshlrev_b32 v{vA0}, 17, v{vG}")
    a(f"v_lshl_add_u32 v{vA0}, v{vJ}, 4, v{vA0}")
    a(f"s_lshl_b32 s{sT0}, s{sPID}, 19")
    a(f"s_lshl_b32 s{sT1}, s{sH}, 8")
    a(f"s_add_u32 s{sT0}, s{sT0}, s{sT1}")
    a("s_waitcnt lgkmcnt(0)")
    srd(a, SRD_A, sX, 2048)
    a(f"buffer_load_dwordx4 {R(vPB0)}, v{vVO}, {SR(SRD_A)}, 0 offen")
    a(f"buffer_load_dwordx4 {R(vPB1)}, v{vVO}, {SR(SRD_A)}, 0 offen offset:1024")
    srd(a, SRD_WS, sWS, WSZ)
    load_tag()
    a("s_mov_b64 exec, 1")
    a(f"buffer_store_dword v{vS}, v{vVO}, {SR(SRD_WS)}, s{sOFF} offen offset:{CNT} sc1")
    a("s_mov_b64 exec, -1")
    srd(a, SRD_B, sWQ, 0x400000)
    for t in range(16):
        a(f"buffer_load_dwordx4 {R(TA+4*t)}, v{vA0}, {SR(SRD_B)}, s{sT0} offen {WPOL}")
        if t < 15:
            a(f"s_add_u32 s{sT0}, s{sT0}, 8192")
    if EARLY == 2:
        a("s_barrier")
    masks()
    a("s_waitcnt vmcnt(17)")
    stamp(2)
    X = [TC + i for i in range(16)]
    for bb, src in ((0, vPB0), (1, vPB1)):
        for k in range(4):
            a(f"v_lshlrev_b32 v{X[bb*8+2*k]}, 16, v{src+k}")
            a(f"v_and_b32 v{X[bb*8+2*k+1]}, 0xffff0000, v{src+k}")
    S0, S1, Tm0, Tm1 = TC + 16, TC + 17, TC + 18, TC + 19
    Dv = [TC + 20 + i for i in range(16)]
    for bb, s in ((0, S0), (1, S1)):
        a(f"v_add_f32 v{s}, v{X[bb*8]}, v{X[bb*8+1]}")
    for k in range(2, 8):
        for bb, s in ((0, S0), (1, S1)):
            a(f"v_add_f32 v{s}, v{s}, v{X[bb*8+k]}")
    allreduce(a, [S0, S1], [Tm0, Tm1])
    a(f"v_mul_f32 v{S0}, 0x3b000000, v{S0}")
    a(f"v_mul_f32 v{S1}, 0x3b000000, v{S1}")
    V0, V1 = TC + 36, TC + 37
    for bb, s in ((0, S0), (1, S1)):
        for k in range(8):
            a(f"v_sub_f32 v{Dv[bb*8+k]}, v{X[bb*8+k]}, v{s}")
    for bb, v in ((0, V0), (1, V1)):
        a(f"v_mul_f32 v{v}, v{Dv[bb*8]}, v{Dv[bb*8]}")
    for k in range(1, 8):
        for bb, v in ((0, V0), (1, V1)):
            a(f"v_fmac_f32 v{v}, v{Dv[bb*8+k]}, v{Dv[bb*8+k]}")
    allreduce(a, [V0, V1], [Tm0, Tm1])
    a(f"v_mul_f32 v{V0}, 0x3b000000, v{V0}")
    a(f"v_mul_f32 v{V1}, 0x3b000000, v{V1}")
    rne(a, [S0, S1, V0, V1])
    a(f"v_add_f32 v{V0}, 0x3727c5ac, v{V0}")
    a(f"v_add_f32 v{V1}, 0x3727c5ac, v{V1}")
    rne(a, [V0, V1])
    a(f"v_sqrt_f32 v{V0}, v{V0}")
    a(f"v_sqrt_f32 v{V1}, v{V1}")
    rne(a, [V0, V1])
    a(f"v_rcp_f32 v{V0}, v{V0}")
    a(f"v_rcp_f32 v{V1}, v{V1}")
    for bb, s in ((0, S0), (1, S1)):
        for k in range(8):
            a(f"v_sub_f32 v{Dv[bb*8+k]}, v{X[bb*8+k]}, v{s}")
    rne(a, Dv)
    for bb, v in ((0, V0), (1, V1)):
        for k in range(8):
            a(f"v_mul_f32 v{Dv[bb*8+k]}, v{Dv[bb*8+k]}, v{v}")
    for d in Dv:
        a(f"v_cvt_pk_bf16_f32 v{d}, v{d}, v{d}")
    a(f"v_lshlrev_b32 v{vA1}, 5, v{vLANE}")
    for bb in range(2):
        for k in range(2):
            a(f"ds_write_b128 v{vA1}, {R(Dv[bb*8+4*k])} offset:{L_XN + bb*2048 + 16*k}")
    a(f"s_cmp_ge_u32 s{sLW}, 88")
    a(f"s_cselect_b32 s{sT0}, 88, 0")
    a(f"s_cselect_b32 s{SRD_C}, s{sWU}, s{sWG}")
    a(f"s_cselect_b32 s{SRD_C+1}, s{sWU+1}, s{sWG+1}")
    a(f"s_and_b32 s{SRD_C+1}, s{SRD_C+1}, 0xffff")
    a(f"s_sub_u32 s{sT0}, s{sLW}, s{sT0}")
    a(f"s_cmp_lt_u32 s{sLW}, 176")
    a(f"s_cselect_b32 s{SRD_C+2}, {512*2752}, 0")
    a(f"s_mov_b32 s{SRD_C+3}, 0x20000")
    a(f"s_lshr_b32 s{sT1}, s{sT0}, 3")
    a(f"s_and_b32 s{sT5}, s{sT0}, 7")
    a(f"s_mul_i32 s{sT3}, s{sT5}, {64*2752}")
    a(f"s_lshl_b32 s{sT4}, s{sT1}, 8")
    a(f"s_add_u32 s{sT3}, s{sT3}, s{sT4}")
    a(f"v_mul_u32_u24 v{vA0}, {16*2752}, v{vG}")
    a(f"v_lshl_add_u32 v{vA0}, v{vJ}, 4, v{vA0}")
    a(f"s_lshl_b32 s{sT4}, s{sT1}, 4")
    a(f"v_add_u32 v{vT}, s{sT4}, v{vJ}")
    a(f"v_cmp_gt_u32 vcc, 172, v{vT}")
    a(f"v_mov_b32 v{vU}, 0x40000000")
    a(f"v_cndmask_b32 v{vA0}, v{vU}, v{vA0}, vcc")
    for t in range(16):
        a(f"buffer_load_dwordx4 {R(TB+4*t)}, v{vA0}, {SR(SRD_C)}, s{sT3} offen {WPOL}")
        if t < 15:
            a(f"s_add_u32 s{sT3}, s{sT3}, 2752")
    a(f"v_lshrrev_b32 v{vT}, 3, v{vJ}")
    a(f"v_lshlrev_b32 v{vKO}, 11, v{vT}")
    a(f"v_lshl_add_u32 v{vKO}, v{vG}, 6, v{vKO}")
    a(f"s_lshl_b32 s{sT0}, s{sPID}, 8")
    a(f"v_add_u32 v{vA1}, s{sT0}, v{vKO}")
    a("s_waitcnt lgkmcnt(0)")
    make_tag()
    if EARLY == 1:
        a("s_barrier")
    tile_gemv(a, TA, vA1, L_XN, waits={0: 28, 4: 24, 8: 20, 12: 16})
    publish(vACC, vVO, sOFF, QP, fine=True)
    if not EARLY:
        a("s_barrier")
    stamp(3)
    a(f"s_cmp_ge_u32 s{sLW}, 176")
    a("s_cbranch_scc1 L_A0_noffn1")
    a(f"s_lshl_b32 s{sT0}, s{sT5}, 8")
    a(f"v_add_u32 v{vA1}, s{sT0}, v{vKO}")
    tile_gemv(a, TB, vA1, L_XN, waits={0: 1})
    publish(vACC, vVO, sOFF, GP)
    a.label("L_A0_noffn1")
    stamp(4)
    a("s_setprio 0")
    a(f"s_cmp_ge_u32 s{sLW}, 32")
    a("s_cbranch_scc1 L_A0_nogen")
    a(f"s_lshr_b32 s{sT4}, s{sLW}, 3")
    a(f"s_and_b32 s{sT5}, s{sLW}, 7")
    a(f"s_and_b32 s{sT0}, s{sT5}, 1")
    a(f"s_lshl_b32 s{sT0}, s{sT0}, 9")
    a(f"s_lshl_b32 s{sT1}, s{sT4}, 7")
    a(f"s_add_u32 s{sT0}, s{sT0}, s{sT1}")
    a(f"s_lshr_b32 s{sT1}, s{sT5}, 1")
    a(f"s_lshl_b32 s{sT1}, s{sT1}, 5")
    a(f"s_add_u32 s{sT0}, s{sT0}, s{sT1}")
    a(f"v_and_b32 v{vT}, 31, v{vLANE}")
    a(f"v_add_u32 v{vT}, s{sT0}, v{vT}")
    a(f"v_lshlrev_b32 v{vA2}, 1, v{vT}")
    a(f"buffer_load_ushort v{vP}, v{vA2}, {SR(SRD_A)}, 0 offen")
    a(f"v_lshrrev_b32 v{vT}, 3, v{vLANE}")
    a(f"v_lshlrev_b32 v{vA0}, 14, v{vT}")
    a(f"v_and_b32 v{vA1}, 3, v{vT}")
    a(f"v_and_b32 v{vT}, 7, v{vLANE}")
    a(f"v_lshl_add_u32 v{vA0}, v{vT}, 4, v{vA0}")
    a(f"s_lshl_b32 s{sT4}, s{sT4}, 12")
    a(f"s_lshl_b32 s{sT5}, s{sT5}, 7")
    a(f"s_add_u32 s{sT4}, s{sT4}, s{sT5}")
    a(f"s_add_u32 s{sT5}, s{sT4}, {DPB + 168*4096}")
    for r in range(4):
        a(f"v_mov_b32 v{TA+8+r}, 0")
    for _ in range(3):
        a(f"s_sleep {PSL}")
    gather(TA, 3, vA0, sT5, 8 * 16384, 0, PSL, "dp", lastmask=0xffff)
    stamp(5)

    def reduce_select(dst, n):
        for t in range(1, n):
            for r in range(4):
                a(f"v_add_f32 v{TA+r}, v{TA+r}, v{TA+4*t+r}")
        regs = [TA + r for r in range(4)]
        tmps = [TA + 4 + r for r in range(4)]
        for r in regs:
            a(f"v_add_f32_dpp v{r}, v{r}, v{r} row_ror:8 {DPPM}")
        for sw in ("v_permlane16_swap_b32", "v_permlane32_swap_b32"):
            for r, t in zip(regs, tmps):
                a(f"v_mov_b32 v{t}, v{r}")
            for r, t in zip(regs, tmps):
                a(f"{sw} v{r}, v{t}")
            for r, t in zip(regs, tmps):
                a(f"v_add_f32 v{r}, v{r}, v{t}")
        a(f"v_cndmask_b32 v{dst}, v{TA}, v{TA+1}, s[{sSEL}:{sSEL+1}]")
        a(f"v_cndmask_b32 v{dst}, v{dst}, v{TA+2}, s[{sSEL+2}:{sSEL+3}]")
        a(f"v_cndmask_b32 v{dst}, v{dst}, v{TA+3}, s[{sSEL+4}:{sSEL+5}]")
    for r in range(1, 4):
        a(f"v_cmp_eq_u32 s[{sSEL+2*r-2}:{sSEL+2*r-1}], {r}, v{vA1}")
    reduce_select(vM, 3)
    rne(a, [vM])
    a(f"v_mul_f32 v{vU}, {NLOG2E:#x}, v{vM}")
    a(f"v_exp_f32 v{vU}, v{vU}")
    a(f"v_add_f32 v{vU}, 1.0, v{vU}")
    a(f"v_rcp_f32 v{vU}, v{vU}")
    a(f"v_mul_f32 v{vM}, v{vM}, v{vU}")
    rne(a, [vM])
    a(f"v_lshlrev_b32 v{vP}, 16, v{vP}")
    srd(a, SRD_B, sOUT, 2048)
    a(f"s_lshl_b32 s{sT4}, s{sLW}, 13")
    a(f"s_add_u32 s{sT4}, s{sT4}, {YPB:#x}")
    stamp(6)
    a("s_setprio 3")
    a("s_barrier")
    if PY:
        gatherP(TA, [TB + 32 * p for p in range(PY)], 8, vVO, sT4, 1024, 0, "yp", PGAP)
    else:
        gather(TA, 8, vVO, sT4, 1024, 0, YSL, "yp")
    stamp(7)
    reduce_select(vL, 8)
    rne(a, [vL])
    a(f"v_mul_f32 v{vL}, v{vL}, v{vM}")
    rne(a, [vL])
    a(f"v_add_f32 v{vL}, v{vL}, v{vP}")
    a(f"v_cvt_pk_bf16_f32 v{vL}, v{vL}, v{vL}")
    a("s_mov_b32 exec_hi, 0")
    a(f"buffer_store_short v{vL}, v{vA2}, {SR(SRD_B)}, 0 offen")
    a(f"s_cmp_lg_u32 s{sLW}, 0")
    a("s_cbranch_scc1 L_A0_nogen")
    a("s_mov_b64 exec, 1")
    a(f"v_mov_b32 v{vT}, s{sGEN}")
    a(f"v_mov_b32 v{vU}, {GEN:#x}")
    a(f"buffer_store_dword v{vT}, v{vU}, {SR(SRD_WS)}, 0 offen sc1")
    a.label("L_A0_nogen")
    stamp_flush(7)
    a("s_endpgm")

    a.label("L_A1")
    if EXP & 8:
        a("s_endpgm")
    a("s_setprio 2")
    pre_tag()
    a(f"v_mov_b32 v{vKO}, 0")
    a(f"ds_write_b32 v{vKO}, v{vKO} offset:{L_QF}")
    masks()
    a(f"s_lshl_b32 s{sOFF}, s{sLW}, 12")
    a(f"v_lshlrev_b32 v{vA0}, 14, v{vG}")
    a(f"v_lshl_add_u32 v{vA0}, v{vJ}, 4, v{vA0}")
    a(f"s_lshl_b32 s{sT0}, s{sH}, 17")
    a(f"s_lshl_b32 s{sT1}, s{sB}, 16")
    a(f"s_add_u32 s{sT0}, s{sT0}, s{sT1}")
    a(f"s_lshl_b32 s{sT1}, s{sS}, 8")
    a(f"s_add_u32 s{sT0}, s{sT0}, s{sT1}")
    a(f"v_lshrrev_b32 v{vT}, 5, v{vLANE}")
    a(f"v_lshlrev_b32 v{vA1}, 12, v{vT}")
    a(f"v_bfe_u32 v{vT}, v{vLANE}, 3, 2")
    a(f"v_lshl_add_u32 v{vA1}, v{vT}, 8, v{vA1}")
    a(f"v_lshlrev_b32 v{vA2}, 6, v{vT}")
    a(f"v_and_b32 v{vT}, 7, v{vLANE}")
    a(f"v_lshl_add_u32 v{vA1}, v{vT}, 4, v{vA1}")
    a(f"v_lshl_add_u32 v{vA2}, v{vT}, 1, v{vA2}")
    a(f"s_sub_u32 s{sT1}, s{sLW}, 168")
    a(f"s_and_b32 s{sT1}, s{sT1}, 0xff")
    a(f"s_lshr_b32 s{sT4}, s{sT1}, 2")
    a(f"s_and_b32 s{sT5}, s{sT1}, 3")
    a(f"s_lshl_b32 s{sT3}, s{sT4}, 16")
    a(f"s_lshl_b32 s{sT1}, s{sT5}, 8")
    a(f"s_add_u32 s{sT3}, s{sT3}, s{sT1}")
    a("s_waitcnt lgkmcnt(0)")
    srd(a, SRD_WS, sWS, WSZ)
    load_tag()
    srd(a, SRD_B, sWO, 0x400000)
    srd(a, SRD_C, sWD, 1376 * 1024)
    a(f"s_cmp_ge_u32 s{sLW}, 168")
    a(f"s_cselect_b32 s{SRD_C+2}, {1376*1024}, 0")
    a("s_waitcnt lgkmcnt(0)")
    make_tag()
    if EARLY == 2:
        a("s_barrier")
    for t in range(16):
        if t % 4 == 0 and t:
            a(f"s_add_u32 s{sT0}, s{sT0}, 4096")
        a(f"buffer_load_dwordx4 {R(TA+4*t)}, v{vA0}, {SR(SRD_B)}, s{sT0} offen offset:{1024*(t%4)} {WPOL}")
    for t in range(16):
        if t % 4 == 0 and t:
            a(f"s_add_u32 s{sT3}, s{sT3}, 4096")
        a(f"buffer_load_dwordx4 {R(TB+4*t)}, v{vA0}, {SR(SRD_C)}, s{sT3} offen offset:{1024*(t%4)} {WPOL}")
    a(f"s_lshl_b32 s{sT0}, s{sH}, 15")
    a(f"s_lshl_b32 s{sT1}, s{sB}, 7")
    a(f"s_add_u32 s{sT0}, s{sT0}, s{sT1}")
    if EARLY != 2:
        a("s_barrier")
    stamp(2, -1)
    if QSL:
        a(f"s_sleep {QSL}")
    gather(TC, 4, vA1, sT0, 8192, QP, 1, "qp", fine=True)
    stamp(3, -1)
    for t in range(1, 4):
        for r in range(4):
            a(f"v_add_f32 v{TC+r}, v{TC+r}, v{TC+4*t+r}")
    for r in range(4):
        a(f"v_mov_b32 v{TC+4+r}, v{TC+r}")
    for r in range(4):
        a(f"v_permlane32_swap_b32 v{TC+r}, v{TC+4+r}")
    for r in range(4):
        a(f"v_add_f32 v{TC+r}, v{TC+r}, v{TC+4+r}")
    for r in range(4):
        a(f"v_cvt_pk_bf16_f32 v{TC+r}, v{TC+r}, v{TC+r}")
    for r in range(4):
        a(f"ds_write_b16 v{vA2}, v{TC+r} offset:{L_QV + 16*r}")
    a(f"v_mov_b32 v{vT}, 1")
    a("s_waitcnt lgkmcnt(0)")
    a(f"ds_write_b32 v{vKO}, v{vT} offset:{L_QF}")
    a("s_setprio 0")
    a(f"v_lshrrev_b32 v{vT}, 3, v{vJ}")
    a(f"v_lshlrev_b32 v{vP}, 8, v{vT}")
    a(f"v_lshl_add_u32 v{vP}, v{vG}, 6, v{vP}")
    a(f"v_lshlrev_b32 v{vL}, 4, v{vLANE}")
    a(f"s_cmp_lt_u32 s{sLW}, 168")
    a("s_cbranch_scc1 L_A1_noffn2")
    a(f"v_lshrrev_b32 v{vT}, 5, v{vLANE}")
    a(f"v_mul_u32_u24 v{vA0}, {88*4096}, v{vT}")
    a(f"v_and_b32 v{vT}, 31, v{vLANE}")
    a(f"v_lshl_add_u32 v{vA0}, v{vT}, 4, v{vA0}")
    a(f"s_lshr_b32 s{sT0}, s{sT4}, 1")
    a(f"s_lshl_b32 s{sT0}, s{sT0}, 15")
    a(f"s_and_b32 s{sT1}, s{sT4}, 1")
    a(f"s_lshl_b32 s{sT1}, s{sT1}, 9")
    a(f"s_add_u32 s{sT0}, s{sT0}, s{sT1}")
    a(f"s_sleep {GSL}")
    gather(TC, 8, vA0, sT0, 4096, GP, 32, "gp")
    for t in range(1, 8):
        for r in range(4):
            a(f"v_add_f32 v{TC+r}, v{TC+r}, v{TC+4*t+r}")
    G = [TC + r for r in range(4)]
    Uu = [TC + 4 + r for r in range(4)]
    E = [TC + 8 + r for r in range(4)]
    rne(a, G)
    for r in range(4):
        a(f"v_mov_b32 v{Uu[r]}, v{G[r]}")
    for r in range(4):
        a(f"v_permlane32_swap_b32 v{G[r]}, v{Uu[r]}")
    a(f"s_mov_b32 s{sT0}, 0xbdd2d3e8")
    a(f"v_mov_b32 v{vU}, 0xc0135761")
    for r in range(4):
        a(f"v_mul_f32 v{E[r]}, v{G[r]}, v{G[r]}")
    for r in range(4):
        a(f"v_fma_f32 v{E[r]}, v{E[r]}, s{sT0}, v{vU}")
    for r in range(4):
        a(f"v_mul_f32 v{E[r]}, v{E[r]}, v{G[r]}")
    for r in range(4):
        a(f"v_exp_f32 v{E[r]}, v{E[r]}")
    for r in range(4):
        a(f"v_add_f32 v{E[r]}, 1.0, v{E[r]}")
    for r in range(4):
        a(f"v_rcp_f32 v{E[r]}, v{E[r]}")
    for r in range(4):
        a(f"v_mul_f32 v{G[r]}, v{G[r]}, v{E[r]}")
    rne(a, G)
    for r in range(4):
        a(f"v_mul_f32 v{G[r]}, v{G[r]}, v{Uu[r]}")
    for r in range(4):
        a(f"v_cvt_pk_bf16_f32 v{G[r]}, v{G[r]}, v{G[r]}")
    a(f"v_lshrrev_b32 v{vT}, 3, v{vJ}")
    a(f"v_lshlrev_b32 v{vA0}, 8, v{vT}")
    a(f"v_and_b32 v{vT}, 1, v{vG}")
    a(f"v_lshl_add_u32 v{vA0}, v{vT}, 7, v{vA0}")
    a(f"v_and_b32 v{vT}, 7, v{vJ}")
    a(f"v_lshl_add_u32 v{vA0}, v{vT}, 2, v{vA0}")
    for r in range(4):
        a(f"ds_write_b32 v{vA0}, v{G[r]} offset:{L_VEC1 + 32*r}")
    a("s_waitcnt lgkmcnt(0)")
    tile_gemv(a, TB, vP, L_VEC1)
    a(f"s_add_u32 s{sT0}, s{sOFF}, {DPB:#x}")
    publish(vACC, vL, sT0, 0)
    a.label("L_A1_noffn2")
    stamp(7, -1)
    if EXP & 512:
        a(f"s_andn2_b32 s{sT0}, s{sLW}, 3")
        a(f"s_lshl_b32 s{sT0}, s{sT0}, 12")
        a(f"s_add_u32 s{sT0}, s{sT0}, {CNT}")
        a(f"v_mov_b32 v{vA0}, 0")
        a("s_mov_b64 exec, 1")
        a(f"s_mov_b32 s{sCNT}, {ANUM}")
        stamp(2, -1)
        a.label("L_exp512")
        a(f"v_mov_b32 v{vT}, 1")
        if EXP & 1024:
            a(f"buffer_load_dword v{vT}, v{vA0}, {SR(SRD_WS)}, s{sT0} offen sc1")
        else:
            a(f"buffer_atomic_add v{vT}, v{vA0}, {SR(SRD_WS)}, s{sT0} offen sc0 sc1")
        a("s_waitcnt vmcnt(0)")
        a(f"s_sub_u32 s{sCNT}, s{sCNT}, 1")
        a(f"s_cmp_lg_u32 s{sCNT}, 0")
        a("s_cbranch_scc1 L_exp512")
        stamp(3, -1)
        a("s_mov_b64 exec, -1")
    a(f"v_and_b32 v{vT}, 31, v{vLANE}")
    a(f"v_lshlrev_b32 v{vVO}, 4, v{vT}")
    a(f"v_mov_b32 v{vKO}, 0")
    a(f"v_mov_b32 v{vU}, {ML}")
    a(f"v_cmp_gt_u32 vcc, 32, v{vLANE}")
    a(f"s_mov_b64 s[{sEX}:{sEX+1}], vcc")
    a(f"s_lshl_b32 s{sT1}, s{sB}, 8")
    a(f"s_add_u32 s{sT1}, s{sT1}, {OP}")
    a(f"v_lshlrev_b32 v{vA1}, 4, v{vJ}")
    a(f"v_add_u32 v{vA1}, s{sT1}, v{vA1}")
    a(f"v_cndmask_b32 v{vA1}, v{vU}, v{vA1}, vcc")
    a(f"v_and_b32 v{vT}, 1, v{vG}")
    a(f"v_lshl_add_u32 v{vA1}, v{vT}, 14, v{vA1}")
    a(f"v_lshlrev_b32 v{vA2}, 8, v{vT}")
    a(f"v_bfe_u32 v{vT}, v{vLANE}, 3, 1")
    a(f"v_lshl_add_u32 v{vA2}, v{vT}, 7, v{vA2}")
    a(f"v_and_b32 v{vT}, 7, v{vLANE}")
    a(f"v_lshl_add_u32 v{vA2}, v{vT}, 2, v{vA2}")
    a(f"v_lshrrev_b32 v{vT}, 3, v{vLANE}")
    a(f"v_lshlrev_b32 v{vA0}, 13, v{vT}")
    a(f"v_and_b32 v{vT}, 7, v{vLANE}")
    a(f"v_lshl_add_u32 v{vA0}, v{vT}, 4, v{vA0}")
    a(f"s_lshl_b32 s{sT2}, s{sS}, 16")
    a(f"s_lshl_b32 s{sT3}, s{sH}, 8")
    a(f"s_add_u32 s{sT2}, s{sT2}, s{sT3}")
    a(f"s_lshl_b32 s{sT3}, s{sB}, 7")
    a(f"s_add_u32 s{sT2}, s{sT2}, s{sT3}")
    a(f"s_add_u32 s{sT2}, s{sT2}, {YPB:#x}")
    a(f"s_lshl_b32 s{sT0}, s{sH}, 15")
    a("s_setprio 3")
    a("s_barrier")
    stamp(4, -1)
    MLr = TC
    a(f"ds_read_b128 {R(MLr)}, v{vKO} offset:{L_PML}")
    a(f"ds_read_b128 {R(MLr+4)}, v{vKO} offset:{L_PML+16}")
    for w in range(4):
        a(f"ds_read_b128 {R(TB+4*w)}, v{vVO} offset:{L_PART + 512*w}")

    def combine(ms, ls, F, outm, outl):
        a(f"v_max_f32 v{outm}, v{ms[0]}, v{ms[1]}")
        a(f"v_max3_f32 v{outm}, v{outm}, v{ms[2]}, v{ms[3]}")
        for w in range(4):
            a(f"v_sub_f32 v{F+w}, v{ms[w]}, v{outm}")
        for w in range(4):
            a(f"v_mul_f32 v{F+w}, s{sL2E}, v{F+w}")
        for w in range(4):
            a(f"v_exp_f32 v{F+w}, v{F+w}")
        a(f"v_mul_f32 v{outl}, v{F}, v{ls[0]}")
        for w in range(1, 4):
            a(f"v_fmac_f32 v{outl}, v{F+w}, v{ls[w]}")

    def combine_o(os_, F):
        for r in range(4):
            a(f"v_mul_f32 v{os_[0]+r}, v{F}, v{os_[0]+r}")
        for w in range(1, 4):
            for r in range(4):
                a(f"v_fmac_f32 v{os_[0]+r}, v{F+w}, v{os_[w]+r}")
    F = TC + 8
    a("s_waitcnt lgkmcnt(4)")
    combine([MLr + 2 * w for w in range(4)], [MLr + 2 * w + 1 for w in range(4)], F, vM, vMN)
    a("s_waitcnt lgkmcnt(0)")
    combine_o([TB + 4 * w for w in range(4)], F)
    for r in range(4):
        src = vM if r % 2 == 0 else vMN
        a(f"v_cndmask_b32 v{TB+r}, v{src}, v{TB+r}, s[{sEX}:{sEX+1}]")
    a("s_mov_b32 exec_hi, 0xff")
    publish(TB, vL, sOFF, OP)
    a("s_mov_b64 exec, -1")
    stamp(5, -1)
    GB = TB + 16
    if PP:
        gatherP(GB, [TC + 16 + 16 * p for p in range(PP)], 4, vA1, sT0, 4096, 0, "op", PGAP)
    else:
        gather(GB, 4, vA1, sT0, 4096, 0, OSL, "op")
    stamp(6, -1)
    for t in range(4):
        a(f"v_mov_b32 v{MLr+2*t}, v{GB+4*t}")
        a(f"v_mov_b32 v{MLr+2*t+1}, v{GB+4*t+1}")
    for t in range(4):
        a(f"v_permlane32_swap_b32 v{GB+4*t}, v{MLr+2*t}")
        a(f"v_permlane32_swap_b32 v{GB+4*t+1}, v{MLr+2*t+1}")
    combine([MLr + 2 * w for w in range(4)], [MLr + 2 * w + 1 for w in range(4)], F, vM, vMN)
    a(f"v_rcp_f32 v{vMN}, v{vMN}")
    combine_o([GB + 4 * w for w in range(4)], F)
    for r in range(4):
        a(f"v_mul_f32 v{GB+r}, v{GB+r}, v{vMN}")
    for r in range(4):
        a(f"v_cvt_pk_bf16_f32 v{GB+r}, v{GB+r}, v{GB+r}")
    a(f"s_mov_b64 exec, s[{sEX}:{sEX+1}]")
    for r in range(4):
        a(f"ds_write_b32 v{vA2}, v{GB+r} offset:{L_VEC1 + 32*r}")
    a("s_mov_b64 exec, -1")
    a("s_waitcnt lgkmcnt(0)")
    tile_gemv(a, TA, vP, L_VEC1)
    publish(vACC, vA0, sT2, 0)
    stamp_flush(7)
    a.label("L_end")
    a("s_endpgm")
    a.label("L_codeend")

    body = a.finish()
    hdr = open("cdna_kernels/" + NAME + ".s.ref").read().split("; @launch")[0]
    nv = 248
    txt = hdr + f"; @launch grid=(256,1,1) block=(384,1,1) lds={L_TOTAL + 4*NL*8192}\n"
    txt += '.amdgcn_target "amdgcn-amd-amdhsa--gfx950"\n.text\n'
    txt += f".globl {NAME}_kernel\n.p2align 8\n.type {NAME}_kernel,@function\n"
    txt += body
    txt += f""".section .rodata,"a"
.p2align 6
.amdhsa_kernel {NAME}_kernel
  .amdhsa_next_free_vgpr {nv}
  .amdhsa_next_free_sgpr 102
  .amdhsa_accum_offset {(nv+3)//4*4}
  .amdhsa_group_segment_fixed_size 0
  .amdhsa_kernarg_size 96
  .amdhsa_user_sgpr_count 2
  .amdhsa_user_sgpr_kernarg_segment_ptr 1
  .amdhsa_system_sgpr_workgroup_id_x 1
  .amdhsa_float_denorm_mode_32 3
.end_amdhsa_kernel
"""
    return txt


if __name__ == "__main__":
    out = sys.argv[1]
    kw = eval("dict(" + (sys.argv[2] if len(sys.argv) > 2 else "") + ")")
    open(out, "w").write(gen(**kw))
```

```python
import sys
sys.path.insert(0, "work")
from asmlib import Asm

NAME = "recurrent_scan__mha_block_cached__geglu_ffn__decode"

QP, GP, YP, OP, ML, CNT = 0, 1024, 2048, 3072, 3584, 3840
DPB = 0x100000
YPB = 0x100000
GEN = 0x140000
WSZ = 0x200000
L_QF = 6464
L_XN, L_QV, L_PART, L_PML, L_VEC1, L_VEC0, L_TOTAL = 0, 4096, 4352, 6400, 6656, 7168, 8192

LOG2E = 0x3FB8AA3B
NLOG2E = 0xBFB8AA3B
SCALE = 0x3DB504F3

sX, sK, sV, sWQ, sWO, sBX, sWG, sWU, sWD, sOUT, sDBG, sWS = 4, 6, 8, 10, 12, 14, 16, 18, 20, 22, 24, 26
sH, sB, sS, sLW, sPID = 28, 29, 30, 31, 32
sL2E = 33
SRD_A, SRD_B, SRD_C, SRD_WS, SRD_D = 36, 40, 44, 48, 52
sT0, sT1, sT2, sT3, sT4, sT5 = 56, 57, 58, 59, 60, 61
sCNT = 62
sOFF = 63
sEX = 64
sIT = 66
sTAG, sGEN = 34, 35
sTMK = 67
sSEL = 96
sPM = 86
TBITS = 8
TMASK = (1 << TBITS) - 1
sST = 70
vLANE, vJ, vG = 1, 2, 3
vMASK = 4
vT, vU, vW, vP, vM, vMN, vL, vKO, vVO, vA0, vA1, vA2 = 8, 9, 10, 11, 12, 13, 14, 15, 16, 17, 18, 19
vS, vACC, vPB0, vPB1, vQB = 20, 24, 28, 32, 36
vWIN = 52
vTAG = 244
vWOA = 246
sWOF = 68
sKF = 69
TA, TB, TC = 52, 116, 180


def srd(a, d, ptr, nbytes):
    a(f"s_mov_b32 s{d}, s{ptr}")
    a(f"s_and_b32 s{d+1}, s{ptr+1}, 0xffff")
    if isinstance(nbytes, int):
        a(f"s_mov_b32 s{d+2}, {nbytes:#x}")
    else:
        a(f"s_mov_b32 s{d+2}, {nbytes}")
    a(f"s_mov_b32 s{d+3}, 0x20000")


def R(b, n=4):
    return f"v[{b}:{b+n-1}]"


def SR(b, n=4):
    return f"s[{b}:{b+n-1}]"


DPPM = "row_mask:0xf bank_mask:0xf"


def allreduce(a, regs, tmps, op="v_add_f32", quad=True):
    steps = []
    if quad:
        steps += ["quad_perm:[1,0,3,2]", "quad_perm:[2,3,0,1]"]
    steps += ["row_ror:4", "row_ror:8"]
    for st in steps:
        for r in regs:
            a(f"{op}_dpp v{r}, v{r}, v{r} {st} {DPPM}")
    for sw in ("v_permlane16_swap_b32", "v_permlane32_swap_b32"):
        for r, t in zip(regs, tmps):
            a(f"v_mov_b32 v{t}, v{r}")
        for r, t in zip(regs, tmps):
            a(f"{sw} v{r}, v{t}")
        for r, t in zip(regs, tmps):
            a(f"{op} v{r}, v{r}, v{t}")


def rne(a, regs):
    for r in regs:
        a(f"v_cvt_pk_bf16_f32 v{r}, v{r}, v{r}")
    for r in regs:
        a(f"v_and_b32 v{r}, 0xffff0000, v{r}")


def tile_gemv(a, tbase, vaddr_lds, lds_off, waits=None):
    for k in range(4):
        a(f"ds_read_b128 {R(vQB+4*k)}, v{vaddr_lds} offset:{lds_off+16*k}")
    a("s_waitcnt lgkmcnt(0)")

    def build(t):
        pb = vPB0 if t % 2 == 0 else vPB1
        for r in range(4):
            a(f"v_and_b32 v{pb+r}, v{vQB+t}, v{vMASK+r}")
    build(0)
    for t in range(16):
        if t + 1 < 16:
            build(t + 1)
        pb = vPB0 if t % 2 == 0 else vPB1
        if waits and t in waits:
            a(f"s_waitcnt vmcnt({waits[t]})")
        c = "0" if t == 0 else R(vACC)
        a(f"v_mfma_f32_16x16x32_bf16 {R(vACC)}, {R(tbase+4*t)}, {R(pb)}, {c}")


def sanitize(a, base, n=4):
    for r in range(n):
        a(f"v_min_u32 v{base+r}, -2, v{base+r}")


def poll(a, issue, regs, sleep=0, name="poll"):
    top = a.newlabel(name)
    done = a.newlabel(name + "d")
    a(f"s_mov_b32 s{sCNT}, 0x40000")
    a.label(top)
    issue()
    a("s_waitcnt vmcnt(0)")
    rs = list(regs)
    a(f"v_max_u32 v{vT}, v{rs[0]}, v{rs[1]}" if len(rs) > 1 else f"v_mov_b32 v{vT}, v{rs[0]}")
    rest = rs[2:]
    while rest:
        if len(rest) >= 2:
            a(f"v_max3_u32 v{vT}, v{vT}, v{rest[0]}, v{rest[1]}")
            rest = rest[2:]
        else:
            a(f"v_max_u32 v{vT}, v{vT}, v{rest[0]}")
            rest = rest[1:]
    a(f"v_cmp_eq_u32 vcc, -1, v{vT}")
    a(f"s_cbranch_vccz {done}")
    a(f"s_sub_u32 s{sCNT}, s{sCNT}, 1")
    a(f"s_cbranch_scc1 {done}")
    if sleep:
        a(f"s_sleep {sleep}")
    a(f"s_branch {top}")
    a.label(done)


def gen(DD=3, STAMP=False, NSTAT=22, INFL=16, NL=4, EXP=0, SG=0, EARLY=0, PSL=64, QSL=0, CPF=3, RCL=0, ANUM=8, POL='nt', WPOL='nt', DBGST=0, GSL=64, PP=2, PGAP=8, ALPHA=0, YSL=0, OSL=0, PY=2, PAT=0, SCL=1, CPOS=0, LWO=3, WSL=24, EH=2, CLS=0, BETA2=0):
    a = Asm()
    stamps = {"n": 0}

    def stamp(k, grp=0):
        if STAMP and (k < 2 or grp == -1 or grp == SG):
            a(f"s_memrealtime s[{sST+2*k}:{sST+2*k+1}]")

    def stamp_flush(nst):
        if not STAMP:
            return
        a(f"s_memrealtime s[{sST+2}:{sST+3}]")
        a("s_waitcnt lgkmcnt(0)")
        a("s_mov_b64 exec, -1")
        if DBGST:
            srd(a, SRD_D, sDBG, 256)
            a("s_mov_b64 exec, 1")
            a(f"s_min_u32 s{sT0}, s3, 2")
            a(f"s_mul_i32 s{sT0}, s{sT0}, 20")
            a("v_mov_b32 v17, 0")
            a(f"s_not_b32 s{sT1}, s{sST}")
            a(f"v_mov_b32 v20, s{sT1}")
            a(f"buffer_atomic_umax v20, v17, {SR(SRD_D)}, 0 offen sc1")
            for k in range(5):
                a(f"v_mov_b32 v{21+k}, s{sST+2*(k+1)}")
                a(f"buffer_atomic_umax v{21+k}, v17, {SR(SRD_D)}, s{sT0} offen offset:{4+4*k} sc1")
            return
        srd(a, SRD_D, sWS, 0x20000000)
        a(f"s_mul_i32 s{sT0}, s2, 6")
        a(f"s_add_u32 s{sT0}, s{sT0}, s3")
        a(f"s_lshl_b32 s{sT1}, s{sT0}, 6")
        a(f"s_lshl_b32 s{sT0}, s{sT0}, 4")
        a(f"s_add_u32 s{sT0}, s{sT0}, 0x10000000")
        a(f"s_add_u32 s{sT1}, s{sT1}, 0x11000000")
        a(f"s_getreg_b32 s{sT2}, hwreg(HW_REG_XCC_ID)")
        a(f"s_and_b32 s{sT2}, s{sT2}, 15")
        a(f"s_lshl_b32 s{sT2}, s{sT2}, 28")
        a(f"s_or_b32 s{sT2}, s{sST+1}, s{sT2}")
        a(f"v_mov_b32 v20, s{sST}")
        a(f"v_mov_b32 v21, s{sT2}")
        a(f"v_mov_b32 v22, s{sST+2}")
        a(f"v_mov_b32 v23, s{sST+3}")
        a("v_mov_b32 v17, 0")
        for k in range(8):
            a(f"v_mov_b32 v{24+k}, s{sST+2*k}")
        a(f"v_cmp_eq_u32 vcc, 0, v{vLANE}")
        a(f"s_and_saveexec_b64 s[{sEX}:{sEX+1}], vcc")
        a(f"buffer_store_dwordx4 v[20:23], v17, {SR(SRD_D)}, s{sT0} offen")
        a(f"buffer_store_dwordx4 v[24:27], v17, {SR(SRD_D)}, s{sT1} offen")
        a(f"buffer_store_dwordx4 v[28:31], v17, {SR(SRD_D)}, s{sT1} offen offset:16")

    a.label(f"{NAME}_kernel")
    a("s_cmp_ge_u32 s2, 256")
    a("s_cbranch_scc1 L_end")
    if STAMP:
        for k in range(8):
            a(f"s_mov_b64 s[{sST+2*k}:{sST+2*k+1}], 0")
    stamp(0)
    a("s_load_dwordx16 s[4:19], s[0:1], 0")
    a("s_load_dwordx8 s[20:27], s[0:1], 64")
    a("v_lshrrev_b32 v2, 6, v0")
    a(f"v_and_b32 v{vLANE}, 63, v0")
    a("v_readfirstlane_b32 s3, v2")
    a(f"v_and_b32 v{vJ}, 15, v{vLANE}")
    a(f"v_lshrrev_b32 v{vG}, 4, v{vLANE}")
    a(f"s_bfe_u32 s{sH}, s2, 0x50002")
    a(f"s_lshr_b32 s{sB}, s2, 7")
    a(f"s_and_b32 s{sS}, s2, 3")
    a(f"s_lshl_b32 s{sPID}, s{sB}, 2")
    a(f"s_add_u32 s{sPID}, s{sPID}, s{sS}")
    a(f"s_lshl_b32 s{sLW}, s{sH}, 3")
    a(f"s_add_u32 s{sLW}, s{sLW}, s{sPID}")
    a(f"s_mov_b32 s{sL2E}, {LOG2E:#x}")

    def masks():
        a(f"v_and_b32 v{vT}, 1, v{vLANE}")
        a(f"v_lshlrev_b32 v{vT}, 4, v{vT}")
        a(f"v_mov_b32 v{vU}, 0xffff")
        a(f"v_lshlrev_b32 v{vU}, v{vT}, v{vU}")
        a(f"v_bfe_u32 v{vT}, v{vLANE}, 1, 2")
        for r in range(4):
            a(f"v_cmp_eq_u32 vcc, {r}, v{vT}")
            a(f"v_cndmask_b32 v{vMASK+r}, 0, v{vU}, vcc")

    def flagpoll(nd, soff, vaddr, sleep, lane0):
        ftop = a.newlabel("flag")
        fdone = a.newlabel("flagd")
        a(f"s_mov_b32 s{sCNT}, 0x40000")
        a(f"s_mov_b32 s{sIT}, 0x01010101")
        if lane0:
            a("s_mov_b64 exec, 1")
        a.label(ftop)
        if nd == 2:
            a(f"buffer_load_dwordx2 v[{vT}:{vU}], v{vaddr}, {SR(SRD_D)}, {soff} offen sc1")
            a("s_waitcnt vmcnt(0)")
            a(f"v_and_b32 v{vT}, v{vT}, v{vU}")
        else:
            a(f"buffer_load_dword v{vT}, v{vaddr}, {SR(SRD_D)}, {soff} offen sc1")
            a("s_waitcnt vmcnt(0)")
        a(f"v_cmp_ne_u32 vcc, s{sIT}, v{vT}")
        a(f"s_cbranch_vccz {fdone}")
        a(f"s_sub_u32 s{sCNT}, s{sCNT}, 1")
        a(f"s_cbranch_scc1 {fdone}")
        a(f"s_sleep {sleep}")
        a(f"s_branch {ftop}")
        a.label(fdone)
        if lane0:
            a("s_mov_b64 exec, -1")

    a("s_cmp_eq_u32 s3, 0")
    a("s_cbranch_scc1 L_A0")
    a("s_cmp_eq_u32 s3, 1")
    a("s_cbranch_scc1 L_A1")

    if CPF:
        a(f"s_getpc_b64 s[{sT0}:{sT1}]")
        a.label("L_pc")
        a(f"s_sub_u32 s{sT0}, s{sT0}, L_pc-{NAME}_kernel")
        a(f"s_subb_u32 s{sT1}, s{sT1}, 0")
        a(f"v_subrev_u32 v{vT}, 128, v0")
        a(f"v_lshlrev_b32 v{vT}, 4, v{vT}")
        for k in range(CPF):
            a(f"v_min_u32 v{vU}, L_codeend-{NAME}_kernel-16, v{vT}")
            a(f"global_load_dwordx4 {R(200+4*k)}, v{vU}, s[{sT0}:{sT1}]")
            a(f"v_add_u32 v{vT}, 4096, v{vT}")
    a(f"v_and_b32 v{vT}, 3, v{vLANE}")
    a(f"v_lshlrev_b32 v{vKO}, 4, v{vT}")
    a(f"v_bfe_u32 v{vT}, v{vLANE}, 2, 2")
    a(f"v_lshl_add_u32 v{vKO}, v{vT}, 8, v{vKO}")
    a(f"v_lshl_add_u32 v{vKO}, v{vG}, 6, v{vKO}")
    a(f"v_lshlrev_b32 v{vVO}, 4, v{vLANE}")
    a(f"s_lshl_b32 s{sT0}, s{sB}, 5")
    a(f"s_add_u32 s{sT0}, s{sT0}, s{sH}")
    a(f"s_lshl_b32 s{sOFF}, s{sT0}, 21")
    a(f"s_mul_i32 s{sT0}, s{sS}, {4 * NSTAT if PAT == 1 else 4}")
    a(f"s_add_u32 s{sT0}, s{sT0}, s3")
    a(f"s_sub_u32 s{sT0}, s{sT0}, 2")
    a(f"s_lshl_b32 s{sT0}, s{sT0}, 12")
    a(f"s_add_u32 s{sOFF}, s{sOFF}, s{sT0}")
    a("s_waitcnt lgkmcnt(0)")
    srd(a, SRD_A, sK, 0x8000000)
    srd(a, SRD_B, sV, 0x8000000)

    USTEP = 0x4000 if PAT == 1 else 0x10000
    fifo = []
    sSL = [86 + k for k in range(DD)]
    sDYN, sNS, sCA, sCP, sCV = 90, 91, 67, 68, 69
    assert not RCL or (NSTAT % DD == 0 and NL % DD == 0)
    sRET = 92
    sCPs = [94 + k for k in range(DD)]
    assert not (ALPHA and RCL)
    vCL = [vWIN + 32 * (DD + 1) + k for k in range(DD)]
    vCA = vCL[-1] + 1
    NDYN = (512 - 16 * NSTAT) // (4 if CLS else 1)
    BAD = 0x40000000

    def kreg(slot, m):
        return vWIN + 32 * slot + 4 * m

    def vreg(slot, m):
        return vWIN + 32 * slot + 16 + 4 * m

    def issueK(slot, so):
        for m in range(4):
            a(f"buffer_load_dwordx4 {R(kreg(slot, m))}, v{vKO}, {SR(SRD_A)}, s{so} offen offset:{1024*m} {POL}")
            fifo.append(("K", slot))

    def issueV(slot, so):
        for m in range(4):
            a(f"buffer_load_dwordx4 {R(vreg(slot, m))}, v{vVO}, {SR(SRD_B)}, s{so} offen offset:{1024*m} {POL}")
            fifo.append(("V", slot))

    def issueC(slot):
        if SCL:
            return
        if EXP & 4:
            a(f"v_mov_b32 v{vCL[slot]}, -8")
            return
        if RCL and slot:
            return
        a(f"v_mov_b32 v{vCL[slot]}, {DD if RCL else 1}")
        a(f"buffer_atomic_add v{vCL[slot]}, v{vCA}, {SR(SRD_WS)}, s{sCPs[slot]} offen sc0 sc1")
        fifo.append(("C", slot))

    def waitfor(tag):
        last = max(i for i, t in enumerate(fifo) if t == tag)
        n = len(fifo) - 1 - last
        assert n < 64
        a(f"s_waitcnt vmcnt({n})")
        del fifo[:last + 1]

    def sclaim():
        sk = a.newlabel("cl")
        a(f"s_cmp_gt_i32 s{sNS}, 0")
        a(f"s_cbranch_scc1 {sk}")
        a(f"s_cmp_ge_u32 s{sCP}, {NDYN}")
        a(f"s_cbranch_scc1 {sk}")
        a(f"s_mov_b32 s{sCV}, 1")
        a(f"s_atomic_add s{sCV}, s[{sWS}:{sWS+1}], s{sCA} glc")
        a.label(sk)

    def process(slot, fromlds=False):
        if fromlds:
            for m in range(8):
                a(f"ds_read_b128 {R(kreg(slot, m))}, v{vA2} offset:{1024*m}")
            a(f"v_add_u32 v{vA2}, 0x2000, v{vA2}")
            a("s_waitcnt lgkmcnt(4)")
        else:
            a(f"s_cmp_ge_u32 s{sSL[slot]}, {BAD:#x}")
            a("s_cbranch_scc1 L_sdone")
            if SCL and CPOS == 0:
                sclaim()
            waitfor(("K", slot))
        for m in range(4):
            c = "0" if m == 0 else R(vS)
            if not EXP & 2:
                a(f"v_mfma_f32_16x16x32_bf16 {R(vS)}, {R(kreg(slot, m))}, {R(vQB+4*m)}, {c}")
        if not fromlds:
            so = sSL[slot]
            if SCL:
                a("s_waitcnt lgkmcnt(0)")
                a(f"s_add_u32 s{sCP}, s{sCV}, 1")
                a(f"s_lshl_b32 s{sT1}, s{sCP}, {14 if CLS else 12}")
                a(f"s_add_u32 s{sT1}, s{sT1}, s{sDYN}")
                a(f"s_cmp_lt_u32 s{sCP}, {NDYN}")
                a(f"s_cselect_b32 s{sT1}, s{sT1}, {BAD:#x}")
                a(f"s_sub_i32 s{sNS}, s{sNS}, 1")
                a(f"s_cmp_ge_i32 s{sNS}, 0")
                a(f"s_cselect_b32 s{so}, s{sOFF}, s{sT1}")
                a(f"s_add_u32 s{sOFF}, s{sOFF}, {USTEP:#x}")
                issueK(slot, so)
                if BETA2:
                    sk = a.newlabel("nb")
                    a(f"s_cmp_ge_i32 s{sNS}, 0")
                    a(f"s_cbranch_scc1 {sk}")
                    a(f"s_sub_i32 s{sT2}, s{sCP}, s{sCPs[slot]}")
                    a(f"s_mov_b32 s{sCPs[slot]}, s{sCP}")
                    a(f"s_cmp_le_i32 s{sT2}, {16*DD}")
                    a(f"s_cbranch_scc1 {sk}")
                    a(f"s_mul_i32 s{sT2}, s{sT2}, {1 + BETA2}")
                    a(f"s_lshl_b32 s{sT3}, s{sCP}, 1")
                    a(f"s_add_i32 s{sT2}, s{sT2}, s{sT3}")
                    a(f"s_cmp_le_i32 s{sT2}, {2*NDYN + 16*DD*BETA2}")
                    a(f"s_cbranch_scc1 {sk}")
                    a(f"s_mov_b32 s{sCP}, {NDYN}")
                    a(f"s_mov_b32 s{sCV}, {NDYN}")
                    a.label(sk)
                if LWO == 3:
                    sk = a.newlabel("ex")
                    a(f"s_cmp_lt_u32 s{so}, {BAD:#x}")
                    a(f"s_cbranch_scc1 {sk}")
                    a(f"ds_write_b32 v{vA0}, v{vA1} offset:{L_QF+4}")
                    if STAMP and SG == 5:
                        a(f"s_cmp_lg_u32 s{sST+14}, 0")
                        a(f"s_cbranch_scc1 {sk}")
                        a(f"s_memrealtime s[{sST+14}:{sST+15}]")
                        a("s_waitcnt lgkmcnt(0)")
                    a.label(sk)
                if CPOS == 2:
                    sclaim()
        if not fromlds and not SCL:
            so = sSL[slot]
            if not RCL or slot == 0:
                a(f"v_readfirstlane_b32 s{sCV}, v{vCL[slot]}")
            a(f"s_add_u32 s{sCV}, s{sCV}, 1")
            a(f"s_lshl_b32 s{sT1}, s{sCV}, 12")
            a(f"s_add_u32 s{sT1}, s{sT1}, s{sDYN}")
            a(f"s_cmp_lt_u32 s{sCV}, {NDYN}")
            a(f"s_cselect_b32 s{sT1}, s{sT1}, {BAD:#x}")
            if ALPHA:
                a(f"s_max_u32 s{sT1}, s{sT1}, s{sCPs[slot]}")
            a(f"s_sub_i32 s{sNS}, s{sNS}, 1")
            a(f"s_cmp_ge_i32 s{sNS}, 0")
            a(f"s_cselect_b32 s{so}, s{sOFF}, s{sT1}")
            a(f"s_add_u32 s{sOFF}, s{sOFF}, {USTEP:#x}")
            if ALPHA:
                a(f"s_mul_i32 s{sT2}, s{sCV}, {16 + ALPHA}")
                a(f"s_mul_i32 s{sT3}, s{sNS}, {16 * ALPHA}")
                a(f"s_add_i32 s{sT2}, s{sT2}, s{sT3}")
                a(f"s_cmp_lt_i32 s{sNS}, 0")
                a(f"s_cselect_b32 s{sT2}, s{sT2}, 0")
                a(f"s_cmp_gt_i32 s{sT2}, {16*(NDYN-1) - ALPHA + 16*ALPHA*(DD-1)}")
                a(f"s_cselect_b32 s{sCA}, {BAD:#x}, s{sCA}")
            a(f"s_cmp_lt_i32 s{sNS}, {DD}")
            a(f"s_cselect_b32 s{sCPs[slot]}, s{sCA}, {BAD:#x}")
            issueC(slot)
            issueK(slot, so)
        if not EXP & 2:
            a(f"v_mov_b32_dpp v{vT}, v{vS} quad_perm:[0,0,0,0] {DPPM}")
            for e in range(1, 4):
                a(f"v_add_f32_dpp v{vT}, v{vS+e}, v{vT} quad_perm:[{e},{e},{e},{e}] {DPPM}")
            rne(a, [vT])
            a(f"v_mul_f32 v{vT}, {SCALE:#x}, v{vT}")
            rne(a, [vT])
            a(f"v_cmp_gt_f32 vcc, v{vT}, v{vM}")
            back = a.newlabel("back")
            a(f"s_cbranch_vccz {back}")
            a(f"s_call_b64 s[{sRET}:{sRET+1}], L_slow")
            a.label(back)
            a(f"v_fma_f32 v{vT}, v{vT}, s{sL2E}, v{vMN}")
            a(f"v_exp_f32 v{vT}, v{vT}")
            a(f"v_add_f32 v{vL}, v{vL}, v{vT}")
            a(f"v_cvt_pk_bf16_f32 v{vP}, v{vT}, v{vT}")
        if fromlds:
            a("s_waitcnt lgkmcnt(0)")
        else:
            if SCL and CPOS == 1:
                sclaim()
            waitfor(("V", slot))

        def build(m):
            pb = vPB0 if m % 2 == 0 else vPB1
            for r in range(4):
                a(f"v_and_b32_dpp v{pb+r}, v{vP}, v{vMASK+r} row_newbcast:{4*m} {DPPM}")
        if not EXP & 2:
            build(0)
            for m in range(4):
                if m + 1 < 4:
                    build(m + 1)
                pb = vPB0 if m % 2 == 0 else vPB1
                a(f"v_mfma_f32_16x16x32_bf16 {R(vACC)}, {R(vreg(slot, m))}, {R(pb)}, {R(vACC)}")
        if not fromlds:
            issueV(slot, so)

    srd(a, SRD_WS, sWS, WSZ)
    a(f"s_sub_u32 s{sT5}, s3, 2")
    a(f"s_mul_i32 s{sT5}, s{sT5}, {NL*8192}")
    a(f"s_add_u32 s{sT5}, s{sT5}, {L_TOTAL}")
    a(f"v_add_u32 v{vA2}, s{sT5}, v{vVO}")
    a(f"v_mov_b32 v{vCA}, {BAD:#x}")
    a(f"v_cmp_eq_u32 vcc, 0, v{vLANE}")
    a(f"v_cndmask_b32 v{vCA}, v{vCA}, 0, vcc")
    for k in range(DD):
        a(f"s_mov_b32 s{sCPs[k]}, {BAD:#x}")
    if EXP & 8:
        a(f"v_mov_b32 v{vW}, 0")
        a(f"v_mov_b32 v{vT}, 1")
        a(f"ds_write_b32 v{vW}, v{vT} offset:{L_QF}")
        a("s_waitcnt lgkmcnt(0)")
    a("s_barrier")
    nfl = 0
    for k in range(DD):
        a(f"s_mov_b32 s{sSL[k]}, s{sOFF}")
        a(f"s_add_u32 s{sOFF}, s{sOFF}, {USTEP:#x}")
        for fn in (issueK, issueV):
            if nfl >= INFL:
                a(f"s_waitcnt vmcnt({INFL-4})")
                nfl -= 4
            if fn is issueK:
                issueC(k)
            fn(k, sSL[k])
            nfl += 4
            if EARLY == 3 and (2 * k + (fn is issueV)) == EH - 1:
                a("s_barrier")
    masks()
    a(f"s_andn2_b32 s{sCA}, s{sLW}, 3")
    a(f"s_lshl_b32 s{sCA}, s{sCA}, 12")
    a(f"s_add_u32 s{sCA}, s{sCA}, {CNT}")
    if not NDYN and not SCL:
        a(f"s_mov_b32 s{sCA}, {BAD:#x}")
    a(f"s_mov_b32 s{sCV}, 0")
    a(f"s_mov_b32 s{sCP}, 0")
    a(f"s_lshl_b32 s{sT0}, s{sB}, 5")
    a(f"s_add_u32 s{sT0}, s{sT0}, s{sH}")
    a(f"s_lshl_b32 s{sDYN}, s{sT0}, 21")
    a(f"s_add_u32 s{sDYN}, s{sDYN}, {16*NSTAT*4096}")
    if CLS:
        a(f"s_sub_u32 s{sT0}, s3, 2")
        a(f"s_lshl_b32 s{sT1}, s{sT0}, 12")
        a(f"s_add_u32 s{sDYN}, s{sDYN}, s{sT1}")
        a(f"s_lshl_b32 s{sT1}, s{sT0}, 6")
        a(f"s_add_u32 s{sCA}, s{sCA}, s{sT1}")
    a(f"s_mov_b32 s{sNS}, {NSTAT - DD}")
    for r in range(4):
        a(f"v_mov_b32 v{vACC+r}, 0")
    a(f"v_mov_b32 v{vL}, 0")
    a(f"v_mov_b32 v{vM}, 0xff800000")
    a(f"v_mov_b32 v{vMN}, 0")
    a(f"v_and_b32 v{vT}, 3, v{vJ}")
    a(f"v_lshl_add_u32 v{vT}, v{vG}, 2, v{vT}")
    a(f"v_lshlrev_b32 v{vA0}, 4, v{vT}")
    a(f"v_lshrrev_b32 v{vA1}, 2, v{vJ}")
    a(f"s_mov_b32 s{sIT}, 0")
    a(f"v_mov_b32 v{vW}, 0")
    a.label("L_lpro")
    a(f"ds_read_b32 v{vT}, v{vW} offset:{L_QF}")
    a("s_waitcnt lgkmcnt(0)")
    a(f"v_cmp_ne_u32 vcc, 0, v{vT}")
    a("s_cbranch_vccnz L_qready")
    a(f"s_cmp_lt_u32 s{sIT}, {NL}")
    a("s_cbranch_scc1 L_lgo")
    a("s_sleep 1")
    a("s_branch L_lpro")
    a.label("L_lgo")
    for rep in range(DD if RCL else 1):
        for which in "KV":
            a(f"s_mov_b32 m0, s{sT5}")
            a(f"s_waitcnt vmcnt({INFL-4})")
            for m in range(4):
                if which == "K":
                    a(f"buffer_load_dwordx4 v{vKO}, {SR(SRD_A)}, s{sOFF} offen offset:{1024*m} {POL} lds")
                else:
                    a(f"buffer_load_dwordx4 v{vVO}, {SR(SRD_B)}, s{sOFF} offen offset:{1024*m} {POL} lds")
            a(f"s_add_u32 s{sT5}, s{sT5}, 4096")
        a(f"s_add_u32 s{sOFF}, s{sOFF}, {USTEP:#x}")
        a(f"s_add_u32 s{sIT}, s{sIT}, 1")
        a(f"s_sub_u32 s{sNS}, s{sNS}, 1")
    a("s_branch L_lpro")
    a.label("L_qready")
    stamp(2, -1)
    a(f"ds_read_b128 {R(vS)}, v{vA0} offset:{L_QV}")
    a("s_waitcnt lgkmcnt(0)")
    for m in range(4):
        a(f"v_cmp_eq_u32 vcc, {m}, v{vA1}")
        for r in range(4):
            a(f"v_cndmask_b32 v{vQB+4*m+r}, 0, v{vS+r}, vcc")
    a(f"v_mov_b32 v{vA0}, 0")
    a(f"v_mov_b32 v{vA1}, 1")
    state0 = list(fifo)
    a.label("L_loop")
    for k in range(DD):
        process(k)
    assert fifo == state0, (fifo, state0)
    if STAMP:
        for k, done in (((5, 11), (6, 17), (7, 23)) if SG != 5 else ((5, 11), (6, NSTAT - DD))):
            lb = a.newlabel("ps")
            a(f"s_cmp_gt_i32 s{sNS}, {NSTAT - DD - done}")
            a(f"s_cbranch_scc1 {lb}")
            a(f"s_cmp_lg_u32 s{sST+2*k}, 0")
            a(f"s_cbranch_scc1 {lb}")
            stamp(k, -1)
            a("s_waitcnt lgkmcnt(0)")
            a.label(lb)
    if NL:
        a(f"s_cmp_eq_u32 s{sIT}, 0")
        a("s_cbranch_scc1 L_loop")
        a(f"s_waitcnt vmcnt({len(fifo)})")
        a.label("L_lloop")
        process(DD, fromlds=True)
        a(f"s_sub_u32 s{sIT}, s{sIT}, 1")
        a(f"s_cmp_lg_u32 s{sIT}, 0")
        a("s_cbranch_scc1 L_lloop")
        stamp(4, -1)
    a("s_branch L_loop")
    a.label("L_slow")
    a(f"v_max_f32_dpp v{vU}, v{vT}, v{vT} row_ror:4 {DPPM}")
    a(f"v_max_f32_dpp v{vU}, v{vU}, v{vU} row_ror:8 {DPPM}")
    a(f"v_mov_b32 v{vW}, v{vU}")
    a(f"v_permlane16_swap_b32 v{vU}, v{vW}")
    a(f"v_max_f32 v{vU}, v{vU}, v{vW}")
    a(f"v_mov_b32 v{vW}, v{vU}")
    a(f"v_permlane32_swap_b32 v{vU}, v{vW}")
    a(f"v_max3_f32 v{vU}, v{vU}, v{vW}, v{vM}")
    a(f"v_sub_f32 v{vW}, v{vM}, v{vU}")
    a(f"v_mul_f32 v{vW}, s{sL2E}, v{vW}")
    a(f"v_exp_f32 v{vW}, v{vW}")
    a(f"v_mov_b32 v{vM}, v{vU}")
    a(f"v_mul_f32 v{vMN}, {NLOG2E:#x}, v{vU}")
    for r in range(4):
        a(f"v_mul_f32 v{vACC+r}, v{vACC+r}, v{vW}")
    a(f"v_mul_f32 v{vL}, v{vL}, v{vW}")
    a(f"s_setpc_b64 s[{sRET}:{sRET+1}]")
    a.label("L_sdone")
    if STAMP and SG == 5:
        a(f"s_sub_u32 s{sT0}, {NSTAT - DD}, s{sNS}")
        a(f"s_mul_i32 s{sT0}, s{sT0}, 100")
        a(f"s_add_u32 s{sST+8}, s{sST}, s{sT0}")
    stamp(3, -1)
    allreduce(a, [vL], [vW], quad=False)
    a(f"v_lshlrev_b32 v{vA0}, 3, v{vG}")
    a(f"v_add_u32 v{vA0}, v{vA0}, v{vJ}")
    a(f"v_lshlrev_b32 v{vA0}, 4, v{vA0}")
    a(f"s_sub_u32 s{sT0}, s3, 2")
    a(f"s_lshl_b32 s{sT1}, s{sT0}, 9")
    a(f"v_add_u32 v{vA0}, s{sT1}, v{vA0}")
    a(f"s_lshl_b32 s{sT1}, s{sT0}, 3")
    a(f"v_mov_b32 v{vA1}, s{sT1}")
    a(f"v_mov_b32 v{vMN}, v{vL}")
    a(f"v_cmp_gt_u32 vcc, 8, v{vJ}")
    a(f"s_and_saveexec_b64 s[{sEX}:{sEX+1}], vcc")
    a(f"ds_write_b128 v{vA0}, {R(vACC)} offset:{L_PART}")
    a(f"ds_write_b64 v{vA1}, v[{vM}:{vMN}] offset:{L_PML}")
    a("s_waitcnt lgkmcnt(0)")
    a("s_barrier")
    stamp_flush(4)
    a("s_endpgm")

    def load_tag():
        a(f"s_mov_b32 s{sT2}, {GEN:#x}")
        a(f"s_load_dword s{sTAG}, s[{sWS}:{sWS+1}], s{sT2}")

    def make_tag():
        a(f"s_add_u32 s{sGEN}, s{sTAG}, 1")
        a(f"s_mov_b32 s{sTMK}, 0xff")
        a(f"v_and_b32 v{vTAG}, s{sGEN}, v{vTAG}")
        a(f"v_and_b32 v{vTAG+1}, s{sGEN}, v{vTAG+1}")

    def pre_tag():
        a(f"v_mov_b32 v{vTAG}, 0xff")
        a(f"v_mov_b32 v{vTAG+1}, 7")

    def publish(src, voff, soff, off, fine=False):
        mk, tg = ("7", vTAG + 1) if fine else (f"s{sTMK}", vTAG)
        for r in range(4):
            a(f"v_bfi_b32 v{src+r}, {mk}, v{tg}, v{src+r}")
        a(f"buffer_store_dwordx4 {R(src)}, v{voff}, {SR(SRD_WS)}, s{soff} offen offset:{off} sc1")

    def gather(dst, n, voff, soff, step, off, sleep, name, lanes="-1", fine=False, lastmask=None):
        mk, tg = ("7", vTAG + 1) if fine else (f"s{sTMK}", vTAG)
        top = a.newlabel(name)
        done = a.newlabel(name + "d")
        a(f"s_mov_b32 s{sCNT}, 0x40000")
        a(f"s_mov_b32 s{sPM}, {(1 << n) - 1}")
        if lanes != "-1":
            a(f"s_mov_b64 exec, {lanes}")
        a.label(top)
        if n > 1:
            a(f"s_mov_b32 s{sT1}, s{soff}")
        for t in range(n):
            sk = a.newlabel(name + "s")
            if n > 1:
                a(f"s_bitcmp1_b32 s{sPM}, {t}")
                a(f"s_cbranch_scc0 {sk}")
            if lastmask and t == n - 1:
                a(f"s_mov_b32 exec_hi, {lastmask:#x}")
            a(f"buffer_load_dwordx4 {R(dst+4*t)}, v{voff}, {SR(SRD_WS)}, s{sT1 if n > 1 else soff} offen offset:{off} sc1")
            if lastmask and t == n - 1:
                a("s_mov_b32 exec_hi, -1")
            a.label(sk)
            if t < n - 1:
                a(f"s_add_u32 s{sT1}, s{sT1}, {step}")
        a("s_waitcnt vmcnt(0)")
        for t in range(n):
            d = dst + 4 * t
            sk = a.newlabel(name + "c")
            if n > 1:
                a(f"s_bitcmp1_b32 s{sPM}, {t}")
                a(f"s_cbranch_scc0 {sk}")
            if lastmask and t == n - 1:
                a(f"s_mov_b32 exec_hi, {lastmask:#x}")
            for r in range(4):
                a(f"v_xor_b32 v{d+r}, v{d+r}, v{tg}")
            a(f"v_or3_b32 v{vT}, v{d}, v{d+1}, v{d+2}")
            a(f"v_or_b32 v{vT}, v{vT}, v{d+3}")
            a(f"v_and_b32 v{vT}, {mk}, v{vT}")
            a(f"v_cmp_ne_u32 vcc, 0, v{vT}")
            if lastmask and t == n - 1:
                a("s_mov_b32 exec_hi, -1")
            if n > 1:
                a(f"s_cbranch_vccnz {sk}")
                a(f"s_bitset0_b32 s{sPM}, {t}")
                a.label(sk)
        if n > 1:
            a(f"s_cmp_eq_u32 s{sPM}, 0")
            a(f"s_cbranch_scc1 {done}")
        else:
            a(f"s_cbranch_vccz {done}")
        a(f"s_sub_u32 s{sCNT}, s{sCNT}, 1")
        a(f"s_cbranch_scc1 {done}")
        if sleep:
            a(f"s_sleep {sleep}")
        a(f"s_branch {top}")
        a.label(done)
        if lanes != "-1":
            a("s_mov_b64 exec, -1")

    def gatherP(fin, bufs, n, voff, soff, step, off, name, gap):
        P = len(bufs)
        top = a.newlabel(name)
        done = a.newlabel(name + "d")
        a(f"s_mov_b32 s{sCNT}, 0x40000")
        a(f"s_mov_b32 s{sPM}, {(1 << n) - 1}")
        for t in range(n):
            a(f"s_add_u32 s{sPM+1+t}, s{soff}, {t*step}")

        def issue(bf):
            for t in range(n):
                a(f"buffer_load_dwordx4 {R(bf+4*t)}, v{voff}, {SR(SRD_WS)}, s{sPM+1+t} offen offset:{off} sc1")
        for p in range(P - 1):
            issue(bufs[p])
            a(f"s_sleep {gap}")
        a.label(top)
        for p in range(P):
            issue(bufs[(p + P - 1) % P])
            a(f"s_waitcnt vmcnt({n*(P-1)})")
            bf = bufs[p]
            for t in range(n):
                d = bf + 4 * t
                sk = a.newlabel(name + "c")
                if n > 1:
                    a(f"s_bitcmp1_b32 s{sPM}, {t}")
                    a(f"s_cbranch_scc0 {sk}")
                for r in range(4):
                    a(f"v_xor_b32 v{fin+4*t+r}, v{d+r}, v{vTAG}")
                a(f"v_or3_b32 v{vT}, v{fin+4*t}, v{fin+4*t+1}, v{fin+4*t+2}")
                a(f"v_or_b32 v{vT}, v{vT}, v{fin+4*t+3}")
                a(f"v_and_b32 v{vT}, s{sTMK}, v{vT}")
                a(f"v_cmp_ne_u32 vcc, 0, v{vT}")
                if n > 1:
                    a(f"s_cbranch_vccnz {sk}")
                    a(f"s_bitset0_b32 s{sPM}, {t}")
                    a(f"s_mov_b32 s{sPM+1+t}, 0x40000000")
                    a.label(sk)
                else:
                    a(f"s_cbranch_vccz {done}")
            if n > 1:
                a(f"s_cmp_eq_u32 s{sPM}, 0")
                a(f"s_cbranch_scc1 {done}")
        a(f"s_sub_u32 s{sCNT}, s{sCNT}, 1")
        a(f"s_cbranch_scc0 {top}")
        a.label(done)

    a.label("L_A0")
    if EXP & 8:
        a("s_endpgm")
    a("s_setprio 3")
    pre_tag()
    a(f"v_lshlrev_b32 v{vVO}, 4, v{vLANE}")
    for r in range(4):
        a(f"v_mov_b32 v{vS+r}, -1")
    a(f"s_lshl_b32 s{sOFF}, s{sLW}, 12")
    a(f"v_lshlrev_b32 v{vA0}, 17, v{vG}")
    a(f"v_lshl_add_u32 v{vA0}, v{vJ}, 4, v{vA0}")
    a(f"s_lshl_b32 s{sT0}, s{sPID}, 19")
    a(f"s_lshl_b32 s{sT1}, s{sH}, 8")
    a(f"s_add_u32 s{sT0}, s{sT0}, s{sT1}")
    a("s_waitcnt lgkmcnt(0)")
    srd(a, SRD_A, sX, 2048)
    a(f"buffer_load_dwordx4 {R(vPB0)}, v{vVO}, {SR(SRD_A)}, 0 offen")
    a(f"buffer_load_dwordx4 {R(vPB1)}, v{vVO}, {SR(SRD_A)}, 0 offen offset:1024")
    srd(a, SRD_WS, sWS, WSZ)
    load_tag()
    a("s_mov_b64 exec, 0xffff")
    a(f"buffer_store_dwordx4 {R(vS)}, v{vVO}, {SR(SRD_WS)}, s{sOFF} offen offset:{CNT} sc1")
    a("s_mov_b64 exec, -1")
    srd(a, SRD_B, sWQ, 0x400000)
    for t in range(16):
        a(f"buffer_load_dwordx4 {R(TA+4*t)}, v{vA0}, {SR(SRD_B)}, s{sT0} offen {WPOL}")
        if t < 15:
            a(f"s_add_u32 s{sT0}, s{sT0}, 8192")
    if EARLY >= 2:
        a("s_barrier")
    masks()
    a("s_waitcnt vmcnt(17)")
    stamp(2)
    X = [TC + i for i in range(16)]
    for bb, src in ((0, vPB0), (1, vPB1)):
        for k in range(4):
            a(f"v_lshlrev_b32 v{X[bb*8+2*k]}, 16, v{src+k}")
            a(f"v_and_b32 v{X[bb*8+2*k+1]}, 0xffff0000, v{src+k}")
    S0, S1, Tm0, Tm1 = TC + 16, TC + 17, TC + 18, TC + 19
    Dv = [TC + 20 + i for i in range(16)]
    for bb, s in ((0, S0), (1, S1)):
        a(f"v_add_f32 v{s}, v{X[bb*8]}, v{X[bb*8+1]}")
    for k in range(2, 8):
        for bb, s in ((0, S0), (1, S1)):
            a(f"v_add_f32 v{s}, v{s}, v{X[bb*8+k]}")
    allreduce(a, [S0, S1], [Tm0, Tm1])
    a(f"v_mul_f32 v{S0}, 0x3b000000, v{S0}")
    a(f"v_mul_f32 v{S1}, 0x3b000000, v{S1}")
    V0, V1 = TC + 36, TC + 37
    for bb, s in ((0, S0), (1, S1)):
        for k in range(8):
            a(f"v_sub_f32 v{Dv[bb*8+k]}, v{X[bb*8+k]}, v{s}")
    for bb, v in ((0, V0), (1, V1)):
        a(f"v_mul_f32 v{v}, v{Dv[bb*8]}, v{Dv[bb*8]}")
    for k in range(1, 8):
        for bb, v in ((0, V0), (1, V1)):
            a(f"v_fmac_f32 v{v}, v{Dv[bb*8+k]}, v{Dv[bb*8+k]}")
    allreduce(a, [V0, V1], [Tm0, Tm1])
    a(f"v_mul_f32 v{V0}, 0x3b000000, v{V0}")
    a(f"v_mul_f32 v{V1}, 0x3b000000, v{V1}")
    rne(a, [S0, S1, V0, V1])
    a(f"v_add_f32 v{V0}, 0x3727c5ac, v{V0}")
    a(f"v_add_f32 v{V1}, 0x3727c5ac, v{V1}")
    rne(a, [V0, V1])
    a(f"v_sqrt_f32 v{V0}, v{V0}")
    a(f"v_sqrt_f32 v{V1}, v{V1}")
    rne(a, [V0, V1])
    a(f"v_rcp_f32 v{V0}, v{V0}")
    a(f"v_rcp_f32 v{V1}, v{V1}")
    for bb, s in ((0, S0), (1, S1)):
        for k in range(8):
            a(f"v_sub_f32 v{Dv[bb*8+k]}, v{X[bb*8+k]}, v{s}")
    rne(a, Dv)
    for bb, v in ((0, V0), (1, V1)):
        for k in range(8):
            a(f"v_mul_f32 v{Dv[bb*8+k]}, v{Dv[bb*8+k]}, v{v}")
    for d in Dv:
        a(f"v_cvt_pk_bf16_f32 v{d}, v{d}, v{d}")
    a(f"v_lshlrev_b32 v{vA1}, 5, v{vLANE}")
    for bb in range(2):
        for k in range(2):
            a(f"ds_write_b128 v{vA1}, {R(Dv[bb*8+4*k])} offset:{L_XN + bb*2048 + 16*k}")
    a(f"s_cmp_ge_u32 s{sLW}, 88")
    a(f"s_cselect_b32 s{sT0}, 88, 0")
    a(f"s_cselect_b32 s{SRD_C}, s{sWU}, s{sWG}")
    a(f"s_cselect_b32 s{SRD_C+1}, s{sWU+1}, s{sWG+1}")
    a(f"s_and_b32 s{SRD_C+1}, s{SRD_C+1}, 0xffff")
    a(f"s_sub_u32 s{sT0}, s{sLW}, s{sT0}")
    a(f"s_cmp_lt_u32 s{sLW}, 176")
    a(f"s_cselect_b32 s{SRD_C+2}, {512*2752}, 0")
    a(f"s_mov_b32 s{SRD_C+3}, 0x20000")
    a(f"s_lshr_b32 s{sT1}, s{sT0}, 3")
    a(f"s_and_b32 s{sT5}, s{sT0}, 7")
    a(f"s_mul_i32 s{sT3}, s{sT5}, {64*2752}")
    a(f"s_lshl_b32 s{sT4}, s{sT1}, 8")
    a(f"s_add_u32 s{sT3}, s{sT3}, s{sT4}")
    a(f"v_mul_u32_u24 v{vA0}, {16*2752}, v{vG}")
    a(f"v_lshl_add_u32 v{vA0}, v{vJ}, 4, v{vA0}")
    a(f"s_lshl_b32 s{sT4}, s{sT1}, 4")
    a(f"v_add_u32 v{vT}, s{sT4}, v{vJ}")
    a(f"v_cmp_gt_u32 vcc, 172, v{vT}")
    a(f"v_mov_b32 v{vU}, 0x40000000")
    a(f"v_cndmask_b32 v{vA0}, v{vU}, v{vA0}, vcc")
    for t in range(16):
        a(f"buffer_load_dwordx4 {R(TB+4*t)}, v{vA0}, {SR(SRD_C)}, s{sT3} offen {WPOL}")
        if t < 15:
            a(f"s_add_u32 s{sT3}, s{sT3}, 2752")
    a(f"v_lshrrev_b32 v{vT}, 3, v{vJ}")
    a(f"v_lshlrev_b32 v{vKO}, 11, v{vT}")
    a(f"v_lshl_add_u32 v{vKO}, v{vG}, 6, v{vKO}")
    a(f"s_lshl_b32 s{sT0}, s{sPID}, 8")
    a(f"v_add_u32 v{vA1}, s{sT0}, v{vKO}")
    a("s_waitcnt lgkmcnt(0)")
    make_tag()
    if EARLY == 1:
        a("s_barrier")
    tile_gemv(a, TA, vA1, L_XN, waits={0: 28, 4: 24, 8: 20, 12: 16})
    publish(vACC, vVO, sOFF, QP, fine=True)
    if EARLY in (0, 3):
        a("s_barrier")
    stamp(3)
    a(f"s_cmp_ge_u32 s{sLW}, 176")
    a("s_cbranch_scc1 L_A0_noffn1")
    a(f"s_lshl_b32 s{sT0}, s{sT5}, 8")
    a(f"v_add_u32 v{vA1}, s{sT0}, v{vKO}")
    tile_gemv(a, TB, vA1, L_XN, waits={0: 1})
    publish(vACC, vVO, sOFF, GP)
    a.label("L_A0_noffn1")
    stamp(4)
    a("s_setprio 0")
    a(f"s_cmp_ge_u32 s{sLW}, 32")
    a("s_cbranch_scc1 L_A0_nogen")
    a(f"s_lshr_b32 s{sT4}, s{sLW}, 3")
    a(f"s_and_b32 s{sT5}, s{sLW}, 7")
    a(f"s_and_b32 s{sT0}, s{sT5}, 1")
    a(f"s_lshl_b32 s{sT0}, s{sT0}, 9")
    a(f"s_lshl_b32 s{sT1}, s{sT4}, 7")
    a(f"s_add_u32 s{sT0}, s{sT0}, s{sT1}")
    a(f"s_lshr_b32 s{sT1}, s{sT5}, 1")
    a(f"s_lshl_b32 s{sT1}, s{sT1}, 5")
    a(f"s_add_u32 s{sT0}, s{sT0}, s{sT1}")
    a(f"v_and_b32 v{vT}, 31, v{vLANE}")
    a(f"v_add_u32 v{vT}, s{sT0}, v{vT}")
    a(f"v_lshlrev_b32 v{vA2}, 1, v{vT}")
    a(f"buffer_load_ushort v{vP}, v{vA2}, {SR(SRD_A)}, 0 offen")
    a(f"v_lshrrev_b32 v{vT}, 3, v{vLANE}")
    a(f"v_lshlrev_b32 v{vA0}, 14, v{vT}")
    a(f"v_and_b32 v{vA1}, 3, v{vT}")
    a(f"v_and_b32 v{vT}, 7, v{vLANE}")
    a(f"v_lshl_add_u32 v{vA0}, v{vT}, 4, v{vA0}")
    a(f"s_lshl_b32 s{sT4}, s{sT4}, 12")
    a(f"s_lshl_b32 s{sT5}, s{sT5}, 7")
    a(f"s_add_u32 s{sT4}, s{sT4}, s{sT5}")
    a(f"s_add_u32 s{sT5}, s{sT4}, {DPB + 168*4096}")
    for r in range(4):
        a(f"v_mov_b32 v{TA+8+r}, 0")
    for _ in range(3):
        a(f"s_sleep {PSL}")
    gather(TA, 3, vA0, sT5, 8 * 16384, 0, PSL, "dp", lastmask=0xffff)
    stamp(5)

    def reduce_select(dst, n):
        for t in range(1, n):
            for r in range(4):
                a(f"v_add_f32 v{TA+r}, v{TA+r}, v{TA+4*t+r}")
        regs = [TA + r for r in range(4)]
        tmps = [TA + 4 + r for r in range(4)]
        for r in regs:
            a(f"v_add_f32_dpp v{r}, v{r}, v{r} row_ror:8 {DPPM}")
        for sw in ("v_permlane16_swap_b32", "v_permlane32_swap_b32"):
            for r, t in zip(regs, tmps):
                a(f"v_mov_b32 v{t}, v{r}")
            for r, t in zip(regs, tmps):
                a(f"{sw} v{r}, v{t}")
            for r, t in zip(regs, tmps):
                a(f"v_add_f32 v{r}, v{r}, v{t}")
        a(f"v_cndmask_b32 v{dst}, v{TA}, v{TA+1}, s[{sSEL}:{sSEL+1}]")
        a(f"v_cndmask_b32 v{dst}, v{dst}, v{TA+2}, s[{sSEL+2}:{sSEL+3}]")
        a(f"v_cndmask_b32 v{dst}, v{dst}, v{TA+3}, s[{sSEL+4}:{sSEL+5}]")
    for r in range(1, 4):
        a(f"v_cmp_eq_u32 s[{sSEL+2*r-2}:{sSEL+2*r-1}], {r}, v{vA1}")
    reduce_select(vM, 3)
    rne(a, [vM])
    a(f"v_mul_f32 v{vU}, {NLOG2E:#x}, v{vM}")
    a(f"v_exp_f32 v{vU}, v{vU}")
    a(f"v_add_f32 v{vU}, 1.0, v{vU}")
    a(f"v_rcp_f32 v{vU}, v{vU}")
    a(f"v_mul_f32 v{vM}, v{vM}, v{vU}")
    rne(a, [vM])
    a(f"v_lshlrev_b32 v{vP}, 16, v{vP}")
    srd(a, SRD_B, sOUT, 2048)
    a(f"s_lshl_b32 s{sT4}, s{sLW}, 13")
    a(f"s_add_u32 s{sT4}, s{sT4}, {YPB:#x}")
    stamp(6)
    a("s_setprio 3")
    a("s_barrier")
    if PY:
        gatherP(TA, [TB + 32 * p for p in range(PY)], 8, vVO, sT4, 1024, 0, "yp", PGAP)
    else:
        gather(TA, 8, vVO, sT4, 1024, 0, YSL, "yp")
    stamp(7)
    reduce_select(vL, 8)
    rne(a, [vL])
    a(f"v_mul_f32 v{vL}, v{vL}, v{vM}")
    rne(a, [vL])
    a(f"v_add_f32 v{vL}, v{vL}, v{vP}")
    a(f"v_cvt_pk_bf16_f32 v{vL}, v{vL}, v{vL}")
    a("s_mov_b32 exec_hi, 0")
    a(f"buffer_store_short v{vL}, v{vA2}, {SR(SRD_B)}, 0 offen")
    a(f"s_cmp_lg_u32 s{sLW}, 0")
    a("s_cbranch_scc1 L_A0_nogen")
    a("s_mov_b64 exec, 1")
    a(f"v_mov_b32 v{vT}, s{sGEN}")
    a(f"v_mov_b32 v{vU}, {GEN:#x}")
    a(f"buffer_store_dword v{vT}, v{vU}, {SR(SRD_WS)}, 0 offen sc1")
    a.label("L_A0_nogen")
    stamp_flush(7)
    a("s_endpgm")

    a.label("L_A1")
    if EXP & 8:
        a("s_endpgm")
    a("s_setprio 2")
    pre_tag()
    a(f"v_mov_b32 v{vKO}, 0")
    a(f"ds_write_b32 v{vKO}, v{vKO} offset:{L_QF}")
    a(f"ds_write_b32 v{vKO}, v{vKO} offset:{L_QF+4}")
    masks()
    a(f"s_lshl_b32 s{sOFF}, s{sLW}, 12")
    a(f"v_lshlrev_b32 v{vA0}, 14, v{vG}")
    a(f"v_lshl_add_u32 v{vA0}, v{vJ}, 4, v{vA0}")
    a(f"s_lshl_b32 s{sT0}, s{sH}, 17")
    a(f"s_lshl_b32 s{sT1}, s{sB}, 16")
    a(f"s_add_u32 s{sT0}, s{sT0}, s{sT1}")
    a(f"s_lshl_b32 s{sT1}, s{sS}, 8")
    a(f"s_add_u32 s{sT0}, s{sT0}, s{sT1}")
    a(f"v_lshrrev_b32 v{vT}, 5, v{vLANE}")
    a(f"v_lshlrev_b32 v{vA1}, 12, v{vT}")
    a(f"v_bfe_u32 v{vT}, v{vLANE}, 3, 2")
    a(f"v_lshl_add_u32 v{vA1}, v{vT}, 8, v{vA1}")
    a(f"v_lshlrev_b32 v{vA2}, 6, v{vT}")
    a(f"v_and_b32 v{vT}, 7, v{vLANE}")
    a(f"v_lshl_add_u32 v{vA1}, v{vT}, 4, v{vA1}")
    a(f"v_lshl_add_u32 v{vA2}, v{vT}, 1, v{vA2}")
    a(f"s_lshr_b32 s{sT1}, s{sLW}, 4")
    a(f"s_add_u32 s{sT1}, s{sT1}, 80")
    a(f"s_and_b32 s{sT2}, s{sLW}, 0x8f")
    a(f"s_cmp_eq_u32 s{sT2}, 9")
    a(f"s_cselect_b32 s{sKF}, s{sT1}, 255")
    a(f"s_sub_u32 s{sT1}, s{sLW}, 176")
    a(f"s_cmp_ge_u32 s{sLW}, 176")
    a(f"s_cselect_b32 s{sKF}, s{sT1}, s{sKF}")
    a(f"s_mov_b32 s{sT1}, s{sKF}")
    a(f"s_lshr_b32 s{sT4}, s{sT1}, 2")
    a(f"s_and_b32 s{sT5}, s{sT1}, 3")
    a(f"s_lshl_b32 s{sT3}, s{sT4}, 16")
    a(f"s_lshl_b32 s{sT1}, s{sT5}, 8")
    a(f"s_add_u32 s{sT3}, s{sT3}, s{sT1}")
    a("s_waitcnt lgkmcnt(0)")
    srd(a, SRD_WS, sWS, WSZ)
    load_tag()
    srd(a, SRD_B, sWO, 0x400000)
    srd(a, SRD_C, sWD, 1376 * 1024)
    a(f"s_cmp_lt_u32 s{sKF}, 88")
    a(f"s_cselect_b32 s{SRD_C+2}, {1376*1024}, 0")
    if EARLY >= 2:
        a("s_barrier")
    a("s_waitcnt lgkmcnt(0)")
    make_tag()
    def wo_loads():
        for t in range(16):
            if t % 4 == 0 and t:
                a(f"s_add_u32 s{sWOF}, s{sWOF}, 4096")
            a(f"buffer_load_dwordx4 {R(TA+4*t)}, v{vWOA}, {SR(SRD_B)}, s{sWOF} offen offset:{1024*(t%4)} {WPOL}")
    a(f"s_mov_b32 s{sWOF}, s{sT0}")
    a(f"v_mov_b32 v{vWOA}, v{vA0}")
    if LWO == 0:
        wo_loads()
    for t in range(16):
        if t % 4 == 0 and t:
            a(f"s_add_u32 s{sT3}, s{sT3}, 4096")
        a(f"buffer_load_dwordx4 {R(TB+4*t)}, v{vA0}, {SR(SRD_C)}, s{sT3} offen offset:{1024*(t%4)} {WPOL}")
    a(f"s_lshl_b32 s{sT0}, s{sH}, 15")
    a(f"s_lshl_b32 s{sT1}, s{sB}, 7")
    a(f"s_add_u32 s{sT0}, s{sT0}, s{sT1}")
    if EARLY != 2:
        a("s_barrier")
    stamp(2, -1)
    if QSL:
        a(f"s_sleep {QSL}")
    gather(TC, 4, vA1, sT0, 8192, QP, 1, "qp", fine=True)
    stamp(3, -1)
    for t in range(1, 4):
        for r in range(4):
            a(f"v_add_f32 v{TC+r}, v{TC+r}, v{TC+4*t+r}")
    for r in range(4):
        a(f"v_mov_b32 v{TC+4+r}, v{TC+r}")
    for r in range(4):
        a(f"v_permlane32_swap_b32 v{TC+r}, v{TC+4+r}")
    for r in range(4):
        a(f"v_add_f32 v{TC+r}, v{TC+r}, v{TC+4+r}")
    for r in range(4):
        a(f"v_cvt_pk_bf16_f32 v{TC+r}, v{TC+r}, v{TC+r}")
    for r in range(4):
        a(f"ds_write_b16 v{vA2}, v{TC+r} offset:{L_QV + 16*r}")
    a(f"v_mov_b32 v{vT}, 1")
    a("s_waitcnt lgkmcnt(0)")
    a(f"ds_write_b32 v{vKO}, v{vT} offset:{L_QF}")
    a("s_setprio 0")
    a(f"v_lshrrev_b32 v{vT}, 3, v{vJ}")
    a(f"v_lshlrev_b32 v{vP}, 8, v{vT}")
    a(f"v_lshl_add_u32 v{vP}, v{vG}, 6, v{vP}")
    a(f"v_lshlrev_b32 v{vL}, 4, v{vLANE}")
    a(f"s_cmp_ge_u32 s{sKF}, 88")
    a("s_cbranch_scc1 L_A1_noffn2")
    a(f"v_lshrrev_b32 v{vT}, 5, v{vLANE}")
    a(f"v_mul_u32_u24 v{vA0}, {88*4096}, v{vT}")
    a(f"v_and_b32 v{vT}, 31, v{vLANE}")
    a(f"v_lshl_add_u32 v{vA0}, v{vT}, 4, v{vA0}")
    a(f"s_lshr_b32 s{sT0}, s{sT4}, 1")
    a(f"s_lshl_b32 s{sT0}, s{sT0}, 15")
    a(f"s_and_b32 s{sT1}, s{sT4}, 1")
    a(f"s_lshl_b32 s{sT1}, s{sT1}, 9")
    a(f"s_add_u32 s{sT0}, s{sT0}, s{sT1}")
    a(f"s_sleep {GSL}")
    gather(TC, 8, vA0, sT0, 4096, GP, 32, "gp")
    for t in range(1, 8):
        for r in range(4):
            a(f"v_add_f32 v{TC+r}, v{TC+r}, v{TC+4*t+r}")
    G = [TC + r for r in range(4)]
    Uu = [TC + 4 + r for r in range(4)]
    E = [TC + 8 + r for r in range(4)]
    rne(a, G)
    for r in range(4):
        a(f"v_mov_b32 v{Uu[r]}, v{G[r]}")
    for r in range(4):
        a(f"v_permlane32_swap_b32 v{G[r]}, v{Uu[r]}")
    a(f"s_mov_b32 s{sT0}, 0xbdd2d3e8")
    a(f"v_mov_b32 v{vU}, 0xc0135761")
    for r in range(4):
        a(f"v_mul_f32 v{E[r]}, v{G[r]}, v{G[r]}")
    for r in range(4):
        a(f"v_fma_f32 v{E[r]}, v{E[r]}, s{sT0}, v{vU}")
    for r in range(4):
        a(f"v_mul_f32 v{E[r]}, v{E[r]}, v{G[r]}")
    for r in range(4):
        a(f"v_exp_f32 v{E[r]}, v{E[r]}")
    for r in range(4):
        a(f"v_add_f32 v{E[r]}, 1.0, v{E[r]}")
    for r in range(4):
        a(f"v_rcp_f32 v{E[r]}, v{E[r]}")
    for r in range(4):
        a(f"v_mul_f32 v{G[r]}, v{G[r]}, v{E[r]}")
    rne(a, G)
    for r in range(4):
        a(f"v_mul_f32 v{G[r]}, v{G[r]}, v{Uu[r]}")
    for r in range(4):
        a(f"v_cvt_pk_bf16_f32 v{G[r]}, v{G[r]}, v{G[r]}")
    a(f"v_lshrrev_b32 v{vT}, 3, v{vJ}")
    a(f"v_lshlrev_b32 v{vA0}, 8, v{vT}")
    a(f"v_and_b32 v{vT}, 1, v{vG}")
    a(f"v_lshl_add_u32 v{vA0}, v{vT}, 7, v{vA0}")
    a(f"v_and_b32 v{vT}, 7, v{vJ}")
    a(f"v_lshl_add_u32 v{vA0}, v{vT}, 2, v{vA0}")
    for r in range(4):
        a(f"ds_write_b32 v{vA0}, v{G[r]} offset:{L_VEC1 + 32*r}")
    a("s_waitcnt lgkmcnt(0)")
    tile_gemv(a, TB, vP, L_VEC1)
    a(f"s_lshl_b32 s{sT0}, s{sKF}, 12")
    a(f"s_add_u32 s{sT0}, s{sT0}, {DPB + 168*4096}")
    publish(vACC, vL, sT0, 0)
    a.label("L_A1_noffn2")
    stamp(7, -1)
    if EXP & 512:
        a(f"s_andn2_b32 s{sT0}, s{sLW}, 3")
        a(f"s_lshl_b32 s{sT0}, s{sT0}, 12")
        a(f"s_add_u32 s{sT0}, s{sT0}, {CNT}")
        a(f"v_mov_b32 v{vA0}, 0")
        a("s_mov_b64 exec, 1")
        a(f"s_mov_b32 s{sCNT}, {ANUM}")
        stamp(2, -1)
        a.label("L_exp512")
        a(f"v_mov_b32 v{vT}, 1")
        if EXP & 2048:
            a(f"s_mov_b32 s{sT2}, 1")
            a(f"s_atomic_add s{sT2}, s[{sWS}:{sWS+1}], s{sT0} glc")
            a("s_waitcnt lgkmcnt(0)")
        elif EXP & 1024:
            a(f"buffer_load_dword v{vT}, v{vA0}, {SR(SRD_WS)}, s{sT0} offen sc1")
        else:
            a(f"buffer_atomic_add v{vT}, v{vA0}, {SR(SRD_WS)}, s{sT0} offen sc0 sc1")
        a("s_waitcnt vmcnt(0)")
        a(f"s_sub_u32 s{sCNT}, s{sCNT}, 1")
        a(f"s_cmp_lg_u32 s{sCNT}, 0")
        a("s_cbranch_scc1 L_exp512")
        stamp(3, -1)
        a("s_mov_b64 exec, -1")
    a(f"v_and_b32 v{vT}, 31, v{vLANE}")
    a(f"v_lshlrev_b32 v{vVO}, 4, v{vT}")
    a(f"v_mov_b32 v{vKO}, 0")
    a(f"v_and_b32 v{vU}, 7, v{vLANE}")
    a(f"v_lshlrev_b32 v{vU}, 4, v{vU}")
    a(f"v_add_u32 v{vU}, {ML}, v{vU}")
    a(f"v_cmp_gt_u32 vcc, 32, v{vLANE}")
    a(f"s_mov_b64 s[{sEX}:{sEX+1}], vcc")
    a(f"s_lshl_b32 s{sT1}, s{sB}, 8")
    a(f"s_add_u32 s{sT1}, s{sT1}, {OP}")
    a(f"v_lshlrev_b32 v{vA1}, 4, v{vJ}")
    a(f"v_add_u32 v{vA1}, s{sT1}, v{vA1}")
    a(f"v_cndmask_b32 v{vA1}, v{vU}, v{vA1}, vcc")
    a(f"v_and_b32 v{vT}, 1, v{vG}")
    a(f"v_lshl_add_u32 v{vA1}, v{vT}, 14, v{vA1}")
    a(f"v_lshlrev_b32 v{vA2}, 8, v{vT}")
    a(f"v_bfe_u32 v{vT}, v{vLANE}, 3, 1")
    a(f"v_lshl_add_u32 v{vA2}, v{vT}, 7, v{vA2}")
    a(f"v_and_b32 v{vT}, 7, v{vLANE}")
    a(f"v_lshl_add_u32 v{vA2}, v{vT}, 2, v{vA2}")
    a(f"v_lshrrev_b32 v{vT}, 3, v{vLANE}")
    a(f"v_lshlrev_b32 v{vA0}, 13, v{vT}")
    a(f"v_and_b32 v{vT}, 7, v{vLANE}")
    a(f"v_lshl_add_u32 v{vA0}, v{vT}, 4, v{vA0}")
    a(f"s_lshl_b32 s{sT2}, s{sS}, 16")
    a(f"s_lshl_b32 s{sT3}, s{sH}, 8")
    a(f"s_add_u32 s{sT2}, s{sT2}, s{sT3}")
    a(f"s_lshl_b32 s{sT3}, s{sB}, 7")
    a(f"s_add_u32 s{sT2}, s{sT2}, s{sT3}")
    a(f"s_add_u32 s{sT2}, s{sT2}, {YPB:#x}")
    a(f"s_lshl_b32 s{sT0}, s{sH}, 15")
    if LWO == 3:
        a.label("L_A1_wait")
        a(f"s_sleep {WSL}")
        a(f"ds_read_b32 v{vT}, v{vKO} offset:{L_QF+4}")
        a("s_waitcnt lgkmcnt(0)")
        a(f"v_cmp_eq_u32 vcc, 0, v{vT}")
        a("s_cbranch_vccnz L_A1_wait")
        wo_loads()
    a("s_setprio 3")
    a("s_barrier")
    stamp(4, -1)
    if LWO == 1:
        wo_loads()
    MLr = TC
    a(f"ds_read_b128 {R(MLr)}, v{vKO} offset:{L_PML}")
    a(f"ds_read_b128 {R(MLr+4)}, v{vKO} offset:{L_PML+16}")
    for w in range(4):
        a(f"ds_read_b128 {R(TB+4*w)}, v{vVO} offset:{L_PART + 512*w}")

    def combine(ms, ls, F, outm, outl):
        a(f"v_max_f32 v{outm}, v{ms[0]}, v{ms[1]}")
        a(f"v_max3_f32 v{outm}, v{outm}, v{ms[2]}, v{ms[3]}")
        for w in range(4):
            a(f"v_sub_f32 v{F+w}, v{ms[w]}, v{outm}")
        for w in range(4):
            a(f"v_mul_f32 v{F+w}, s{sL2E}, v{F+w}")
        for w in range(4):
            a(f"v_exp_f32 v{F+w}, v{F+w}")
        a(f"v_mul_f32 v{outl}, v{F}, v{ls[0]}")
        for w in range(1, 4):
            a(f"v_fmac_f32 v{outl}, v{F+w}, v{ls[w]}")

    def combine_o(os_, F):
        for r in range(4):
            a(f"v_mul_f32 v{os_[0]+r}, v{F}, v{os_[0]+r}")
        for w in range(1, 4):
            for r in range(4):
                a(f"v_fmac_f32 v{os_[0]+r}, v{F+w}, v{os_[w]+r}")
    F = TC + 8
    a("s_waitcnt lgkmcnt(4)")
    combine([MLr + 2 * w for w in range(4)], [MLr + 2 * w + 1 for w in range(4)], F, vM, vMN)
    a("s_waitcnt lgkmcnt(0)")
    combine_o([TB + 4 * w for w in range(4)], F)
    for r in range(4):
        src = vM if r % 2 == 0 else vMN
        a(f"v_cndmask_b32 v{TB+r}, v{src}, v{TB+r}, s[{sEX}:{sEX+1}]")
    a("s_mov_b32 exec_hi, 0xff")
    publish(TB, vL, sOFF, OP)
    a("s_mov_b64 exec, -1")
    stamp(5, -1)
    if LWO == 2:
        wo_loads()
    GB = TB + 16
    if PP:
        gatherP(GB, [TC + 16 + 16 * p for p in range(PP)], 4, vA1, sT0, 4096, 0, "op", PGAP)
    else:
        gather(GB, 4, vA1, sT0, 4096, 0, OSL, "op")
    stamp(6, -1)
    for t in range(4):
        a(f"v_mov_b32 v{MLr+2*t}, v{GB+4*t}")
        a(f"v_mov_b32 v{MLr+2*t+1}, v{GB+4*t+1}")
    for t in range(4):
        a(f"v_permlane32_swap_b32 v{GB+4*t}, v{MLr+2*t}")
        a(f"v_permlane32_swap_b32 v{GB+4*t+1}, v{MLr+2*t+1}")
    combine([MLr + 2 * w for w in range(4)], [MLr + 2 * w + 1 for w in range(4)], F, vM, vMN)
    a(f"v_rcp_f32 v{vMN}, v{vMN}")
    combine_o([GB + 4 * w for w in range(4)], F)
    for r in range(4):
        a(f"v_mul_f32 v{GB+r}, v{GB+r}, v{vMN}")
    for r in range(4):
        a(f"v_cvt_pk_bf16_f32 v{GB+r}, v{GB+r}, v{GB+r}")
    a(f"s_mov_b64 exec, s[{sEX}:{sEX+1}]")
    for r in range(4):
        a(f"ds_write_b32 v{vA2}, v{GB+r} offset:{L_VEC1 + 32*r}")
    a("s_mov_b64 exec, -1")
    a("s_waitcnt lgkmcnt(0)")
    tile_gemv(a, TA, vP, L_VEC1)
    publish(vACC, vA0, sT2, 0)
    stamp_flush(7)
    a.label("L_end")
    a("s_endpgm")
    a.label("L_codeend")

    body = a.finish()
    hdr = open("cdna_kernels/" + NAME + ".s.ref").read().split("; @launch")[0]
    nv = 248
    txt = hdr + f"; @launch grid=(256,1,1) block=(384,1,1) lds={L_TOTAL + 4*NL*8192}\n"
    txt += '.amdgcn_target "amdgcn-amd-amdhsa--gfx950"\n.text\n'
    txt += f".globl {NAME}_kernel\n.p2align 8\n.type {NAME}_kernel,@function\n"
    txt += body
    txt += f""".section .rodata,"a"
.p2align 6
.amdhsa_kernel {NAME}_kernel
  .amdhsa_next_free_vgpr {nv}
  .amdhsa_next_free_sgpr 102
  .amdhsa_accum_offset {(nv+3)//4*4}
  .amdhsa_group_segment_fixed_size 0
  .amdhsa_kernarg_size 96
  .amdhsa_user_sgpr_count 2
  .amdhsa_user_sgpr_kernarg_segment_ptr 1
  .amdhsa_system_sgpr_workgroup_id_x 1
  .amdhsa_float_denorm_mode_32 3
.end_amdhsa_kernel
"""
    return txt


if __name__ == "__main__":
    out = sys.argv[1]
    kw = eval("dict(" + (sys.argv[2] if len(sys.argv) > 2 else "") + ")")
    open(out, "w").write(gen(**kw))
```

```python
import sys
sys.path.insert(0, "work")
from asmlib import Asm

NAME = "recurrent_scan__mha_block_cached__geglu_ffn__decode"

QP, GP, YP, OP, ML, CNT = 0, 1024, 2048, 3072, 3584, 3840
DPB = 0x100000
YPB = 0x100000
GEN = 0x140000
WSZ = 0x200000
L_QF = 6464
L_XN, L_QV, L_PART, L_PML, L_VEC1, L_VEC0, L_TOTAL = 0, 4096, 4352, 6400, 6656, 7168, 8192

LOG2E = 0x3FB8AA3B
NLOG2E = 0xBFB8AA3B
SCALE = 0x3DB504F3

sX, sK, sV, sWQ, sWO, sBX, sWG, sWU, sWD, sOUT, sDBG, sWS = 4, 6, 8, 10, 12, 14, 16, 18, 20, 22, 24, 26
sH, sB, sS, sLW, sPID = 28, 29, 30, 31, 32
sL2E = 33
SRD_A, SRD_B, SRD_C, SRD_WS, SRD_D = 36, 40, 44, 48, 52
sT0, sT1, sT2, sT3, sT4, sT5 = 56, 57, 58, 59, 60, 61
sCNT = 62
sOFF = 63
sEX = 64
sIT = 66
sTAG, sGEN = 34, 35
sTMK = 67
sSEL = 96
sPM = 86
TBITS = 8
TMASK = (1 << TBITS) - 1
sST = 70
vLANE, vJ, vG = 1, 2, 3
vMASK = 4
vT, vU, vW, vP, vM, vMN, vL, vKO, vVO, vA0, vA1, vA2 = 8, 9, 10, 11, 12, 13, 14, 15, 16, 17, 18, 19
vS, vACC, vPB0, vPB1, vQB = 20, 24, 28, 32, 36
vWIN = 52
vTAG = 244
vWOA = 246
sWOF = 68
sKF = 69
TA, TB, TC = 52, 116, 180


def srd(a, d, ptr, nbytes):
    a(f"s_mov_b32 s{d}, s{ptr}")
    a(f"s_and_b32 s{d+1}, s{ptr+1}, 0xffff")
    if isinstance(nbytes, int):
        a(f"s_mov_b32 s{d+2}, {nbytes:#x}")
    else:
        a(f"s_mov_b32 s{d+2}, {nbytes}")
    a(f"s_mov_b32 s{d+3}, 0x20000")


def R(b, n=4):
    return f"v[{b}:{b+n-1}]"


def SR(b, n=4):
    return f"s[{b}:{b+n-1}]"


DPPM = "row_mask:0xf bank_mask:0xf"


def allreduce(a, regs, tmps, op="v_add_f32", quad=True):
    steps = []
    if quad:
        steps += ["quad_perm:[1,0,3,2]", "quad_perm:[2,3,0,1]"]
    steps += ["row_ror:4", "row_ror:8"]
    for st in steps:
        for r in regs:
            a(f"{op}_dpp v{r}, v{r}, v{r} {st} {DPPM}")
    for sw in ("v_permlane16_swap_b32", "v_permlane32_swap_b32"):
        for r, t in zip(regs, tmps):
            a(f"v_mov_b32 v{t}, v{r}")
        for r, t in zip(regs, tmps):
            a(f"{sw} v{r}, v{t}")
        for r, t in zip(regs, tmps):
            a(f"{op} v{r}, v{r}, v{t}")


def rne(a, regs):
    for r in regs:
        a(f"v_cvt_pk_bf16_f32 v{r}, v{r}, v{r}")
    for r in regs:
        a(f"v_and_b32 v{r}, 0xffff0000, v{r}")


def tile_gemv(a, tbase, vaddr_lds, lds_off, waits=None):
    for k in range(4):
        a(f"ds_read_b128 {R(vQB+4*k)}, v{vaddr_lds} offset:{lds_off+16*k}")
    a("s_waitcnt lgkmcnt(0)")

    def build(t):
        pb = vPB0 if t % 2 == 0 else vPB1
        for r in range(4):
            a(f"v_and_b32 v{pb+r}, v{vQB+t}, v{vMASK+r}")
    build(0)
    for t in range(16):
        if t + 1 < 16:
            build(t + 1)
        pb = vPB0 if t % 2 == 0 else vPB1
        if waits and t in waits:
            a(f"s_waitcnt vmcnt({waits[t]})")
        c = "0" if t == 0 else R(vACC)
        a(f"v_mfma_f32_16x16x32_bf16 {R(vACC)}, {R(tbase+4*t)}, {R(pb)}, {c}")


def sanitize(a, base, n=4):
    for r in range(n):
        a(f"v_min_u32 v{base+r}, -2, v{base+r}")


def poll(a, issue, regs, sleep=0, name="poll"):
    top = a.newlabel(name)
    done = a.newlabel(name + "d")
    a(f"s_mov_b32 s{sCNT}, 0x40000")
    a.label(top)
    issue()
    a("s_waitcnt vmcnt(0)")
    rs = list(regs)
    a(f"v_max_u32 v{vT}, v{rs[0]}, v{rs[1]}" if len(rs) > 1 else f"v_mov_b32 v{vT}, v{rs[0]}")
    rest = rs[2:]
    while rest:
        if len(rest) >= 2:
            a(f"v_max3_u32 v{vT}, v{vT}, v{rest[0]}, v{rest[1]}")
            rest = rest[2:]
        else:
            a(f"v_max_u32 v{vT}, v{vT}, v{rest[0]}")
            rest = rest[1:]
    a(f"v_cmp_eq_u32 vcc, -1, v{vT}")
    a(f"s_cbranch_vccz {done}")
    a(f"s_sub_u32 s{sCNT}, s{sCNT}, 1")
    a(f"s_cbranch_scc1 {done}")
    if sleep:
        a(f"s_sleep {sleep}")
    a(f"s_branch {top}")
    a.label(done)


def gen(DD=3, STAMP=False, NSTAT=22, INFL=16, NL=4, EXP=0, SG=0, EARLY=0, PSL=64, QSL=0, CPF=3, RCL=0, ANUM=8, POL='nt', WPOL='nt', DBGST=0, GSL=64, PP=2, PGAP=8, ALPHA=0, YSL=0, OSL=0, PY=2, PAT=0, SCL=1, CPOS=0, LWO=3, WSL=24, EH=2, CLS=0, BETA2=0, DIAG=0):
    a = Asm()
    stamps = {"n": 0}

    def stamp(k, grp=0):
        if STAMP and (k < 2 or grp == -1 or grp == SG):
            a(f"s_memrealtime s[{sST+2*k}:{sST+2*k+1}]")

    def stamp_flush(nst):
        if not STAMP:
            return
        a(f"s_memrealtime s[{sST+2}:{sST+3}]")
        a("s_waitcnt lgkmcnt(0)")
        a("s_mov_b64 exec, -1")
        if DBGST:
            srd(a, SRD_D, sDBG, 256)
            a("s_mov_b64 exec, 1")
            a(f"s_min_u32 s{sT0}, s3, 2")
            a(f"s_mul_i32 s{sT0}, s{sT0}, 20")
            a("v_mov_b32 v17, 0")
            a(f"s_not_b32 s{sT1}, s{sST}")
            a(f"v_mov_b32 v20, s{sT1}")
            a(f"buffer_atomic_umax v20, v17, {SR(SRD_D)}, 0 offen sc1")
            for k in range(5):
                a(f"v_mov_b32 v{21+k}, s{sST+2*(k+1)}")
                a(f"buffer_atomic_umax v{21+k}, v17, {SR(SRD_D)}, s{sT0} offen offset:{4+4*k} sc1")
            return
        srd(a, SRD_D, sWS, 0x20000000)
        a(f"s_mul_i32 s{sT0}, s2, 6")
        a(f"s_add_u32 s{sT0}, s{sT0}, s3")
        a(f"s_lshl_b32 s{sT1}, s{sT0}, 6")
        a(f"s_lshl_b32 s{sT0}, s{sT0}, 4")
        a(f"s_add_u32 s{sT0}, s{sT0}, 0x10000000")
        a(f"s_add_u32 s{sT1}, s{sT1}, 0x11000000")
        a(f"s_getreg_b32 s{sT2}, hwreg(HW_REG_XCC_ID)")
        a(f"s_and_b32 s{sT2}, s{sT2}, 15")
        a(f"s_lshl_b32 s{sT2}, s{sT2}, 28")
        a(f"s_or_b32 s{sT2}, s{sST+1}, s{sT2}")
        a(f"v_mov_b32 v20, s{sST}")
        a(f"v_mov_b32 v21, s{sT2}")
        a(f"v_mov_b32 v22, s{sST+2}")
        a(f"v_mov_b32 v23, s{sST+3}")
        a("v_mov_b32 v17, 0")
        for k in range(8):
            a(f"v_mov_b32 v{24+k}, s{sST+2*k}")
        a(f"v_cmp_eq_u32 vcc, 0, v{vLANE}")
        a(f"s_and_saveexec_b64 s[{sEX}:{sEX+1}], vcc")
        a(f"buffer_store_dwordx4 v[20:23], v17, {SR(SRD_D)}, s{sT0} offen")
        a(f"buffer_store_dwordx4 v[24:27], v17, {SR(SRD_D)}, s{sT1} offen")
        a(f"buffer_store_dwordx4 v[28:31], v17, {SR(SRD_D)}, s{sT1} offen offset:16")

    a.label(f"{NAME}_kernel")
    a("s_cmp_ge_u32 s2, 256")
    a("s_cbranch_scc1 L_end")
    if STAMP:
        for k in range(8):
            a(f"s_mov_b64 s[{sST+2*k}:{sST+2*k+1}], 0")
    stamp(0)
    if DIAG:
        a(f"s_memrealtime s[{sST}:{sST+1}]")
    a("s_load_dwordx16 s[4:19], s[0:1], 0")
    a("s_load_dwordx8 s[20:27], s[0:1], 64")
    a("v_lshrrev_b32 v2, 6, v0")
    a(f"v_and_b32 v{vLANE}, 63, v0")
    a("v_readfirstlane_b32 s3, v2")
    a(f"v_and_b32 v{vJ}, 15, v{vLANE}")
    a(f"v_lshrrev_b32 v{vG}, 4, v{vLANE}")
    a(f"s_bfe_u32 s{sH}, s2, 0x50002")
    a(f"s_lshr_b32 s{sB}, s2, 7")
    a(f"s_and_b32 s{sS}, s2, 3")
    a(f"s_lshl_b32 s{sPID}, s{sB}, 2")
    a(f"s_add_u32 s{sPID}, s{sPID}, s{sS}")
    a(f"s_lshl_b32 s{sLW}, s{sH}, 3")
    a(f"s_add_u32 s{sLW}, s{sLW}, s{sPID}")
    a(f"s_mov_b32 s{sL2E}, {LOG2E:#x}")

    def masks():
        a(f"v_and_b32 v{vT}, 1, v{vLANE}")
        a(f"v_lshlrev_b32 v{vT}, 4, v{vT}")
        a(f"v_mov_b32 v{vU}, 0xffff")
        a(f"v_lshlrev_b32 v{vU}, v{vT}, v{vU}")
        a(f"v_bfe_u32 v{vT}, v{vLANE}, 1, 2")
        for r in range(4):
            a(f"v_cmp_eq_u32 vcc, {r}, v{vT}")
            a(f"v_cndmask_b32 v{vMASK+r}, 0, v{vU}, vcc")

    def flagpoll(nd, soff, vaddr, sleep, lane0):
        ftop = a.newlabel("flag")
        fdone = a.newlabel("flagd")
        a(f"s_mov_b32 s{sCNT}, 0x40000")
        a(f"s_mov_b32 s{sIT}, 0x01010101")
        if lane0:
            a("s_mov_b64 exec, 1")
        a.label(ftop)
        if nd == 2:
            a(f"buffer_load_dwordx2 v[{vT}:{vU}], v{vaddr}, {SR(SRD_D)}, {soff} offen sc1")
            a("s_waitcnt vmcnt(0)")
            a(f"v_and_b32 v{vT}, v{vT}, v{vU}")
        else:
            a(f"buffer_load_dword v{vT}, v{vaddr}, {SR(SRD_D)}, {soff} offen sc1")
            a("s_waitcnt vmcnt(0)")
        a(f"v_cmp_ne_u32 vcc, s{sIT}, v{vT}")
        a(f"s_cbranch_vccz {fdone}")
        a(f"s_sub_u32 s{sCNT}, s{sCNT}, 1")
        a(f"s_cbranch_scc1 {fdone}")
        a(f"s_sleep {sleep}")
        a(f"s_branch {ftop}")
        a.label(fdone)
        if lane0:
            a("s_mov_b64 exec, -1")

    a("s_cmp_eq_u32 s3, 0")
    a("s_cbranch_scc1 L_A0")
    a("s_cmp_eq_u32 s3, 1")
    a("s_cbranch_scc1 L_A1")

    if CPF:
        a(f"s_getpc_b64 s[{sT0}:{sT1}]")
        a.label("L_pc")
        a(f"s_sub_u32 s{sT0}, s{sT0}, L_pc-{NAME}_kernel")
        a(f"s_subb_u32 s{sT1}, s{sT1}, 0")
        a(f"v_subrev_u32 v{vT}, 128, v0")
        a(f"v_lshlrev_b32 v{vT}, 4, v{vT}")
        for k in range(CPF):
            a(f"v_min_u32 v{vU}, L_codeend-{NAME}_kernel-16, v{vT}")
            a(f"global_load_dwordx4 {R(200+4*k)}, v{vU}, s[{sT0}:{sT1}]")
            a(f"v_add_u32 v{vT}, 4096, v{vT}")
    a(f"v_and_b32 v{vT}, 3, v{vLANE}")
    a(f"v_lshlrev_b32 v{vKO}, 4, v{vT}")
    a(f"v_bfe_u32 v{vT}, v{vLANE}, 2, 2")
    a(f"v_lshl_add_u32 v{vKO}, v{vT}, 8, v{vKO}")
    a(f"v_lshl_add_u32 v{vKO}, v{vG}, 6, v{vKO}")
    a(f"v_lshlrev_b32 v{vVO}, 4, v{vLANE}")
    a(f"s_lshl_b32 s{sT0}, s{sB}, 5")
    a(f"s_add_u32 s{sT0}, s{sT0}, s{sH}")
    a(f"s_lshl_b32 s{sOFF}, s{sT0}, 21")
    a(f"s_mul_i32 s{sT0}, s{sS}, {4 * NSTAT if PAT == 1 else 4}")
    a(f"s_add_u32 s{sT0}, s{sT0}, s3")
    a(f"s_sub_u32 s{sT0}, s{sT0}, 2")
    a(f"s_lshl_b32 s{sT0}, s{sT0}, 12")
    a(f"s_add_u32 s{sOFF}, s{sOFF}, s{sT0}")
    a("s_waitcnt lgkmcnt(0)")
    srd(a, SRD_A, sK, 0x8000000)
    srd(a, SRD_B, sV, 0x8000000)

    USTEP = 0x4000 if PAT == 1 else 0x10000
    fifo = []
    sSL = [86 + k for k in range(DD)]
    sDYN, sNS, sCA, sCP, sCV = 90, 91, 67, 68, 69
    assert not RCL or (NSTAT % DD == 0 and NL % DD == 0)
    sRET = 92
    sCPs = [94 + k for k in range(DD)]
    assert not (ALPHA and RCL)
    vCL = [vWIN + 32 * (DD + 1) + k for k in range(DD)]
    vCA = vCL[-1] + 1
    NDYN = (512 - 16 * NSTAT) // (4 if CLS else 1)
    BAD = 0x40000000

    def kreg(slot, m):
        return vWIN + 32 * slot + 4 * m

    def vreg(slot, m):
        return vWIN + 32 * slot + 16 + 4 * m

    def issueK(slot, so):
        for m in range(4):
            a(f"buffer_load_dwordx4 {R(kreg(slot, m))}, v{vKO}, {SR(SRD_A)}, s{so} offen offset:{1024*m} {POL}")
            fifo.append(("K", slot))

    def issueV(slot, so):
        for m in range(4):
            a(f"buffer_load_dwordx4 {R(vreg(slot, m))}, v{vVO}, {SR(SRD_B)}, s{so} offen offset:{1024*m} {POL}")
            fifo.append(("V", slot))

    def issueC(slot):
        if SCL:
            return
        if EXP & 4:
            a(f"v_mov_b32 v{vCL[slot]}, -8")
            return
        if RCL and slot:
            return
        a(f"v_mov_b32 v{vCL[slot]}, {DD if RCL else 1}")
        a(f"buffer_atomic_add v{vCL[slot]}, v{vCA}, {SR(SRD_WS)}, s{sCPs[slot]} offen sc0 sc1")
        fifo.append(("C", slot))

    def waitfor(tag):
        last = max(i for i, t in enumerate(fifo) if t == tag)
        n = len(fifo) - 1 - last
        assert n < 64
        a(f"s_waitcnt vmcnt({n})")
        del fifo[:last + 1]

    def sclaim():
        sk = a.newlabel("cl")
        a(f"s_cmp_gt_i32 s{sNS}, 0")
        a(f"s_cbranch_scc1 {sk}")
        a(f"s_cmp_ge_u32 s{sCP}, {NDYN}")
        a(f"s_cbranch_scc1 {sk}")
        a(f"s_mov_b32 s{sCV}, 1")
        a(f"s_atomic_add s{sCV}, s[{sWS}:{sWS+1}], s{sCA} glc")
        a.label(sk)

    def process(slot, fromlds=False):
        if fromlds:
            for m in range(8):
                a(f"ds_read_b128 {R(kreg(slot, m))}, v{vA2} offset:{1024*m}")
            a(f"v_add_u32 v{vA2}, 0x2000, v{vA2}")
            a("s_waitcnt lgkmcnt(4)")
        else:
            a(f"s_cmp_ge_u32 s{sSL[slot]}, {BAD:#x}")
            a("s_cbranch_scc1 L_sdone")
            if SCL and CPOS == 0:
                sclaim()
            waitfor(("K", slot))
        for m in range(4):
            c = "0" if m == 0 else R(vS)
            if not EXP & 2:
                a(f"v_mfma_f32_16x16x32_bf16 {R(vS)}, {R(kreg(slot, m))}, {R(vQB+4*m)}, {c}")
        if not fromlds:
            so = sSL[slot]
            if SCL:
                a("s_waitcnt lgkmcnt(0)")
                a(f"s_add_u32 s{sCP}, s{sCV}, 1")
                a(f"s_lshl_b32 s{sT1}, s{sCP}, {14 if CLS else 12}")
                a(f"s_add_u32 s{sT1}, s{sT1}, s{sDYN}")
                a(f"s_cmp_lt_u32 s{sCP}, {NDYN}")
                a(f"s_cselect_b32 s{sT1}, s{sT1}, {BAD:#x}")
                a(f"s_sub_i32 s{sNS}, s{sNS}, 1")
                a(f"s_cmp_ge_i32 s{sNS}, 0")
                a(f"s_cselect_b32 s{so}, s{sOFF}, s{sT1}")
                a(f"s_add_u32 s{sOFF}, s{sOFF}, {USTEP:#x}")
                issueK(slot, so)
                if BETA2:
                    sk = a.newlabel("nb")
                    a(f"s_cmp_ge_i32 s{sNS}, 0")
                    a(f"s_cbranch_scc1 {sk}")
                    a(f"s_sub_i32 s{sT2}, s{sCP}, s{sCPs[slot]}")
                    a(f"s_mov_b32 s{sCPs[slot]}, s{sCP}")
                    a(f"s_cmp_le_i32 s{sT2}, {16*DD}")
                    a(f"s_cbranch_scc1 {sk}")
                    a(f"s_mul_i32 s{sT2}, s{sT2}, {1 + BETA2}")
                    a(f"s_lshl_b32 s{sT3}, s{sCP}, 1")
                    a(f"s_add_i32 s{sT2}, s{sT2}, s{sT3}")
                    a(f"s_cmp_le_i32 s{sT2}, {2*NDYN + 16*DD*BETA2}")
                    a(f"s_cbranch_scc1 {sk}")
                    a(f"s_mov_b32 s{sCP}, {NDYN}")
                    a(f"s_mov_b32 s{sCV}, {NDYN}")
                    a.label(sk)
                if LWO == 3:
                    sk = a.newlabel("ex")
                    a(f"s_cmp_lt_u32 s{so}, {BAD:#x}")
                    a(f"s_cbranch_scc1 {sk}")
                    a(f"ds_write_b32 v{vA0}, v{vA1} offset:{L_QF+4}")
                    if STAMP and SG == 5:
                        a(f"s_cmp_lg_u32 s{sST+14}, 0")
                        a(f"s_cbranch_scc1 {sk}")
                        a(f"s_memrealtime s[{sST+14}:{sST+15}]")
                        a("s_waitcnt lgkmcnt(0)")
                    a.label(sk)
                if CPOS == 2:
                    sclaim()
        if not fromlds and not SCL:
            so = sSL[slot]
            if not RCL or slot == 0:
                a(f"v_readfirstlane_b32 s{sCV}, v{vCL[slot]}")
            a(f"s_add_u32 s{sCV}, s{sCV}, 1")
            a(f"s_lshl_b32 s{sT1}, s{sCV}, 12")
            a(f"s_add_u32 s{sT1}, s{sT1}, s{sDYN}")
            a(f"s_cmp_lt_u32 s{sCV}, {NDYN}")
            a(f"s_cselect_b32 s{sT1}, s{sT1}, {BAD:#x}")
            if ALPHA:
                a(f"s_max_u32 s{sT1}, s{sT1}, s{sCPs[slot]}")
            a(f"s_sub_i32 s{sNS}, s{sNS}, 1")
            a(f"s_cmp_ge_i32 s{sNS}, 0")
            a(f"s_cselect_b32 s{so}, s{sOFF}, s{sT1}")
            a(f"s_add_u32 s{sOFF}, s{sOFF}, {USTEP:#x}")
            if ALPHA:
                a(f"s_mul_i32 s{sT2}, s{sCV}, {16 + ALPHA}")
                a(f"s_mul_i32 s{sT3}, s{sNS}, {16 * ALPHA}")
                a(f"s_add_i32 s{sT2}, s{sT2}, s{sT3}")
                a(f"s_cmp_lt_i32 s{sNS}, 0")
                a(f"s_cselect_b32 s{sT2}, s{sT2}, 0")
                a(f"s_cmp_gt_i32 s{sT2}, {16*(NDYN-1) - ALPHA + 16*ALPHA*(DD-1)}")
                a(f"s_cselect_b32 s{sCA}, {BAD:#x}, s{sCA}")
            a(f"s_cmp_lt_i32 s{sNS}, {DD}")
            a(f"s_cselect_b32 s{sCPs[slot]}, s{sCA}, {BAD:#x}")
            issueC(slot)
            issueK(slot, so)
        if not EXP & 2:
            a(f"v_mov_b32_dpp v{vT}, v{vS} quad_perm:[0,0,0,0] {DPPM}")
            for e in range(1, 4):
                a(f"v_add_f32_dpp v{vT}, v{vS+e}, v{vT} quad_perm:[{e},{e},{e},{e}] {DPPM}")
            rne(a, [vT])
            a(f"v_mul_f32 v{vT}, {SCALE:#x}, v{vT}")
            rne(a, [vT])
            a(f"v_cmp_gt_f32 vcc, v{vT}, v{vM}")
            back = a.newlabel("back")
            a(f"s_cbranch_vccz {back}")
            a(f"s_call_b64 s[{sRET}:{sRET+1}], L_slow")
            a.label(back)
            a(f"v_fma_f32 v{vT}, v{vT}, s{sL2E}, v{vMN}")
            a(f"v_exp_f32 v{vT}, v{vT}")
            a(f"v_add_f32 v{vL}, v{vL}, v{vT}")
            a(f"v_cvt_pk_bf16_f32 v{vP}, v{vT}, v{vT}")
        if fromlds:
            a("s_waitcnt lgkmcnt(0)")
        else:
            if SCL and CPOS == 1:
                sclaim()
            waitfor(("V", slot))

        def build(m):
            pb = vPB0 if m % 2 == 0 else vPB1
            for r in range(4):
                a(f"v_and_b32_dpp v{pb+r}, v{vP}, v{vMASK+r} row_newbcast:{4*m} {DPPM}")
        if not EXP & 2:
            build(0)
            for m in range(4):
                if m + 1 < 4:
                    build(m + 1)
                pb = vPB0 if m % 2 == 0 else vPB1
                a(f"v_mfma_f32_16x16x32_bf16 {R(vACC)}, {R(vreg(slot, m))}, {R(pb)}, {R(vACC)}")
        if not fromlds:
            issueV(slot, so)

    srd(a, SRD_WS, sWS, WSZ)
    a(f"s_sub_u32 s{sT5}, s3, 2")
    a(f"s_mul_i32 s{sT5}, s{sT5}, {NL*8192}")
    a(f"s_add_u32 s{sT5}, s{sT5}, {L_TOTAL}")
    a(f"v_add_u32 v{vA2}, s{sT5}, v{vVO}")
    a(f"v_mov_b32 v{vCA}, {BAD:#x}")
    a(f"v_cmp_eq_u32 vcc, 0, v{vLANE}")
    a(f"v_cndmask_b32 v{vCA}, v{vCA}, 0, vcc")
    for k in range(DD):
        a(f"s_mov_b32 s{sCPs[k]}, {BAD:#x}")
    if EXP & 8:
        a(f"v_mov_b32 v{vW}, 0")
        a(f"v_mov_b32 v{vT}, 1")
        a(f"ds_write_b32 v{vW}, v{vT} offset:{L_QF}")
        a("s_waitcnt lgkmcnt(0)")
    a("s_barrier")
    nfl = 0
    for k in range(DD):
        a(f"s_mov_b32 s{sSL[k]}, s{sOFF}")
        a(f"s_add_u32 s{sOFF}, s{sOFF}, {USTEP:#x}")
        for fn in (issueK, issueV):
            if nfl >= INFL:
                a(f"s_waitcnt vmcnt({INFL-4})")
                nfl -= 4
            if fn is issueK:
                issueC(k)
            fn(k, sSL[k])
            nfl += 4
            if EARLY == 3 and (2 * k + (fn is issueV)) == EH - 1:
                a("s_barrier")
    masks()
    a(f"s_andn2_b32 s{sCA}, s{sLW}, 3")
    a(f"s_lshl_b32 s{sCA}, s{sCA}, 12")
    a(f"s_add_u32 s{sCA}, s{sCA}, {CNT}")
    if not NDYN and not SCL:
        a(f"s_mov_b32 s{sCA}, {BAD:#x}")
    a(f"s_mov_b32 s{sCV}, 0")
    a(f"s_mov_b32 s{sCP}, 0")
    a(f"s_lshl_b32 s{sT0}, s{sB}, 5")
    a(f"s_add_u32 s{sT0}, s{sT0}, s{sH}")
    a(f"s_lshl_b32 s{sDYN}, s{sT0}, 21")
    a(f"s_add_u32 s{sDYN}, s{sDYN}, {16*NSTAT*4096}")
    if CLS:
        a(f"s_sub_u32 s{sT0}, s3, 2")
        a(f"s_lshl_b32 s{sT1}, s{sT0}, 12")
        a(f"s_add_u32 s{sDYN}, s{sDYN}, s{sT1}")
        a(f"s_lshl_b32 s{sT1}, s{sT0}, 6")
        a(f"s_add_u32 s{sCA}, s{sCA}, s{sT1}")
    a(f"s_mov_b32 s{sNS}, {NSTAT - DD}")
    for r in range(4):
        a(f"v_mov_b32 v{vACC+r}, 0")
    a(f"v_mov_b32 v{vL}, 0")
    a(f"v_mov_b32 v{vM}, 0xff800000")
    a(f"v_mov_b32 v{vMN}, 0")
    a(f"v_and_b32 v{vT}, 3, v{vJ}")
    a(f"v_lshl_add_u32 v{vT}, v{vG}, 2, v{vT}")
    a(f"v_lshlrev_b32 v{vA0}, 4, v{vT}")
    a(f"v_lshrrev_b32 v{vA1}, 2, v{vJ}")
    a(f"s_mov_b32 s{sIT}, 0")
    a(f"v_mov_b32 v{vW}, 0")
    a.label("L_lpro")
    a(f"ds_read_b32 v{vT}, v{vW} offset:{L_QF}")
    a("s_waitcnt lgkmcnt(0)")
    a(f"v_cmp_ne_u32 vcc, 0, v{vT}")
    a("s_cbranch_vccnz L_qready")
    a(f"s_cmp_lt_u32 s{sIT}, {NL}")
    a("s_cbranch_scc1 L_lgo")
    a("s_sleep 1")
    a("s_branch L_lpro")
    a.label("L_lgo")
    for rep in range(DD if RCL else 1):
        for which in "KV":
            a(f"s_mov_b32 m0, s{sT5}")
            a(f"s_waitcnt vmcnt({INFL-4})")
            for m in range(4):
                if which == "K":
                    a(f"buffer_load_dwordx4 v{vKO}, {SR(SRD_A)}, s{sOFF} offen offset:{1024*m} {POL} lds")
                else:
                    a(f"buffer_load_dwordx4 v{vVO}, {SR(SRD_B)}, s{sOFF} offen offset:{1024*m} {POL} lds")
            a(f"s_add_u32 s{sT5}, s{sT5}, 4096")
        a(f"s_add_u32 s{sOFF}, s{sOFF}, {USTEP:#x}")
        a(f"s_add_u32 s{sIT}, s{sIT}, 1")
        a(f"s_sub_u32 s{sNS}, s{sNS}, 1")
    a("s_branch L_lpro")
    a.label("L_qready")
    stamp(2, -1)
    a(f"ds_read_b128 {R(vS)}, v{vA0} offset:{L_QV}")
    a("s_waitcnt lgkmcnt(0)")
    for m in range(4):
        a(f"v_cmp_eq_u32 vcc, {m}, v{vA1}")
        for r in range(4):
            a(f"v_cndmask_b32 v{vQB+4*m+r}, 0, v{vS+r}, vcc")
    a(f"v_mov_b32 v{vA0}, 0")
    a(f"v_mov_b32 v{vA1}, 1")
    state0 = list(fifo)
    a.label("L_loop")
    for k in range(DD):
        process(k)
    assert fifo == state0, (fifo, state0)
    if STAMP:
        for k, done in (((5, 11), (6, 17), (7, 23)) if SG != 5 else ((5, 11), (6, NSTAT - DD))):
            lb = a.newlabel("ps")
            a(f"s_cmp_gt_i32 s{sNS}, {NSTAT - DD - done}")
            a(f"s_cbranch_scc1 {lb}")
            a(f"s_cmp_lg_u32 s{sST+2*k}, 0")
            a(f"s_cbranch_scc1 {lb}")
            stamp(k, -1)
            a("s_waitcnt lgkmcnt(0)")
            a.label(lb)
    if NL:
        a(f"s_cmp_eq_u32 s{sIT}, 0")
        a("s_cbranch_scc1 L_loop")
        a(f"s_waitcnt vmcnt({len(fifo)})")
        a.label("L_lloop")
        process(DD, fromlds=True)
        a(f"s_sub_u32 s{sIT}, s{sIT}, 1")
        a(f"s_cmp_lg_u32 s{sIT}, 0")
        a("s_cbranch_scc1 L_lloop")
        stamp(4, -1)
    a("s_branch L_loop")
    a.label("L_slow")
    a(f"v_max_f32_dpp v{vU}, v{vT}, v{vT} row_ror:4 {DPPM}")
    a(f"v_max_f32_dpp v{vU}, v{vU}, v{vU} row_ror:8 {DPPM}")
    a(f"v_mov_b32 v{vW}, v{vU}")
    a(f"v_permlane16_swap_b32 v{vU}, v{vW}")
    a(f"v_max_f32 v{vU}, v{vU}, v{vW}")
    a(f"v_mov_b32 v{vW}, v{vU}")
    a(f"v_permlane32_swap_b32 v{vU}, v{vW}")
    a(f"v_max3_f32 v{vU}, v{vU}, v{vW}, v{vM}")
    a(f"v_sub_f32 v{vW}, v{vM}, v{vU}")
    a(f"v_mul_f32 v{vW}, s{sL2E}, v{vW}")
    a(f"v_exp_f32 v{vW}, v{vW}")
    a(f"v_mov_b32 v{vM}, v{vU}")
    a(f"v_mul_f32 v{vMN}, {NLOG2E:#x}, v{vU}")
    for r in range(4):
        a(f"v_mul_f32 v{vACC+r}, v{vACC+r}, v{vW}")
    a(f"v_mul_f32 v{vL}, v{vL}, v{vW}")
    a(f"s_setpc_b64 s[{sRET}:{sRET+1}]")
    a.label("L_sdone")
    if STAMP and SG == 5:
        a(f"s_sub_u32 s{sT0}, {NSTAT - DD}, s{sNS}")
        a(f"s_mul_i32 s{sT0}, s{sT0}, 100")
        a(f"s_add_u32 s{sST+8}, s{sST}, s{sT0}")
    stamp(3, -1)
    allreduce(a, [vL], [vW], quad=False)
    a(f"v_lshlrev_b32 v{vA0}, 3, v{vG}")
    a(f"v_add_u32 v{vA0}, v{vA0}, v{vJ}")
    a(f"v_lshlrev_b32 v{vA0}, 4, v{vA0}")
    a(f"s_sub_u32 s{sT0}, s3, 2")
    a(f"s_lshl_b32 s{sT1}, s{sT0}, 9")
    a(f"v_add_u32 v{vA0}, s{sT1}, v{vA0}")
    a(f"s_lshl_b32 s{sT1}, s{sT0}, 3")
    a(f"v_mov_b32 v{vA1}, s{sT1}")
    a(f"v_mov_b32 v{vMN}, v{vL}")
    a(f"v_cmp_gt_u32 vcc, 8, v{vJ}")
    a(f"s_and_saveexec_b64 s[{sEX}:{sEX+1}], vcc")
    a(f"ds_write_b128 v{vA0}, {R(vACC)} offset:{L_PART}")
    a(f"ds_write_b64 v{vA1}, v[{vM}:{vMN}] offset:{L_PML}")
    a("s_waitcnt lgkmcnt(0)")
    a("s_barrier")
    stamp_flush(4)
    a("s_endpgm")

    def load_tag():
        a(f"s_mov_b32 s{sT2}, {GEN:#x}")
        a(f"s_load_dword s{sTAG}, s[{sWS}:{sWS+1}], s{sT2}")

    def make_tag():
        a(f"s_add_u32 s{sGEN}, s{sTAG}, 1")
        a(f"s_mov_b32 s{sTMK}, 0xff")
        a(f"v_and_b32 v{vTAG}, s{sGEN}, v{vTAG}")
        a(f"v_and_b32 v{vTAG+1}, s{sGEN}, v{vTAG+1}")

    def pre_tag():
        a(f"v_mov_b32 v{vTAG}, 0xff")
        a(f"v_mov_b32 v{vTAG+1}, 7")

    def publish(src, voff, soff, off, fine=False):
        mk, tg = ("7", vTAG + 1) if fine else (f"s{sTMK}", vTAG)
        for r in range(4):
            a(f"v_bfi_b32 v{src+r}, {mk}, v{tg}, v{src+r}")
        a(f"buffer_store_dwordx4 {R(src)}, v{voff}, {SR(SRD_WS)}, s{soff} offen offset:{off} sc1")

    def gather(dst, n, voff, soff, step, off, sleep, name, lanes="-1", fine=False, lastmask=None):
        mk, tg = ("7", vTAG + 1) if fine else (f"s{sTMK}", vTAG)
        top = a.newlabel(name)
        done = a.newlabel(name + "d")
        a(f"s_mov_b32 s{sCNT}, 0x40000")
        a(f"s_mov_b32 s{sPM}, {(1 << n) - 1}")
        if lanes != "-1":
            a(f"s_mov_b64 exec, {lanes}")
        a.label(top)
        if n > 1:
            a(f"s_mov_b32 s{sT1}, s{soff}")
        for t in range(n):
            sk = a.newlabel(name + "s")
            if n > 1:
                a(f"s_bitcmp1_b32 s{sPM}, {t}")
                a(f"s_cbranch_scc0 {sk}")
            if lastmask and t == n - 1:
                a(f"s_mov_b32 exec_hi, {lastmask:#x}")
            a(f"buffer_load_dwordx4 {R(dst+4*t)}, v{voff}, {SR(SRD_WS)}, s{sT1 if n > 1 else soff} offen offset:{off} sc1")
            if lastmask and t == n - 1:
                a("s_mov_b32 exec_hi, -1")
            a.label(sk)
            if t < n - 1:
                a(f"s_add_u32 s{sT1}, s{sT1}, {step}")
        a("s_waitcnt vmcnt(0)")
        for t in range(n):
            d = dst + 4 * t
            sk = a.newlabel(name + "c")
            if n > 1:
                a(f"s_bitcmp1_b32 s{sPM}, {t}")
                a(f"s_cbranch_scc0 {sk}")
            if lastmask and t == n - 1:
                a(f"s_mov_b32 exec_hi, {lastmask:#x}")
            for r in range(4):
                a(f"v_xor_b32 v{d+r}, v{d+r}, v{tg}")
            a(f"v_or3_b32 v{vT}, v{d}, v{d+1}, v{d+2}")
            a(f"v_or_b32 v{vT}, v{vT}, v{d+3}")
            a(f"v_and_b32 v{vT}, {mk}, v{vT}")
            a(f"v_cmp_ne_u32 vcc, 0, v{vT}")
            if lastmask and t == n - 1:
                a("s_mov_b32 exec_hi, -1")
            if n > 1:
                a(f"s_cbranch_vccnz {sk}")
                a(f"s_bitset0_b32 s{sPM}, {t}")
                a.label(sk)
        if n > 1:
            a(f"s_cmp_eq_u32 s{sPM}, 0")
            a(f"s_cbranch_scc1 {done}")
        else:
            a(f"s_cbranch_vccz {done}")
        a(f"s_sub_u32 s{sCNT}, s{sCNT}, 1")
        a(f"s_cbranch_scc1 {done}")
        if sleep:
            a(f"s_sleep {sleep}")
        a(f"s_branch {top}")
        a.label(done)
        if lanes != "-1":
            a("s_mov_b64 exec, -1")

    def gatherP(fin, bufs, n, voff, soff, step, off, name, gap):
        P = len(bufs)
        top = a.newlabel(name)
        done = a.newlabel(name + "d")
        a(f"s_mov_b32 s{sCNT}, 0x40000")
        a(f"s_mov_b32 s{sPM}, {(1 << n) - 1}")
        for t in range(n):
            a(f"s_add_u32 s{sPM+1+t}, s{soff}, {t*step}")

        def issue(bf):
            for t in range(n):
                a(f"buffer_load_dwordx4 {R(bf+4*t)}, v{voff}, {SR(SRD_WS)}, s{sPM+1+t} offen offset:{off} sc1")
        for p in range(P - 1):
            issue(bufs[p])
            a(f"s_sleep {gap}")
        a.label(top)
        for p in range(P):
            issue(bufs[(p + P - 1) % P])
            a(f"s_waitcnt vmcnt({n*(P-1)})")
            bf = bufs[p]
            for t in range(n):
                d = bf + 4 * t
                sk = a.newlabel(name + "c")
                if n > 1:
                    a(f"s_bitcmp1_b32 s{sPM}, {t}")
                    a(f"s_cbranch_scc0 {sk}")
                for r in range(4):
                    a(f"v_xor_b32 v{fin+4*t+r}, v{d+r}, v{vTAG}")
                a(f"v_or3_b32 v{vT}, v{fin+4*t}, v{fin+4*t+1}, v{fin+4*t+2}")
                a(f"v_or_b32 v{vT}, v{vT}, v{fin+4*t+3}")
                a(f"v_and_b32 v{vT}, s{sTMK}, v{vT}")
                a(f"v_cmp_ne_u32 vcc, 0, v{vT}")
                if n > 1:
                    a(f"s_cbranch_vccnz {sk}")
                    a(f"s_bitset0_b32 s{sPM}, {t}")
                    a(f"s_mov_b32 s{sPM+1+t}, 0x40000000")
                    a.label(sk)
                else:
                    a(f"s_cbranch_vccz {done}")
            if n > 1:
                a(f"s_cmp_eq_u32 s{sPM}, 0")
                a(f"s_cbranch_scc1 {done}")
        a(f"s_sub_u32 s{sCNT}, s{sCNT}, 1")
        a(f"s_cbranch_scc0 {top}")
        a.label(done)

    a.label("L_A0")
    if EXP & 8:
        a("s_endpgm")
    a("s_setprio 3")
    pre_tag()
    a(f"v_lshlrev_b32 v{vVO}, 4, v{vLANE}")
    for r in range(4):
        a(f"v_mov_b32 v{vS+r}, -1")
    a(f"s_lshl_b32 s{sOFF}, s{sLW}, 12")
    a(f"v_lshlrev_b32 v{vA0}, 17, v{vG}")
    a(f"v_lshl_add_u32 v{vA0}, v{vJ}, 4, v{vA0}")
    a(f"s_lshl_b32 s{sT0}, s{sPID}, 19")
    a(f"s_lshl_b32 s{sT1}, s{sH}, 8")
    a(f"s_add_u32 s{sT0}, s{sT0}, s{sT1}")
    a("s_waitcnt lgkmcnt(0)")
    srd(a, SRD_A, sX, 2048)
    a(f"buffer_load_dwordx4 {R(vPB0)}, v{vVO}, {SR(SRD_A)}, 0 offen")
    a(f"buffer_load_dwordx4 {R(vPB1)}, v{vVO}, {SR(SRD_A)}, 0 offen offset:1024")
    srd(a, SRD_WS, sWS, WSZ)
    load_tag()
    a("s_mov_b64 exec, 0xffff")
    a(f"buffer_store_dwordx4 {R(vS)}, v{vVO}, {SR(SRD_WS)}, s{sOFF} offen offset:{CNT} sc1")
    a("s_mov_b64 exec, -1")
    srd(a, SRD_B, sWQ, 0x400000)
    for t in range(16):
        a(f"buffer_load_dwordx4 {R(TA+4*t)}, v{vA0}, {SR(SRD_B)}, s{sT0} offen {WPOL}")
        if t < 15:
            a(f"s_add_u32 s{sT0}, s{sT0}, 8192")
    if EARLY >= 2:
        a("s_barrier")
    masks()
    a("s_waitcnt vmcnt(17)")
    stamp(2)
    X = [TC + i for i in range(16)]
    for bb, src in ((0, vPB0), (1, vPB1)):
        for k in range(4):
            a(f"v_lshlrev_b32 v{X[bb*8+2*k]}, 16, v{src+k}")
            a(f"v_and_b32 v{X[bb*8+2*k+1]}, 0xffff0000, v{src+k}")
    S0, S1, Tm0, Tm1 = TC + 16, TC + 17, TC + 18, TC + 19
    Dv = [TC + 20 + i for i in range(16)]
    for bb, s in ((0, S0), (1, S1)):
        a(f"v_add_f32 v{s}, v{X[bb*8]}, v{X[bb*8+1]}")
    for k in range(2, 8):
        for bb, s in ((0, S0), (1, S1)):
            a(f"v_add_f32 v{s}, v{s}, v{X[bb*8+k]}")
    allreduce(a, [S0, S1], [Tm0, Tm1])
    a(f"v_mul_f32 v{S0}, 0x3b000000, v{S0}")
    a(f"v_mul_f32 v{S1}, 0x3b000000, v{S1}")
    V0, V1 = TC + 36, TC + 37
    for bb, s in ((0, S0), (1, S1)):
        for k in range(8):
            a(f"v_sub_f32 v{Dv[bb*8+k]}, v{X[bb*8+k]}, v{s}")
    for bb, v in ((0, V0), (1, V1)):
        a(f"v_mul_f32 v{v}, v{Dv[bb*8]}, v{Dv[bb*8]}")
    for k in range(1, 8):
        for bb, v in ((0, V0), (1, V1)):
            a(f"v_fmac_f32 v{v}, v{Dv[bb*8+k]}, v{Dv[bb*8+k]}")
    allreduce(a, [V0, V1], [Tm0, Tm1])
    a(f"v_mul_f32 v{V0}, 0x3b000000, v{V0}")
    a(f"v_mul_f32 v{V1}, 0x3b000000, v{V1}")
    rne(a, [S0, S1, V0, V1])
    a(f"v_add_f32 v{V0}, 0x3727c5ac, v{V0}")
    a(f"v_add_f32 v{V1}, 0x3727c5ac, v{V1}")
    rne(a, [V0, V1])
    a(f"v_sqrt_f32 v{V0}, v{V0}")
    a(f"v_sqrt_f32 v{V1}, v{V1}")
    rne(a, [V0, V1])
    a(f"v_rcp_f32 v{V0}, v{V0}")
    a(f"v_rcp_f32 v{V1}, v{V1}")
    for bb, s in ((0, S0), (1, S1)):
        for k in range(8):
            a(f"v_sub_f32 v{Dv[bb*8+k]}, v{X[bb*8+k]}, v{s}")
    rne(a, Dv)
    for bb, v in ((0, V0), (1, V1)):
        for k in range(8):
            a(f"v_mul_f32 v{Dv[bb*8+k]}, v{Dv[bb*8+k]}, v{v}")
    for d in Dv:
        a(f"v_cvt_pk_bf16_f32 v{d}, v{d}, v{d}")
    a(f"v_lshlrev_b32 v{vA1}, 5, v{vLANE}")
    for bb in range(2):
        for k in range(2):
            a(f"ds_write_b128 v{vA1}, {R(Dv[bb*8+4*k])} offset:{L_XN + bb*2048 + 16*k}")
    a(f"s_cmp_ge_u32 s{sLW}, 88")
    a(f"s_cselect_b32 s{sT0}, 88, 0")
    a(f"s_cselect_b32 s{SRD_C}, s{sWU}, s{sWG}")
    a(f"s_cselect_b32 s{SRD_C+1}, s{sWU+1}, s{sWG+1}")
    a(f"s_and_b32 s{SRD_C+1}, s{SRD_C+1}, 0xffff")
    a(f"s_sub_u32 s{sT0}, s{sLW}, s{sT0}")
    a(f"s_cmp_lt_u32 s{sLW}, 176")
    a(f"s_cselect_b32 s{SRD_C+2}, {512*2752}, 0")
    a(f"s_mov_b32 s{SRD_C+3}, 0x20000")
    a(f"s_lshr_b32 s{sT1}, s{sT0}, 3")
    a(f"s_and_b32 s{sT5}, s{sT0}, 7")
    a(f"s_mul_i32 s{sT3}, s{sT5}, {64*2752}")
    a(f"s_lshl_b32 s{sT4}, s{sT1}, 8")
    a(f"s_add_u32 s{sT3}, s{sT3}, s{sT4}")
    a(f"v_mul_u32_u24 v{vA0}, {16*2752}, v{vG}")
    a(f"v_lshl_add_u32 v{vA0}, v{vJ}, 4, v{vA0}")
    a(f"s_lshl_b32 s{sT4}, s{sT1}, 4")
    a(f"v_add_u32 v{vT}, s{sT4}, v{vJ}")
    a(f"v_cmp_gt_u32 vcc, 172, v{vT}")
    a(f"v_mov_b32 v{vU}, 0x40000000")
    a(f"v_cndmask_b32 v{vA0}, v{vU}, v{vA0}, vcc")
    for t in range(16):
        a(f"buffer_load_dwordx4 {R(TB+4*t)}, v{vA0}, {SR(SRD_C)}, s{sT3} offen {WPOL}")
        if t < 15:
            a(f"s_add_u32 s{sT3}, s{sT3}, 2752")
    a(f"v_lshrrev_b32 v{vT}, 3, v{vJ}")
    a(f"v_lshlrev_b32 v{vKO}, 11, v{vT}")
    a(f"v_lshl_add_u32 v{vKO}, v{vG}, 6, v{vKO}")
    a(f"s_lshl_b32 s{sT0}, s{sPID}, 8")
    a(f"v_add_u32 v{vA1}, s{sT0}, v{vKO}")
    a("s_waitcnt lgkmcnt(0)")
    make_tag()
    if EARLY == 1:
        a("s_barrier")
    tile_gemv(a, TA, vA1, L_XN, waits={0: 28, 4: 24, 8: 20, 12: 16})
    publish(vACC, vVO, sOFF, QP, fine=True)
    if EARLY in (0, 3):
        a("s_barrier")
    stamp(3)
    if DIAG == 3:
        a(f"s_memrealtime s[{sST+4}:{sST+5}]")
    a(f"s_cmp_ge_u32 s{sLW}, 176")
    a("s_cbranch_scc1 L_A0_noffn1")
    a(f"s_lshl_b32 s{sT0}, s{sT5}, 8")
    a(f"v_add_u32 v{vA1}, s{sT0}, v{vKO}")
    tile_gemv(a, TB, vA1, L_XN, waits={0: 1})
    publish(vACC, vVO, sOFF, GP)
    a.label("L_A0_noffn1")
    stamp(4)
    a("s_setprio 0")
    a(f"s_cmp_ge_u32 s{sLW}, 32")
    a("s_cbranch_scc1 L_A0_nogen")
    a(f"s_lshr_b32 s{sT4}, s{sLW}, 3")
    a(f"s_and_b32 s{sT5}, s{sLW}, 7")
    a(f"s_and_b32 s{sT0}, s{sT5}, 1")
    a(f"s_lshl_b32 s{sT0}, s{sT0}, 9")
    a(f"s_lshl_b32 s{sT1}, s{sT4}, 7")
    a(f"s_add_u32 s{sT0}, s{sT0}, s{sT1}")
    a(f"s_lshr_b32 s{sT1}, s{sT5}, 1")
    a(f"s_lshl_b32 s{sT1}, s{sT1}, 5")
    a(f"s_add_u32 s{sT0}, s{sT0}, s{sT1}")
    a(f"v_and_b32 v{vT}, 31, v{vLANE}")
    a(f"v_add_u32 v{vT}, s{sT0}, v{vT}")
    a(f"v_lshlrev_b32 v{vA2}, 1, v{vT}")
    a(f"buffer_load_ushort v{vP}, v{vA2}, {SR(SRD_A)}, 0 offen")
    a(f"v_lshrrev_b32 v{vT}, 3, v{vLANE}")
    a(f"v_lshlrev_b32 v{vA0}, 14, v{vT}")
    a(f"v_and_b32 v{vA1}, 3, v{vT}")
    a(f"v_and_b32 v{vT}, 7, v{vLANE}")
    a(f"v_lshl_add_u32 v{vA0}, v{vT}, 4, v{vA0}")
    a(f"s_lshl_b32 s{sT4}, s{sT4}, 12")
    a(f"s_lshl_b32 s{sT5}, s{sT5}, 7")
    a(f"s_add_u32 s{sT4}, s{sT4}, s{sT5}")
    a(f"s_add_u32 s{sT5}, s{sT4}, {DPB + 168*4096}")
    for r in range(4):
        a(f"v_mov_b32 v{TA+8+r}, 0")
    for _ in range(3):
        a(f"s_sleep {PSL}")
    gather(TA, 3, vA0, sT5, 8 * 16384, 0, PSL, "dp", lastmask=0xffff)
    stamp(5)
    if DIAG == 4:
        a(f"s_memrealtime s[{sST+4}:{sST+5}]")

    def reduce_select(dst, n):
        for t in range(1, n):
            for r in range(4):
                a(f"v_add_f32 v{TA+r}, v{TA+r}, v{TA+4*t+r}")
        regs = [TA + r for r in range(4)]
        tmps = [TA + 4 + r for r in range(4)]
        for r in regs:
            a(f"v_add_f32_dpp v{r}, v{r}, v{r} row_ror:8 {DPPM}")
        for sw in ("v_permlane16_swap_b32", "v_permlane32_swap_b32"):
            for r, t in zip(regs, tmps):
                a(f"v_mov_b32 v{t}, v{r}")
            for r, t in zip(regs, tmps):
                a(f"{sw} v{r}, v{t}")
            for r, t in zip(regs, tmps):
                a(f"v_add_f32 v{r}, v{r}, v{t}")
        a(f"v_cndmask_b32 v{dst}, v{TA}, v{TA+1}, s[{sSEL}:{sSEL+1}]")
        a(f"v_cndmask_b32 v{dst}, v{dst}, v{TA+2}, s[{sSEL+2}:{sSEL+3}]")
        a(f"v_cndmask_b32 v{dst}, v{dst}, v{TA+3}, s[{sSEL+4}:{sSEL+5}]")
    for r in range(1, 4):
        a(f"v_cmp_eq_u32 s[{sSEL+2*r-2}:{sSEL+2*r-1}], {r}, v{vA1}")
    reduce_select(vM, 3)
    rne(a, [vM])
    a(f"v_mul_f32 v{vU}, {NLOG2E:#x}, v{vM}")
    a(f"v_exp_f32 v{vU}, v{vU}")
    a(f"v_add_f32 v{vU}, 1.0, v{vU}")
    a(f"v_rcp_f32 v{vU}, v{vU}")
    a(f"v_mul_f32 v{vM}, v{vM}, v{vU}")
    rne(a, [vM])
    a(f"v_lshlrev_b32 v{vP}, 16, v{vP}")
    srd(a, SRD_B, sOUT, 2048)
    a(f"s_lshl_b32 s{sT4}, s{sLW}, 13")
    a(f"s_add_u32 s{sT4}, s{sT4}, {YPB:#x}")
    stamp(6)
    a("s_setprio 3")
    a("s_barrier")
    if DIAG == 2:
        a(f"s_memrealtime s[{sST+4}:{sST+5}]")
    if PY:
        gatherP(TA, [TB + 32 * p for p in range(PY)], 8, vVO, sT4, 1024, 0, "yp", PGAP)
    else:
        gather(TA, 8, vVO, sT4, 1024, 0, YSL, "yp")
    stamp(7)
    reduce_select(vL, 8)
    rne(a, [vL])
    a(f"v_mul_f32 v{vL}, v{vL}, v{vM}")
    rne(a, [vL])
    a(f"v_add_f32 v{vL}, v{vL}, v{vP}")
    a(f"v_cvt_pk_bf16_f32 v{vL}, v{vL}, v{vL}")
    a("s_mov_b32 exec_hi, 0")
    a(f"buffer_store_short v{vL}, v{vA2}, {SR(SRD_B)}, 0 offen")
    a(f"s_cmp_lg_u32 s{sLW}, 0")
    a("s_cbranch_scc1 L_A0_nogen")
    a("s_mov_b64 exec, 1")
    a(f"v_mov_b32 v{vT}, s{sGEN}")
    a(f"v_mov_b32 v{vU}, {GEN:#x}")
    a(f"buffer_store_dword v{vT}, v{vU}, {SR(SRD_WS)}, 0 offen sc1")
    if DIAG:
        a(f"s_memrealtime s[{sST+2}:{sST+3}]")
        a("s_waitcnt lgkmcnt(0)")
        src = sST + 2 if DIAG == 1 else sST + 4
        a(f"s_sub_u32 s{sT0}, s{src}, s{sST}")
        if DIAG == 3:
            a(f"s_lshl_b32 s{sT0}, s{sT0}, 3")
        a(f"s_min_u32 s{sT0}, s{sT0}, 100000")
        a.label("L_diag")
        a(f"s_memrealtime s[{sST+6}:{sST+7}]")
        a("s_waitcnt lgkmcnt(0)")
        a(f"s_sub_u32 s{sT1}, s{sST+6}, s{sST+2}")
        a(f"s_cmp_lt_u32 s{sT1}, s{sT0}")
        a("s_cbranch_scc1 L_diag")
    a.label("L_A0_nogen")
    stamp_flush(7)
    a("s_endpgm")

    a.label("L_A1")
    if EXP & 8:
        a("s_endpgm")
    a("s_setprio 2")
    pre_tag()
    a(f"v_mov_b32 v{vKO}, 0")
    a(f"ds_write_b32 v{vKO}, v{vKO} offset:{L_QF}")
    a(f"ds_write_b32 v{vKO}, v{vKO} offset:{L_QF+4}")
    masks()
    a(f"s_lshl_b32 s{sOFF}, s{sLW}, 12")
    a(f"v_lshlrev_b32 v{vA0}, 14, v{vG}")
    a(f"v_lshl_add_u32 v{vA0}, v{vJ}, 4, v{vA0}")
    a(f"s_lshl_b32 s{sT0}, s{sH}, 17")
    a(f"s_lshl_b32 s{sT1}, s{sB}, 16")
    a(f"s_add_u32 s{sT0}, s{sT0}, s{sT1}")
    a(f"s_lshl_b32 s{sT1}, s{sS}, 8")
    a(f"s_add_u32 s{sT0}, s{sT0}, s{sT1}")
    a(f"v_lshrrev_b32 v{vT}, 5, v{vLANE}")
    a(f"v_lshlrev_b32 v{vA1}, 12, v{vT}")
    a(f"v_bfe_u32 v{vT}, v{vLANE}, 3, 2")
    a(f"v_lshl_add_u32 v{vA1}, v{vT}, 8, v{vA1}")
    a(f"v_lshlrev_b32 v{vA2}, 6, v{vT}")
    a(f"v_and_b32 v{vT}, 7, v{vLANE}")
    a(f"v_lshl_add_u32 v{vA1}, v{vT}, 4, v{vA1}")
    a(f"v_lshl_add_u32 v{vA2}, v{vT}, 1, v{vA2}")
    a(f"s_lshr_b32 s{sT1}, s{sLW}, 4")
    a(f"s_add_u32 s{sT1}, s{sT1}, 80")
    a(f"s_and_b32 s{sT2}, s{sLW}, 0x8f")
    a(f"s_cmp_eq_u32 s{sT2}, 9")
    a(f"s_cselect_b32 s{sKF}, s{sT1}, 255")
    a(f"s_sub_u32 s{sT1}, s{sLW}, 176")
    a(f"s_cmp_ge_u32 s{sLW}, 176")
    a(f"s_cselect_b32 s{sKF}, s{sT1}, s{sKF}")
    a(f"s_mov_b32 s{sT1}, s{sKF}")
    a(f"s_lshr_b32 s{sT4}, s{sT1}, 2")
    a(f"s_and_b32 s{sT5}, s{sT1}, 3")
    a(f"s_lshl_b32 s{sT3}, s{sT4}, 16")
    a(f"s_lshl_b32 s{sT1}, s{sT5}, 8")
    a(f"s_add_u32 s{sT3}, s{sT3}, s{sT1}")
    a("s_waitcnt lgkmcnt(0)")
    srd(a, SRD_WS, sWS, WSZ)
    load_tag()
    srd(a, SRD_B, sWO, 0x400000)
    srd(a, SRD_C, sWD, 1376 * 1024)
    a(f"s_cmp_lt_u32 s{sKF}, 88")
    a(f"s_cselect_b32 s{SRD_C+2}, {1376*1024}, 0")
    if EARLY >= 2:
        a("s_barrier")
    a("s_waitcnt lgkmcnt(0)")
    make_tag()
    def wo_loads():
        for t in range(16):
            if t % 4 == 0 and t:
                a(f"s_add_u32 s{sWOF}, s{sWOF}, 4096")
            a(f"buffer_load_dwordx4 {R(TA+4*t)}, v{vWOA}, {SR(SRD_B)}, s{sWOF} offen offset:{1024*(t%4)} {WPOL}")
    a(f"s_mov_b32 s{sWOF}, s{sT0}")
    a(f"v_mov_b32 v{vWOA}, v{vA0}")
    if LWO == 0:
        wo_loads()
    for t in range(16):
        if t % 4 == 0 and t:
            a(f"s_add_u32 s{sT3}, s{sT3}, 4096")
        a(f"buffer_load_dwordx4 {R(TB+4*t)}, v{vA0}, {SR(SRD_C)}, s{sT3} offen offset:{1024*(t%4)} {WPOL}")
    a(f"s_lshl_b32 s{sT0}, s{sH}, 15")
    a(f"s_lshl_b32 s{sT1}, s{sB}, 7")
    a(f"s_add_u32 s{sT0}, s{sT0}, s{sT1}")
    if EARLY != 2:
        a("s_barrier")
    stamp(2, -1)
    if QSL:
        a(f"s_sleep {QSL}")
    gather(TC, 4, vA1, sT0, 8192, QP, 1, "qp", fine=True)
    stamp(3, -1)
    for t in range(1, 4):
        for r in range(4):
            a(f"v_add_f32 v{TC+r}, v{TC+r}, v{TC+4*t+r}")
    for r in range(4):
        a(f"v_mov_b32 v{TC+4+r}, v{TC+r}")
    for r in range(4):
        a(f"v_permlane32_swap_b32 v{TC+r}, v{TC+4+r}")
    for r in range(4):
        a(f"v_add_f32 v{TC+r}, v{TC+r}, v{TC+4+r}")
    for r in range(4):
        a(f"v_cvt_pk_bf16_f32 v{TC+r}, v{TC+r}, v{TC+r}")
    for r in range(4):
        a(f"ds_write_b16 v{vA2}, v{TC+r} offset:{L_QV + 16*r}")
    a(f"v_mov_b32 v{vT}, 1")
    a("s_waitcnt lgkmcnt(0)")
    a(f"ds_write_b32 v{vKO}, v{vT} offset:{L_QF}")
    a("s_setprio 0")
    a(f"v_lshrrev_b32 v{vT}, 3, v{vJ}")
    a(f"v_lshlrev_b32 v{vP}, 8, v{vT}")
    a(f"v_lshl_add_u32 v{vP}, v{vG}, 6, v{vP}")
    a(f"v_lshlrev_b32 v{vL}, 4, v{vLANE}")
    a(f"s_cmp_ge_u32 s{sKF}, 88")
    a("s_cbranch_scc1 L_A1_noffn2")
    a(f"v_lshrrev_b32 v{vT}, 5, v{vLANE}")
    a(f"v_mul_u32_u24 v{vA0}, {88*4096}, v{vT}")
    a(f"v_and_b32 v{vT}, 31, v{vLANE}")
    a(f"v_lshl_add_u32 v{vA0}, v{vT}, 4, v{vA0}")
    a(f"s_lshr_b32 s{sT0}, s{sT4}, 1")
    a(f"s_lshl_b32 s{sT0}, s{sT0}, 15")
    a(f"s_and_b32 s{sT1}, s{sT4}, 1")
    a(f"s_lshl_b32 s{sT1}, s{sT1}, 9")
    a(f"s_add_u32 s{sT0}, s{sT0}, s{sT1}")
    a(f"s_sleep {GSL}")
    gather(TC, 8, vA0, sT0, 4096, GP, 32, "gp")
    for t in range(1, 8):
        for r in range(4):
            a(f"v_add_f32 v{TC+r}, v{TC+r}, v{TC+4*t+r}")
    G = [TC + r for r in range(4)]
    Uu = [TC + 4 + r for r in range(4)]
    E = [TC + 8 + r for r in range(4)]
    rne(a, G)
    for r in range(4):
        a(f"v_mov_b32 v{Uu[r]}, v{G[r]}")
    for r in range(4):
        a(f"v_permlane32_swap_b32 v{G[r]}, v{Uu[r]}")
    a(f"s_mov_b32 s{sT0}, 0xbdd2d3e8")
    a(f"v_mov_b32 v{vU}, 0xc0135761")
    for r in range(4):
        a(f"v_mul_f32 v{E[r]}, v{G[r]}, v{G[r]}")
    for r in range(4):
        a(f"v_fma_f32 v{E[r]}, v{E[r]}, s{sT0}, v{vU}")
    for r in range(4):
        a(f"v_mul_f32 v{E[r]}, v{E[r]}, v{G[r]}")
    for r in range(4):
        a(f"v_exp_f32 v{E[r]}, v{E[r]}")
    for r in range(4):
        a(f"v_add_f32 v{E[r]}, 1.0, v{E[r]}")
    for r in range(4):
        a(f"v_rcp_f32 v{E[r]}, v{E[r]}")
    for r in range(4):
        a(f"v_mul_f32 v{G[r]}, v{G[r]}, v{E[r]}")
    rne(a, G)
    for r in range(4):
        a(f"v_mul_f32 v{G[r]}, v{G[r]}, v{Uu[r]}")
    for r in range(4):
        a(f"v_cvt_pk_bf16_f32 v{G[r]}, v{G[r]}, v{G[r]}")
    a(f"v_lshrrev_b32 v{vT}, 3, v{vJ}")
    a(f"v_lshlrev_b32 v{vA0}, 8, v{vT}")
    a(f"v_and_b32 v{vT}, 1, v{vG}")
    a(f"v_lshl_add_u32 v{vA0}, v{vT}, 7, v{vA0}")
    a(f"v_and_b32 v{vT}, 7, v{vJ}")
    a(f"v_lshl_add_u32 v{vA0}, v{vT}, 2, v{vA0}")
    for r in range(4):
        a(f"ds_write_b32 v{vA0}, v{G[r]} offset:{L_VEC1 + 32*r}")
    a("s_waitcnt lgkmcnt(0)")
    tile_gemv(a, TB, vP, L_VEC1)
    a(f"s_lshl_b32 s{sT0}, s{sKF}, 12")
    a(f"s_add_u32 s{sT0}, s{sT0}, {DPB + 168*4096}")
    publish(vACC, vL, sT0, 0)
    a.label("L_A1_noffn2")
    stamp(7, -1)
    if EXP & 512:
        a(f"s_andn2_b32 s{sT0}, s{sLW}, 3")
        a(f"s_lshl_b32 s{sT0}, s{sT0}, 12")
        a(f"s_add_u32 s{sT0}, s{sT0}, {CNT}")
        a(f"v_mov_b32 v{vA0}, 0")
        a("s_mov_b64 exec, 1")
        a(f"s_mov_b32 s{sCNT}, {ANUM}")
        stamp(2, -1)
        a.label("L_exp512")
        a(f"v_mov_b32 v{vT}, 1")
        if EXP & 2048:
            a(f"s_mov_b32 s{sT2}, 1")
            a(f"s_atomic_add s{sT2}, s[{sWS}:{sWS+1}], s{sT0} glc")
            a("s_waitcnt lgkmcnt(0)")
        elif EXP & 1024:
            a(f"buffer_load_dword v{vT}, v{vA0}, {SR(SRD_WS)}, s{sT0} offen sc1")
        else:
            a(f"buffer_atomic_add v{vT}, v{vA0}, {SR(SRD_WS)}, s{sT0} offen sc0 sc1")
        a("s_waitcnt vmcnt(0)")
        a(f"s_sub_u32 s{sCNT}, s{sCNT}, 1")
        a(f"s_cmp_lg_u32 s{sCNT}, 0")
        a("s_cbranch_scc1 L_exp512")
        stamp(3, -1)
        a("s_mov_b64 exec, -1")
    a(f"v_and_b32 v{vT}, 31, v{vLANE}")
    a(f"v_lshlrev_b32 v{vVO}, 4, v{vT}")
    a(f"v_mov_b32 v{vKO}, 0")
    a(f"v_and_b32 v{vU}, 7, v{vLANE}")
    a(f"v_lshlrev_b32 v{vU}, 4, v{vU}")
    a(f"v_add_u32 v{vU}, {ML}, v{vU}")
    a(f"v_cmp_gt_u32 vcc, 32, v{vLANE}")
    a(f"s_mov_b64 s[{sEX}:{sEX+1}], vcc")
    a(f"s_lshl_b32 s{sT1}, s{sB}, 8")
    a(f"s_add_u32 s{sT1}, s{sT1}, {OP}")
    a(f"v_lshlrev_b32 v{vA1}, 4, v{vJ}")
    a(f"v_add_u32 v{vA1}, s{sT1}, v{vA1}")
    a(f"v_cndmask_b32 v{vA1}, v{vU}, v{vA1}, vcc")
    a(f"v_and_b32 v{vT}, 1, v{vG}")
    a(f"v_lshl_add_u32 v{vA1}, v{vT}, 14, v{vA1}")
    a(f"v_lshlrev_b32 v{vA2}, 8, v{vT}")
    a(f"v_bfe_u32 v{vT}, v{vLANE}, 3, 1")
    a(f"v_lshl_add_u32 v{vA2}, v{vT}, 7, v{vA2}")
    a(f"v_and_b32 v{vT}, 7, v{vLANE}")
    a(f"v_lshl_add_u32 v{vA2}, v{vT}, 2, v{vA2}")
    a(f"v_lshrrev_b32 v{vT}, 3, v{vLANE}")
    a(f"v_lshlrev_b32 v{vA0}, 13, v{vT}")
    a(f"v_and_b32 v{vT}, 7, v{vLANE}")
    a(f"v_lshl_add_u32 v{vA0}, v{vT}, 4, v{vA0}")
    a(f"s_lshl_b32 s{sT2}, s{sS}, 16")
    a(f"s_lshl_b32 s{sT3}, s{sH}, 8")
    a(f"s_add_u32 s{sT2}, s{sT2}, s{sT3}")
    a(f"s_lshl_b32 s{sT3}, s{sB}, 7")
    a(f"s_add_u32 s{sT2}, s{sT2}, s{sT3}")
    a(f"s_add_u32 s{sT2}, s{sT2}, {YPB:#x}")
    a(f"s_lshl_b32 s{sT0}, s{sH}, 15")
    if LWO == 3:
        a.label("L_A1_wait")
        a(f"s_sleep {WSL}")
        a(f"ds_read_b32 v{vT}, v{vKO} offset:{L_QF+4}")
        a("s_waitcnt lgkmcnt(0)")
        a(f"v_cmp_eq_u32 vcc, 0, v{vT}")
        a("s_cbranch_vccnz L_A1_wait")
        wo_loads()
    a("s_setprio 3")
    a("s_barrier")
    stamp(4, -1)
    if LWO == 1:
        wo_loads()
    MLr = TC
    a(f"ds_read_b128 {R(MLr)}, v{vKO} offset:{L_PML}")
    a(f"ds_read_b128 {R(MLr+4)}, v{vKO} offset:{L_PML+16}")
    for w in range(4):
        a(f"ds_read_b128 {R(TB+4*w)}, v{vVO} offset:{L_PART + 512*w}")

    def combine(ms, ls, F, outm, outl):
        a(f"v_max_f32 v{outm}, v{ms[0]}, v{ms[1]}")
        a(f"v_max3_f32 v{outm}, v{outm}, v{ms[2]}, v{ms[3]}")
        for w in range(4):
            a(f"v_sub_f32 v{F+w}, v{ms[w]}, v{outm}")
        for w in range(4):
            a(f"v_mul_f32 v{F+w}, s{sL2E}, v{F+w}")
        for w in range(4):
            a(f"v_exp_f32 v{F+w}, v{F+w}")
        a(f"v_mul_f32 v{outl}, v{F}, v{ls[0]}")
        for w in range(1, 4):
            a(f"v_fmac_f32 v{outl}, v{F+w}, v{ls[w]}")

    def combine_o(os_, F):
        for r in range(4):
            a(f"v_mul_f32 v{os_[0]+r}, v{F}, v{os_[0]+r}")
        for w in range(1, 4):
            for r in range(4):
                a(f"v_fmac_f32 v{os_[0]+r}, v{F+w}, v{os_[w]+r}")
    F = TC + 8
    a("s_waitcnt lgkmcnt(4)")
    combine([MLr + 2 * w for w in range(4)], [MLr + 2 * w + 1 for w in range(4)], F, vM, vMN)
    a("s_waitcnt lgkmcnt(0)")
    combine_o([TB + 4 * w for w in range(4)], F)
    for r in range(4):
        src = vM if r % 2 == 0 else vMN
        a(f"v_cndmask_b32 v{TB+r}, v{src}, v{TB+r}, s[{sEX}:{sEX+1}]")
    a("s_mov_b32 exec_hi, 0xff")
    publish(TB, vL, sOFF, OP)
    a("s_mov_b64 exec, -1")
    stamp(5, -1)
    if LWO == 2:
        wo_loads()
    GB = TB + 16
    if PP:
        gatherP(GB, [TC + 16 + 16 * p for p in range(PP)], 4, vA1, sT0, 4096, 0, "op", PGAP)
    else:
        gather(GB, 4, vA1, sT0, 4096, 0, OSL, "op")
    stamp(6, -1)
    for t in range(4):
        a(f"v_mov_b32 v{MLr+2*t}, v{GB+4*t}")
        a(f"v_mov_b32 v{MLr+2*t+1}, v{GB+4*t+1}")
    for t in range(4):
        a(f"v_permlane32_swap_b32 v{GB+4*t}, v{MLr+2*t}")
        a(f"v_permlane32_swap_b32 v{GB+4*t+1}, v{MLr+2*t+1}")
    combine([MLr + 2 * w for w in range(4)], [MLr + 2 * w + 1 for w in range(4)], F, vM, vMN)
    a(f"v_rcp_f32 v{vMN}, v{vMN}")
    combine_o([GB + 4 * w for w in range(4)], F)
    for r in range(4):
        a(f"v_mul_f32 v{GB+r}, v{GB+r}, v{vMN}")
    for r in range(4):
        a(f"v_cvt_pk_bf16_f32 v{GB+r}, v{GB+r}, v{GB+r}")
    a(f"s_mov_b64 exec, s[{sEX}:{sEX+1}]")
    for r in range(4):
        a(f"ds_write_b32 v{vA2}, v{GB+r} offset:{L_VEC1 + 32*r}")
    a("s_mov_b64 exec, -1")
    a("s_waitcnt lgkmcnt(0)")
    tile_gemv(a, TA, vP, L_VEC1)
    publish(vACC, vA0, sT2, 0)
    stamp_flush(7)
    a.label("L_end")
    a("s_endpgm")
    a.label("L_codeend")

    body = a.finish()
    hdr = open("cdna_kernels/" + NAME + ".s.ref").read().split("; @launch")[0]
    nv = 248
    txt = hdr + f"; @launch grid=(256,1,1) block=(384,1,1) lds={L_TOTAL + 4*NL*8192}\n"
    txt += '.amdgcn_target "amdgcn-amd-amdhsa--gfx950"\n.text\n'
    txt += f".globl {NAME}_kernel\n.p2align 8\n.type {NAME}_kernel,@function\n"
    txt += body
    txt += f""".section .rodata,"a"
.p2align 6
.amdhsa_kernel {NAME}_kernel
  .amdhsa_next_free_vgpr {nv}
  .amdhsa_next_free_sgpr 102
  .amdhsa_accum_offset {(nv+3)//4*4}
  .amdhsa_group_segment_fixed_size 0
  .amdhsa_kernarg_size 96
  .amdhsa_user_sgpr_count 2
  .amdhsa_user_sgpr_kernarg_segment_ptr 1
  .amdhsa_system_sgpr_workgroup_id_x 1
  .amdhsa_float_denorm_mode_32 3
.end_amdhsa_kernel
"""
    return txt


if __name__ == "__main__":
    out = sys.argv[1]
    kw = eval("dict(" + (sys.argv[2] if len(sys.argv) > 2 else "") + ")")
    open(out, "w").write(gen(**kw))
```

```python
import sys
sys.path.insert(0, "work")
from asmlib import Asm

NAME = "recurrent_scan__mha_block_cached__geglu_ffn__decode"

QP, GP, YP, OP, ML, CNT = 0, 1024, 2048, 3072, 3584, 3840
DPB = 0x100000
YPB = 0x100000
GEN = 0x140000
WSZ = 0x200000
L_QF = 6464
L_XN, L_QV, L_PART, L_PML, L_VEC1, L_VEC0, L_TOTAL = 0, 4096, 4352, 6400, 6656, 7168, 8192

LOG2E = 0x3FB8AA3B
NLOG2E = 0xBFB8AA3B
SCALE = 0x3DB504F3

sX, sK, sV, sWQ, sWO, sBX, sWG, sWU, sWD, sOUT, sDBG, sWS = 4, 6, 8, 10, 12, 14, 16, 18, 20, 22, 24, 26
sH, sB, sS, sLW, sPID = 28, 29, 30, 31, 32
sL2E = 33
SRD_A, SRD_B, SRD_C, SRD_WS, SRD_D = 36, 40, 44, 48, 52
sT0, sT1, sT2, sT3, sT4, sT5 = 56, 57, 58, 59, 60, 61
sCNT = 62
sOFF = 63
sEX = 64
sIT = 66
sTAG, sGEN = 34, 35
sTMK = 67
sSEL = 96
sPM = 86
TBITS = 8
TMASK = (1 << TBITS) - 1
sST = 70
vLANE, vJ, vG = 1, 2, 3
vMASK = 4
vT, vU, vW, vP, vM, vMN, vL, vKO, vVO, vA0, vA1, vA2 = 8, 9, 10, 11, 12, 13, 14, 15, 16, 17, 18, 19
vS, vACC, vPB0, vPB1, vQB = 20, 24, 28, 32, 36
vWIN = 52
vTAG = 244
vWOA = 246
vE0, vE1 = 240, 241
sWOF = 68
sKF = 69
TA, TB, TC = 52, 116, 180


def srd(a, d, ptr, nbytes):
    a(f"s_mov_b32 s{d}, s{ptr}")
    a(f"s_and_b32 s{d+1}, s{ptr+1}, 0xffff")
    if isinstance(nbytes, int):
        a(f"s_mov_b32 s{d+2}, {nbytes:#x}")
    else:
        a(f"s_mov_b32 s{d+2}, {nbytes}")
    a(f"s_mov_b32 s{d+3}, 0x20000")


def R(b, n=4):
    return f"v[{b}:{b+n-1}]"


def SR(b, n=4):
    return f"s[{b}:{b+n-1}]"


DPPM = "row_mask:0xf bank_mask:0xf"


def allreduce(a, regs, tmps, op="v_add_f32", quad=True):
    steps = []
    if quad:
        steps += ["quad_perm:[1,0,3,2]", "quad_perm:[2,3,0,1]"]
    steps += ["row_ror:4", "row_ror:8"]
    for st in steps:
        for r in regs:
            a(f"{op}_dpp v{r}, v{r}, v{r} {st} {DPPM}")
    for sw in ("v_permlane16_swap_b32", "v_permlane32_swap_b32"):
        for r, t in zip(regs, tmps):
            a(f"v_mov_b32 v{t}, v{r}")
        for r, t in zip(regs, tmps):
            a(f"{sw} v{r}, v{t}")
        for r, t in zip(regs, tmps):
            a(f"{op} v{r}, v{r}, v{t}")


def rne(a, regs):
    for r in regs:
        a(f"v_cvt_pk_bf16_f32 v{r}, v{r}, v{r}")
    for r in regs:
        a(f"v_and_b32 v{r}, 0xffff0000, v{r}")


def tile_gemv(a, tbase, vaddr_lds, lds_off, waits=None):
    for k in range(4):
        a(f"ds_read_b128 {R(vQB+4*k)}, v{vaddr_lds} offset:{lds_off+16*k}")
    a("s_waitcnt lgkmcnt(0)")

    def build(t):
        pb = vPB0 if t % 2 == 0 else vPB1
        for r in range(4):
            a(f"v_and_b32 v{pb+r}, v{vQB+t}, v{vMASK+r}")
    build(0)
    for t in range(16):
        if t + 1 < 16:
            build(t + 1)
        pb = vPB0 if t % 2 == 0 else vPB1
        if waits and t in waits:
            a(f"s_waitcnt vmcnt({waits[t]})")
        c = "0" if t == 0 else R(vACC)
        a(f"v_mfma_f32_16x16x32_bf16 {R(vACC)}, {R(tbase+4*t)}, {R(pb)}, {c}")


def sanitize(a, base, n=4):
    for r in range(n):
        a(f"v_min_u32 v{base+r}, -2, v{base+r}")


def poll(a, issue, regs, sleep=0, name="poll"):
    top = a.newlabel(name)
    done = a.newlabel(name + "d")
    a(f"s_mov_b32 s{sCNT}, 0x40000")
    a.label(top)
    issue()
    a("s_waitcnt vmcnt(0)")
    rs = list(regs)
    a(f"v_max_u32 v{vT}, v{rs[0]}, v{rs[1]}" if len(rs) > 1 else f"v_mov_b32 v{vT}, v{rs[0]}")
    rest = rs[2:]
    while rest:
        if len(rest) >= 2:
            a(f"v_max3_u32 v{vT}, v{vT}, v{rest[0]}, v{rest[1]}")
            rest = rest[2:]
        else:
            a(f"v_max_u32 v{vT}, v{vT}, v{rest[0]}")
            rest = rest[1:]
    a(f"v_cmp_eq_u32 vcc, -1, v{vT}")
    a(f"s_cbranch_vccz {done}")
    a(f"s_sub_u32 s{sCNT}, s{sCNT}, 1")
    a(f"s_cbranch_scc1 {done}")
    if sleep:
        a(f"s_sleep {sleep}")
    a(f"s_branch {top}")
    a.label(done)


def gen(DD=3, STAMP=False, NSTAT=22, INFL=16, NL=4, EXP=0, SG=0, EARLY=0, PSL=64, QSL=0, CPF=3, RCL=0, ANUM=8, POL='nt', WPOL='nt', DBGST=0, GSL=64, PP=2, PGAP=8, ALPHA=0, YSL=0, OSL=0, PY=2, PAT=0, SCL=1, CPOS=0, LWO=4, WSL=4, EH=2, CLS=0, BETA2=0, DIAG=0, ROT=5, LINFL=0, LATEK=0, ILV=1, LWD=0):
    a = Asm()
    stamps = {"n": 0}

    def stamp(k, grp=0):
        if STAMP and (k < 2 or grp == -1 or grp == SG):
            a(f"s_memrealtime s[{sST+2*k}:{sST+2*k+1}]")

    def stamp_flush(nst):
        if not STAMP:
            return
        a(f"s_memrealtime s[{sST+2}:{sST+3}]")
        a("s_waitcnt lgkmcnt(0)")
        a("s_mov_b64 exec, -1")
        if DBGST:
            srd(a, SRD_D, sDBG, 256)
            a("s_mov_b64 exec, 1")
            a(f"s_min_u32 s{sT0}, s3, 2")
            a(f"s_mul_i32 s{sT0}, s{sT0}, 20")
            a("v_mov_b32 v17, 0")
            a(f"s_not_b32 s{sT1}, s{sST}")
            a(f"v_mov_b32 v20, s{sT1}")
            a(f"buffer_atomic_umax v20, v17, {SR(SRD_D)}, 0 offen sc1")
            for k in range(5):
                a(f"v_mov_b32 v{21+k}, s{sST+2*(k+1)}")
                a(f"buffer_atomic_umax v{21+k}, v17, {SR(SRD_D)}, s{sT0} offen offset:{4+4*k} sc1")
            return
        srd(a, SRD_D, sWS, 0x20000000)
        a(f"s_mul_i32 s{sT0}, s2, 6")
        a(f"s_add_u32 s{sT0}, s{sT0}, s3")
        a(f"s_lshl_b32 s{sT1}, s{sT0}, 6")
        a(f"s_lshl_b32 s{sT0}, s{sT0}, 4")
        a(f"s_add_u32 s{sT0}, s{sT0}, 0x10000000")
        a(f"s_add_u32 s{sT1}, s{sT1}, 0x11000000")
        a(f"s_getreg_b32 s{sT2}, hwreg(HW_REG_XCC_ID)")
        a(f"s_and_b32 s{sT2}, s{sT2}, 15")
        a(f"s_lshl_b32 s{sT2}, s{sT2}, 28")
        a(f"s_or_b32 s{sT2}, s{sST+1}, s{sT2}")
        a(f"v_mov_b32 v20, s{sST}")
        a(f"v_mov_b32 v21, s{sT2}")
        a(f"v_mov_b32 v22, s{sST+2}")
        a(f"v_mov_b32 v23, s{sST+3}")
        a("v_mov_b32 v17, 0")
        for k in range(8):
            a(f"v_mov_b32 v{24+k}, s{sST+2*k}")
        a(f"v_cmp_eq_u32 vcc, 0, v{vLANE}")
        a(f"s_and_saveexec_b64 s[{sEX}:{sEX+1}], vcc")
        a(f"buffer_store_dwordx4 v[20:23], v17, {SR(SRD_D)}, s{sT0} offen")
        a(f"buffer_store_dwordx4 v[24:27], v17, {SR(SRD_D)}, s{sT1} offen")
        a(f"buffer_store_dwordx4 v[28:31], v17, {SR(SRD_D)}, s{sT1} offen offset:16")

    a.label(f"{NAME}_kernel")
    a("s_cmp_ge_u32 s2, 256")
    a("s_cbranch_scc1 L_end")
    if STAMP:
        for k in range(8):
            a(f"s_mov_b64 s[{sST+2*k}:{sST+2*k+1}], 0")
    stamp(0)
    if DIAG:
        a(f"s_memrealtime s[{sST}:{sST+1}]")
    a("s_load_dwordx16 s[4:19], s[0:1], 0")
    a("s_load_dwordx8 s[20:27], s[0:1], 64")
    a("v_lshrrev_b32 v2, 6, v0")
    a(f"v_and_b32 v{vLANE}, 63, v0")
    a("v_readfirstlane_b32 s3, v2")
    a(f"v_and_b32 v{vJ}, 15, v{vLANE}")
    a(f"v_lshrrev_b32 v{vG}, 4, v{vLANE}")
    a(f"s_bfe_u32 s{sH}, s2, 0x50002")
    a(f"s_lshr_b32 s{sB}, s2, 7")
    a(f"s_and_b32 s{sS}, s2, 3")
    a(f"s_lshl_b32 s{sPID}, s{sB}, 2")
    a(f"s_add_u32 s{sPID}, s{sPID}, s{sS}")
    a(f"s_lshl_b32 s{sLW}, s{sH}, 3")
    a(f"s_add_u32 s{sLW}, s{sLW}, s{sPID}")
    a(f"s_mov_b32 s{sL2E}, {LOG2E:#x}")

    def masks():
        a(f"v_and_b32 v{vT}, 1, v{vLANE}")
        a(f"v_lshlrev_b32 v{vT}, 4, v{vT}")
        a(f"v_mov_b32 v{vU}, 0xffff")
        a(f"v_lshlrev_b32 v{vU}, v{vT}, v{vU}")
        a(f"v_bfe_u32 v{vT}, v{vLANE}, 1, 2")
        for r in range(4):
            a(f"v_cmp_eq_u32 vcc, {r}, v{vT}")
            a(f"v_cndmask_b32 v{vMASK+r}, 0, v{vU}, vcc")

    def flagpoll(nd, soff, vaddr, sleep, lane0):
        ftop = a.newlabel("flag")
        fdone = a.newlabel("flagd")
        a(f"s_mov_b32 s{sCNT}, 0x40000")
        a(f"s_mov_b32 s{sIT}, 0x01010101")
        if lane0:
            a("s_mov_b64 exec, 1")
        a.label(ftop)
        if nd == 2:
            a(f"buffer_load_dwordx2 v[{vT}:{vU}], v{vaddr}, {SR(SRD_D)}, {soff} offen sc1")
            a("s_waitcnt vmcnt(0)")
            a(f"v_and_b32 v{vT}, v{vT}, v{vU}")
        else:
            a(f"buffer_load_dword v{vT}, v{vaddr}, {SR(SRD_D)}, {soff} offen sc1")
            a("s_waitcnt vmcnt(0)")
        a(f"v_cmp_ne_u32 vcc, s{sIT}, v{vT}")
        a(f"s_cbranch_vccz {fdone}")
        a(f"s_sub_u32 s{sCNT}, s{sCNT}, 1")
        a(f"s_cbranch_scc1 {fdone}")
        a(f"s_sleep {sleep}")
        a(f"s_branch {ftop}")
        a.label(fdone)
        if lane0:
            a("s_mov_b64 exec, -1")

    a("s_cmp_eq_u32 s3, 0")
    a("s_cbranch_scc1 L_A0")
    a("s_cmp_eq_u32 s3, 1")
    a("s_cbranch_scc1 L_A1")

    if CPF:
        a(f"s_getpc_b64 s[{sT0}:{sT1}]")
        a.label("L_pc")
        a(f"s_sub_u32 s{sT0}, s{sT0}, L_pc-{NAME}_kernel")
        a(f"s_subb_u32 s{sT1}, s{sT1}, 0")
        a(f"v_subrev_u32 v{vT}, 128, v0")
        a(f"v_lshlrev_b32 v{vT}, 4, v{vT}")
        for k in range(CPF):
            a(f"v_min_u32 v{vU}, L_codeend-{NAME}_kernel-16, v{vT}")
            a(f"global_load_dwordx4 {R(200+4*k)}, v{vU}, s[{sT0}:{sT1}]")
            a(f"v_add_u32 v{vT}, 4096, v{vT}")
    a(f"v_and_b32 v{vT}, 3, v{vLANE}")
    a(f"v_lshlrev_b32 v{vKO}, 4, v{vT}")
    a(f"v_bfe_u32 v{vT}, v{vLANE}, 2, 2")
    a(f"v_lshl_add_u32 v{vKO}, v{vT}, 8, v{vKO}")
    a(f"v_lshl_add_u32 v{vKO}, v{vG}, 6, v{vKO}")
    a(f"v_lshlrev_b32 v{vVO}, 4, v{vLANE}")
    a(f"s_lshl_b32 s{sT0}, s{sB}, 5")
    a(f"s_add_u32 s{sT0}, s{sT0}, s{sH}")
    a(f"s_lshl_b32 s{sOFF}, s{sT0}, 21")
    a(f"s_mul_i32 s{sT0}, s{sS}, {4 * NSTAT if PAT == 1 else 4}")
    a(f"s_add_u32 s{sT0}, s{sT0}, s3")
    a(f"s_sub_u32 s{sT0}, s{sT0}, 2")
    a(f"s_lshl_b32 s{sT0}, s{sT0}, 12")
    a(f"s_add_u32 s{sOFF}, s{sOFF}, s{sT0}")
    a("s_waitcnt lgkmcnt(0)")
    srd(a, SRD_A, sK, 0x8000000)
    srd(a, SRD_B, sV, 0x8000000)

    USTEP = 0x4000 if PAT == 1 else 0x10000
    fifo = []
    sSL = [86 + k for k in range(DD)]
    sDYN, sNS, sCA, sCP, sCV = 90, 91, 67, 68, 69
    assert not RCL or (NSTAT % DD == 0 and NL % DD == 0)
    sRET = 92
    sCPs = [94 + k for k in range(DD)]
    assert not (ALPHA and RCL)
    vCL = [vWIN + 32 * (DD + 1) + k for k in range(DD)]
    vCA = vCL[-1] + 1
    NDYN = (512 - 16 * NSTAT) // (4 if CLS else 1)
    BAD = 0x40000000

    def kreg(slot, m):
        return vWIN + 32 * slot + 4 * m

    def vreg(slot, m):
        return vWIN + 32 * slot + 16 + 4 * m

    def issueK(slot, so):
        for m in range(4):
            a(f"buffer_load_dwordx4 {R(kreg(slot, m))}, v{vKO}, {SR(SRD_A)}, s{so} offen offset:{1024*m} {POL}")
            fifo.append(("K", slot))

    def issueV(slot, so):
        for m in range(4):
            a(f"buffer_load_dwordx4 {R(vreg(slot, m))}, v{vVO}, {SR(SRD_B)}, s{so} offen offset:{1024*m} {POL}")
            fifo.append(("V", slot))

    def issueC(slot):
        if SCL:
            return
        if EXP & 4:
            a(f"v_mov_b32 v{vCL[slot]}, -8")
            return
        if RCL and slot:
            return
        a(f"v_mov_b32 v{vCL[slot]}, {DD if RCL else 1}")
        a(f"buffer_atomic_add v{vCL[slot]}, v{vCA}, {SR(SRD_WS)}, s{sCPs[slot]} offen sc0 sc1")
        fifo.append(("C", slot))

    def waitfor(tag):
        last = max(i for i, t in enumerate(fifo) if t == tag)
        n = len(fifo) - 1 - last
        assert n < 64
        a(f"s_waitcnt vmcnt({n})")
        del fifo[:last + 1]

    def sclaim():
        sk = a.newlabel("cl")
        if EXP & 4096:
            a(f"s_cmp_gt_i32 s{sNS}, 20")
            a(f"s_cbranch_scc1 {sk}")
            a(f"s_cmp_lt_i32 s{sNS}, 1")
            a(f"s_cbranch_scc1 {sk}")
            a(f"s_mov_b32 s{sT4}, 1")
            a(f"s_atomic_add s{sT4}, s[{sWS}:{sWS+1}], s{sCA} glc")
            a.label(sk)
            return
        a(f"s_cmp_gt_i32 s{sNS}, 0")
        a(f"s_cbranch_scc1 {sk}")
        a(f"s_cmp_ge_u32 s{sCP}, {NDYN}")
        a(f"s_cbranch_scc1 {sk}")
        a(f"s_mov_b32 s{sCV}, 1")
        a(f"s_atomic_add s{sCV}, s[{sWS}:{sWS+1}], s{sCA} glc")
        a.label(sk)

    def process(slot, fromlds=False):
        if fromlds:
            for m in range(8):
                a(f"ds_read_b128 {R(kreg(slot, m))}, v{vA2} offset:{1024*m}")
            a(f"v_add_u32 v{vA2}, 0x2000, v{vA2}")
            a("s_waitcnt lgkmcnt(4)")
        else:
            a(f"s_cmp_ge_u32 s{sSL[slot]}, {BAD:#x}")
            a("s_cbranch_scc1 L_sdone")
            if SCL and CPOS == 0:
                sclaim()
            waitfor(("K", slot))
        for m in range(4):
            c = "0" if m == 0 else R(vS)
            if not EXP & 2:
                a(f"v_mfma_f32_16x16x32_bf16 {R(vS)}, {R(kreg(slot, m))}, {R(vQB+4*m)}, {c}")
        if not fromlds:
            so = sSL[slot]

        def refillK():
            a("s_waitcnt lgkmcnt(0)")
            a(f"s_add_u32 s{sCP}, s{sCV}, 1")
            a(f"s_lshl_b32 s{sT1}, s{sCP}, {14 if CLS else 12}")
            a(f"s_add_u32 s{sT1}, s{sT1}, s{sDYN}")
            a(f"s_cmp_lt_u32 s{sCP}, {NDYN}")
            a(f"s_cselect_b32 s{sT1}, s{sT1}, {BAD:#x}")
            a(f"s_sub_i32 s{sNS}, s{sNS}, 1")
            a(f"s_cmp_ge_i32 s{sNS}, 0")
            a(f"s_cselect_b32 s{so}, s{sOFF}, s{sT1}")
            a(f"s_add_u32 s{sOFF}, s{sOFF}, {USTEP:#x}")
            if EXP & 8192:
                a(f"s_add_u32 s{sT2}, s{sOFF}, {ROT*4096}")
                a(f"s_and_b32 s{sT2}, s{sT2}, 0xffff")
                a(f"s_andn2_b32 s{sOFF}, s{sOFF}, 0xffff")
                a(f"s_or_b32 s{sOFF}, s{sOFF}, s{sT2}")
            issueK(slot, so)
            if BETA2:
                sk = a.newlabel("nb")
                a(f"s_cmp_ge_i32 s{sNS}, 0")
                a(f"s_cbranch_scc1 {sk}")
                a(f"s_sub_i32 s{sT2}, s{sCP}, s{sCPs[slot]}")
                a(f"s_mov_b32 s{sCPs[slot]}, s{sCP}")
                a(f"s_cmp_le_i32 s{sT2}, {16*DD}")
                a(f"s_cbranch_scc1 {sk}")
                a(f"s_mul_i32 s{sT2}, s{sT2}, {1 + BETA2}")
                a(f"s_lshl_b32 s{sT3}, s{sCP}, 1")
                a(f"s_add_i32 s{sT2}, s{sT2}, s{sT3}")
                a(f"s_cmp_le_i32 s{sT2}, {2*NDYN + 16*DD*BETA2}")
                a(f"s_cbranch_scc1 {sk}")
                a(f"s_mov_b32 s{sCP}, {NDYN}")
                a(f"s_mov_b32 s{sCV}, {NDYN}")
                a.label(sk)
            if LWO == 3:
                sk = a.newlabel("ex")
                a(f"s_cmp_lt_u32 s{so}, {BAD:#x}")
                a(f"s_cbranch_scc1 {sk}")
                a(f"ds_write_b32 v{vA0}, v{vA1} offset:{L_QF+4}")
                if STAMP and SG == 5:
                    a(f"s_cmp_lg_u32 s{sST+14}, 0")
                    a(f"s_cbranch_scc1 {sk}")
                    a(f"s_memrealtime s[{sST+14}:{sST+15}]")
                    a("s_waitcnt lgkmcnt(0)")
                a.label(sk)
            if CPOS == 2:
                sclaim()
        if not fromlds and SCL and not LATEK:
            refillK()
        if not fromlds and not SCL:
            so = sSL[slot]
            if not RCL or slot == 0:
                a(f"v_readfirstlane_b32 s{sCV}, v{vCL[slot]}")
            a(f"s_add_u32 s{sCV}, s{sCV}, 1")
            a(f"s_lshl_b32 s{sT1}, s{sCV}, 12")
            a(f"s_add_u32 s{sT1}, s{sT1}, s{sDYN}")
            a(f"s_cmp_lt_u32 s{sCV}, {NDYN}")
            a(f"s_cselect_b32 s{sT1}, s{sT1}, {BAD:#x}")
            if ALPHA:
                a(f"s_max_u32 s{sT1}, s{sT1}, s{sCPs[slot]}")
            a(f"s_sub_i32 s{sNS}, s{sNS}, 1")
            a(f"s_cmp_ge_i32 s{sNS}, 0")
            a(f"s_cselect_b32 s{so}, s{sOFF}, s{sT1}")
            a(f"s_add_u32 s{sOFF}, s{sOFF}, {USTEP:#x}")
            if ALPHA:
                a(f"s_mul_i32 s{sT2}, s{sCV}, {16 + ALPHA}")
                a(f"s_mul_i32 s{sT3}, s{sNS}, {16 * ALPHA}")
                a(f"s_add_i32 s{sT2}, s{sT2}, s{sT3}")
                a(f"s_cmp_lt_i32 s{sNS}, 0")
                a(f"s_cselect_b32 s{sT2}, s{sT2}, 0")
                a(f"s_cmp_gt_i32 s{sT2}, {16*(NDYN-1) - ALPHA + 16*ALPHA*(DD-1)}")
                a(f"s_cselect_b32 s{sCA}, {BAD:#x}, s{sCA}")
            a(f"s_cmp_lt_i32 s{sNS}, {DD}")
            a(f"s_cselect_b32 s{sCPs[slot]}, s{sCA}, {BAD:#x}")
            issueC(slot)
            issueK(slot, so)
        if not EXP & 2:
            a(f"v_mov_b32_dpp v{vT}, v{vS} quad_perm:[0,0,0,0] {DPPM}")
            for e in range(1, 4):
                a(f"v_add_f32_dpp v{vT}, v{vS+e}, v{vT} quad_perm:[{e},{e},{e},{e}] {DPPM}")
            rne(a, [vT])
            a(f"v_mul_f32 v{vT}, {SCALE:#x}, v{vT}")
            rne(a, [vT])
            a(f"v_cmp_gt_f32 vcc, v{vT}, v{vM}")
            back = a.newlabel("back")
            a(f"s_cbranch_vccz {back}")
            a(f"s_call_b64 s[{sRET}:{sRET+1}], L_slow")
            a.label(back)
            a(f"v_fma_f32 v{vT}, v{vT}, s{sL2E}, v{vMN}")
            a(f"v_exp_f32 v{vT}, v{vT}")
            a(f"v_add_f32 v{vL}, v{vL}, v{vT}")
            a(f"v_cvt_pk_bf16_f32 v{vP}, v{vT}, v{vT}")
        if fromlds:
            a("s_waitcnt lgkmcnt(0)")
        else:
            if SCL and CPOS == 1:
                sclaim()
            waitfor(("V", slot))
            if LATEK == 2:
                refillK()

        def build(m):
            pb = vPB0 if m % 2 == 0 else vPB1
            for r in range(4):
                a(f"v_and_b32_dpp v{pb+r}, v{vP}, v{vMASK+r} row_newbcast:{4*m} {DPPM}")
        if not EXP & 2:
            build(0)
            for m in range(4):
                if m + 1 < 4:
                    build(m + 1)
                pb = vPB0 if m % 2 == 0 else vPB1
                a(f"v_mfma_f32_16x16x32_bf16 {R(vACC)}, {R(vreg(slot, m))}, {R(pb)}, {R(vACC)}")
        if not fromlds:
            if LATEK == 1:
                refillK()
            issueV(slot, so)

    srd(a, SRD_WS, sWS, WSZ)
    a(f"s_sub_u32 s{sT5}, s3, 2")
    a(f"s_mul_i32 s{sT5}, s{sT5}, {NL*8192}")
    a(f"s_add_u32 s{sT5}, s{sT5}, {L_TOTAL}")
    a(f"v_add_u32 v{vA2}, s{sT5}, v{vVO}")
    a(f"v_mov_b32 v{vCA}, {BAD:#x}")
    a(f"v_cmp_eq_u32 vcc, 0, v{vLANE}")
    a(f"v_cndmask_b32 v{vCA}, v{vCA}, 0, vcc")
    for k in range(DD):
        a(f"s_mov_b32 s{sCPs[k]}, {BAD:#x}")
    if EXP & 8:
        a(f"v_mov_b32 v{vW}, 0")
        a(f"v_mov_b32 v{vT}, 1")
        a(f"ds_write_b32 v{vW}, v{vT} offset:{L_QF}")
        a("s_waitcnt lgkmcnt(0)")
    a("s_barrier")
    nfl = 0
    for k in range(DD):
        a(f"s_mov_b32 s{sSL[k]}, s{sOFF}")
        a(f"s_add_u32 s{sOFF}, s{sOFF}, {USTEP:#x}")
        for fn in (issueK, issueV):
            if nfl >= INFL:
                a(f"s_waitcnt vmcnt({INFL-4})")
                nfl -= 4
            if fn is issueK:
                issueC(k)
            fn(k, sSL[k])
            nfl += 4
            if EARLY == 3 and (2 * k + (fn is issueV)) == EH - 1:
                a("s_barrier")
    masks()
    a(f"s_andn2_b32 s{sCA}, s{sLW}, 3")
    a(f"s_lshl_b32 s{sCA}, s{sCA}, 12")
    a(f"s_add_u32 s{sCA}, s{sCA}, {CNT}")
    if not NDYN and not SCL:
        a(f"s_mov_b32 s{sCA}, {BAD:#x}")
    a(f"s_mov_b32 s{sCV}, 0")
    a(f"s_mov_b32 s{sCP}, 0")
    a(f"s_lshl_b32 s{sT0}, s{sB}, 5")
    a(f"s_add_u32 s{sT0}, s{sT0}, s{sH}")
    a(f"s_lshl_b32 s{sDYN}, s{sT0}, 21")
    a(f"s_add_u32 s{sDYN}, s{sDYN}, {16*NSTAT*4096}")
    if CLS:
        a(f"s_sub_u32 s{sT0}, s3, 2")
        a(f"s_lshl_b32 s{sT1}, s{sT0}, 12")
        a(f"s_add_u32 s{sDYN}, s{sDYN}, s{sT1}")
        a(f"s_lshl_b32 s{sT1}, s{sT0}, 6")
        a(f"s_add_u32 s{sCA}, s{sCA}, s{sT1}")
    a(f"s_mov_b32 s{sNS}, {NSTAT - DD}")
    for r in range(4):
        a(f"v_mov_b32 v{vACC+r}, 0")
    a(f"v_mov_b32 v{vL}, 0")
    a(f"v_mov_b32 v{vM}, 0xff800000")
    a(f"v_mov_b32 v{vMN}, 0")
    a(f"v_and_b32 v{vT}, 3, v{vJ}")
    a(f"v_lshl_add_u32 v{vT}, v{vG}, 2, v{vT}")
    a(f"v_lshlrev_b32 v{vA0}, 4, v{vT}")
    a(f"v_lshrrev_b32 v{vA1}, 2, v{vJ}")
    a(f"v_lshlrev_b32 v{vE0}, 3, v{vG}")
    a(f"v_add_u32 v{vE0}, v{vE0}, v{vJ}")
    a(f"v_lshlrev_b32 v{vE0}, 4, v{vE0}")
    a(f"s_sub_u32 s{sT0}, s3, 2")
    a(f"s_lshl_b32 s{sT1}, s{sT0}, 9")
    a(f"v_add_u32 v{vE0}, s{sT1}, v{vE0}")
    a(f"s_lshl_b32 s{sT1}, s{sT0}, 3")
    a(f"v_mov_b32 v{vE1}, s{sT1}")
    a(f"s_mov_b32 s{sIT}, 0")
    a(f"v_mov_b32 v{vW}, 0")
    a.label("L_lpro")
    a(f"ds_read_b32 v{vT}, v{vW} offset:{L_QF}")
    a("s_waitcnt lgkmcnt(0)")
    a(f"v_cmp_ne_u32 vcc, 0, v{vT}")
    a("s_cbranch_vccnz L_qready")
    a(f"s_cmp_lt_u32 s{sIT}, {NL}")
    a("s_cbranch_scc1 L_lgo")
    a("s_sleep 1")
    a("s_branch L_lpro")
    a.label("L_lgo")
    for rep in range(DD if RCL else 1):
        for which in "KV":
            a(f"s_mov_b32 m0, s{sT5}")
            a(f"s_waitcnt vmcnt({(LINFL or INFL)-4})")
            for m in range(4):
                if which == "K":
                    a(f"buffer_load_dwordx4 v{vKO}, {SR(SRD_A)}, s{sOFF} offen offset:{1024*m} {POL} lds")
                else:
                    a(f"buffer_load_dwordx4 v{vVO}, {SR(SRD_B)}, s{sOFF} offen offset:{1024*m} {POL} lds")
            a(f"s_add_u32 s{sT5}, s{sT5}, 4096")
        a(f"s_add_u32 s{sOFF}, s{sOFF}, {USTEP:#x}")
        a(f"s_add_u32 s{sIT}, s{sIT}, 1")
        a(f"s_sub_u32 s{sNS}, s{sNS}, 1")
    a("s_branch L_lpro")
    a.label("L_qready")
    stamp(2, -1)
    a(f"ds_read_b128 {R(vS)}, v{vA0} offset:{L_QV}")
    a("s_waitcnt lgkmcnt(0)")
    for m in range(4):
        a(f"v_cmp_eq_u32 vcc, {m}, v{vA1}")
        for r in range(4):
            a(f"v_cndmask_b32 v{vQB+4*m+r}, 0, v{vS+r}, vcc")
    a(f"v_mov_b32 v{vA0}, 0")
    a(f"v_mov_b32 v{vA1}, 1")
    state0 = list(fifo)
    a.label("L_loop")
    for k in range(DD):
        process(k)
    assert fifo == state0, (fifo, state0)
    if STAMP:
        for k, done in (((5, 11), (6, 17), (7, 23)) if SG != 5 else ((5, 11), (6, NSTAT - DD))):
            lb = a.newlabel("ps")
            a(f"s_cmp_gt_i32 s{sNS}, {NSTAT - DD - done}")
            a(f"s_cbranch_scc1 {lb}")
            a(f"s_cmp_lg_u32 s{sST+2*k}, 0")
            a(f"s_cbranch_scc1 {lb}")
            stamp(k, -1)
            a("s_waitcnt lgkmcnt(0)")
            a.label(lb)
    if NL:
        a(f"s_cmp_eq_u32 s{sIT}, 0")
        a("s_cbranch_scc1 L_loop")
        a(f"s_waitcnt vmcnt({len(fifo)})")
        a.label("L_lloop")
        process(DD, fromlds=True)
        a(f"s_sub_u32 s{sIT}, s{sIT}, 1")
        if not ILV:
            a(f"s_cmp_lg_u32 s{sIT}, 0")
            a("s_cbranch_scc1 L_lloop")
        stamp(4, -1)
        if STAMP:
            a("s_waitcnt lgkmcnt(0)")
    a("s_branch L_loop")
    a.label("L_slow")
    a(f"v_max_f32_dpp v{vU}, v{vT}, v{vT} row_ror:4 {DPPM}")
    a(f"v_max_f32_dpp v{vU}, v{vU}, v{vU} row_ror:8 {DPPM}")
    a(f"v_mov_b32 v{vW}, v{vU}")
    a(f"v_permlane16_swap_b32 v{vU}, v{vW}")
    a(f"v_max_f32 v{vU}, v{vU}, v{vW}")
    a(f"v_mov_b32 v{vW}, v{vU}")
    a(f"v_permlane32_swap_b32 v{vU}, v{vW}")
    a(f"v_max3_f32 v{vU}, v{vU}, v{vW}, v{vM}")
    a(f"v_sub_f32 v{vW}, v{vM}, v{vU}")
    a(f"v_mul_f32 v{vW}, s{sL2E}, v{vW}")
    a(f"v_exp_f32 v{vW}, v{vW}")
    a(f"v_mov_b32 v{vM}, v{vU}")
    a(f"v_mul_f32 v{vMN}, {NLOG2E:#x}, v{vU}")
    for r in range(4):
        a(f"v_mul_f32 v{vACC+r}, v{vACC+r}, v{vW}")
    a(f"v_mul_f32 v{vL}, v{vL}, v{vW}")
    a(f"s_setpc_b64 s[{sRET}:{sRET+1}]")
    a.label("L_sdone")
    if LWO == 4:
        a(f"ds_write_b32 v{vA0}, v{vA1} offset:{L_QF+4}")
    if STAMP and SG == 5:
        a(f"s_sub_u32 s{sT0}, {NSTAT - DD}, s{sNS}")
        a(f"s_mul_i32 s{sT0}, s{sT0}, 100")
        a(f"s_add_u32 s{sST+8}, s{sST}, s{sT0}")
    stamp(3, -1)
    a("s_mov_b32 exec_lo, 0x00ff00ff")
    a("s_mov_b32 exec_hi, 0x00ff00ff")
    a("s_nop 3")
    a(f"ds_write_b128 v{vE0}, {R(vACC)} offset:{L_PART}")
    a("s_mov_b64 exec, -1")
    allreduce(a, [vL], [vW], quad=False)
    a(f"v_mov_b32 v{vMN}, v{vL}")
    a(f"ds_write_b64 v{vE1}, v[{vM}:{vMN}] offset:{L_PML}")
    a("s_waitcnt lgkmcnt(0)")
    a("s_barrier")
    stamp_flush(4)
    a("s_endpgm")

    def load_tag():
        a(f"s_mov_b32 s{sT2}, {GEN:#x}")
        a(f"s_load_dword s{sTAG}, s[{sWS}:{sWS+1}], s{sT2}")

    def make_tag():
        a(f"s_add_u32 s{sGEN}, s{sTAG}, 1")
        a(f"s_mov_b32 s{sTMK}, 0xff")
        a(f"v_and_b32 v{vTAG}, s{sGEN}, v{vTAG}")
        a(f"v_and_b32 v{vTAG+1}, s{sGEN}, v{vTAG+1}")

    def pre_tag():
        a(f"v_mov_b32 v{vTAG}, 0xff")
        a(f"v_mov_b32 v{vTAG+1}, 7")

    def publish(src, voff, soff, off, fine=False):
        mk, tg = ("7", vTAG + 1) if fine else (f"s{sTMK}", vTAG)
        for r in range(4):
            a(f"v_bfi_b32 v{src+r}, {mk}, v{tg}, v{src+r}")
        a(f"buffer_store_dwordx4 {R(src)}, v{voff}, {SR(SRD_WS)}, s{soff} offen offset:{off} sc1")

    def gather(dst, n, voff, soff, step, off, sleep, name, lanes="-1", fine=False, lastmask=None):
        mk, tg = ("7", vTAG + 1) if fine else (f"s{sTMK}", vTAG)
        top = a.newlabel(name)
        done = a.newlabel(name + "d")
        a(f"s_mov_b32 s{sCNT}, 0x40000")
        a(f"s_mov_b32 s{sPM}, {(1 << n) - 1}")
        if lanes != "-1":
            a(f"s_mov_b64 exec, {lanes}")
        a.label(top)
        if n > 1:
            a(f"s_mov_b32 s{sT1}, s{soff}")
        for t in range(n):
            sk = a.newlabel(name + "s")
            if n > 1:
                a(f"s_bitcmp1_b32 s{sPM}, {t}")
                a(f"s_cbranch_scc0 {sk}")
            if lastmask and t == n - 1:
                a(f"s_mov_b32 exec_hi, {lastmask:#x}")
            a(f"buffer_load_dwordx4 {R(dst+4*t)}, v{voff}, {SR(SRD_WS)}, s{sT1 if n > 1 else soff} offen offset:{off} sc1")
            if lastmask and t == n - 1:
                a("s_mov_b32 exec_hi, -1")
            a.label(sk)
            if t < n - 1:
                a(f"s_add_u32 s{sT1}, s{sT1}, {step}")
        a("s_waitcnt vmcnt(0)")
        for t in range(n):
            d = dst + 4 * t
            sk = a.newlabel(name + "c")
            if n > 1:
                a(f"s_bitcmp1_b32 s{sPM}, {t}")
                a(f"s_cbranch_scc0 {sk}")
            if lastmask and t == n - 1:
                a(f"s_mov_b32 exec_hi, {lastmask:#x}")
            for r in range(4):
                a(f"v_xor_b32 v{d+r}, v{d+r}, v{tg}")
            a(f"v_or3_b32 v{vT}, v{d}, v{d+1}, v{d+2}")
            a(f"v_or_b32 v{vT}, v{vT}, v{d+3}")
            a(f"v_and_b32 v{vT}, {mk}, v{vT}")
            a(f"v_cmp_ne_u32 vcc, 0, v{vT}")
            if lastmask and t == n - 1:
                a("s_mov_b32 exec_hi, -1")
            if n > 1:
                a(f"s_cbranch_vccnz {sk}")
                a(f"s_bitset0_b32 s{sPM}, {t}")
                a.label(sk)
        if n > 1:
            a(f"s_cmp_eq_u32 s{sPM}, 0")
            a(f"s_cbranch_scc1 {done}")
        else:
            a(f"s_cbranch_vccz {done}")
        a(f"s_sub_u32 s{sCNT}, s{sCNT}, 1")
        a(f"s_cbranch_scc1 {done}")
        if sleep:
            a(f"s_sleep {sleep}")
        a(f"s_branch {top}")
        a.label(done)
        if lanes != "-1":
            a("s_mov_b64 exec, -1")

    def gatherP(fin, bufs, n, voff, soff, step, off, name, gap, items=None):
        P = len(bufs)
        if items is None:
            items = [(voff, soff, t * step) for t in range(n)]
        n = len(items)
        top = a.newlabel(name)
        done = a.newlabel(name + "d")
        a(f"s_mov_b32 s{sCNT}, 0x40000")
        a(f"s_mov_b32 s{sPM}, {(1 << n) - 1}")
        for t, (vo, so, add) in enumerate(items):
            a(f"s_add_u32 s{sPM+1+t}, s{so}, {add}")

        def issue(bf):
            for t, (vo, so, add) in enumerate(items):
                a(f"buffer_load_dwordx4 {R(bf+4*t)}, v{vo}, {SR(SRD_WS)}, s{sPM+1+t} offen offset:{off} sc1")
        for p in range(P - 1):
            issue(bufs[p])
            a(f"s_sleep {gap}")
        a.label(top)
        for p in range(P):
            issue(bufs[(p + P - 1) % P])
            a(f"s_waitcnt vmcnt({n*(P-1)})")
            bf = bufs[p]
            for t in range(n):
                d = bf + 4 * t
                sk = a.newlabel(name + "c")
                if n > 1:
                    a(f"s_bitcmp1_b32 s{sPM}, {t}")
                    a(f"s_cbranch_scc0 {sk}")
                for r in range(4):
                    a(f"v_xor_b32 v{fin+4*t+r}, v{d+r}, v{vTAG}")
                a(f"v_or3_b32 v{vT}, v{fin+4*t}, v{fin+4*t+1}, v{fin+4*t+2}")
                a(f"v_or_b32 v{vT}, v{vT}, v{fin+4*t+3}")
                a(f"v_and_b32 v{vT}, s{sTMK}, v{vT}")
                a(f"v_cmp_ne_u32 vcc, 0, v{vT}")
                if n > 1:
                    a(f"s_cbranch_vccnz {sk}")
                    a(f"s_bitset0_b32 s{sPM}, {t}")
                    a(f"s_mov_b32 s{sPM+1+t}, 0x40000000")
                    a.label(sk)
                else:
                    a(f"s_cbranch_vccz {done}")
            if n > 1:
                a(f"s_cmp_eq_u32 s{sPM}, 0")
                a(f"s_cbranch_scc1 {done}")
        a(f"s_sub_u32 s{sCNT}, s{sCNT}, 1")
        a(f"s_cbranch_scc0 {top}")
        a.label(done)

    def ffn2_index():
        a(f"s_lshr_b32 s{sT1}, s{sLW}, 4")
        a(f"s_add_u32 s{sT1}, s{sT1}, 80")
        a(f"s_and_b32 s{sT2}, s{sLW}, 0x8f")
        a(f"s_cmp_eq_u32 s{sT2}, 9")
        a(f"s_cselect_b32 s{sKF}, s{sT1}, 255")
        a(f"s_sub_u32 s{sT1}, s{sLW}, 176")
        a(f"s_cmp_ge_u32 s{sLW}, 176")
        a(f"s_cselect_b32 s{sKF}, s{sT1}, s{sKF}")
        a(f"s_mov_b32 s{sT1}, s{sKF}")
        a(f"s_lshr_b32 s{sT4}, s{sT1}, 2")
        a(f"s_and_b32 s{sT5}, s{sT1}, 3")
        a(f"s_lshl_b32 s{sT3}, s{sT4}, 16")
        a(f"s_lshl_b32 s{sT1}, s{sT5}, 8")
        a(f"s_add_u32 s{sT3}, s{sT3}, s{sT1}")

    def wd_loads(vaddr):
        srd(a, SRD_C, sWD, 1376 * 1024)
        a(f"s_cmp_lt_u32 s{sKF}, 88")
        a(f"s_cselect_b32 s{SRD_C+2}, {1376*1024}, 0")
        for t in range(16):
            if t % 4 == 0 and t:
                a(f"s_add_u32 s{sT3}, s{sT3}, 4096")
            a(f"buffer_load_dwordx4 {R(TB+4*t)}, v{vaddr}, {SR(SRD_C)}, s{sT3} offen offset:{1024*(t%4)} {WPOL}")

    def dp_publish(voff):
        a(f"s_lshl_b32 s{sT0}, s{sKF}, 12")
        a(f"s_add_u32 s{sT0}, s{sT0}, {DPB + 168*4096}")
        publish(vACC, voff, sT0, 0)

    def ldswait(off, sleep, name):
        a.label(name)
        a(f"s_sleep {sleep}")
        a(f"ds_read_b32 v{vT}, v{vW} offset:{off}")
        a("s_waitcnt lgkmcnt(0)")
        a(f"v_cmp_eq_u32 vcc, 0, v{vT}")
        a(f"s_cbranch_vccnz {name}")

    a.label("L_A0")
    if EXP & 8:
        a("s_endpgm")
    a("s_setprio 3")
    pre_tag()
    a(f"v_lshlrev_b32 v{vVO}, 4, v{vLANE}")
    for r in range(4):
        a(f"v_mov_b32 v{vS+r}, -1")
    a(f"s_lshl_b32 s{sOFF}, s{sLW}, 12")
    a(f"v_lshlrev_b32 v{vA0}, 17, v{vG}")
    a(f"v_lshl_add_u32 v{vA0}, v{vJ}, 4, v{vA0}")
    a(f"s_lshl_b32 s{sT0}, s{sPID}, 19")
    a(f"s_lshl_b32 s{sT1}, s{sH}, 8")
    a(f"s_add_u32 s{sT0}, s{sT0}, s{sT1}")
    a("s_waitcnt lgkmcnt(0)")
    srd(a, SRD_A, sX, 2048)
    a(f"buffer_load_dwordx4 {R(vPB0)}, v{vVO}, {SR(SRD_A)}, 0 offen")
    a(f"buffer_load_dwordx4 {R(vPB1)}, v{vVO}, {SR(SRD_A)}, 0 offen offset:1024")
    srd(a, SRD_WS, sWS, WSZ)
    load_tag()
    a("s_mov_b64 exec, 0xffff")
    a(f"buffer_store_dwordx4 {R(vS)}, v{vVO}, {SR(SRD_WS)}, s{sOFF} offen offset:{CNT} sc1")
    a("s_mov_b64 exec, -1")
    srd(a, SRD_B, sWQ, 0x400000)
    for t in range(16):
        a(f"buffer_load_dwordx4 {R(TA+4*t)}, v{vA0}, {SR(SRD_B)}, s{sT0} offen {WPOL}")
        if t < 15:
            a(f"s_add_u32 s{sT0}, s{sT0}, 8192")
    if EARLY >= 2:
        a("s_barrier")
    masks()
    a("s_waitcnt vmcnt(17)")
    stamp(2)
    X = [TC + i for i in range(16)]
    for bb, src in ((0, vPB0), (1, vPB1)):
        for k in range(4):
            a(f"v_lshlrev_b32 v{X[bb*8+2*k]}, 16, v{src+k}")
            a(f"v_and_b32 v{X[bb*8+2*k+1]}, 0xffff0000, v{src+k}")
    S0, S1, Tm0, Tm1 = TC + 16, TC + 17, TC + 18, TC + 19
    Dv = [TC + 20 + i for i in range(16)]
    for bb, s in ((0, S0), (1, S1)):
        a(f"v_add_f32 v{s}, v{X[bb*8]}, v{X[bb*8+1]}")
    for k in range(2, 8):
        for bb, s in ((0, S0), (1, S1)):
            a(f"v_add_f32 v{s}, v{s}, v{X[bb*8+k]}")
    allreduce(a, [S0, S1], [Tm0, Tm1])
    a(f"v_mul_f32 v{S0}, 0x3b000000, v{S0}")
    a(f"v_mul_f32 v{S1}, 0x3b000000, v{S1}")
    V0, V1 = TC + 36, TC + 37
    for bb, s in ((0, S0), (1, S1)):
        for k in range(8):
            a(f"v_sub_f32 v{Dv[bb*8+k]}, v{X[bb*8+k]}, v{s}")
    for bb, v in ((0, V0), (1, V1)):
        a(f"v_mul_f32 v{v}, v{Dv[bb*8]}, v{Dv[bb*8]}")
    for k in range(1, 8):
        for bb, v in ((0, V0), (1, V1)):
            a(f"v_fmac_f32 v{v}, v{Dv[bb*8+k]}, v{Dv[bb*8+k]}")
    allreduce(a, [V0, V1], [Tm0, Tm1])
    a(f"v_mul_f32 v{V0}, 0x3b000000, v{V0}")
    a(f"v_mul_f32 v{V1}, 0x3b000000, v{V1}")
    rne(a, [S0, S1, V0, V1])
    a(f"v_add_f32 v{V0}, 0x3727c5ac, v{V0}")
    a(f"v_add_f32 v{V1}, 0x3727c5ac, v{V1}")
    rne(a, [V0, V1])
    a(f"v_sqrt_f32 v{V0}, v{V0}")
    a(f"v_sqrt_f32 v{V1}, v{V1}")
    rne(a, [V0, V1])
    a(f"v_rcp_f32 v{V0}, v{V0}")
    a(f"v_rcp_f32 v{V1}, v{V1}")
    for bb, s in ((0, S0), (1, S1)):
        for k in range(8):
            a(f"v_sub_f32 v{Dv[bb*8+k]}, v{X[bb*8+k]}, v{s}")
    rne(a, Dv)
    for bb, v in ((0, V0), (1, V1)):
        for k in range(8):
            a(f"v_mul_f32 v{Dv[bb*8+k]}, v{Dv[bb*8+k]}, v{v}")
    for d in Dv:
        a(f"v_cvt_pk_bf16_f32 v{d}, v{d}, v{d}")
    a(f"v_lshlrev_b32 v{vA1}, 5, v{vLANE}")
    for bb in range(2):
        for k in range(2):
            a(f"ds_write_b128 v{vA1}, {R(Dv[bb*8+4*k])} offset:{L_XN + bb*2048 + 16*k}")
    a(f"s_cmp_ge_u32 s{sLW}, 88")
    a(f"s_cselect_b32 s{sT0}, 88, 0")
    a(f"s_cselect_b32 s{SRD_C}, s{sWU}, s{sWG}")
    a(f"s_cselect_b32 s{SRD_C+1}, s{sWU+1}, s{sWG+1}")
    a(f"s_and_b32 s{SRD_C+1}, s{SRD_C+1}, 0xffff")
    a(f"s_sub_u32 s{sT0}, s{sLW}, s{sT0}")
    a(f"s_cmp_lt_u32 s{sLW}, 176")
    a(f"s_cselect_b32 s{SRD_C+2}, {512*2752}, 0")
    a(f"s_mov_b32 s{SRD_C+3}, 0x20000")
    a(f"s_lshr_b32 s{sT1}, s{sT0}, 3")
    a(f"s_and_b32 s{sT5}, s{sT0}, 7")
    a(f"s_mul_i32 s{sT3}, s{sT5}, {64*2752}")
    a(f"s_lshl_b32 s{sT4}, s{sT1}, 8")
    a(f"s_add_u32 s{sT3}, s{sT3}, s{sT4}")
    a(f"v_mul_u32_u24 v{vA0}, {16*2752}, v{vG}")
    a(f"v_lshl_add_u32 v{vA0}, v{vJ}, 4, v{vA0}")
    a(f"s_lshl_b32 s{sT4}, s{sT1}, 4")
    a(f"v_add_u32 v{vT}, s{sT4}, v{vJ}")
    a(f"v_cmp_gt_u32 vcc, 172, v{vT}")
    a(f"v_mov_b32 v{vU}, 0x40000000")
    a(f"v_cndmask_b32 v{vA0}, v{vU}, v{vA0}, vcc")
    for t in range(16):
        a(f"buffer_load_dwordx4 {R(TB+4*t)}, v{vA0}, {SR(SRD_C)}, s{sT3} offen {WPOL}")
        if t < 15:
            a(f"s_add_u32 s{sT3}, s{sT3}, 2752")
    a(f"v_lshrrev_b32 v{vT}, 3, v{vJ}")
    a(f"v_lshlrev_b32 v{vKO}, 11, v{vT}")
    a(f"v_lshl_add_u32 v{vKO}, v{vG}, 6, v{vKO}")
    a(f"s_lshl_b32 s{sT0}, s{sPID}, 8")
    a(f"v_add_u32 v{vA1}, s{sT0}, v{vKO}")
    a("s_waitcnt lgkmcnt(0)")
    make_tag()
    if EARLY == 1:
        a("s_barrier")
    tile_gemv(a, TA, vA1, L_XN, waits={0: 28, 4: 24, 8: 20, 12: 16})
    publish(vACC, vVO, sOFF, QP, fine=True)
    if EARLY in (0, 3):
        a("s_barrier")
    stamp(3)
    if DIAG == 3:
        a(f"s_memrealtime s[{sST+4}:{sST+5}]")
    a(f"s_cmp_ge_u32 s{sLW}, 176")
    a("s_cbranch_scc1 L_A0_noffn1")
    a(f"s_lshl_b32 s{sT0}, s{sT5}, 8")
    a(f"v_add_u32 v{vA1}, s{sT0}, v{vKO}")
    tile_gemv(a, TB, vA1, L_XN, waits={0: 1})
    publish(vACC, vVO, sOFF, GP)
    a.label("L_A0_noffn1")
    stamp(4)
    a("s_setprio 0")
    if LWD:
        ffn2_index()
        a(f"s_cmp_lt_u32 s{sKF}, 88")
        a("s_cbranch_scc1 L_A0_ffn2")
        a(f"s_cmp_ge_u32 s{sLW}, 32")
        a("s_cbranch_scc1 L_A0_nogen")
        a("s_barrier")
        a("s_branch L_A0_final")
        a.label("L_A0_ffn2")
        a(f"v_lshlrev_b32 v{vA0}, 14, v{vG}")
        a(f"v_lshl_add_u32 v{vA0}, v{vJ}, 4, v{vA0}")
        a(f"v_lshrrev_b32 v{vT}, 3, v{vJ}")
        a(f"v_lshlrev_b32 v{vA1}, 8, v{vT}")
        a(f"v_lshl_add_u32 v{vA1}, v{vG}, 6, v{vA1}")
        a(f"v_mov_b32 v{vW}, 0")
        ldswait(L_QF + 8, 64, "L_A0_w1")
        ldswait(L_QF + 4, WSL, "L_A0_w2")
        wd_loads(vA0)
        a("s_setprio 2")
        a("s_barrier")
        tile_gemv(a, TB, vA1, L_VEC0, waits={0: 12, 4: 8, 8: 4, 12: 0})
        dp_publish(vVO)
        a.label("L_A0_final")
    a(f"s_cmp_ge_u32 s{sLW}, 32")
    a("s_cbranch_scc1 L_A0_nogen")
    a(f"s_lshr_b32 s{sT4}, s{sLW}, 3")
    a(f"s_and_b32 s{sT5}, s{sLW}, 7")
    a(f"s_and_b32 s{sT0}, s{sT5}, 1")
    a(f"s_lshl_b32 s{sT0}, s{sT0}, 9")
    a(f"s_lshl_b32 s{sT1}, s{sT4}, 7")
    a(f"s_add_u32 s{sT0}, s{sT0}, s{sT1}")
    a(f"s_lshr_b32 s{sT1}, s{sT5}, 1")
    a(f"s_lshl_b32 s{sT1}, s{sT1}, 5")
    a(f"s_add_u32 s{sT0}, s{sT0}, s{sT1}")
    a(f"v_and_b32 v{vT}, 31, v{vLANE}")
    a(f"v_add_u32 v{vT}, s{sT0}, v{vT}")
    a(f"v_lshlrev_b32 v{vA2}, 1, v{vT}")
    a(f"buffer_load_ushort v{vP}, v{vA2}, {SR(SRD_A)}, 0 offen")
    a(f"v_lshrrev_b32 v{vT}, 3, v{vLANE}")
    a(f"v_lshlrev_b32 v{vA0}, 14, v{vT}")
    a(f"v_and_b32 v{vA1}, 3, v{vT}")
    a(f"v_and_b32 v{vT}, 7, v{vLANE}")
    a(f"v_lshl_add_u32 v{vA0}, v{vT}, 4, v{vA0}")
    a(f"s_lshl_b32 s{sT4}, s{sT4}, 12")
    a(f"s_lshl_b32 s{sT5}, s{sT5}, 7")
    a(f"s_add_u32 s{sT4}, s{sT4}, s{sT5}")
    a(f"s_add_u32 s{sT5}, s{sT4}, {DPB + 168*4096}")
    if LWD == 2:
        a(f"v_min_u32 v{vKO}, {5*16384 + 127}, v{vA0}")
        a(f"v_and_b32 v{vT}, 7, v{vLANE}")
        a(f"v_and_b32 v{vKO}, 0x1c000, v{vKO}")
        a(f"v_lshl_add_u32 v{vKO}, v{vT}, 4, v{vKO}")
        srd(a, SRD_B, sOUT, 2048)
        a(f"s_lshl_b32 s{sT4}, s{sLW}, 13")
        a(f"s_add_u32 s{sT4}, s{sT4}, {YPB:#x}")
        a("s_setprio 3")
        items = [(vA0, sT5, 0), (vA0, sT5, 8 * 16384), (vKO, sT5, 16 * 16384)] + [(vVO, sT4, 1024 * t) for t in range(8)]
        gatherP(TA, [TB, TC], 11, None, None, 0, 0, "yp", PGAP, items=items)
        stamp(7)
        D0, Y0 = TA, TA + 12
        a("s_mov_b32 exec_hi, 0xffff")
        for r in range(4):
            a(f"v_add_f32 v{D0+r}, v{D0+r}, v{D0+8+r}")
        a("s_mov_b32 exec_hi, -1")
        for r in range(4):
            a(f"v_add_f32 v{D0+r}, v{D0+r}, v{D0+4+r}")
        for (x, y) in ((0, 1), (2, 3), (4, 5), (6, 7), (0, 2), (4, 6), (0, 4)):
            for r in range(4):
                a(f"v_add_f32 v{Y0+4*x+r}, v{Y0+4*x+r}, v{Y0+4*y+r}")
        regs = [D0 + r for r in range(4)] + [Y0 + r for r in range(4)]
        tmps = [D0 + 4 + r for r in range(4)] + [Y0 + 4 + r for r in range(4)]
        for r in regs:
            a(f"v_add_f32_dpp v{r}, v{r}, v{r} row_ror:8 {DPPM}")
        for sw in ("v_permlane16_swap_b32", "v_permlane32_swap_b32"):
            for r, t in zip(regs, tmps):
                a(f"v_mov_b32 v{t}, v{r}")
            for r, t in zip(regs, tmps):
                a(f"{sw} v{r}, v{t}")
            for r, t in zip(regs, tmps):
                a(f"v_add_f32 v{r}, v{r}, v{t}")
        a("s_mov_b32 exec_hi, 0")
        for r in range(1, 4):
            a(f"s_mov_b32 exec_lo, {0xff << (8*r):#x}")
            a(f"v_mov_b32 v{D0}, v{D0+r}")
            a(f"v_mov_b32 v{Y0}, v{Y0+r}")
        a("s_mov_b32 exec_lo, -1")
        rne(a, [D0, Y0])
        a(f"v_mul_f32 v{vU}, {NLOG2E:#x}, v{D0}")
        a(f"v_exp_f32 v{vU}, v{vU}")
        a(f"v_lshlrev_b32 v{vP}, 16, v{vP}")
        a(f"v_add_f32 v{vU}, 1.0, v{vU}")
        a(f"v_rcp_f32 v{vU}, v{vU}")
        a(f"v_mul_f32 v{D0}, v{D0}, v{vU}")
        rne(a, [D0])
        a(f"v_mul_f32 v{Y0}, v{Y0}, v{D0}")
        rne(a, [Y0])
        a(f"v_add_f32 v{Y0}, v{Y0}, v{vP}")
        a(f"v_cvt_pk_bf16_f32 v{Y0}, v{Y0}, v{Y0}")
        a(f"buffer_store_short v{Y0}, v{vA2}, {SR(SRD_B)}, 0 offen")
        a("s_branch L_A0_stored")
    for r in range(4):
        a(f"v_mov_b32 v{TA+8+r}, 0")
    if not LWD:
        for _ in range(3):
            a(f"s_sleep {PSL}")
    gather(TA, 3, vA0, sT5, 8 * 16384, 0, 2 if LWD else PSL, "dp", lastmask=0xffff)
    stamp(5)
    if DIAG == 4:
        a(f"s_memrealtime s[{sST+4}:{sST+5}]")

    def reduce_select(dst, n):
        for t in range(1, n):
            for r in range(4):
                a(f"v_add_f32 v{TA+r}, v{TA+r}, v{TA+4*t+r}")
        regs = [TA + r for r in range(4)]
        tmps = [TA + 4 + r for r in range(4)]
        for r in regs:
            a(f"v_add_f32_dpp v{r}, v{r}, v{r} row_ror:8 {DPPM}")
        for sw in ("v_permlane16_swap_b32", "v_permlane32_swap_b32"):
            for r, t in zip(regs, tmps):
                a(f"v_mov_b32 v{t}, v{r}")
            for r, t in zip(regs, tmps):
                a(f"{sw} v{r}, v{t}")
            for r, t in zip(regs, tmps):
                a(f"v_add_f32 v{r}, v{r}, v{t}")
        a(f"v_cndmask_b32 v{dst}, v{TA}, v{TA+1}, s[{sSEL}:{sSEL+1}]")
        a(f"v_cndmask_b32 v{dst}, v{dst}, v{TA+2}, s[{sSEL+2}:{sSEL+3}]")
        a(f"v_cndmask_b32 v{dst}, v{dst}, v{TA+3}, s[{sSEL+4}:{sSEL+5}]")
    for r in range(1, 4):
        a(f"v_cmp_eq_u32 s[{sSEL+2*r-2}:{sSEL+2*r-1}], {r}, v{vA1}")
    reduce_select(vM, 3)
    rne(a, [vM])
    a(f"v_mul_f32 v{vU}, {NLOG2E:#x}, v{vM}")
    a(f"v_exp_f32 v{vU}, v{vU}")
    a(f"v_add_f32 v{vU}, 1.0, v{vU}")
    a(f"v_rcp_f32 v{vU}, v{vU}")
    a(f"v_mul_f32 v{vM}, v{vM}, v{vU}")
    rne(a, [vM])
    a(f"v_lshlrev_b32 v{vP}, 16, v{vP}")
    srd(a, SRD_B, sOUT, 2048)
    a(f"s_lshl_b32 s{sT4}, s{sLW}, 13")
    a(f"s_add_u32 s{sT4}, s{sT4}, {YPB:#x}")
    stamp(6)
    a("s_setprio 3")
    if not LWD:
        a("s_barrier")
    if DIAG == 2:
        a(f"s_memrealtime s[{sST+4}:{sST+5}]")
    if PY:
        gatherP(TA, [TB + 32 * p for p in range(PY)], 8, vVO, sT4, 1024, 0, "yp", PGAP)
    else:
        gather(TA, 8, vVO, sT4, 1024, 0, YSL, "yp")
    stamp(7)
    reduce_select(vL, 8)
    rne(a, [vL])
    a(f"v_mul_f32 v{vL}, v{vL}, v{vM}")
    rne(a, [vL])
    a(f"v_add_f32 v{vL}, v{vL}, v{vP}")
    a(f"v_cvt_pk_bf16_f32 v{vL}, v{vL}, v{vL}")
    a("s_mov_b32 exec_hi, 0")
    a(f"buffer_store_short v{vL}, v{vA2}, {SR(SRD_B)}, 0 offen")
    a.label("L_A0_stored")
    a(f"s_cmp_lg_u32 s{sLW}, 0")
    a("s_cbranch_scc1 L_A0_nogen")
    a("s_mov_b64 exec, 1")
    a(f"v_mov_b32 v{vT}, s{sGEN}")
    a(f"v_mov_b32 v{vU}, {GEN:#x}")
    a(f"buffer_store_dword v{vT}, v{vU}, {SR(SRD_WS)}, 0 offen sc1")
    if DIAG:
        a(f"s_memrealtime s[{sST+2}:{sST+3}]")
        a("s_waitcnt lgkmcnt(0)")
        src = sST + 2 if DIAG == 1 else sST + 4
        a(f"s_sub_u32 s{sT0}, s{src}, s{sST}")
        if DIAG == 3:
            a(f"s_lshl_b32 s{sT0}, s{sT0}, 3")
        a(f"s_min_u32 s{sT0}, s{sT0}, 100000")
        a.label("L_diag")
        a(f"s_memrealtime s[{sST+6}:{sST+7}]")
        a("s_waitcnt lgkmcnt(0)")
        a(f"s_sub_u32 s{sT1}, s{sST+6}, s{sST+2}")
        a(f"s_cmp_lt_u32 s{sT1}, s{sT0}")
        a("s_cbranch_scc1 L_diag")
    a.label("L_A0_nogen")
    stamp_flush(7)
    a("s_endpgm")

    a.label("L_A1")
    if EXP & 8:
        a("s_endpgm")
    a("s_setprio 2")
    pre_tag()
    a(f"v_mov_b32 v{vKO}, 0")
    a(f"ds_write_b32 v{vKO}, v{vKO} offset:{L_QF}")
    a(f"ds_write_b32 v{vKO}, v{vKO} offset:{L_QF+4}")
    a(f"ds_write_b32 v{vKO}, v{vKO} offset:{L_QF+8}")
    masks()
    a(f"s_lshl_b32 s{sOFF}, s{sLW}, 12")
    a(f"v_lshlrev_b32 v{vA0}, 14, v{vG}")
    a(f"v_lshl_add_u32 v{vA0}, v{vJ}, 4, v{vA0}")
    a(f"s_lshl_b32 s{sT0}, s{sH}, 17")
    a(f"s_lshl_b32 s{sT1}, s{sB}, 16")
    a(f"s_add_u32 s{sT0}, s{sT0}, s{sT1}")
    a(f"s_lshl_b32 s{sT1}, s{sS}, 8")
    a(f"s_add_u32 s{sT0}, s{sT0}, s{sT1}")
    a(f"v_lshrrev_b32 v{vT}, 5, v{vLANE}")
    a(f"v_lshlrev_b32 v{vA1}, 12, v{vT}")
    a(f"v_bfe_u32 v{vT}, v{vLANE}, 3, 2")
    a(f"v_lshl_add_u32 v{vA1}, v{vT}, 8, v{vA1}")
    a(f"v_lshlrev_b32 v{vA2}, 6, v{vT}")
    a(f"v_and_b32 v{vT}, 7, v{vLANE}")
    a(f"v_lshl_add_u32 v{vA1}, v{vT}, 4, v{vA1}")
    a(f"v_lshl_add_u32 v{vA2}, v{vT}, 1, v{vA2}")
    ffn2_index()
    a("s_waitcnt lgkmcnt(0)")
    srd(a, SRD_WS, sWS, WSZ)
    load_tag()
    srd(a, SRD_B, sWO, 0x400000)
    if EARLY >= 2:
        a("s_barrier")
    a("s_waitcnt lgkmcnt(0)")
    make_tag()
    def wo_loads():
        for t in range(16):
            if t % 4 == 0 and t:
                a(f"s_add_u32 s{sWOF}, s{sWOF}, 4096")
            a(f"buffer_load_dwordx4 {R(TA+4*t)}, v{vWOA}, {SR(SRD_B)}, s{sWOF} offen offset:{1024*(t%4)} {WPOL}")
    a(f"s_mov_b32 s{sWOF}, s{sT0}")
    a(f"v_mov_b32 v{vWOA}, v{vA0}")
    if LWO == 0:
        wo_loads()
    if not LWD:
        wd_loads(vA0)
    a(f"s_lshl_b32 s{sT0}, s{sH}, 15")
    a(f"s_lshl_b32 s{sT1}, s{sB}, 7")
    a(f"s_add_u32 s{sT0}, s{sT0}, s{sT1}")
    if EARLY != 2:
        a("s_barrier")
    stamp(2, -1)
    if QSL:
        a(f"s_sleep {QSL}")
    gather(TC, 4, vA1, sT0, 8192, QP, 1, "qp", fine=True)
    stamp(3, -1)
    for t in range(1, 4):
        for r in range(4):
            a(f"v_add_f32 v{TC+r}, v{TC+r}, v{TC+4*t+r}")
    for r in range(4):
        a(f"v_mov_b32 v{TC+4+r}, v{TC+r}")
    for r in range(4):
        a(f"v_permlane32_swap_b32 v{TC+r}, v{TC+4+r}")
    for r in range(4):
        a(f"v_add_f32 v{TC+r}, v{TC+r}, v{TC+4+r}")
    for r in range(4):
        a(f"v_cvt_pk_bf16_f32 v{TC+r}, v{TC+r}, v{TC+r}")
    for r in range(4):
        a(f"ds_write_b16 v{vA2}, v{TC+r} offset:{L_QV + 16*r}")
    a(f"v_mov_b32 v{vT}, 1")
    a("s_waitcnt lgkmcnt(0)")
    a(f"ds_write_b32 v{vKO}, v{vT} offset:{L_QF}")
    a("s_setprio 0")
    a(f"v_lshrrev_b32 v{vT}, 3, v{vJ}")
    a(f"v_lshlrev_b32 v{vP}, 8, v{vT}")
    a(f"v_lshl_add_u32 v{vP}, v{vG}, 6, v{vP}")
    a(f"v_lshlrev_b32 v{vL}, 4, v{vLANE}")
    a(f"s_cmp_ge_u32 s{sKF}, 88")
    a("s_cbranch_scc1 L_A1_noffn2")
    a(f"v_lshrrev_b32 v{vT}, 5, v{vLANE}")
    a(f"v_mul_u32_u24 v{vA0}, {88*4096}, v{vT}")
    a(f"v_and_b32 v{vT}, 31, v{vLANE}")
    a(f"v_lshl_add_u32 v{vA0}, v{vT}, 4, v{vA0}")
    a(f"s_lshr_b32 s{sT0}, s{sT4}, 1")
    a(f"s_lshl_b32 s{sT0}, s{sT0}, 15")
    a(f"s_and_b32 s{sT1}, s{sT4}, 1")
    a(f"s_lshl_b32 s{sT1}, s{sT1}, 9")
    a(f"s_add_u32 s{sT0}, s{sT0}, s{sT1}")
    a(f"s_sleep {GSL}")
    gather(TC, 8, vA0, sT0, 4096, GP, 32, "gp")
    for t in range(1, 8):
        for r in range(4):
            a(f"v_add_f32 v{TC+r}, v{TC+r}, v{TC+4*t+r}")
    G = [TC + r for r in range(4)]
    Uu = [TC + 4 + r for r in range(4)]
    E = [TC + 8 + r for r in range(4)]
    rne(a, G)
    for r in range(4):
        a(f"v_mov_b32 v{Uu[r]}, v{G[r]}")
    for r in range(4):
        a(f"v_permlane32_swap_b32 v{G[r]}, v{Uu[r]}")
    a(f"s_mov_b32 s{sT0}, 0xbdd2d3e8")
    a(f"v_mov_b32 v{vU}, 0xc0135761")
    for r in range(4):
        a(f"v_mul_f32 v{E[r]}, v{G[r]}, v{G[r]}")
    for r in range(4):
        a(f"v_fma_f32 v{E[r]}, v{E[r]}, s{sT0}, v{vU}")
    for r in range(4):
        a(f"v_mul_f32 v{E[r]}, v{E[r]}, v{G[r]}")
    for r in range(4):
        a(f"v_exp_f32 v{E[r]}, v{E[r]}")
    for r in range(4):
        a(f"v_add_f32 v{E[r]}, 1.0, v{E[r]}")
    for r in range(4):
        a(f"v_rcp_f32 v{E[r]}, v{E[r]}")
    for r in range(4):
        a(f"v_mul_f32 v{G[r]}, v{G[r]}, v{E[r]}")
    rne(a, G)
    for r in range(4):
        a(f"v_mul_f32 v{G[r]}, v{G[r]}, v{Uu[r]}")
    for r in range(4):
        a(f"v_cvt_pk_bf16_f32 v{G[r]}, v{G[r]}, v{G[r]}")
    a(f"v_lshrrev_b32 v{vT}, 3, v{vJ}")
    a(f"v_lshlrev_b32 v{vA0}, 8, v{vT}")
    a(f"v_and_b32 v{vT}, 1, v{vG}")
    a(f"v_lshl_add_u32 v{vA0}, v{vT}, 7, v{vA0}")
    a(f"v_and_b32 v{vT}, 7, v{vJ}")
    a(f"v_lshl_add_u32 v{vA0}, v{vT}, 2, v{vA0}")
    for r in range(4):
        a(f"ds_write_b32 v{vA0}, v{G[r]} offset:{L_VEC0 + 32*r}")
    a(f"v_mov_b32 v{vT}, 1")
    a("s_waitcnt lgkmcnt(0)")
    if LWD:
        a(f"ds_write_b32 v{vKO}, v{vT} offset:{L_QF+8}")
    else:
        tile_gemv(a, TB, vP, L_VEC0)
        dp_publish(vL)
    a.label("L_A1_noffn2")
    stamp(7, -1)
    if EXP & 512:
        a(f"s_andn2_b32 s{sT0}, s{sLW}, 3")
        a(f"s_lshl_b32 s{sT0}, s{sT0}, 12")
        a(f"s_add_u32 s{sT0}, s{sT0}, {CNT}")
        a(f"v_mov_b32 v{vA0}, 0")
        a("s_mov_b64 exec, 1")
        a(f"s_mov_b32 s{sCNT}, {ANUM}")
        stamp(2, -1)
        a.label("L_exp512")
        a(f"v_mov_b32 v{vT}, 1")
        if EXP & 2048:
            a(f"s_mov_b32 s{sT2}, 1")
            a(f"s_atomic_add s{sT2}, s[{sWS}:{sWS+1}], s{sT0} glc")
            a("s_waitcnt lgkmcnt(0)")
        elif EXP & 1024:
            a(f"buffer_load_dword v{vT}, v{vA0}, {SR(SRD_WS)}, s{sT0} offen sc1")
        else:
            a(f"buffer_atomic_add v{vT}, v{vA0}, {SR(SRD_WS)}, s{sT0} offen sc0 sc1")
        a("s_waitcnt vmcnt(0)")
        a(f"s_sub_u32 s{sCNT}, s{sCNT}, 1")
        a(f"s_cmp_lg_u32 s{sCNT}, 0")
        a("s_cbranch_scc1 L_exp512")
        stamp(3, -1)
        a("s_mov_b64 exec, -1")
    a(f"v_and_b32 v{vT}, 31, v{vLANE}")
    a(f"v_lshlrev_b32 v{vVO}, 4, v{vT}")
    a(f"v_mov_b32 v{vKO}, 0")
    a(f"v_and_b32 v{vU}, 7, v{vLANE}")
    a(f"v_lshlrev_b32 v{vU}, 4, v{vU}")
    a(f"v_add_u32 v{vU}, {ML}, v{vU}")
    a(f"v_cmp_gt_u32 vcc, 32, v{vLANE}")
    a(f"s_mov_b64 s[{sEX}:{sEX+1}], vcc")
    a(f"s_lshl_b32 s{sT1}, s{sB}, 8")
    a(f"s_add_u32 s{sT1}, s{sT1}, {OP}")
    a(f"v_lshlrev_b32 v{vA1}, 4, v{vJ}")
    a(f"v_add_u32 v{vA1}, s{sT1}, v{vA1}")
    a(f"v_cndmask_b32 v{vA1}, v{vU}, v{vA1}, vcc")
    a(f"v_and_b32 v{vT}, 1, v{vG}")
    a(f"v_lshl_add_u32 v{vA1}, v{vT}, 14, v{vA1}")
    a(f"v_lshlrev_b32 v{vA2}, 8, v{vT}")
    a(f"v_bfe_u32 v{vT}, v{vLANE}, 3, 1")
    a(f"v_lshl_add_u32 v{vA2}, v{vT}, 7, v{vA2}")
    a(f"v_and_b32 v{vT}, 7, v{vLANE}")
    a(f"v_lshl_add_u32 v{vA2}, v{vT}, 2, v{vA2}")
    a(f"v_lshrrev_b32 v{vT}, 3, v{vLANE}")
    a(f"v_lshlrev_b32 v{vA0}, 13, v{vT}")
    a(f"v_and_b32 v{vT}, 7, v{vLANE}")
    a(f"v_lshl_add_u32 v{vA0}, v{vT}, 4, v{vA0}")
    a(f"s_lshl_b32 s{sT2}, s{sS}, 16")
    a(f"s_lshl_b32 s{sT3}, s{sH}, 8")
    a(f"s_add_u32 s{sT2}, s{sT2}, s{sT3}")
    a(f"s_lshl_b32 s{sT3}, s{sB}, 7")
    a(f"s_add_u32 s{sT2}, s{sT2}, s{sT3}")
    a(f"s_add_u32 s{sT2}, s{sT2}, {YPB:#x}")
    a(f"s_lshl_b32 s{sT0}, s{sH}, 15")
    if LWO in (3, 4):
        a.label("L_A1_wait")
        a(f"s_sleep {WSL}")
        a(f"ds_read_b32 v{vT}, v{vKO} offset:{L_QF+4}")
        a("s_waitcnt lgkmcnt(0)")
        a(f"v_cmp_eq_u32 vcc, 0, v{vT}")
        a("s_cbranch_vccnz L_A1_wait")
        wo_loads()
    a("s_setprio 3")
    a("s_barrier")
    stamp(4, -1)
    if LWO == 1:
        wo_loads()
    MLr = TC
    a(f"ds_read_b128 {R(MLr)}, v{vKO} offset:{L_PML}")
    a(f"ds_read_b128 {R(MLr+4)}, v{vKO} offset:{L_PML+16}")
    for w in range(4):
        a(f"ds_read_b128 {R(TB+4*w)}, v{vVO} offset:{L_PART + 512*w}")

    def combine(ms, ls, F, outm, outl):
        a(f"v_max_f32 v{outm}, v{ms[0]}, v{ms[1]}")
        a(f"v_max3_f32 v{outm}, v{outm}, v{ms[2]}, v{ms[3]}")
        for w in range(4):
            a(f"v_sub_f32 v{F+w}, v{ms[w]}, v{outm}")
        for w in range(4):
            a(f"v_mul_f32 v{F+w}, s{sL2E}, v{F+w}")
        for w in range(4):
            a(f"v_exp_f32 v{F+w}, v{F+w}")
        a(f"v_mul_f32 v{outl}, v{F}, v{ls[0]}")
        for w in range(1, 4):
            a(f"v_fmac_f32 v{outl}, v{F+w}, v{ls[w]}")

    def combine_o(os_, F):
        for r in range(4):
            a(f"v_mul_f32 v{os_[0]+r}, v{F}, v{os_[0]+r}")
        for w in range(1, 4):
            for r in range(4):
                a(f"v_fmac_f32 v{os_[0]+r}, v{F+w}, v{os_[w]+r}")
    F = TC + 8
    a("s_waitcnt lgkmcnt(4)")
    combine([MLr + 2 * w for w in range(4)], [MLr + 2 * w + 1 for w in range(4)], F, vM, vMN)
    a("s_waitcnt lgkmcnt(0)")
    combine_o([TB + 4 * w for w in range(4)], F)
    for r in range(4):
        src = vM if r % 2 == 0 else vMN
        a(f"v_cndmask_b32 v{TB+r}, v{src}, v{TB+r}, s[{sEX}:{sEX+1}]")
    a("s_mov_b32 exec_hi, 0xff")
    publish(TB, vL, sOFF, OP)
    a("s_mov_b64 exec, -1")
    stamp(5, -1)
    if LWO == 2:
        wo_loads()
    GB = TB + 16
    if PP:
        gatherP(GB, [TC + 16 + 16 * p for p in range(PP)], 4, vA1, sT0, 4096, 0, "op", PGAP)
    else:
        gather(GB, 4, vA1, sT0, 4096, 0, OSL, "op")
    stamp(6, -1)
    for t in range(4):
        a(f"v_mov_b32 v{MLr+2*t}, v{GB+4*t}")
        a(f"v_mov_b32 v{MLr+2*t+1}, v{GB+4*t+1}")
    for t in range(4):
        a(f"v_permlane32_swap_b32 v{GB+4*t}, v{MLr+2*t}")
        a(f"v_permlane32_swap_b32 v{GB+4*t+1}, v{MLr+2*t+1}")
    combine([MLr + 2 * w for w in range(4)], [MLr + 2 * w + 1 for w in range(4)], F, vM, vMN)
    a(f"v_rcp_f32 v{vMN}, v{vMN}")
    combine_o([GB + 4 * w for w in range(4)], F)
    for r in range(4):
        a(f"v_mul_f32 v{GB+r}, v{GB+r}, v{vMN}")
    for r in range(4):
        a(f"v_cvt_pk_bf16_f32 v{GB+r}, v{GB+r}, v{GB+r}")
    a(f"s_mov_b64 exec, s[{sEX}:{sEX+1}]")
    for r in range(4):
        a(f"ds_write_b32 v{vA2}, v{GB+r} offset:{L_VEC1 + 32*r}")
    a("s_mov_b64 exec, -1")
    a("s_waitcnt lgkmcnt(0)")
    tile_gemv(a, TA, vP, L_VEC1)
    publish(vACC, vA0, sT2, 0)
    stamp_flush(7)
    a.label("L_end")
    a("s_endpgm")
    a.label("L_codeend")

    body = a.finish()
    hdr = open("cdna_kernels/" + NAME + ".s.ref").read().split("; @launch")[0]
    nv = 248
    txt = hdr + f"; @launch grid=(256,1,1) block=(384,1,1) lds={L_TOTAL + 4*NL*8192}\n"
    txt += '.amdgcn_target "amdgcn-amd-amdhsa--gfx950"\n.text\n'
    txt += f".globl {NAME}_kernel\n.p2align 8\n.type {NAME}_kernel,@function\n"
    txt += body
    txt += f""".section .rodata,"a"
.p2align 6
.amdhsa_kernel {NAME}_kernel
  .amdhsa_next_free_vgpr {nv}
  .amdhsa_next_free_sgpr 102
  .amdhsa_accum_offset {(nv+3)//4*4}
  .amdhsa_group_segment_fixed_size 0
  .amdhsa_kernarg_size 96
  .amdhsa_user_sgpr_count 2
  .amdhsa_user_sgpr_kernarg_segment_ptr 1
  .amdhsa_system_sgpr_workgroup_id_x 1
  .amdhsa_float_denorm_mode_32 3
.end_amdhsa_kernel
"""
    return txt


if __name__ == "__main__":
    out = sys.argv[1]
    kw = eval("dict(" + (sys.argv[2] if len(sys.argv) > 2 else "") + ")")
    open(out, "w").write(gen(**kw))
```

```python
import sys
sys.path.insert(0, "work")
from asmlib import Asm

NAME = "recurrent_scan__mha_block_cached__geglu_ffn__decode"

QP, GP, YP, OP, ML, CNT = 0, 1024, 2048, 3072, 3584, 3840
DPB = 0x100000
YPB = 0x100000
GEN = 0x140000
WSZ = 0x200000
L_QF = 6464
L_KF = 6496
L_SC = 8192
L_XN, L_QV, L_PART, L_PML, L_VEC1, L_VEC0, L_TOTAL = 0, 4096, 4352, 6400, 6656, 7168, 16384

LOG2E = 0x3FB8AA3B
NLOG2E = 0xBFB8AA3B
SCALE = 0x3DB504F3

sX, sK, sV, sWQ, sWO, sBX, sWG, sWU, sWD, sOUT, sDBG, sWS = 4, 6, 8, 10, 12, 14, 16, 18, 20, 22, 24, 26
sH, sB, sS, sLW, sPID = 28, 29, 30, 31, 32
sL2E = 33
SRD_A, SRD_B, SRD_C, SRD_WS, SRD_D = 36, 40, 44, 48, 52
sT0, sT1, sT2, sT3, sT4, sT5 = 56, 57, 58, 59, 60, 61
sCNT = 62
sOFF = 63
sEX = 64
sIT = 66
sTAG, sGEN = 34, 35
sTMK = 67
sSEL = 96
sPM = 86
TBITS = 8
TMASK = (1 << TBITS) - 1
sST = 70
vLANE, vJ, vG = 1, 2, 3
vMASK = 4
vT, vU, vW, vP, vM, vMN, vL, vKO, vVO, vA0, vA1, vA2 = 8, 9, 10, 11, 12, 13, 14, 15, 16, 17, 18, 19
vS, vACC, vPB0, vPB1, vQB = 20, 24, 28, 32, 36
vWIN = 52
vTAG = 244
vWOA = 246
vE0, vE1 = 240, 241
sWOF = 68
sKF = 69
TA, TB, TC = 52, 116, 180


def srd(a, d, ptr, nbytes):
    a(f"s_mov_b32 s{d}, s{ptr}")
    a(f"s_and_b32 s{d+1}, s{ptr+1}, 0xffff")
    if isinstance(nbytes, int):
        a(f"s_mov_b32 s{d+2}, {nbytes:#x}")
    else:
        a(f"s_mov_b32 s{d+2}, {nbytes}")
    a(f"s_mov_b32 s{d+3}, 0x20000")


def R(b, n=4):
    return f"v[{b}:{b+n-1}]"


def SR(b, n=4):
    return f"s[{b}:{b+n-1}]"


DPPM = "row_mask:0xf bank_mask:0xf"


def allreduce(a, regs, tmps, op="v_add_f32", quad=True):
    steps = []
    if quad:
        steps += ["quad_perm:[1,0,3,2]", "quad_perm:[2,3,0,1]"]
    steps += ["row_ror:4", "row_ror:8"]
    for st in steps:
        for r in regs:
            a(f"{op}_dpp v{r}, v{r}, v{r} {st} {DPPM}")
    for sw in ("v_permlane16_swap_b32", "v_permlane32_swap_b32"):
        for r, t in zip(regs, tmps):
            a(f"v_mov_b32 v{t}, v{r}")
        for r, t in zip(regs, tmps):
            a(f"{sw} v{r}, v{t}")
        for r, t in zip(regs, tmps):
            a(f"{op} v{r}, v{r}, v{t}")


def rne(a, regs):
    for r in regs:
        a(f"v_cvt_pk_bf16_f32 v{r}, v{r}, v{r}")
    for r in regs:
        a(f"v_and_b32 v{r}, 0xffff0000, v{r}")


def tile_gemv(a, tbase, vaddr_lds, lds_off, waits=None):
    for k in range(4):
        a(f"ds_read_b128 {R(vQB+4*k)}, v{vaddr_lds} offset:{lds_off+16*k}")
    a("s_waitcnt lgkmcnt(0)")

    def build(t):
        pb = vPB0 if t % 2 == 0 else vPB1
        for r in range(4):
            a(f"v_and_b32 v{pb+r}, v{vQB+t}, v{vMASK+r}")
    build(0)
    for t in range(16):
        if t + 1 < 16:
            build(t + 1)
        pb = vPB0 if t % 2 == 0 else vPB1
        if waits and t in waits:
            a(f"s_waitcnt vmcnt({waits[t]})")
        c = "0" if t == 0 else R(vACC)
        a(f"v_mfma_f32_16x16x32_bf16 {R(vACC)}, {R(tbase+4*t)}, {R(pb)}, {c}")


def sanitize(a, base, n=4):
    for r in range(n):
        a(f"v_min_u32 v{base+r}, -2, v{base+r}")


def poll(a, issue, regs, sleep=0, name="poll"):
    top = a.newlabel(name)
    done = a.newlabel(name + "d")
    a(f"s_mov_b32 s{sCNT}, 0x40000")
    a.label(top)
    issue()
    a("s_waitcnt vmcnt(0)")
    rs = list(regs)
    a(f"v_max_u32 v{vT}, v{rs[0]}, v{rs[1]}" if len(rs) > 1 else f"v_mov_b32 v{vT}, v{rs[0]}")
    rest = rs[2:]
    while rest:
        if len(rest) >= 2:
            a(f"v_max3_u32 v{vT}, v{vT}, v{rest[0]}, v{rest[1]}")
            rest = rest[2:]
        else:
            a(f"v_max_u32 v{vT}, v{vT}, v{rest[0]}")
            rest = rest[1:]
    a(f"v_cmp_eq_u32 vcc, -1, v{vT}")
    a(f"s_cbranch_vccz {done}")
    a(f"s_sub_u32 s{sCNT}, s{sCNT}, 1")
    a(f"s_cbranch_scc1 {done}")
    if sleep:
        a(f"s_sleep {sleep}")
    a(f"s_branch {top}")
    a.label(done)


def gen(DD=1, STAMP=False, NSTAT=22, INFL=8, NL=8, EXP=0, SG=0, EARLY=3, PSL=64, QSL=12, CPF=4, RCL=0, ANUM=8, POL='nt', WPOL='nt', DBGST=0, GSL=64, PP=2, PGAP=8, ALPHA=0, YSL=0, OSL=0, PY=2, PAT=0, SCL=1, CPOS=0, LWO=4, WSL=4, EH=2, CLS=0, BETA2=0, DIAG=0, ROT=5, LINFL=0, LATEK=0, ILV=1, LWD=0, NP=6, FINE=1, PRE=1, CLX=1):
    a = Asm()
    stamps = {"n": 0}

    def stamp(k, grp=0):
        if STAMP and (k < 2 or grp == -1 or grp == SG):
            a(f"s_memrealtime s[{sST+2*k}:{sST+2*k+1}]")

    def stamp_flush(nst):
        if not STAMP:
            return
        a(f"s_memrealtime s[{sST+2}:{sST+3}]")
        a("s_waitcnt lgkmcnt(0)")
        a("s_mov_b64 exec, -1")
        if DBGST:
            srd(a, SRD_D, sDBG, 256)
            a("s_mov_b64 exec, 1")
            a(f"s_min_u32 s{sT0}, s3, 2")
            a(f"s_mul_i32 s{sT0}, s{sT0}, 20")
            a("v_mov_b32 v17, 0")
            a(f"s_not_b32 s{sT1}, s{sST}")
            a(f"v_mov_b32 v20, s{sT1}")
            a(f"buffer_atomic_umax v20, v17, {SR(SRD_D)}, 0 offen sc1")
            for k in range(5):
                a(f"v_mov_b32 v{21+k}, s{sST+2*(k+1)}")
                a(f"buffer_atomic_umax v{21+k}, v17, {SR(SRD_D)}, s{sT0} offen offset:{4+4*k} sc1")
            return
        srd(a, SRD_D, sWS, 0x20000000)
        a(f"s_mul_i32 s{sT0}, s2, 6")
        a(f"s_add_u32 s{sT0}, s{sT0}, s3")
        a(f"s_lshl_b32 s{sT1}, s{sT0}, 6")
        a(f"s_lshl_b32 s{sT0}, s{sT0}, 4")
        a(f"s_add_u32 s{sT0}, s{sT0}, 0x10000000")
        a(f"s_add_u32 s{sT1}, s{sT1}, 0x11000000")
        a(f"s_getreg_b32 s{sT2}, hwreg(HW_REG_XCC_ID)")
        a(f"s_and_b32 s{sT2}, s{sT2}, 15")
        a(f"s_lshl_b32 s{sT2}, s{sT2}, 28")
        a(f"s_or_b32 s{sT2}, s{sST+1}, s{sT2}")
        a(f"v_mov_b32 v20, s{sST}")
        a(f"v_mov_b32 v21, s{sT2}")
        a(f"v_mov_b32 v22, s{sST+2}")
        a(f"v_mov_b32 v23, s{sST+3}")
        a("v_mov_b32 v17, 0")
        for k in range(8):
            a(f"v_mov_b32 v{24+k}, s{sST+2*k}")
        a(f"v_cmp_eq_u32 vcc, 0, v{vLANE}")
        a(f"s_and_saveexec_b64 s[{sEX}:{sEX+1}], vcc")
        a(f"buffer_store_dwordx4 v[20:23], v17, {SR(SRD_D)}, s{sT0} offen")
        a(f"buffer_store_dwordx4 v[24:27], v17, {SR(SRD_D)}, s{sT1} offen")
        a(f"buffer_store_dwordx4 v[28:31], v17, {SR(SRD_D)}, s{sT1} offen offset:16")

    a.label(f"{NAME}_kernel")
    a("s_cmp_ge_u32 s2, 256")
    a("s_cbranch_scc1 L_end")
    if STAMP:
        for k in range(8):
            a(f"s_mov_b64 s[{sST+2*k}:{sST+2*k+1}], 0")
    stamp(0)
    if DIAG:
        a(f"s_memrealtime s[{sST}:{sST+1}]")
    a("s_load_dwordx16 s[4:19], s[0:1], 0")
    a("s_load_dwordx8 s[20:27], s[0:1], 64")
    a("v_lshrrev_b32 v2, 6, v0")
    a(f"v_and_b32 v{vLANE}, 63, v0")
    a("v_readfirstlane_b32 s3, v2")
    a(f"v_and_b32 v{vJ}, 15, v{vLANE}")
    a(f"v_lshrrev_b32 v{vG}, 4, v{vLANE}")
    a(f"s_bfe_u32 s{sH}, s2, 0x50002")
    a(f"s_lshr_b32 s{sB}, s2, 7")
    a(f"s_and_b32 s{sS}, s2, 3")
    a(f"s_lshl_b32 s{sPID}, s{sB}, 2")
    a(f"s_add_u32 s{sPID}, s{sPID}, s{sS}")
    a(f"s_lshl_b32 s{sLW}, s{sH}, 3")
    a(f"s_add_u32 s{sLW}, s{sLW}, s{sPID}")
    a(f"s_mov_b32 s{sL2E}, {LOG2E:#x}")

    def masks():
        a(f"v_and_b32 v{vT}, 1, v{vLANE}")
        a(f"v_lshlrev_b32 v{vT}, 4, v{vT}")
        a(f"v_mov_b32 v{vU}, 0xffff")
        a(f"v_lshlrev_b32 v{vU}, v{vT}, v{vU}")
        a(f"v_bfe_u32 v{vT}, v{vLANE}, 1, 2")
        for r in range(4):
            a(f"v_cmp_eq_u32 vcc, {r}, v{vT}")
            a(f"v_cndmask_b32 v{vMASK+r}, 0, v{vU}, vcc")

    def flagpoll(nd, soff, vaddr, sleep, lane0):
        ftop = a.newlabel("flag")
        fdone = a.newlabel("flagd")
        a(f"s_mov_b32 s{sCNT}, 0x40000")
        a(f"s_mov_b32 s{sIT}, 0x01010101")
        if lane0:
            a("s_mov_b64 exec, 1")
        a.label(ftop)
        if nd == 2:
            a(f"buffer_load_dwordx2 v[{vT}:{vU}], v{vaddr}, {SR(SRD_D)}, {soff} offen sc1")
            a("s_waitcnt vmcnt(0)")
            a(f"v_and_b32 v{vT}, v{vT}, v{vU}")
        else:
            a(f"buffer_load_dword v{vT}, v{vaddr}, {SR(SRD_D)}, {soff} offen sc1")
            a("s_waitcnt vmcnt(0)")
        a(f"v_cmp_ne_u32 vcc, s{sIT}, v{vT}")
        a(f"s_cbranch_vccz {fdone}")
        a(f"s_sub_u32 s{sCNT}, s{sCNT}, 1")
        a(f"s_cbranch_scc1 {fdone}")
        a(f"s_sleep {sleep}")
        a(f"s_branch {ftop}")
        a.label(fdone)
        if lane0:
            a("s_mov_b64 exec, -1")

    a("s_cmp_eq_u32 s3, 0")
    a("s_cbranch_scc1 L_A0")
    a("s_cmp_eq_u32 s3, 1")
    a("s_cbranch_scc1 L_A1")

    if CPF:
        a(f"s_getpc_b64 s[{sT0}:{sT1}]")
        a.label("L_pc")
        a(f"s_sub_u32 s{sT0}, s{sT0}, L_pc-{NAME}_kernel")
        a(f"s_subb_u32 s{sT1}, s{sT1}, 0")
        a(f"v_subrev_u32 v{vT}, 128, v0")
        a(f"v_lshlrev_b32 v{vT}, 4, v{vT}")
        for k in range(CPF):
            a(f"v_min_u32 v{vU}, L_codeend-{NAME}_kernel-16, v{vT}")
            a(f"global_load_dwordx4 {R(200+4*k)}, v{vU}, s[{sT0}:{sT1}]")
            a(f"v_add_u32 v{vT}, 4096, v{vT}")
    a(f"v_and_b32 v{vT}, 3, v{vLANE}")
    a(f"v_lshlrev_b32 v{vKO}, 4, v{vT}")
    a(f"v_bfe_u32 v{vT}, v{vLANE}, 2, 2")
    a(f"v_lshl_add_u32 v{vKO}, v{vT}, 8, v{vKO}")
    a(f"v_lshl_add_u32 v{vKO}, v{vG}, 6, v{vKO}")
    a(f"v_lshlrev_b32 v{vVO}, 4, v{vLANE}")
    a(f"s_lshl_b32 s{sT0}, s{sB}, 5")
    a(f"s_add_u32 s{sT0}, s{sT0}, s{sH}")
    a(f"s_lshl_b32 s{sOFF}, s{sT0}, 21")
    a(f"s_lshl_b32 s{sT0}, s{sS}, 2")
    a(f"s_add_u32 s{sT0}, s{sT0}, s3")
    a(f"s_sub_u32 s{sT0}, s{sT0}, 2")
    a(f"s_lshl_b32 s{sT0}, s{sT0}, 12")
    a(f"s_add_u32 s{sOFF}, s{sOFF}, s{sT0}")
    a("s_waitcnt lgkmcnt(0)")
    srd(a, SRD_A, sK, 0x8000000)
    srd(a, SRD_B, sV, 0x8000000)

    BAD = 0x40000000
    NSV = 32 - NP
    NDYN = 16 * NP
    assert NP % 2 == 0 and NL % 2 == 0
    BUF = [vWIN, vWIN + 16]
    BUFL = vWIN + 32
    SC = [vWIN + 48, vWIN + 52]
    PK = vWIN + 56
    vSW = [vWIN + 60, vWIN + 61, vWIN + 62]
    vSL, vSR, vCO, vSG, vTG = vWIN + 63, vWIN + 64, vWIN + 65, vWIN + 66, vWIN + 67
    SRD_X = SRD_C
    sBASE, sKI, sVI, sCA, sCP, sCV, sDYN, sSCB = 86, 87, 88, 67, 68, 69, 90, 91
    sUO = [94, 95]
    sRET = 92

    def loads(buf, voff, srd_, so):
        for m in range(4):
            a(f"buffer_load_dwordx4 {R(buf+4*m)}, v{voff}, {SR(srd_)}, s{so} offen offset:{1024*m} {POL}")

    def load1(buf, m, voff, srd_, so):
        a(f"buffer_load_dwordx4 {R(buf+4*m)}, v{voff}, {SR(srd_)}, s{so} offen offset:{1024*m} {POL}")

    def kbody(buf, vsw, refill):
        for m in range(4):
            c = "0" if m == 0 else R(vS)
            if refill and (FINE or m == 0):
                a(f"s_waitcnt vmcnt({7 if FINE else 4})")
            a(f"v_mfma_f32_16x16x32_bf16 {R(vS)}, {R(buf+4*m)}, {R(vQB+4*m)}, {c}")
            if refill and FINE:
                load1(buf, m, vCO, SRD_X, sOFF)
        if refill:
            if not FINE:
                loads(buf, vCO, SRD_X, sOFF)
            a(f"s_bfe_u32 s{sT0}, s{sOFF}, 0x50010")
            a(f"s_lshl_b32 s{sT0}, s{sT0}, 8")
            a(f"s_add_u32 s{sOFF}, s{sOFF}, 0x10000")
        a(f"v_mov_b32_dpp v{vT}, v{vS} quad_perm:[0,0,0,0] {DPPM}")
        for e in range(1, 4):
            a(f"v_add_f32_dpp v{vT}, v{vS+e}, v{vT} quad_perm:[{e},{e},{e},{e}] {DPPM}")
        rne(a, [vT])
        a(f"v_mul_f32 v{vT}, {SCALE:#x}, v{vT}")
        rne(a, [vT])
        a(f"v_max_f32 v{vM}, v{vM}, v{vT}")
        a(f"ds_write_b32 v{vsw}, v{vT} offset:{L_SC}")
        if refill:
            a(f"v_add_u32 v{vsw}, s{sT0}, v{vSL}")
        else:
            a(f"v_add_u32 v{vsw}, 256, v{vsw}")

    def pbody(sc):
        for m in range(4):
            a(f"v_fma_f32 v{sc+m}, v{sc+m}, s{sL2E}, v{vMN}")
        for m in range(4):
            a(f"v_exp_f32 v{sc+m}, v{sc+m}")
        for m in range(4):
            a(f"v_cvt_pk_bf16_f32 v{PK+m}, v{sc+m}, v{sc+m}")
        a(f"v_add_f32 v{sc}, v{sc}, v{sc+1}")
        a(f"v_add_f32 v{sc+2}, v{sc+2}, v{sc+3}")
        a(f"v_add_f32 v{vL}, v{vL}, v{sc}")
        a(f"v_add_f32 v{vL}, v{vL}, v{sc+2}")

    PBX = vWIN + 68

    PBS = [PBX, BUFL]

    def buildall(x=0):
        for m in range(4):
            for r in range(4):
                a(f"v_and_b32 v{PBS[x]+4*m+r}, v{PK+m}, v{vMASK+r}")

    def vbody(buf, so, cnt, x=0):
        for m in range(4):
            if FINE or m == 0:
                a(f"s_waitcnt vmcnt({cnt if FINE else cnt - 3})")
            a(f"v_mfma_f32_16x16x32_bf16 {R(vACC)}, {R(buf+4*m)}, {R(PBS[x]+4*m)}, {R(vACC)}")
            if FINE:
                load1(buf, m, vCO if x == 0 else vVO, SRD_X if x == 0 else SRD_B, so)
        if not FINE:
            loads(buf, vCO if x == 0 else vVO, SRD_X if x == 0 else SRD_B, so)

    def sclaim():
        sk = a.newlabel("cl")
        a(f"s_cmp_ge_u32 s{sCP}, {NDYN}")
        a(f"s_cbranch_scc1 {sk}")
        a(f"s_mov_b32 s{sCV}, 1")
        a(f"s_atomic_add s{sCV}, s[{sWS}:{sWS+1}], s{sCA} glc")
        a.label(sk)

    def dynnext():
        a("s_waitcnt lgkmcnt(0)")
        a(f"s_add_u32 s{sCP}, s{sCV}, 1")
        a(f"s_lshl_b32 s{sT1}, s{sCP}, 12")
        a(f"s_add_u32 s{sT1}, s{sT1}, s{sDYN}")
        a(f"s_cmp_lt_u32 s{sCP}, {NDYN}")
        a(f"s_cselect_b32 s{sUO[0]}, s{sT1}, {BAD:#x}")

    srd(a, SRD_X, sK, 0x8000000)
    a(f"s_mov_b32 s{sBASE}, s{sOFF}")
    a(f"s_sub_u32 s{sT4}, s3, 2")
    a(f"s_mul_i32 s{sT5}, s{sT4}, {NL*4096}")
    a(f"s_add_u32 s{sT5}, s{sT5}, {L_TOTAL}")
    a(f"v_add_u32 v{vA2}, s{sT5}, v{vVO}")
    a(f"v_mov_b32 v{vCO}, v{vKO}")
    a("s_barrier")
    loads(BUF[0], vKO, SRD_A, sOFF)
    a(f"s_add_u32 s{sOFF}, s{sOFF}, 0x10000")
    masks()
    a(f"s_andn2_b32 s{sCA}, s{sLW}, 3")
    a(f"s_lshl_b32 s{sCA}, s{sCA}, 12")
    a(f"s_add_u32 s{sCA}, s{sCA}, {CNT}")
    a(f"s_mov_b32 s{sCV}, 0")
    a(f"s_mov_b32 s{sCP}, 0")
    a(f"s_lshl_b32 s{sT0}, s{sB}, 5")
    a(f"s_add_u32 s{sT0}, s{sT0}, s{sH}")
    a(f"s_lshl_b32 s{sDYN}, s{sT0}, 21")
    a(f"s_add_u32 s{sDYN}, s{sDYN}, {16*NSV*4096}")
    for r in range(4):
        a(f"v_mov_b32 v{vACC+r}, 0")
    a(f"v_mov_b32 v{vL}, 0")
    a(f"v_mov_b32 v{vM}, 0xff800000")
    a(f"v_and_b32 v{vT}, 3, v{vJ}")
    a(f"v_lshl_add_u32 v{vT}, v{vG}, 2, v{vT}")
    a(f"v_lshlrev_b32 v{vA0}, 4, v{vT}")
    a(f"v_lshrrev_b32 v{vA1}, 2, v{vJ}")
    a(f"v_lshlrev_b32 v{vE0}, 3, v{vG}")
    a(f"v_add_u32 v{vE0}, v{vE0}, v{vJ}")
    a(f"v_lshlrev_b32 v{vE0}, 4, v{vE0}")
    a(f"s_lshl_b32 s{sT1}, s{sT4}, 9")
    a(f"v_add_u32 v{vE0}, s{sT1}, v{vE0}")
    a(f"s_lshl_b32 s{sT1}, s{sT4}, 3")
    a(f"v_mov_b32 v{vE1}, s{sT1}")
    a(f"v_lshlrev_b32 v{vSG}, 4, v{vG}")
    a(f"s_lshl_b32 s{sT1}, s{sT4}, 6")
    a(f"v_add_u32 v{vSR}, s{sT1}, v{vSG}")
    a(f"v_lshl_add_u32 v{vSL}, v{vA1}, 2, v{vSR}")
    a(f"v_mov_b32 v{vSW[0]}, v{vSL}")
    a(f"v_add_u32 v{vSW[1]}, 256, v{vSL}")
    a(f"v_add_u32 v{vSW[2]}, 512, v{vSL}")
    a("s_barrier")
    loads(BUF[1], vKO, SRD_A, sOFF)
    a(f"s_add_u32 s{sOFF}, s{sOFF}, 0x10000")
    a(f"s_mov_b32 s{sIT}, 0")
    a(f"s_mov_b32 s{sKI}, {NSV // 2}")
    a(f"v_mov_b32 v{vW}, 0")
    a.label("L_lpro")
    a(f"ds_read_b32 v{vT}, v{vW} offset:{L_QF}")
    a("s_waitcnt lgkmcnt(0)")
    a(f"v_cmp_ne_u32 vcc, 0, v{vT}")
    a("s_cbranch_vccnz L_qready")
    a(f"s_cmp_lt_u32 s{sIT}, {NL}")
    a("s_cbranch_scc1 L_lgo")
    a("s_sleep 1")
    a("s_branch L_lpro")
    a.label("L_lgo")
    for rep in range(2):
        a(f"s_mov_b32 m0, s{sT5}")
        a("s_waitcnt vmcnt(4)")
        for m in range(4):
            a(f"buffer_load_dwordx4 v{vKO}, {SR(SRD_A)}, s{sOFF} offen offset:{1024*m} {POL} lds")
        a(f"s_add_u32 s{sT5}, s{sT5}, 4096")
        a(f"s_add_u32 s{sOFF}, s{sOFF}, 0x10000")
    a(f"s_add_u32 s{sIT}, s{sIT}, 2")
    a(f"s_sub_u32 s{sKI}, s{sKI}, 1")
    a("s_branch L_lpro")
    a.label("L_qready")
    stamp(2, -1)
    a(f"ds_read_b128 {R(vS)}, v{vA0} offset:{L_QV}")
    a("s_waitcnt lgkmcnt(0)")
    for m in range(4):
        a(f"v_cmp_eq_u32 vcc, {m}, v{vA1}")
        for r in range(4):
            a(f"v_cndmask_b32 v{vQB+4*m+r}, 0, v{vS+r}, vcc")
    a(f"v_mov_b32 v{vA0}, 0")
    a(f"v_mov_b32 v{vA1}, 1")
    a.label("L_kloop")
    a(f"s_sub_u32 s{sKI}, s{sKI}, 1")
    a(f"s_cmp_lg_u32 s{sKI}, 0")
    a("s_cbranch_scc1 L_kgo")
    a(f"s_mov_b32 s{SRD_X}, s{SRD_B}")
    a(f"s_mov_b32 s{SRD_X+1}, s{SRD_B+1}")
    a(f"s_mov_b32 s{sOFF}, s{sBASE}")
    a(f"v_mov_b32 v{vCO}, v{vVO}")
    a.label("L_kgo")
    for x in range(2):
        kbody(BUF[x], vSW[x], True)
    a(f"s_cmp_eq_u32 s{sIT}, 0")
    a("s_cbranch_scc1 L_knol")
    a("s_waitcnt vmcnt(8)")
    a.label("L_kl")
    for m in range(4):
        a(f"ds_read_b128 {R(BUFL+4*m)}, v{vA2} offset:{1024*m}")
    a(f"v_add_u32 v{vA2}, 0x1000, v{vA2}")
    a("s_waitcnt lgkmcnt(0)")
    kbody(BUFL, vSW[2], False)
    a(f"s_sub_u32 s{sIT}, s{sIT}, 1")
    a(f"s_bitcmp1_b32 s{sIT}, 0")
    a("s_cbranch_scc1 L_kl")
    a.label("L_knol")
    a(f"s_cmp_lg_u32 s{sKI}, 0")
    a("s_cbranch_scc1 L_kloop")
    stamp(5, -1)
    allreduce(a, [vM], [vW], op="v_max_f32", quad=False)
    a(f"v_mul_f32 v{vMN}, {NLOG2E:#x}, v{vM}")
    a(f"s_mov_b32 s{sVI}, {NSV // 2}")
    a.label("L_vloop")
    a(f"ds_read_b128 {R(SC[0])}, v{vSR} offset:{L_SC}")
    a(f"ds_read_b128 {R(SC[1])}, v{vSR} offset:{L_SC+256}")
    a(f"v_add_u32 v{vSR}, 512, v{vSR}")
    a(f"s_sub_u32 s{sVI}, s{sVI}, 1")
    a(f"s_mov_b32 s{sUO[0]}, s{sOFF}")
    a(f"s_add_u32 s{sUO[1]}, s{sOFF}, 0x10000")
    a(f"s_add_u32 s{sOFF}, s{sOFF}, 0x20000")
    a("s_waitcnt lgkmcnt(0)")
    for x in range(2):
        pbody(SC[x])
        buildall(x)
    a(f"s_cmp_lg_u32 s{sVI}, 0")
    a("s_cbranch_scc1 L_vnd")
    dynnext()
    a(f"s_mov_b32 s{sUO[1]}, s{sUO[0]}")
    a(f"s_mov_b32 s{SRD_X}, s{SRD_A}")
    a(f"s_mov_b32 s{SRD_X+1}, s{SRD_A+1}")
    a(f"v_mov_b32 v{vCO}, v{vKO}")
    a.label("L_vnd")
    for x in range(2):
        vbody(BUF[x], sUO[x], 7, x)
        if x == CLX:
            a(f"s_cmp_gt_u32 s{sVI}, 1")
            a("s_cbranch_scc1 L_vnc")
            sclaim()
            a.label("L_vnc")
    a(f"s_cmp_lg_u32 s{sVI}, 0")
    a("s_cbranch_scc1 L_vloop")
    a(f"v_mul_f32 v{vL}, 0x3e800000, v{vL}")
    stamp(6, -1)
    a.label("L_dloop")
    a(f"s_cmp_ge_u32 s{sUO[0]}, {BAD:#x}")
    a("s_cbranch_scc1 L_sdone")
    a("s_waitcnt vmcnt(4)")
    for m in range(4):
        c = "0" if m == 0 else R(vS)
        a(f"v_mfma_f32_16x16x32_bf16 {R(vS)}, {R(BUF[0]+4*m)}, {R(vQB+4*m)}, {c}")
    dynnext()
    loads(BUF[0], vKO, SRD_A, sUO[0])
    sclaim()
    a(f"v_mov_b32_dpp v{vT}, v{vS} quad_perm:[0,0,0,0] {DPPM}")
    for e in range(1, 4):
        a(f"v_add_f32_dpp v{vT}, v{vS+e}, v{vT} quad_perm:[{e},{e},{e},{e}] {DPPM}")
    rne(a, [vT])
    a(f"v_mul_f32 v{vT}, {SCALE:#x}, v{vT}")
    rne(a, [vT])
    a(f"v_cmp_gt_f32 vcc, v{vT}, v{vM}")
    a("s_cbranch_vccnz L_slow")
    a.label("L_back")
    a(f"v_fma_f32 v{vT}, v{vT}, s{sL2E}, v{vMN}")
    a(f"v_exp_f32 v{vT}, v{vT}")
    a(f"v_add_f32 v{vL}, v{vL}, v{vT}")
    a(f"v_cvt_pk_bf16_f32 v{vP}, v{vT}, v{vT}")
    for m in range(4):
        for r in range(4):
            a(f"v_and_b32_dpp v{PBX+4*m+r}, v{vP}, v{vMASK+r} row_newbcast:{4*m} {DPPM}")
    a("s_waitcnt vmcnt(4)")
    for m in range(4):
        a(f"v_mfma_f32_16x16x32_bf16 {R(vACC)}, {R(BUF[1]+4*m)}, {R(PBX+4*m)}, {R(vACC)}")
    loads(BUF[1], vVO, SRD_B, sUO[0])
    a("s_branch L_dloop")
    a.label("L_slow")
    a("s_nop 0")
    a(f"v_max_f32_dpp v{vU}, v{vT}, v{vT} row_ror:4 {DPPM}")
    a(f"v_max_f32_dpp v{vU}, v{vU}, v{vU} row_ror:8 {DPPM}")
    a(f"v_mov_b32 v{vW}, v{vU}")
    a(f"v_permlane16_swap_b32 v{vU}, v{vW}")
    a(f"v_max_f32 v{vU}, v{vU}, v{vW}")
    a(f"v_mov_b32 v{vW}, v{vU}")
    a(f"v_permlane32_swap_b32 v{vU}, v{vW}")
    a(f"v_max3_f32 v{vU}, v{vU}, v{vW}, v{vM}")
    a(f"v_sub_f32 v{vW}, v{vM}, v{vU}")
    a(f"v_mul_f32 v{vW}, s{sL2E}, v{vW}")
    a(f"v_exp_f32 v{vW}, v{vW}")
    a(f"v_mov_b32 v{vM}, v{vU}")
    a(f"v_mul_f32 v{vMN}, {NLOG2E:#x}, v{vU}")
    for r in range(4):
        a(f"v_mul_f32 v{vACC+r}, v{vACC+r}, v{vW}")
    a(f"v_mul_f32 v{vL}, v{vL}, v{vW}")
    a("s_branch L_back")
    a.label("L_sdone")
    a(f"ds_write_b32 v{vA0}, v{vA1} offset:{L_QF+4}")
    stamp(3, -1)
    a("s_mov_b32 exec_lo, 0x00ff00ff")
    a("s_mov_b32 exec_hi, 0x00ff00ff")
    a("s_nop 3")
    a(f"ds_write_b128 v{vE0}, {R(vACC)} offset:{L_PART}")
    a("s_mov_b64 exec, -1")
    allreduce(a, [vL], [vW], quad=False)
    a(f"v_mov_b32 v{vMN}, v{vL}")
    a(f"ds_write_b64 v{vE1}, v[{vM}:{vMN}] offset:{L_PML}")
    a("s_waitcnt lgkmcnt(0)")
    a("s_barrier")
    stamp_flush(4)
    a("s_endpgm")

    def load_tag():
        a(f"s_mov_b32 s{sT2}, {GEN:#x}")
        a(f"s_load_dword s{sTAG}, s[{sWS}:{sWS+1}], s{sT2}")

    def make_tag():
        a(f"s_add_u32 s{sGEN}, s{sTAG}, 1")
        a(f"s_mov_b32 s{sTMK}, 0xff")
        a(f"v_and_b32 v{vTAG}, s{sGEN}, v{vTAG}")
        a(f"v_and_b32 v{vTAG+1}, s{sGEN}, v{vTAG+1}")

    def pre_tag():
        a(f"v_mov_b32 v{vTAG}, 0xff")
        a(f"v_mov_b32 v{vTAG+1}, 7")

    def publish(src, voff, soff, off, fine=False):
        mk, tg = ("7", vTAG + 1) if fine else (f"s{sTMK}", vTAG)
        for r in range(4):
            a(f"v_bfi_b32 v{src+r}, {mk}, v{tg}, v{src+r}")
        a(f"buffer_store_dwordx4 {R(src)}, v{voff}, {SR(SRD_WS)}, s{soff} offen offset:{off} sc1")

    def gather(dst, n, voff, soff, step, off, sleep, name, lanes="-1", fine=False, lastmask=None):
        mk, tg = ("7", vTAG + 1) if fine else (f"s{sTMK}", vTAG)
        top = a.newlabel(name)
        done = a.newlabel(name + "d")
        a(f"s_mov_b32 s{sCNT}, 0x40000")
        a(f"s_mov_b32 s{sPM}, {(1 << n) - 1}")
        if lanes != "-1":
            a(f"s_mov_b64 exec, {lanes}")
        a.label(top)
        if n > 1:
            a(f"s_mov_b32 s{sT1}, s{soff}")
        for t in range(n):
            sk = a.newlabel(name + "s")
            if n > 1:
                a(f"s_bitcmp1_b32 s{sPM}, {t}")
                a(f"s_cbranch_scc0 {sk}")
            if lastmask and t == n - 1:
                a(f"s_mov_b32 exec_hi, {lastmask:#x}")
            a(f"buffer_load_dwordx4 {R(dst+4*t)}, v{voff}, {SR(SRD_WS)}, s{sT1 if n > 1 else soff} offen offset:{off} sc1")
            if lastmask and t == n - 1:
                a("s_mov_b32 exec_hi, -1")
            a.label(sk)
            if t < n - 1:
                a(f"s_add_u32 s{sT1}, s{sT1}, {step}")
        a("s_waitcnt vmcnt(0)")
        for t in range(n):
            d = dst + 4 * t
            sk = a.newlabel(name + "c")
            if n > 1:
                a(f"s_bitcmp1_b32 s{sPM}, {t}")
                a(f"s_cbranch_scc0 {sk}")
            if lastmask and t == n - 1:
                a(f"s_mov_b32 exec_hi, {lastmask:#x}")
            for r in range(4):
                a(f"v_xor_b32 v{d+r}, v{d+r}, v{tg}")
            a(f"v_or3_b32 v{vT}, v{d}, v{d+1}, v{d+2}")
            a(f"v_or_b32 v{vT}, v{vT}, v{d+3}")
            a(f"v_and_b32 v{vT}, {mk}, v{vT}")
            a(f"v_cmp_ne_u32 vcc, 0, v{vT}")
            if lastmask and t == n - 1:
                a("s_mov_b32 exec_hi, -1")
            if n > 1:
                a(f"s_cbranch_vccnz {sk}")
                a(f"s_bitset0_b32 s{sPM}, {t}")
                a.label(sk)
        if n > 1:
            a(f"s_cmp_eq_u32 s{sPM}, 0")
            a(f"s_cbranch_scc1 {done}")
        else:
            a(f"s_cbranch_vccz {done}")
        a(f"s_sub_u32 s{sCNT}, s{sCNT}, 1")
        a(f"s_cbranch_scc1 {done}")
        if sleep:
            a(f"s_sleep {sleep}")
        a(f"s_branch {top}")
        a.label(done)
        if lanes != "-1":
            a("s_mov_b64 exec, -1")

    def gatherP(fin, bufs, n, voff, soff, step, off, name, gap, items=None):
        P = len(bufs)
        if items is None:
            items = [(voff, soff, t * step) for t in range(n)]
        n = len(items)
        top = a.newlabel(name)
        done = a.newlabel(name + "d")
        a(f"s_mov_b32 s{sCNT}, 0x40000")
        a(f"s_mov_b32 s{sPM}, {(1 << n) - 1}")
        for t, (vo, so, add) in enumerate(items):
            a(f"s_add_u32 s{sPM+1+t}, s{so}, {add}")

        def issue(bf):
            for t, (vo, so, add) in enumerate(items):
                a(f"buffer_load_dwordx4 {R(bf+4*t)}, v{vo}, {SR(SRD_WS)}, s{sPM+1+t} offen offset:{off} sc1")
        for p in range(P - 1):
            issue(bufs[p])
            a(f"s_sleep {gap}")
        a.label(top)
        for p in range(P):
            issue(bufs[(p + P - 1) % P])
            a(f"s_waitcnt vmcnt({n*(P-1)})")
            bf = bufs[p]
            for t in range(n):
                d = bf + 4 * t
                sk = a.newlabel(name + "c")
                if n > 1:
                    a(f"s_bitcmp1_b32 s{sPM}, {t}")
                    a(f"s_cbranch_scc0 {sk}")
                for r in range(4):
                    a(f"v_xor_b32 v{fin+4*t+r}, v{d+r}, v{vTAG}")
                a(f"v_or3_b32 v{vT}, v{fin+4*t}, v{fin+4*t+1}, v{fin+4*t+2}")
                a(f"v_or_b32 v{vT}, v{vT}, v{fin+4*t+3}")
                a(f"v_and_b32 v{vT}, s{sTMK}, v{vT}")
                a(f"v_cmp_ne_u32 vcc, 0, v{vT}")
                if n > 1:
                    a(f"s_cbranch_vccnz {sk}")
                    a(f"s_bitset0_b32 s{sPM}, {t}")
                    a(f"s_mov_b32 s{sPM+1+t}, 0x40000000")
                    a.label(sk)
                else:
                    a(f"s_cbranch_vccz {done}")
            if n > 1:
                a(f"s_cmp_eq_u32 s{sPM}, 0")
                a(f"s_cbranch_scc1 {done}")
        a(f"s_sub_u32 s{sCNT}, s{sCNT}, 1")
        a(f"s_cbranch_scc0 {top}")
        a.label(done)

    def ffn2_index():
        a(f"s_lshr_b32 s{sT1}, s{sLW}, 4")
        a(f"s_add_u32 s{sT1}, s{sT1}, 80")
        a(f"s_and_b32 s{sT2}, s{sLW}, 0x8f")
        a(f"s_cmp_eq_u32 s{sT2}, 9")
        a(f"s_cselect_b32 s{sKF}, s{sT1}, 255")
        a(f"s_sub_u32 s{sT1}, s{sLW}, 176")
        a(f"s_cmp_ge_u32 s{sLW}, 176")
        a(f"s_cselect_b32 s{sKF}, s{sT1}, s{sKF}")
        a(f"s_mov_b32 s{sT1}, s{sKF}")
        a(f"s_lshr_b32 s{sT4}, s{sT1}, 2")
        a(f"s_and_b32 s{sT5}, s{sT1}, 3")
        a(f"s_lshl_b32 s{sT3}, s{sT4}, 16")
        a(f"s_lshl_b32 s{sT1}, s{sT5}, 8")
        a(f"s_add_u32 s{sT3}, s{sT3}, s{sT1}")

    def wd_loads(vaddr):
        srd(a, SRD_C, sWD, 1376 * 1024)
        a(f"s_cmp_lt_u32 s{sKF}, 88")
        a(f"s_cselect_b32 s{SRD_C+2}, {1376*1024}, 0")
        for t in range(16):
            if t % 4 == 0 and t:
                a(f"s_add_u32 s{sT3}, s{sT3}, 4096")
            a(f"buffer_load_dwordx4 {R(TB+4*t)}, v{vaddr}, {SR(SRD_C)}, s{sT3} offen offset:{1024*(t%4)} {WPOL}")

    def dp_publish(voff):
        a(f"s_lshl_b32 s{sT0}, s{sKF}, 12")
        a(f"s_add_u32 s{sT0}, s{sT0}, {DPB + 168*4096}")
        publish(vACC, voff, sT0, 0)

    def ldswait(off, sleep, name):
        a.label(name)
        a(f"s_sleep {sleep}")
        a(f"ds_read_b32 v{vT}, v{vW} offset:{off}")
        a("s_waitcnt lgkmcnt(0)")
        a(f"v_cmp_eq_u32 vcc, 0, v{vT}")
        a(f"s_cbranch_vccnz {name}")

    a.label("L_A0")
    if EXP & 8:
        a("s_endpgm")
    a("s_setprio 3")
    pre_tag()
    a(f"v_lshlrev_b32 v{vVO}, 4, v{vLANE}")
    for r in range(4):
        a(f"v_mov_b32 v{vS+r}, -1")
    a(f"s_lshl_b32 s{sOFF}, s{sLW}, 12")
    a(f"v_lshlrev_b32 v{vA0}, 17, v{vG}")
    a(f"v_lshl_add_u32 v{vA0}, v{vJ}, 4, v{vA0}")
    a(f"s_lshl_b32 s{sT0}, s{sPID}, 19")
    a(f"s_lshl_b32 s{sT1}, s{sH}, 8")
    a(f"s_add_u32 s{sT0}, s{sT0}, s{sT1}")
    a("s_waitcnt lgkmcnt(0)")
    srd(a, SRD_A, sX, 2048)
    a(f"buffer_load_dwordx4 {R(vPB0)}, v{vVO}, {SR(SRD_A)}, 0 offen")
    a(f"buffer_load_dwordx4 {R(vPB1)}, v{vVO}, {SR(SRD_A)}, 0 offen offset:1024")
    srd(a, SRD_WS, sWS, WSZ)
    load_tag()
    a("s_mov_b64 exec, 0xffff")
    a(f"buffer_store_dwordx4 {R(vS)}, v{vVO}, {SR(SRD_WS)}, s{sOFF} offen offset:{CNT} sc1")
    a("s_mov_b64 exec, -1")
    srd(a, SRD_B, sWQ, 0x400000)
    for t in range(16):
        a(f"buffer_load_dwordx4 {R(TA+4*t)}, v{vA0}, {SR(SRD_B)}, s{sT0} offen {WPOL}")
        if t < 15:
            a(f"s_add_u32 s{sT0}, s{sT0}, 8192")
    if EARLY >= 2:
        a("s_barrier")
    masks()
    a("s_waitcnt vmcnt(17)")
    stamp(2)
    X = [TC + i for i in range(16)]
    for bb, src in ((0, vPB0), (1, vPB1)):
        for k in range(4):
            a(f"v_lshlrev_b32 v{X[bb*8+2*k]}, 16, v{src+k}")
            a(f"v_and_b32 v{X[bb*8+2*k+1]}, 0xffff0000, v{src+k}")
    S0, S1, Tm0, Tm1 = TC + 16, TC + 17, TC + 18, TC + 19
    Dv = [TC + 20 + i for i in range(16)]
    for bb, s in ((0, S0), (1, S1)):
        a(f"v_add_f32 v{s}, v{X[bb*8]}, v{X[bb*8+1]}")
    for k in range(2, 8):
        for bb, s in ((0, S0), (1, S1)):
            a(f"v_add_f32 v{s}, v{s}, v{X[bb*8+k]}")
    allreduce(a, [S0, S1], [Tm0, Tm1])
    a(f"v_mul_f32 v{S0}, 0x3b000000, v{S0}")
    a(f"v_mul_f32 v{S1}, 0x3b000000, v{S1}")
    V0, V1 = TC + 36, TC + 37
    for bb, s in ((0, S0), (1, S1)):
        for k in range(8):
            a(f"v_sub_f32 v{Dv[bb*8+k]}, v{X[bb*8+k]}, v{s}")
    for bb, v in ((0, V0), (1, V1)):
        a(f"v_mul_f32 v{v}, v{Dv[bb*8]}, v{Dv[bb*8]}")
    for k in range(1, 8):
        for bb, v in ((0, V0), (1, V1)):
            a(f"v_fmac_f32 v{v}, v{Dv[bb*8+k]}, v{Dv[bb*8+k]}")
    allreduce(a, [V0, V1], [Tm0, Tm1])
    a(f"v_mul_f32 v{V0}, 0x3b000000, v{V0}")
    a(f"v_mul_f32 v{V1}, 0x3b000000, v{V1}")
    rne(a, [S0, S1, V0, V1])
    a(f"v_add_f32 v{V0}, 0x3727c5ac, v{V0}")
    a(f"v_add_f32 v{V1}, 0x3727c5ac, v{V1}")
    rne(a, [V0, V1])
    a(f"v_sqrt_f32 v{V0}, v{V0}")
    a(f"v_sqrt_f32 v{V1}, v{V1}")
    rne(a, [V0, V1])
    a(f"v_rcp_f32 v{V0}, v{V0}")
    a(f"v_rcp_f32 v{V1}, v{V1}")
    for bb, s in ((0, S0), (1, S1)):
        for k in range(8):
            a(f"v_sub_f32 v{Dv[bb*8+k]}, v{X[bb*8+k]}, v{s}")
    rne(a, Dv)
    for bb, v in ((0, V0), (1, V1)):
        for k in range(8):
            a(f"v_mul_f32 v{Dv[bb*8+k]}, v{Dv[bb*8+k]}, v{v}")
    for d in Dv:
        a(f"v_cvt_pk_bf16_f32 v{d}, v{d}, v{d}")
    a(f"v_lshlrev_b32 v{vA1}, 5, v{vLANE}")
    for bb in range(2):
        for k in range(2):
            a(f"ds_write_b128 v{vA1}, {R(Dv[bb*8+4*k])} offset:{L_XN + bb*2048 + 16*k}")
    a(f"s_cmp_ge_u32 s{sLW}, 88")
    a(f"s_cselect_b32 s{sT0}, 88, 0")
    a(f"s_cselect_b32 s{SRD_C}, s{sWU}, s{sWG}")
    a(f"s_cselect_b32 s{SRD_C+1}, s{sWU+1}, s{sWG+1}")
    a(f"s_and_b32 s{SRD_C+1}, s{SRD_C+1}, 0xffff")
    a(f"s_sub_u32 s{sT0}, s{sLW}, s{sT0}")
    a(f"s_cmp_lt_u32 s{sLW}, 176")
    a(f"s_cselect_b32 s{SRD_C+2}, {512*2752}, 0")
    a(f"s_mov_b32 s{SRD_C+3}, 0x20000")
    a(f"s_lshr_b32 s{sT1}, s{sT0}, 3")
    a(f"s_and_b32 s{sT5}, s{sT0}, 7")
    a(f"s_mul_i32 s{sT3}, s{sT5}, {64*2752}")
    a(f"s_lshl_b32 s{sT4}, s{sT1}, 8")
    a(f"s_add_u32 s{sT3}, s{sT3}, s{sT4}")
    a(f"v_mul_u32_u24 v{vA0}, {16*2752}, v{vG}")
    a(f"v_lshl_add_u32 v{vA0}, v{vJ}, 4, v{vA0}")
    a(f"s_lshl_b32 s{sT4}, s{sT1}, 4")
    a(f"v_add_u32 v{vT}, s{sT4}, v{vJ}")
    a(f"v_cmp_gt_u32 vcc, 172, v{vT}")
    a(f"v_mov_b32 v{vU}, 0x40000000")
    a(f"v_cndmask_b32 v{vA0}, v{vU}, v{vA0}, vcc")
    for t in range(16):
        a(f"buffer_load_dwordx4 {R(TB+4*t)}, v{vA0}, {SR(SRD_C)}, s{sT3} offen {WPOL}")
        if t < 15:
            a(f"s_add_u32 s{sT3}, s{sT3}, 2752")
    a(f"v_lshrrev_b32 v{vT}, 3, v{vJ}")
    a(f"v_lshlrev_b32 v{vKO}, 11, v{vT}")
    a(f"v_lshl_add_u32 v{vKO}, v{vG}, 6, v{vKO}")
    a(f"s_lshl_b32 s{sT0}, s{sPID}, 8")
    a(f"v_add_u32 v{vA1}, s{sT0}, v{vKO}")
    a("s_waitcnt lgkmcnt(0)")
    make_tag()
    if EARLY == 1:
        a("s_barrier")
    tile_gemv(a, TA, vA1, L_XN, waits={0: 28, 4: 24, 8: 20, 12: 16})
    publish(vACC, vVO, sOFF, QP, fine=True)
    if EARLY in (0, 3):
        a("s_barrier")
    stamp(3)
    if DIAG == 3:
        a(f"s_memrealtime s[{sST+4}:{sST+5}]")
    a(f"s_cmp_ge_u32 s{sLW}, 176")
    a("s_cbranch_scc1 L_A0_noffn1")
    a(f"s_lshl_b32 s{sT0}, s{sT5}, 8")
    a(f"v_add_u32 v{vA1}, s{sT0}, v{vKO}")
    tile_gemv(a, TB, vA1, L_XN, waits={0: 1})
    publish(vACC, vVO, sOFF, GP)
    a.label("L_A0_noffn1")
    stamp(4)
    a("s_setprio 0")
    if LWD:
        ffn2_index()
        a(f"s_cmp_lt_u32 s{sKF}, 88")
        a("s_cbranch_scc1 L_A0_ffn2")
        a(f"s_cmp_ge_u32 s{sLW}, 32")
        a("s_cbranch_scc1 L_A0_nogen")
        a("s_barrier")
        a("s_branch L_A0_final")
        a.label("L_A0_ffn2")
        a(f"v_lshlrev_b32 v{vA0}, 14, v{vG}")
        a(f"v_lshl_add_u32 v{vA0}, v{vJ}, 4, v{vA0}")
        a(f"v_lshrrev_b32 v{vT}, 3, v{vJ}")
        a(f"v_lshlrev_b32 v{vA1}, 8, v{vT}")
        a(f"v_lshl_add_u32 v{vA1}, v{vG}, 6, v{vA1}")
        a(f"v_mov_b32 v{vW}, 0")
        ldswait(L_QF + 8, 64, "L_A0_w1")
        ldswait(L_QF + 4, WSL, "L_A0_w2")
        wd_loads(vA0)
        a("s_setprio 2")
        a("s_barrier")
        tile_gemv(a, TB, vA1, L_VEC0, waits={0: 12, 4: 8, 8: 4, 12: 0})
        dp_publish(vVO)
        a.label("L_A0_final")
    a(f"s_cmp_ge_u32 s{sLW}, 32")
    a("s_cbranch_scc1 L_A0_nogen")
    a(f"s_lshr_b32 s{sT4}, s{sLW}, 3")
    a(f"s_and_b32 s{sT5}, s{sLW}, 7")
    a(f"s_and_b32 s{sT0}, s{sT5}, 1")
    a(f"s_lshl_b32 s{sT0}, s{sT0}, 9")
    a(f"s_lshl_b32 s{sT1}, s{sT4}, 7")
    a(f"s_add_u32 s{sT0}, s{sT0}, s{sT1}")
    a(f"s_lshr_b32 s{sT1}, s{sT5}, 1")
    a(f"s_lshl_b32 s{sT1}, s{sT1}, 5")
    a(f"s_add_u32 s{sT0}, s{sT0}, s{sT1}")
    a(f"v_and_b32 v{vT}, 31, v{vLANE}")
    a(f"v_add_u32 v{vT}, s{sT0}, v{vT}")
    a(f"v_lshlrev_b32 v{vA2}, 1, v{vT}")
    a(f"buffer_load_ushort v{vP}, v{vA2}, {SR(SRD_A)}, 0 offen")
    a(f"v_lshrrev_b32 v{vT}, 3, v{vLANE}")
    a(f"v_lshlrev_b32 v{vA0}, 14, v{vT}")
    a(f"v_and_b32 v{vA1}, 3, v{vT}")
    a(f"v_and_b32 v{vT}, 7, v{vLANE}")
    a(f"v_lshl_add_u32 v{vA0}, v{vT}, 4, v{vA0}")
    a(f"s_lshl_b32 s{sT4}, s{sT4}, 12")
    a(f"s_lshl_b32 s{sT5}, s{sT5}, 7")
    a(f"s_add_u32 s{sT4}, s{sT4}, s{sT5}")
    a(f"s_add_u32 s{sT5}, s{sT4}, {DPB + 168*4096}")
    if LWD == 2:
        a(f"v_min_u32 v{vKO}, {5*16384 + 127}, v{vA0}")
        a(f"v_and_b32 v{vT}, 7, v{vLANE}")
        a(f"v_and_b32 v{vKO}, 0x1c000, v{vKO}")
        a(f"v_lshl_add_u32 v{vKO}, v{vT}, 4, v{vKO}")
        srd(a, SRD_B, sOUT, 2048)
        a(f"s_lshl_b32 s{sT4}, s{sLW}, 13")
        a(f"s_add_u32 s{sT4}, s{sT4}, {YPB:#x}")
        a("s_setprio 3")
        items = [(vA0, sT5, 0), (vA0, sT5, 8 * 16384), (vKO, sT5, 16 * 16384)] + [(vVO, sT4, 1024 * t) for t in range(8)]
        gatherP(TA, [TB, TC], 11, None, None, 0, 0, "yp", PGAP, items=items)
        stamp(7)
        D0, Y0 = TA, TA + 12
        a("s_mov_b32 exec_hi, 0xffff")
        for r in range(4):
            a(f"v_add_f32 v{D0+r}, v{D0+r}, v{D0+8+r}")
        a("s_mov_b32 exec_hi, -1")
        for r in range(4):
            a(f"v_add_f32 v{D0+r}, v{D0+r}, v{D0+4+r}")
        for (x, y) in ((0, 1), (2, 3), (4, 5), (6, 7), (0, 2), (4, 6), (0, 4)):
            for r in range(4):
                a(f"v_add_f32 v{Y0+4*x+r}, v{Y0+4*x+r}, v{Y0+4*y+r}")
        regs = [D0 + r for r in range(4)] + [Y0 + r for r in range(4)]
        tmps = [D0 + 4 + r for r in range(4)] + [Y0 + 4 + r for r in range(4)]
        for r in regs:
            a(f"v_add_f32_dpp v{r}, v{r}, v{r} row_ror:8 {DPPM}")
        for sw in ("v_permlane16_swap_b32", "v_permlane32_swap_b32"):
            for r, t in zip(regs, tmps):
                a(f"v_mov_b32 v{t}, v{r}")
            for r, t in zip(regs, tmps):
                a(f"{sw} v{r}, v{t}")
            for r, t in zip(regs, tmps):
                a(f"v_add_f32 v{r}, v{r}, v{t}")
        a("s_mov_b32 exec_hi, 0")
        for r in range(1, 4):
            a(f"s_mov_b32 exec_lo, {0xff << (8*r):#x}")
            a(f"v_mov_b32 v{D0}, v{D0+r}")
            a(f"v_mov_b32 v{Y0}, v{Y0+r}")
        a("s_mov_b32 exec_lo, -1")
        rne(a, [D0, Y0])
        a(f"v_mul_f32 v{vU}, {NLOG2E:#x}, v{D0}")
        a(f"v_exp_f32 v{vU}, v{vU}")
        a(f"v_lshlrev_b32 v{vP}, 16, v{vP}")
        a(f"v_add_f32 v{vU}, 1.0, v{vU}")
        a(f"v_rcp_f32 v{vU}, v{vU}")
        a(f"v_mul_f32 v{D0}, v{D0}, v{vU}")
        rne(a, [D0])
        a(f"v_mul_f32 v{Y0}, v{Y0}, v{D0}")
        rne(a, [Y0])
        a(f"v_add_f32 v{Y0}, v{Y0}, v{vP}")
        a(f"v_cvt_pk_bf16_f32 v{Y0}, v{Y0}, v{Y0}")
        a(f"buffer_store_short v{Y0}, v{vA2}, {SR(SRD_B)}, 0 offen")
        a("s_branch L_A0_stored")
    for r in range(4):
        a(f"v_mov_b32 v{TA+8+r}, 0")
    if not LWD:
        for _ in range(3):
            a(f"s_sleep {PSL}")
    gather(TA, 3, vA0, sT5, 8 * 16384, 0, 2 if LWD else PSL, "dp", lastmask=0xffff)
    stamp(5)
    if DIAG == 4:
        a(f"s_memrealtime s[{sST+4}:{sST+5}]")

    def reduce_select(dst, n):
        for t in range(1, n):
            for r in range(4):
                a(f"v_add_f32 v{TA+r}, v{TA+r}, v{TA+4*t+r}")
        regs = [TA + r for r in range(4)]
        tmps = [TA + 4 + r for r in range(4)]
        for r in regs:
            a(f"v_add_f32_dpp v{r}, v{r}, v{r} row_ror:8 {DPPM}")
        for sw in ("v_permlane16_swap_b32", "v_permlane32_swap_b32"):
            for r, t in zip(regs, tmps):
                a(f"v_mov_b32 v{t}, v{r}")
            for r, t in zip(regs, tmps):
                a(f"{sw} v{r}, v{t}")
            for r, t in zip(regs, tmps):
                a(f"v_add_f32 v{r}, v{r}, v{t}")
        a(f"v_cndmask_b32 v{dst}, v{TA}, v{TA+1}, s[{sSEL}:{sSEL+1}]")
        a(f"v_cndmask_b32 v{dst}, v{dst}, v{TA+2}, s[{sSEL+2}:{sSEL+3}]")
        a(f"v_cndmask_b32 v{dst}, v{dst}, v{TA+3}, s[{sSEL+4}:{sSEL+5}]")
    for r in range(1, 4):
        a(f"v_cmp_eq_u32 s[{sSEL+2*r-2}:{sSEL+2*r-1}], {r}, v{vA1}")
    reduce_select(vM, 3)
    rne(a, [vM])
    a(f"v_mul_f32 v{vU}, {NLOG2E:#x}, v{vM}")
    a(f"v_exp_f32 v{vU}, v{vU}")
    a(f"v_add_f32 v{vU}, 1.0, v{vU}")
    a(f"v_rcp_f32 v{vU}, v{vU}")
    a(f"v_mul_f32 v{vM}, v{vM}, v{vU}")
    rne(a, [vM])
    a(f"v_lshlrev_b32 v{vP}, 16, v{vP}")
    srd(a, SRD_B, sOUT, 2048)
    a(f"s_lshl_b32 s{sT4}, s{sLW}, 13")
    a(f"s_add_u32 s{sT4}, s{sT4}, {YPB:#x}")
    stamp(6)
    a("s_setprio 3")
    if not LWD:
        a("s_barrier")
    if DIAG == 2:
        a(f"s_memrealtime s[{sST+4}:{sST+5}]")
    if PY:
        gatherP(TA, [TB + 32 * p for p in range(PY)], 8, vVO, sT4, 1024, 0, "yp", PGAP)
    else:
        gather(TA, 8, vVO, sT4, 1024, 0, YSL, "yp")
    stamp(7)
    reduce_select(vL, 8)
    rne(a, [vL])
    a(f"v_mul_f32 v{vL}, v{vL}, v{vM}")
    rne(a, [vL])
    a(f"v_add_f32 v{vL}, v{vL}, v{vP}")
    a(f"v_cvt_pk_bf16_f32 v{vL}, v{vL}, v{vL}")
    a("s_mov_b32 exec_hi, 0")
    a(f"buffer_store_short v{vL}, v{vA2}, {SR(SRD_B)}, 0 offen")
    a.label("L_A0_stored")
    a(f"s_cmp_lg_u32 s{sLW}, 0")
    a("s_cbranch_scc1 L_A0_nogen")
    a("s_mov_b64 exec, 1")
    a(f"v_mov_b32 v{vT}, s{sGEN}")
    a(f"v_mov_b32 v{vU}, {GEN:#x}")
    a(f"buffer_store_dword v{vT}, v{vU}, {SR(SRD_WS)}, 0 offen sc1")
    if DIAG:
        a(f"s_memrealtime s[{sST+2}:{sST+3}]")
        a("s_waitcnt lgkmcnt(0)")
        src = sST + 2 if DIAG == 1 else sST + 4
        a(f"s_sub_u32 s{sT0}, s{src}, s{sST}")
        if DIAG == 3:
            a(f"s_lshl_b32 s{sT0}, s{sT0}, 3")
        a(f"s_min_u32 s{sT0}, s{sT0}, 100000")
        a.label("L_diag")
        a(f"s_memrealtime s[{sST+6}:{sST+7}]")
        a("s_waitcnt lgkmcnt(0)")
        a(f"s_sub_u32 s{sT1}, s{sST+6}, s{sST+2}")
        a(f"s_cmp_lt_u32 s{sT1}, s{sT0}")
        a("s_cbranch_scc1 L_diag")
    a.label("L_A0_nogen")
    stamp_flush(7)
    a("s_endpgm")

    a.label("L_A1")
    if EXP & 8:
        a("s_endpgm")
    a("s_setprio 2")
    pre_tag()
    a(f"v_mov_b32 v{vKO}, 0")
    a(f"ds_write_b32 v{vKO}, v{vKO} offset:{L_QF}")
    a(f"ds_write_b32 v{vKO}, v{vKO} offset:{L_QF+4}")
    a(f"ds_write_b32 v{vKO}, v{vKO} offset:{L_QF+8}")
    masks()
    a(f"s_lshl_b32 s{sOFF}, s{sLW}, 12")
    a(f"v_lshlrev_b32 v{vA0}, 14, v{vG}")
    a(f"v_lshl_add_u32 v{vA0}, v{vJ}, 4, v{vA0}")
    a(f"s_lshl_b32 s{sT0}, s{sH}, 17")
    a(f"s_lshl_b32 s{sT1}, s{sB}, 16")
    a(f"s_add_u32 s{sT0}, s{sT0}, s{sT1}")
    a(f"s_lshl_b32 s{sT1}, s{sS}, 8")
    a(f"s_add_u32 s{sT0}, s{sT0}, s{sT1}")
    a(f"v_lshrrev_b32 v{vT}, 5, v{vLANE}")
    a(f"v_lshlrev_b32 v{vA1}, 12, v{vT}")
    a(f"v_bfe_u32 v{vT}, v{vLANE}, 3, 2")
    a(f"v_lshl_add_u32 v{vA1}, v{vT}, 8, v{vA1}")
    a(f"v_lshlrev_b32 v{vA2}, 6, v{vT}")
    a(f"v_and_b32 v{vT}, 7, v{vLANE}")
    a(f"v_lshl_add_u32 v{vA1}, v{vT}, 4, v{vA1}")
    a(f"v_lshl_add_u32 v{vA2}, v{vT}, 1, v{vA2}")
    ffn2_index()
    a("s_waitcnt lgkmcnt(0)")
    srd(a, SRD_WS, sWS, WSZ)
    load_tag()
    srd(a, SRD_B, sWO, 0x400000)
    if EARLY >= 2:
        a("s_barrier")
    a("s_waitcnt lgkmcnt(0)")
    make_tag()
    def wo_loads():
        for t in range(16):
            if t % 4 == 0 and t:
                a(f"s_add_u32 s{sWOF}, s{sWOF}, 4096")
            a(f"buffer_load_dwordx4 {R(TA+4*t)}, v{vWOA}, {SR(SRD_B)}, s{sWOF} offen offset:{1024*(t%4)} {WPOL}")
    a(f"s_mov_b32 s{sWOF}, s{sT0}")
    a(f"v_mov_b32 v{vWOA}, v{vA0}")
    if LWO == 0:
        wo_loads()
    if not LWD:
        wd_loads(vA0)
    a(f"s_lshl_b32 s{sT0}, s{sH}, 15")
    a(f"s_lshl_b32 s{sT1}, s{sB}, 7")
    a(f"s_add_u32 s{sT0}, s{sT0}, s{sT1}")
    if EARLY != 2:
        a("s_barrier")
    stamp(2, -1)
    if QSL:
        a(f"s_sleep {QSL}")
    gather(TC, 4, vA1, sT0, 8192, QP, 1, "qp", fine=True)
    stamp(3, -1)
    for t in range(1, 4):
        for r in range(4):
            a(f"v_add_f32 v{TC+r}, v{TC+r}, v{TC+4*t+r}")
    for r in range(4):
        a(f"v_mov_b32 v{TC+4+r}, v{TC+r}")
    for r in range(4):
        a(f"v_permlane32_swap_b32 v{TC+r}, v{TC+4+r}")
    for r in range(4):
        a(f"v_add_f32 v{TC+r}, v{TC+r}, v{TC+4+r}")
    for r in range(4):
        a(f"v_cvt_pk_bf16_f32 v{TC+r}, v{TC+r}, v{TC+r}")
    for r in range(4):
        a(f"ds_write_b16 v{vA2}, v{TC+r} offset:{L_QV + 16*r}")
    a(f"v_mov_b32 v{vT}, 1")
    a("s_waitcnt lgkmcnt(0)")
    a(f"ds_write_b32 v{vKO}, v{vT} offset:{L_QF}")
    a("s_setprio 0")
    a(f"v_lshrrev_b32 v{vT}, 3, v{vJ}")
    a(f"v_lshlrev_b32 v{vP}, 8, v{vT}")
    a(f"v_lshl_add_u32 v{vP}, v{vG}, 6, v{vP}")
    a(f"v_lshlrev_b32 v{vL}, 4, v{vLANE}")
    a(f"s_cmp_ge_u32 s{sKF}, 88")
    a("s_cbranch_scc1 L_A1_noffn2")
    a(f"v_lshrrev_b32 v{vT}, 5, v{vLANE}")
    a(f"v_mul_u32_u24 v{vA0}, {88*4096}, v{vT}")
    a(f"v_and_b32 v{vT}, 31, v{vLANE}")
    a(f"v_lshl_add_u32 v{vA0}, v{vT}, 4, v{vA0}")
    a(f"s_lshr_b32 s{sT0}, s{sT4}, 1")
    a(f"s_lshl_b32 s{sT0}, s{sT0}, 15")
    a(f"s_and_b32 s{sT1}, s{sT4}, 1")
    a(f"s_lshl_b32 s{sT1}, s{sT1}, 9")
    a(f"s_add_u32 s{sT0}, s{sT0}, s{sT1}")
    a(f"s_sleep {GSL}")
    gather(TC, 8, vA0, sT0, 4096, GP, 32, "gp")
    for t in range(1, 8):
        for r in range(4):
            a(f"v_add_f32 v{TC+r}, v{TC+r}, v{TC+4*t+r}")
    G = [TC + r for r in range(4)]
    Uu = [TC + 4 + r for r in range(4)]
    E = [TC + 8 + r for r in range(4)]
    rne(a, G)
    for r in range(4):
        a(f"v_mov_b32 v{Uu[r]}, v{G[r]}")
    for r in range(4):
        a(f"v_permlane32_swap_b32 v{G[r]}, v{Uu[r]}")
    a(f"s_mov_b32 s{sT0}, 0xbdd2d3e8")
    a(f"v_mov_b32 v{vU}, 0xc0135761")
    for r in range(4):
        a(f"v_mul_f32 v{E[r]}, v{G[r]}, v{G[r]}")
    for r in range(4):
        a(f"v_fma_f32 v{E[r]}, v{E[r]}, s{sT0}, v{vU}")
    for r in range(4):
        a(f"v_mul_f32 v{E[r]}, v{E[r]}, v{G[r]}")
    for r in range(4):
        a(f"v_exp_f32 v{E[r]}, v{E[r]}")
    for r in range(4):
        a(f"v_add_f32 v{E[r]}, 1.0, v{E[r]}")
    for r in range(4):
        a(f"v_rcp_f32 v{E[r]}, v{E[r]}")
    for r in range(4):
        a(f"v_mul_f32 v{G[r]}, v{G[r]}, v{E[r]}")
    rne(a, G)
    for r in range(4):
        a(f"v_mul_f32 v{G[r]}, v{G[r]}, v{Uu[r]}")
    for r in range(4):
        a(f"v_cvt_pk_bf16_f32 v{G[r]}, v{G[r]}, v{G[r]}")
    a(f"v_lshrrev_b32 v{vT}, 3, v{vJ}")
    a(f"v_lshlrev_b32 v{vA0}, 8, v{vT}")
    a(f"v_and_b32 v{vT}, 1, v{vG}")
    a(f"v_lshl_add_u32 v{vA0}, v{vT}, 7, v{vA0}")
    a(f"v_and_b32 v{vT}, 7, v{vJ}")
    a(f"v_lshl_add_u32 v{vA0}, v{vT}, 2, v{vA0}")
    for r in range(4):
        a(f"ds_write_b32 v{vA0}, v{G[r]} offset:{L_VEC0 + 32*r}")
    a(f"v_mov_b32 v{vT}, 1")
    a("s_waitcnt lgkmcnt(0)")
    if LWD:
        a(f"ds_write_b32 v{vKO}, v{vT} offset:{L_QF+8}")
    else:
        tile_gemv(a, TB, vP, L_VEC0)
        dp_publish(vL)
    a.label("L_A1_noffn2")
    stamp(7, -1)
    if EXP & 512:
        a(f"s_andn2_b32 s{sT0}, s{sLW}, 3")
        a(f"s_lshl_b32 s{sT0}, s{sT0}, 12")
        a(f"s_add_u32 s{sT0}, s{sT0}, {CNT}")
        a(f"v_mov_b32 v{vA0}, 0")
        a("s_mov_b64 exec, 1")
        a(f"s_mov_b32 s{sCNT}, {ANUM}")
        stamp(2, -1)
        a.label("L_exp512")
        a(f"v_mov_b32 v{vT}, 1")
        if EXP & 2048:
            a(f"s_mov_b32 s{sT2}, 1")
            a(f"s_atomic_add s{sT2}, s[{sWS}:{sWS+1}], s{sT0} glc")
            a("s_waitcnt lgkmcnt(0)")
        elif EXP & 1024:
            a(f"buffer_load_dword v{vT}, v{vA0}, {SR(SRD_WS)}, s{sT0} offen sc1")
        else:
            a(f"buffer_atomic_add v{vT}, v{vA0}, {SR(SRD_WS)}, s{sT0} offen sc0 sc1")
        a("s_waitcnt vmcnt(0)")
        a(f"s_sub_u32 s{sCNT}, s{sCNT}, 1")
        a(f"s_cmp_lg_u32 s{sCNT}, 0")
        a("s_cbranch_scc1 L_exp512")
        stamp(3, -1)
        a("s_mov_b64 exec, -1")
    a(f"v_and_b32 v{vT}, 31, v{vLANE}")
    a(f"v_lshlrev_b32 v{vVO}, 4, v{vT}")
    a(f"v_mov_b32 v{vKO}, 0")
    a(f"v_and_b32 v{vU}, 7, v{vLANE}")
    a(f"v_lshlrev_b32 v{vU}, 4, v{vU}")
    a(f"v_add_u32 v{vU}, {ML}, v{vU}")
    a(f"v_cmp_gt_u32 vcc, 32, v{vLANE}")
    a(f"s_mov_b64 s[{sEX}:{sEX+1}], vcc")
    a(f"s_lshl_b32 s{sT1}, s{sB}, 8")
    a(f"s_add_u32 s{sT1}, s{sT1}, {OP}")
    a(f"v_lshlrev_b32 v{vA1}, 4, v{vJ}")
    a(f"v_add_u32 v{vA1}, s{sT1}, v{vA1}")
    a(f"v_cndmask_b32 v{vA1}, v{vU}, v{vA1}, vcc")
    a(f"v_and_b32 v{vT}, 1, v{vG}")
    a(f"v_lshl_add_u32 v{vA1}, v{vT}, 14, v{vA1}")
    a(f"v_lshlrev_b32 v{vA2}, 8, v{vT}")
    a(f"v_bfe_u32 v{vT}, v{vLANE}, 3, 1")
    a(f"v_lshl_add_u32 v{vA2}, v{vT}, 7, v{vA2}")
    a(f"v_and_b32 v{vT}, 7, v{vLANE}")
    a(f"v_lshl_add_u32 v{vA2}, v{vT}, 2, v{vA2}")
    a(f"v_lshrrev_b32 v{vT}, 3, v{vLANE}")
    a(f"v_lshlrev_b32 v{vA0}, 13, v{vT}")
    a(f"v_and_b32 v{vT}, 7, v{vLANE}")
    a(f"v_lshl_add_u32 v{vA0}, v{vT}, 4, v{vA0}")
    a(f"s_lshl_b32 s{sT2}, s{sS}, 16")
    a(f"s_lshl_b32 s{sT3}, s{sH}, 8")
    a(f"s_add_u32 s{sT2}, s{sT2}, s{sT3}")
    a(f"s_lshl_b32 s{sT3}, s{sB}, 7")
    a(f"s_add_u32 s{sT2}, s{sT2}, s{sT3}")
    a(f"s_add_u32 s{sT2}, s{sT2}, {YPB:#x}")
    a(f"s_lshl_b32 s{sT0}, s{sH}, 15")
    if LWO in (3, 4):
        a.label("L_A1_wait")
        a(f"s_sleep {WSL}")
        a(f"ds_read_b32 v{vT}, v{vKO} offset:{L_QF+4}")
        a("s_waitcnt lgkmcnt(0)")
        a(f"v_cmp_eq_u32 vcc, 0, v{vT}")
        a("s_cbranch_vccnz L_A1_wait")
        wo_loads()
    a("s_setprio 3")
    a("s_barrier")
    stamp(4, -1)
    if LWO == 1:
        wo_loads()
    MLr = TC
    a(f"ds_read_b128 {R(MLr)}, v{vKO} offset:{L_PML}")
    a(f"ds_read_b128 {R(MLr+4)}, v{vKO} offset:{L_PML+16}")
    for w in range(4):
        a(f"ds_read_b128 {R(TB+4*w)}, v{vVO} offset:{L_PART + 512*w}")

    def combine(ms, ls, F, outm, outl):
        a(f"v_max_f32 v{outm}, v{ms[0]}, v{ms[1]}")
        a(f"v_max3_f32 v{outm}, v{outm}, v{ms[2]}, v{ms[3]}")
        for w in range(4):
            a(f"v_sub_f32 v{F+w}, v{ms[w]}, v{outm}")
        for w in range(4):
            a(f"v_mul_f32 v{F+w}, s{sL2E}, v{F+w}")
        for w in range(4):
            a(f"v_exp_f32 v{F+w}, v{F+w}")
        a(f"v_mul_f32 v{outl}, v{F}, v{ls[0]}")
        for w in range(1, 4):
            a(f"v_fmac_f32 v{outl}, v{F+w}, v{ls[w]}")

    def combine_o(os_, F):
        for r in range(4):
            a(f"v_mul_f32 v{os_[0]+r}, v{F}, v{os_[0]+r}")
        for w in range(1, 4):
            for r in range(4):
                a(f"v_fmac_f32 v{os_[0]+r}, v{F+w}, v{os_[w]+r}")
    F = TC + 8
    a("s_waitcnt lgkmcnt(4)")
    combine([MLr + 2 * w for w in range(4)], [MLr + 2 * w + 1 for w in range(4)], F, vM, vMN)
    a("s_waitcnt lgkmcnt(0)")
    combine_o([TB + 4 * w for w in range(4)], F)
    for r in range(4):
        src = vM if r % 2 == 0 else vMN
        a(f"v_cndmask_b32 v{TB+r}, v{src}, v{TB+r}, s[{sEX}:{sEX+1}]")
    a("s_mov_b32 exec_hi, 0xff")
    publish(TB, vL, sOFF, OP)
    a("s_mov_b64 exec, -1")
    stamp(5, -1)
    if LWO == 2:
        wo_loads()
    GB = TB + 16
    if PP:
        gatherP(GB, [TC + 16 + 16 * p for p in range(PP)], 4, vA1, sT0, 4096, 0, "op", PGAP)
    else:
        gather(GB, 4, vA1, sT0, 4096, 0, OSL, "op")
    stamp(6, -1)
    for t in range(4):
        a(f"v_mov_b32 v{MLr+2*t}, v{GB+4*t}")
        a(f"v_mov_b32 v{MLr+2*t+1}, v{GB+4*t+1}")
    for t in range(4):
        a(f"v_permlane32_swap_b32 v{GB+4*t}, v{MLr+2*t}")
        a(f"v_permlane32_swap_b32 v{GB+4*t+1}, v{MLr+2*t+1}")
    combine([MLr + 2 * w for w in range(4)], [MLr + 2 * w + 1 for w in range(4)], F, vM, vMN)
    a(f"v_rcp_f32 v{vMN}, v{vMN}")
    combine_o([GB + 4 * w for w in range(4)], F)
    for r in range(4):
        a(f"v_mul_f32 v{GB+r}, v{GB+r}, v{vMN}")
    for r in range(4):
        a(f"v_cvt_pk_bf16_f32 v{GB+r}, v{GB+r}, v{GB+r}")
    a(f"s_mov_b64 exec, s[{sEX}:{sEX+1}]")
    for r in range(4):
        a(f"ds_write_b32 v{vA2}, v{GB+r} offset:{L_VEC1 + 32*r}")
    a("s_mov_b64 exec, -1")
    a("s_waitcnt lgkmcnt(0)")
    tile_gemv(a, TA, vP, L_VEC1)
    publish(vACC, vA0, sT2, 0)
    stamp_flush(7)
    a.label("L_end")
    a("s_endpgm")
    a.label("L_codeend")

    body = a.finish()
    hdr = open("cdna_kernels/" + NAME + ".s.ref").read().split("; @launch")[0]
    nv = 248
    txt = hdr + f"; @launch grid=(256,1,1) block=(384,1,1) lds={L_TOTAL + 4*NL*4096}\n"
    txt += '.amdgcn_target "amdgcn-amd-amdhsa--gfx950"\n.text\n'
    txt += f".globl {NAME}_kernel\n.p2align 8\n.type {NAME}_kernel,@function\n"
    txt += body
    txt += f""".section .rodata,"a"
.p2align 6
.amdhsa_kernel {NAME}_kernel
  .amdhsa_next_free_vgpr {nv}
  .amdhsa_next_free_sgpr 102
  .amdhsa_accum_offset {(nv+3)//4*4}
  .amdhsa_group_segment_fixed_size 0
  .amdhsa_kernarg_size 96
  .amdhsa_user_sgpr_count 2
  .amdhsa_user_sgpr_kernarg_segment_ptr 1
  .amdhsa_system_sgpr_workgroup_id_x 1
  .amdhsa_float_denorm_mode_32 3
.end_amdhsa_kernel
"""
    return txt


if __name__ == "__main__":
    out = sys.argv[1]
    kw = eval("dict(" + (sys.argv[2] if len(sys.argv) > 2 else "") + ")")
    open(out, "w").write(gen(**kw))
```

```python
import sys
sys.path.insert(0, "work")
from asmlib import Asm

DOC = """; ---------------------------------------------------------------------------------------------
; ---------------------------------------------------------------------------------------------
"""
NAME = "recurrent_scan__mha_block_cached__geglu_ffn__decode"

QP, GP, YP, OP, ML, CNT = 0, 1024, 2048, 3072, 3584, 3840
DPB = 0x100000
YPB = 0x100000
GEN = 0x140000
WSZ = 0x200000
L_QF = 6464
L_KF = 6496
L_SC = 8192
L_XN, L_QV, L_PART, L_PML, L_VEC1, L_VEC0, L_TOTAL = 0, 4096, 4352, 6400, 6656, 7168, 16384

LOG2E = 0x3FB8AA3B
NLOG2E = 0xBFB8AA3B
SCALE = 0x3DB504F3

sX, sK, sV, sWQ, sWO, sBX, sWG, sWU, sWD, sOUT, sDBG, sWS = 4, 6, 8, 10, 12, 14, 16, 18, 20, 22, 24, 26
sH, sB, sS, sLW, sPID = 28, 29, 30, 31, 32
sL2E = 33
SRD_A, SRD_B, SRD_C, SRD_WS, SRD_D = 36, 40, 44, 48, 52
sT0, sT1, sT2, sT3, sT4, sT5 = 56, 57, 58, 59, 60, 61
sCNT = 62
sOFF = 63
sEX = 64
sIT = 66
sTAG, sGEN = 34, 35
sTMK = 67
sSEL = 96
sPM = 86
TBITS = 8
TMASK = (1 << TBITS) - 1
sST = 70
vLANE, vJ, vG = 1, 2, 3
vMASK = 4
vT, vU, vW, vP, vM, vMN, vL, vKO, vVO, vA0, vA1, vA2 = 8, 9, 10, 11, 12, 13, 14, 15, 16, 17, 18, 19
vS, vACC, vPB0, vPB1, vQB = 20, 24, 28, 32, 36
vWIN = 52
vTAG = 244
vWOA = 246
vE0, vE1 = 240, 241
sWOF = 68
sKF = 69
sDRY = 95
TA, TB, TC = 52, 116, 180


def srd(a, d, ptr, nbytes):
    a(f"s_mov_b32 s{d}, s{ptr}")
    a(f"s_and_b32 s{d+1}, s{ptr+1}, 0xffff")
    if isinstance(nbytes, int):
        a(f"s_mov_b32 s{d+2}, {nbytes:#x}")
    else:
        a(f"s_mov_b32 s{d+2}, {nbytes}")
    a(f"s_mov_b32 s{d+3}, 0x20000")


def R(b, n=4):
    return f"v[{b}:{b+n-1}]"


def SR(b, n=4):
    return f"s[{b}:{b+n-1}]"


DPPM = "row_mask:0xf bank_mask:0xf"


def allreduce(a, regs, tmps, op="v_add_f32", quad=True):
    steps = []
    if quad:
        steps += ["quad_perm:[1,0,3,2]", "quad_perm:[2,3,0,1]"]
    steps += ["row_ror:4", "row_ror:8"]
    for st in steps:
        for r in regs:
            a(f"{op}_dpp v{r}, v{r}, v{r} {st} {DPPM}")
    for sw in ("v_permlane16_swap_b32", "v_permlane32_swap_b32"):
        for r, t in zip(regs, tmps):
            a(f"v_mov_b32 v{t}, v{r}")
        for r, t in zip(regs, tmps):
            a(f"{sw} v{r}, v{t}")
        for r, t in zip(regs, tmps):
            a(f"{op} v{r}, v{r}, v{t}")


def rne(a, regs):
    for r in regs:
        a(f"v_cvt_pk_bf16_f32 v{r}, v{r}, v{r}")
    for r in regs:
        a(f"v_and_b32 v{r}, 0xffff0000, v{r}")


def tile_gemv(a, tbase, vaddr_lds, lds_off, waits=None):
    for k in range(4):
        a(f"ds_read_b128 {R(vQB+4*k)}, v{vaddr_lds} offset:{lds_off+16*k}")
    a("s_waitcnt lgkmcnt(0)")

    def build(t):
        pb = vPB0 if t % 2 == 0 else vPB1
        for r in range(4):
            a(f"v_and_b32 v{pb+r}, v{vQB+t}, v{vMASK+r}")
    build(0)
    for t in range(16):
        if t + 1 < 16:
            build(t + 1)
        pb = vPB0 if t % 2 == 0 else vPB1
        if waits and t in waits:
            a(f"s_waitcnt vmcnt({waits[t]})")
        c = "0" if t == 0 else R(vACC)
        a(f"v_mfma_f32_16x16x32_bf16 {R(vACC)}, {R(tbase+4*t)}, {R(pb)}, {c}")


def sanitize(a, base, n=4):
    for r in range(n):
        a(f"v_min_u32 v{base+r}, -2, v{base+r}")


def poll(a, issue, regs, sleep=0, name="poll"):
    top = a.newlabel(name)
    done = a.newlabel(name + "d")
    a(f"s_mov_b32 s{sCNT}, 0x40000")
    a.label(top)
    issue()
    a("s_waitcnt vmcnt(0)")
    rs = list(regs)
    a(f"v_max_u32 v{vT}, v{rs[0]}, v{rs[1]}" if len(rs) > 1 else f"v_mov_b32 v{vT}, v{rs[0]}")
    rest = rs[2:]
    while rest:
        if len(rest) >= 2:
            a(f"v_max3_u32 v{vT}, v{vT}, v{rest[0]}, v{rest[1]}")
            rest = rest[2:]
        else:
            a(f"v_max_u32 v{vT}, v{vT}, v{rest[0]}")
            rest = rest[1:]
    a(f"v_cmp_eq_u32 vcc, -1, v{vT}")
    a(f"s_cbranch_vccz {done}")
    a(f"s_sub_u32 s{sCNT}, s{sCNT}, 1")
    a(f"s_cbranch_scc1 {done}")
    if sleep:
        a(f"s_sleep {sleep}")
    a(f"s_branch {top}")
    a.label(done)


def gen(DD=1, STAMP=False, NSTAT=22, INFL=8, NL=8, EXP=0, SG=0, EARLY=3, PSL=64, QSL=12, CPF=4, RCL=0, ANUM=8, POL='nt', WPOL='nt', DBGST=0, GSL=64, PP=2, PGAP=8, ALPHA=0, YSL=0, OSL=0, PY=2, PAT=0, SCL=1, CPOS=0, LWO=4, WSL=4, EH=2, CLS=0, BETA2=0, DIAG=0, ROT=5, LINFL=0, LATEK=0, ILV=1, LWD=0, NP=6, FINE=1, PRE=1, CLX=1, OPOL='', CL2=0, OWN=0, VSEQ=0x9c, DRY=0):
    a = Asm()
    stamps = {"n": 0}

    def stamp(k, grp=0):
        if STAMP and (k < 2 or grp == -1 or grp == SG):
            a(f"s_memrealtime s[{sST+2*k}:{sST+2*k+1}]")

    def stamp_flush(nst):
        if not STAMP:
            return
        a(f"s_memrealtime s[{sST+2}:{sST+3}]")
        a("s_waitcnt lgkmcnt(0)")
        a("s_mov_b64 exec, -1")
        if DBGST:
            srd(a, SRD_D, sDBG, 256)
            a("s_mov_b64 exec, 1")
            a(f"s_min_u32 s{sT0}, s3, 2")
            a(f"s_mul_i32 s{sT0}, s{sT0}, 20")
            a("v_mov_b32 v17, 0")
            a(f"s_not_b32 s{sT1}, s{sST}")
            a(f"v_mov_b32 v20, s{sT1}")
            a(f"buffer_atomic_umax v20, v17, {SR(SRD_D)}, 0 offen sc1")
            for k in range(5):
                a(f"v_mov_b32 v{21+k}, s{sST+2*(k+1)}")
                a(f"buffer_atomic_umax v{21+k}, v17, {SR(SRD_D)}, s{sT0} offen offset:{4+4*k} sc1")
            return
        srd(a, SRD_D, sWS, 0x20000000)
        a(f"s_mul_i32 s{sT0}, s2, 6")
        a(f"s_add_u32 s{sT0}, s{sT0}, s3")
        a(f"s_lshl_b32 s{sT1}, s{sT0}, 6")
        a(f"s_lshl_b32 s{sT0}, s{sT0}, 4")
        a(f"s_add_u32 s{sT0}, s{sT0}, 0x10000000")
        a(f"s_add_u32 s{sT1}, s{sT1}, 0x11000000")
        a(f"s_getreg_b32 s{sT2}, hwreg(HW_REG_XCC_ID)")
        a(f"s_and_b32 s{sT2}, s{sT2}, 15")
        a(f"s_lshl_b32 s{sT2}, s{sT2}, 28")
        a(f"s_or_b32 s{sT2}, s{sST+1}, s{sT2}")
        a(f"v_mov_b32 v20, s{sST}")
        a(f"v_mov_b32 v21, s{sT2}")
        a(f"v_mov_b32 v22, s{sST+2}")
        a(f"v_mov_b32 v23, s{sST+3}")
        a("v_mov_b32 v17, 0")
        for k in range(8):
            a(f"v_mov_b32 v{24+k}, s{sST+2*k}")
        a(f"v_cmp_eq_u32 vcc, 0, v{vLANE}")
        a(f"s_and_saveexec_b64 s[{sEX}:{sEX+1}], vcc")
        a(f"buffer_store_dwordx4 v[20:23], v17, {SR(SRD_D)}, s{sT0} offen")
        a(f"buffer_store_dwordx4 v[24:27], v17, {SR(SRD_D)}, s{sT1} offen")
        a(f"buffer_store_dwordx4 v[28:31], v17, {SR(SRD_D)}, s{sT1} offen offset:16")

    a.label(f"{NAME}_kernel")
    a("s_cmp_ge_u32 s2, 256")
    a("s_cbranch_scc1 L_end")
    if STAMP:
        for k in range(8):
            a(f"s_mov_b64 s[{sST+2*k}:{sST+2*k+1}], 0")
    stamp(0)
    if DIAG:
        a(f"s_memrealtime s[{sST}:{sST+1}]")
    a("s_load_dwordx16 s[4:19], s[0:1], 0")
    a("s_load_dwordx8 s[20:27], s[0:1], 64")
    a("v_lshrrev_b32 v2, 6, v0")
    a(f"v_and_b32 v{vLANE}, 63, v0")
    a("v_readfirstlane_b32 s3, v2")
    a(f"v_and_b32 v{vJ}, 15, v{vLANE}")
    a(f"v_lshrrev_b32 v{vG}, 4, v{vLANE}")
    a(f"s_bfe_u32 s{sH}, s2, 0x50002")
    a(f"s_lshr_b32 s{sB}, s2, 7")
    a(f"s_and_b32 s{sS}, s2, 3")
    a(f"s_lshl_b32 s{sPID}, s{sB}, 2")
    a(f"s_add_u32 s{sPID}, s{sPID}, s{sS}")
    a(f"s_lshl_b32 s{sLW}, s{sH}, 3")
    a(f"s_add_u32 s{sLW}, s{sLW}, s{sPID}")
    a(f"s_mov_b32 s{sL2E}, {LOG2E:#x}")

    def masks():
        a(f"v_and_b32 v{vT}, 1, v{vLANE}")
        a(f"v_lshlrev_b32 v{vT}, 4, v{vT}")
        a(f"v_mov_b32 v{vU}, 0xffff")
        a(f"v_lshlrev_b32 v{vU}, v{vT}, v{vU}")
        a(f"v_bfe_u32 v{vT}, v{vLANE}, 1, 2")
        for r in range(4):
            a(f"v_cmp_eq_u32 vcc, {r}, v{vT}")
            a(f"v_cndmask_b32 v{vMASK+r}, 0, v{vU}, vcc")

    def flagpoll(nd, soff, vaddr, sleep, lane0):
        ftop = a.newlabel("flag")
        fdone = a.newlabel("flagd")
        a(f"s_mov_b32 s{sCNT}, 0x40000")
        a(f"s_mov_b32 s{sIT}, 0x01010101")
        if lane0:
            a("s_mov_b64 exec, 1")
        a.label(ftop)
        if nd == 2:
            a(f"buffer_load_dwordx2 v[{vT}:{vU}], v{vaddr}, {SR(SRD_D)}, {soff} offen sc1")
            a("s_waitcnt vmcnt(0)")
            a(f"v_and_b32 v{vT}, v{vT}, v{vU}")
        else:
            a(f"buffer_load_dword v{vT}, v{vaddr}, {SR(SRD_D)}, {soff} offen sc1")
            a("s_waitcnt vmcnt(0)")
        a(f"v_cmp_ne_u32 vcc, s{sIT}, v{vT}")
        a(f"s_cbranch_vccz {fdone}")
        a(f"s_sub_u32 s{sCNT}, s{sCNT}, 1")
        a(f"s_cbranch_scc1 {fdone}")
        a(f"s_sleep {sleep}")
        a(f"s_branch {ftop}")
        a.label(fdone)
        if lane0:
            a("s_mov_b64 exec, -1")

    a("s_cmp_eq_u32 s3, 0")
    a("s_cbranch_scc1 L_A0")
    a("s_cmp_eq_u32 s3, 1")
    a("s_cbranch_scc1 L_A1")

    if CPF:
        a(f"s_getpc_b64 s[{sT0}:{sT1}]")
        a.label("L_pc")
        a(f"s_sub_u32 s{sT0}, s{sT0}, L_pc-{NAME}_kernel")
        a(f"s_subb_u32 s{sT1}, s{sT1}, 0")
        a(f"v_subrev_u32 v{vT}, 128, v0")
        a(f"v_lshlrev_b32 v{vT}, 4, v{vT}")
        for k in range(CPF):
            a(f"v_min_u32 v{vU}, L_codeend-{NAME}_kernel-16, v{vT}")
            a(f"global_load_dwordx4 {R(200+4*k)}, v{vU}, s[{sT0}:{sT1}]")
            a(f"v_add_u32 v{vT}, 4096, v{vT}")
    a(f"v_and_b32 v{vT}, 3, v{vLANE}")
    a(f"v_lshlrev_b32 v{vKO}, 4, v{vT}")
    a(f"v_bfe_u32 v{vT}, v{vLANE}, 2, 2")
    a(f"v_lshl_add_u32 v{vKO}, v{vT}, 8, v{vKO}")
    a(f"v_lshl_add_u32 v{vKO}, v{vG}, 6, v{vKO}")
    a(f"v_lshlrev_b32 v{vVO}, 4, v{vLANE}")
    a(f"s_lshl_b32 s{sT0}, s{sB}, 5")
    a(f"s_add_u32 s{sT0}, s{sT0}, s{sH}")
    a(f"s_lshl_b32 s{sOFF}, s{sT0}, 21")
    a(f"s_lshl_b32 s{sT0}, s{sS}, 2")
    a(f"s_add_u32 s{sT0}, s{sT0}, s3")
    a(f"s_sub_u32 s{sT0}, s{sT0}, 2")
    a(f"s_lshl_b32 s{sT0}, s{sT0}, 12")
    a(f"s_add_u32 s{sOFF}, s{sOFF}, s{sT0}")
    a("s_waitcnt lgkmcnt(0)")
    srd(a, SRD_A, sK, 0x8000000)
    srd(a, SRD_B, sV, 0x8000000)

    BAD = 0x40000000
    NSV = 32 - NP
    NDYN = 16 * NP
    assert NP % 2 == 0 and NL % 2 == 0
    BUF = [vWIN, vWIN + 16]
    BUFL = vWIN + 32
    SC = [vWIN + 48, vWIN + 52]
    PK = vWIN + 56
    vSW = [vWIN + 60, vWIN + 61, vWIN + 62]
    vSL, vSR, vCO, vSG, vTG = vWIN + 63, vWIN + 64, vWIN + 65, vWIN + 66, vWIN + 67
    SRD_X = SRD_C
    sBASE, sKI, sVI, sCA, sCP, sCV, sDYN, sSCB = 86, 87, 88, 67, 68, 69, 90, 91
    sUO = [94, 95]
    sRET = 92

    def loads(buf, voff, srd_, so):
        for m in range(4):
            a(f"buffer_load_dwordx4 {R(buf+4*m)}, v{voff}, {SR(srd_)}, s{so} offen offset:{1024*m} {POL}")

    def load1(buf, m, voff, srd_, so):
        a(f"buffer_load_dwordx4 {R(buf+4*m)}, v{voff}, {SR(srd_)}, s{so} offen offset:{1024*m} {POL}")

    def kbody(buf, vsw, refill):
        for m in range(4):
            c = "0" if m == 0 else R(vS)
            if refill and (FINE or m == 0):
                a(f"s_waitcnt vmcnt({7 if FINE else 4})")
            a(f"v_mfma_f32_16x16x32_bf16 {R(vS)}, {R(buf+4*m)}, {R(vQB+4*m)}, {c}")
            if refill and FINE:
                load1(buf, m, vCO, SRD_X, sOFF)
        if refill:
            if not FINE:
                loads(buf, vCO, SRD_X, sOFF)
            a(f"s_bfe_u32 s{sT0}, s{sOFF}, 0x50010")
            a(f"s_lshl_b32 s{sT0}, s{sT0}, 8")
            a(f"s_add_u32 s{sOFF}, s{sOFF}, 0x10000")
        a(f"v_mov_b32_dpp v{vT}, v{vS} quad_perm:[0,0,0,0] {DPPM}")
        for e in range(1, 4):
            a(f"v_add_f32_dpp v{vT}, v{vS+e}, v{vT} quad_perm:[{e},{e},{e},{e}] {DPPM}")
        rne(a, [vT])
        a(f"v_mul_f32 v{vT}, {SCALE:#x}, v{vT}")
        rne(a, [vT])
        a(f"v_max_f32 v{vM}, v{vM}, v{vT}")
        a(f"ds_write_b32 v{vsw}, v{vT} offset:{L_SC}")
        if refill:
            a(f"v_add_u32 v{vsw}, s{sT0}, v{vSL}")
        else:
            a(f"v_add_u32 v{vsw}, 256, v{vsw}")

    def pbody(sc):
        for m in range(4):
            a(f"v_fma_f32 v{sc+m}, v{sc+m}, s{sL2E}, v{vMN}")
        for m in range(4):
            a(f"v_exp_f32 v{sc+m}, v{sc+m}")
        for m in range(4):
            a(f"v_cvt_pk_bf16_f32 v{PK+m}, v{sc+m}, v{sc+m}")
        a(f"v_add_f32 v{sc}, v{sc}, v{sc+1}")
        a(f"v_add_f32 v{sc+2}, v{sc+2}, v{sc+3}")
        a(f"v_add_f32 v{vL}, v{vL}, v{sc}")
        a(f"v_add_f32 v{vL}, v{vL}, v{sc+2}")

    PBX = vWIN + 68

    PBS = [PBX, BUFL]

    def buildall(x=0):
        for m in range(4):
            for r in range(4):
                a(f"v_and_b32 v{PBS[x]+4*m+r}, v{PK+m}, v{vMASK+r}")

    def vbody(buf, so, cnt, x=0):
        for m in range(4):
            if FINE or m == 0:
                a(f"s_waitcnt vmcnt({cnt if FINE else cnt - 3})")
            a(f"v_mfma_f32_16x16x32_bf16 {R(vACC)}, {R(buf+4*m)}, {R(PBS[x]+4*m)}, {R(vACC)}")
            if FINE:
                load1(buf, m, vCO if x == 0 else vVO, SRD_X if x == 0 else SRD_B, so)
        if not FINE:
            loads(buf, vCO if x == 0 else vVO, SRD_X if x == 0 else SRD_B, so)

    def sclaim():
        if OWN:
            return sclaim_own()
        sk = a.newlabel("cl")
        if CL2:
            a(f"s_bitcmp0_b32 s{sCP}, 0")
            a(f"s_cbranch_scc1 {sk}")
        a(f"s_cmp_ge_i32 s{sCP}, {NDYN}")
        a(f"s_cbranch_scc1 {sk}")
        a(f"s_mov_b32 s{sCV}, {2 if CL2 else 1}")
        a(f"s_atomic_add s{sCV}, s[{sWS}:{sWS+1}], s{sCA} glc")
        a.label(sk)

    def dynnext():
        if OWN:
            return dynnext_own()
        a("s_waitcnt lgkmcnt(0)")
        a(f"s_add_u32 s{sCP}, s{sCV}, 1")
        if CL2:
            a(f"s_mov_b32 s{sCV}, s{sCP}")
        a(f"s_lshl_b32 s{sT1}, s{sCP}, 12")
        a(f"s_add_u32 s{sT1}, s{sT1}, s{sDYN}")
        a(f"s_cmp_lt_u32 s{sCP}, {NDYN}")
        a(f"s_cselect_b32 s{sUO[0]}, s{sT1}, {BAD:#x}")

    sVIC, sGB = 96, 97

    def sclaim_own():
        sk = a.newlabel("cl")
        a(f"s_cmp_ge_u32 s{sVIC}, 4")
        a(f"s_cbranch_scc1 {sk}")
        a(f"s_mov_b32 s{sCV}, 1")
        a(f"s_atomic_add s{sCV}, s[{sWS}:{sWS+1}], s{sCA} glc")
        a.label(sk)

    def dynnext_own():
        rt = a.newlabel("rt")
        ok = a.newlabel("ok")
        a.label(rt)
        a("s_waitcnt lgkmcnt(0)")
        a(f"s_add_u32 s{sCP}, s{sCV}, 1")
        a(f"s_lshr_b32 s{sT1}, s{sCP}, 2")
        a(f"s_lshl_b32 s{sT1}, s{sT1}, 16")
        a(f"s_and_b32 s{sT2}, s{sCP}, 3")
        a(f"s_lshl_b32 s{sT2}, s{sT2}, 12")
        a(f"s_add_u32 s{sT1}, s{sT1}, s{sT2}")
        a(f"s_add_u32 s{sUO[0]}, s{sT1}, s{sDYN}")
        a(f"s_cmp_lt_u32 s{sCP}, {4*NP}")
        a(f"s_cbranch_scc1 {ok}")
        a(f"s_mov_b32 s{sUO[0]}, {BAD:#x}")
        a(f"s_add_u32 s{sVIC}, s{sVIC}, 1")
        a(f"s_cmp_ge_u32 s{sVIC}, 4")
        a(f"s_cbranch_scc1 {ok}")
        a(f"s_lshl_b32 s{sT1}, s{sVIC}, 1")
        a(f"s_lshr_b32 s{sT1}, {VSEQ:#x}, s{sT1}")
        a(f"s_and_b32 s{sT1}, s{sT1}, 3")
        a(f"s_xor_b32 s{sT1}, s{sT1}, s{sS}")
        a(f"s_lshl_b32 s{sT2}, s{sT1}, 14")
        a(f"s_add_u32 s{sDYN}, s{sGB}, s{sT2}")
        a(f"s_andn2_b32 s{sCA}, s{sLW}, 3")
        a(f"s_add_u32 s{sCA}, s{sCA}, s{sT1}")
        a(f"s_lshl_b32 s{sCA}, s{sCA}, 12")
        a(f"s_add_u32 s{sCA}, s{sCA}, {CNT}")
        a(f"s_mov_b32 s{sCV}, 1")
        a(f"s_atomic_add s{sCV}, s[{sWS}:{sWS+1}], s{sCA} glc")
        a(f"s_branch {rt}")
        a.label(ok)

    srd(a, SRD_X, sK, 0x8000000)
    a(f"s_mov_b32 s{sBASE}, s{sOFF}")
    a(f"s_sub_u32 s{sT4}, s3, 2")
    a(f"s_mul_i32 s{sT5}, s{sT4}, {NL*4096}")
    a(f"s_add_u32 s{sT5}, s{sT5}, {L_TOTAL}")
    a(f"v_add_u32 v{vA2}, s{sT5}, v{vVO}")
    a(f"v_mov_b32 v{vCO}, v{vKO}")
    a("s_barrier")
    loads(BUF[0], vKO, SRD_A, sOFF)
    a(f"s_add_u32 s{sOFF}, s{sOFF}, 0x10000")
    masks()
    a(f"s_andn2_b32 s{sCA}, s{sLW}, 3")
    a(f"s_lshl_b32 s{sCA}, s{sCA}, 12")
    a(f"s_add_u32 s{sCA}, s{sCA}, {CNT}")
    a(f"s_mov_b32 s{sCV}, 0")
    a(f"s_mov_b32 s{sCP}, -1")
    a(f"s_lshl_b32 s{sT0}, s{sB}, 5")
    a(f"s_add_u32 s{sT0}, s{sT0}, s{sH}")
    a(f"s_lshl_b32 s{sDYN}, s{sT0}, 21")
    a(f"s_add_u32 s{sDYN}, s{sDYN}, {16*NSV*4096}")
    if OWN:
        a(f"s_mov_b32 s{sGB}, s{sDYN}")
        a(f"s_lshl_b32 s{sT1}, s{sS}, 14")
        a(f"s_add_u32 s{sDYN}, s{sDYN}, s{sT1}")
        a(f"s_lshl_b32 s{sCA}, s{sLW}, 12")
        a(f"s_add_u32 s{sCA}, s{sCA}, {CNT}")
        a(f"s_mov_b32 s{sVIC}, 0")
    for r in range(4):
        a(f"v_mov_b32 v{vACC+r}, 0")
    a(f"v_mov_b32 v{vL}, 0")
    a(f"v_mov_b32 v{vM}, 0xff800000")
    a(f"v_and_b32 v{vT}, 3, v{vJ}")
    a(f"v_lshl_add_u32 v{vT}, v{vG}, 2, v{vT}")
    a(f"v_lshlrev_b32 v{vA0}, 4, v{vT}")
    a(f"v_lshrrev_b32 v{vA1}, 2, v{vJ}")
    a(f"v_lshlrev_b32 v{vE0}, 3, v{vG}")
    a(f"v_add_u32 v{vE0}, v{vE0}, v{vJ}")
    a(f"v_lshlrev_b32 v{vE0}, 4, v{vE0}")
    a(f"s_lshl_b32 s{sT1}, s{sT4}, 9")
    a(f"v_add_u32 v{vE0}, s{sT1}, v{vE0}")
    a(f"s_lshl_b32 s{sT1}, s{sT4}, 3")
    a(f"v_mov_b32 v{vE1}, s{sT1}")
    a(f"v_lshlrev_b32 v{vSG}, 4, v{vG}")
    a(f"s_lshl_b32 s{sT1}, s{sT4}, 6")
    a(f"v_add_u32 v{vSR}, s{sT1}, v{vSG}")
    a(f"v_lshl_add_u32 v{vSL}, v{vA1}, 2, v{vSR}")
    a(f"v_mov_b32 v{vSW[0]}, v{vSL}")
    a(f"v_add_u32 v{vSW[1]}, 256, v{vSL}")
    a(f"v_add_u32 v{vSW[2]}, 512, v{vSL}")
    a("s_barrier")
    loads(BUF[1], vKO, SRD_A, sOFF)
    a(f"s_add_u32 s{sOFF}, s{sOFF}, 0x10000")
    a(f"s_mov_b32 s{sIT}, 0")
    a(f"s_mov_b32 s{sKI}, {NSV // 2}")
    a(f"v_mov_b32 v{vW}, 0")
    a.label("L_lpro")
    a(f"ds_read_b32 v{vT}, v{vW} offset:{L_QF}")
    a("s_waitcnt lgkmcnt(0)")
    a(f"v_cmp_ne_u32 vcc, 0, v{vT}")
    a("s_cbranch_vccnz L_qready")
    a(f"s_cmp_lt_u32 s{sIT}, {NL}")
    a("s_cbranch_scc1 L_lgo")
    a("s_sleep 1")
    a("s_branch L_lpro")
    a.label("L_lgo")
    for rep in range(2):
        a(f"s_mov_b32 m0, s{sT5}")
        a("s_waitcnt vmcnt(4)")
        for m in range(4):
            a(f"buffer_load_dwordx4 v{vKO}, {SR(SRD_A)}, s{sOFF} offen offset:{1024*m} {POL} lds")
        a(f"s_add_u32 s{sT5}, s{sT5}, 4096")
        a(f"s_add_u32 s{sOFF}, s{sOFF}, 0x10000")
    a(f"s_add_u32 s{sIT}, s{sIT}, 2")
    a(f"s_sub_u32 s{sKI}, s{sKI}, 1")
    a("s_branch L_lpro")
    a.label("L_qready")
    stamp(2, -1)
    a(f"ds_read_b128 {R(vS)}, v{vA0} offset:{L_QV}")
    a("s_waitcnt lgkmcnt(0)")
    for m in range(4):
        a(f"v_cmp_eq_u32 vcc, {m}, v{vA1}")
        for r in range(4):
            a(f"v_cndmask_b32 v{vQB+4*m+r}, 0, v{vS+r}, vcc")
    a(f"v_mov_b32 v{vA0}, 0")
    a(f"v_mov_b32 v{vA1}, 1")
    a.label("L_kloop")
    a(f"s_sub_u32 s{sKI}, s{sKI}, 1")
    a(f"s_cmp_lg_u32 s{sKI}, 0")
    a("s_cbranch_scc1 L_kgo")
    a(f"s_mov_b32 s{SRD_X}, s{SRD_B}")
    a(f"s_mov_b32 s{SRD_X+1}, s{SRD_B+1}")
    a(f"s_mov_b32 s{sOFF}, s{sBASE}")
    a(f"v_mov_b32 v{vCO}, v{vVO}")
    a.label("L_kgo")
    for x in range(2):
        kbody(BUF[x], vSW[x], True)
    a(f"s_cmp_eq_u32 s{sIT}, 0")
    a("s_cbranch_scc1 L_knol")
    a("s_waitcnt vmcnt(8)")
    a.label("L_kl")
    for m in range(4):
        a(f"ds_read_b128 {R(BUFL+4*m)}, v{vA2} offset:{1024*m}")
    a(f"v_add_u32 v{vA2}, 0x1000, v{vA2}")
    a("s_waitcnt lgkmcnt(0)")
    kbody(BUFL, vSW[2], False)
    a(f"s_sub_u32 s{sIT}, s{sIT}, 1")
    a(f"s_bitcmp1_b32 s{sIT}, 0")
    a("s_cbranch_scc1 L_kl")
    a.label("L_knol")
    a(f"s_cmp_lg_u32 s{sKI}, 0")
    a("s_cbranch_scc1 L_kloop")
    stamp(5, -1)
    allreduce(a, [vM], [vW], op="v_max_f32", quad=False)
    a(f"v_mul_f32 v{vMN}, {NLOG2E:#x}, v{vM}")
    a(f"s_mov_b32 s{sVI}, {NSV // 2}")
    a.label("L_vloop")
    a(f"ds_read_b128 {R(SC[0])}, v{vSR} offset:{L_SC}")
    a(f"ds_read_b128 {R(SC[1])}, v{vSR} offset:{L_SC+256}")
    a(f"v_add_u32 v{vSR}, 512, v{vSR}")
    a(f"s_sub_u32 s{sVI}, s{sVI}, 1")
    a(f"s_mov_b32 s{sUO[0]}, s{sOFF}")
    a(f"s_add_u32 s{sUO[1]}, s{sOFF}, 0x10000")
    a(f"s_add_u32 s{sOFF}, s{sOFF}, 0x20000")
    a("s_waitcnt lgkmcnt(0)")
    for x in range(2):
        pbody(SC[x])
        buildall(x)
    a(f"s_cmp_lg_u32 s{sVI}, 0")
    a("s_cbranch_scc1 L_vnd")
    dynnext()
    a(f"s_mov_b32 s{sUO[1]}, s{sUO[0]}")
    a(f"s_mov_b32 s{SRD_X}, s{SRD_A}")
    a(f"s_mov_b32 s{SRD_X+1}, s{SRD_A+1}")
    a(f"v_mov_b32 v{vCO}, v{vKO}")
    a.label("L_vnd")
    for x in range(2):
        vbody(BUF[x], sUO[x], 7, x)
        if x == CLX:
            a(f"s_cmp_gt_u32 s{sVI}, 1")
            a("s_cbranch_scc1 L_vnc")
            sclaim()
            a.label("L_vnc")
    a(f"s_cmp_lg_u32 s{sVI}, 0")
    a("s_cbranch_scc1 L_vloop")
    a(f"v_mul_f32 v{vL}, 0x3e800000, v{vL}")
    stamp(6, -1)
    a.label("L_dloop")
    a(f"s_cmp_ge_u32 s{sUO[0]}, {BAD:#x}")
    a("s_cbranch_scc1 L_sdone")
    a("s_waitcnt vmcnt(4)")
    for m in range(4):
        c = "0" if m == 0 else R(vS)
        a(f"v_mfma_f32_16x16x32_bf16 {R(vS)}, {R(BUF[0]+4*m)}, {R(vQB+4*m)}, {c}")
    dynnext()
    loads(BUF[0], vKO, SRD_A, sUO[0])
    sclaim()
    a(f"v_mov_b32_dpp v{vT}, v{vS} quad_perm:[0,0,0,0] {DPPM}")
    for e in range(1, 4):
        a(f"v_add_f32_dpp v{vT}, v{vS+e}, v{vT} quad_perm:[{e},{e},{e},{e}] {DPPM}")
    rne(a, [vT])
    a(f"v_mul_f32 v{vT}, {SCALE:#x}, v{vT}")
    rne(a, [vT])
    a(f"v_cmp_gt_f32 vcc, v{vT}, v{vM}")
    a("s_cbranch_vccnz L_slow")
    a.label("L_back")
    a(f"v_fma_f32 v{vT}, v{vT}, s{sL2E}, v{vMN}")
    a(f"v_exp_f32 v{vT}, v{vT}")
    a(f"v_add_f32 v{vL}, v{vL}, v{vT}")
    a(f"v_cvt_pk_bf16_f32 v{vP}, v{vT}, v{vT}")
    for m in range(4):
        for r in range(4):
            a(f"v_and_b32_dpp v{PBX+4*m+r}, v{vP}, v{vMASK+r} row_newbcast:{4*m} {DPPM}")
    a("s_waitcnt vmcnt(4)")
    for m in range(4):
        a(f"v_mfma_f32_16x16x32_bf16 {R(vACC)}, {R(BUF[1]+4*m)}, {R(PBX+4*m)}, {R(vACC)}")
    loads(BUF[1], vVO, SRD_B, sUO[0])
    a("s_branch L_dloop")
    a.label("L_slow")
    a("s_nop 0")
    a(f"v_max_f32_dpp v{vU}, v{vT}, v{vT} row_ror:4 {DPPM}")
    a(f"v_max_f32_dpp v{vU}, v{vU}, v{vU} row_ror:8 {DPPM}")
    a(f"v_mov_b32 v{vW}, v{vU}")
    a(f"v_permlane16_swap_b32 v{vU}, v{vW}")
    a(f"v_max_f32 v{vU}, v{vU}, v{vW}")
    a(f"v_mov_b32 v{vW}, v{vU}")
    a(f"v_permlane32_swap_b32 v{vU}, v{vW}")
    a(f"v_max3_f32 v{vU}, v{vU}, v{vW}, v{vM}")
    a(f"v_sub_f32 v{vW}, v{vM}, v{vU}")
    a(f"v_mul_f32 v{vW}, s{sL2E}, v{vW}")
    a(f"v_exp_f32 v{vW}, v{vW}")
    a(f"v_mov_b32 v{vM}, v{vU}")
    a(f"v_mul_f32 v{vMN}, {NLOG2E:#x}, v{vU}")
    for r in range(4):
        a(f"v_mul_f32 v{vACC+r}, v{vACC+r}, v{vW}")
    a(f"v_mul_f32 v{vL}, v{vL}, v{vW}")
    a("s_branch L_back")
    a.label("L_sdone")
    a(f"ds_write_b32 v{vA0}, v{vA1} offset:{L_QF+4}")
    stamp(3, -1)
    a("s_mov_b32 exec_lo, 0x00ff00ff")
    a("s_mov_b32 exec_hi, 0x00ff00ff")
    a("s_nop 3")
    a(f"ds_write_b128 v{vE0}, {R(vACC)} offset:{L_PART}")
    a("s_mov_b64 exec, -1")
    allreduce(a, [vL], [vW], quad=False)
    a(f"v_mov_b32 v{vMN}, v{vL}")
    a(f"ds_write_b64 v{vE1}, v[{vM}:{vMN}] offset:{L_PML}")
    a("s_waitcnt lgkmcnt(0)")
    a("s_barrier")
    stamp_flush(4)
    a("s_endpgm")

    def load_tag():
        a(f"s_mov_b32 s{sT2}, {GEN:#x}")
        a(f"s_load_dword s{sTAG}, s[{sWS}:{sWS+1}], s{sT2}")

    def make_tag():
        a(f"s_add_u32 s{sGEN}, s{sTAG}, 1")
        a(f"s_mov_b32 s{sTMK}, 0xff")
        a(f"v_and_b32 v{vTAG}, s{sGEN}, v{vTAG}")
        a(f"v_and_b32 v{vTAG+1}, s{sGEN}, v{vTAG+1}")

    def pre_tag():
        a(f"v_mov_b32 v{vTAG}, 0xff")
        a(f"v_mov_b32 v{vTAG+1}, 7")

    def publish(src, voff, soff, off, fine=False):
        mk, tg = ("7", vTAG + 1) if fine else (f"s{sTMK}", vTAG)
        for r in range(4):
            a(f"v_bfi_b32 v{src+r}, {mk}, v{tg}, v{src+r}")
        a(f"buffer_store_dwordx4 {R(src)}, v{voff}, {SR(SRD_WS)}, s{soff} offen offset:{off} sc1")

    def gather(dst, n, voff, soff, step, off, sleep, name, lanes="-1", fine=False, lastmask=None):
        mk, tg = ("7", vTAG + 1) if fine else (f"s{sTMK}", vTAG)
        top = a.newlabel(name)
        done = a.newlabel(name + "d")
        a(f"s_mov_b32 s{sCNT}, 0x40000")
        a(f"s_mov_b32 s{sPM}, {(1 << n) - 1}")
        if lanes != "-1":
            a(f"s_mov_b64 exec, {lanes}")
        a.label(top)
        if n > 1:
            a(f"s_mov_b32 s{sT1}, s{soff}")
        for t in range(n):
            sk = a.newlabel(name + "s")
            if n > 1:
                a(f"s_bitcmp1_b32 s{sPM}, {t}")
                a(f"s_cbranch_scc0 {sk}")
            if lastmask and t == n - 1:
                a(f"s_mov_b32 exec_hi, {lastmask:#x}")
            a(f"buffer_load_dwordx4 {R(dst+4*t)}, v{voff}, {SR(SRD_WS)}, s{sT1 if n > 1 else soff} offen offset:{off} sc1")
            if lastmask and t == n - 1:
                a("s_mov_b32 exec_hi, -1")
            a.label(sk)
            if t < n - 1:
                a(f"s_add_u32 s{sT1}, s{sT1}, {step}")
        a("s_waitcnt vmcnt(0)")
        for t in range(n):
            d = dst + 4 * t
            sk = a.newlabel(name + "c")
            if n > 1:
                a(f"s_bitcmp1_b32 s{sPM}, {t}")
                a(f"s_cbranch_scc0 {sk}")
            if lastmask and t == n - 1:
                a(f"s_mov_b32 exec_hi, {lastmask:#x}")
            for r in range(4):
                a(f"v_xor_b32 v{d+r}, v{d+r}, v{tg}")
            a(f"v_or3_b32 v{vT}, v{d}, v{d+1}, v{d+2}")
            a(f"v_or_b32 v{vT}, v{vT}, v{d+3}")
            a(f"v_and_b32 v{vT}, {mk}, v{vT}")
            a(f"v_cmp_ne_u32 vcc, 0, v{vT}")
            if lastmask and t == n - 1:
                a("s_mov_b32 exec_hi, -1")
            if n > 1:
                a(f"s_cbranch_vccnz {sk}")
                a(f"s_bitset0_b32 s{sPM}, {t}")
                a.label(sk)
        if n > 1:
            a(f"s_cmp_eq_u32 s{sPM}, 0")
            a(f"s_cbranch_scc1 {done}")
        else:
            a(f"s_cbranch_vccz {done}")
        a(f"s_sub_u32 s{sCNT}, s{sCNT}, 1")
        a(f"s_cbranch_scc1 {done}")
        if sleep:
            a(f"s_sleep {sleep}")
        a(f"s_branch {top}")
        a.label(done)
        if lanes != "-1":
            a("s_mov_b64 exec, -1")

    def gatherP(fin, bufs, n, voff, soff, step, off, name, gap, items=None):
        P = len(bufs)
        if items is None:
            items = [(voff, soff, t * step) for t in range(n)]
        n = len(items)
        top = a.newlabel(name)
        done = a.newlabel(name + "d")
        a(f"s_mov_b32 s{sCNT}, 0x40000")
        a(f"s_mov_b32 s{sPM}, {(1 << n) - 1}")
        for t, (vo, so, add) in enumerate(items):
            a(f"s_add_u32 s{sPM+1+t}, s{so}, {add}")

        def issue(bf):
            for t, (vo, so, add) in enumerate(items):
                a(f"buffer_load_dwordx4 {R(bf+4*t)}, v{vo}, {SR(SRD_WS)}, s{sPM+1+t} offen offset:{off} sc1")
        for p in range(P - 1):
            issue(bufs[p])
            a(f"s_sleep {gap}")
        a.label(top)
        for p in range(P):
            issue(bufs[(p + P - 1) % P])
            a(f"s_waitcnt vmcnt({n*(P-1)})")
            bf = bufs[p]
            for t in range(n):
                d = bf + 4 * t
                sk = a.newlabel(name + "c")
                if n > 1:
                    a(f"s_bitcmp1_b32 s{sPM}, {t}")
                    a(f"s_cbranch_scc0 {sk}")
                for r in range(4):
                    a(f"v_xor_b32 v{fin+4*t+r}, v{d+r}, v{vTAG}")
                a(f"v_or3_b32 v{vT}, v{fin+4*t}, v{fin+4*t+1}, v{fin+4*t+2}")
                a(f"v_or_b32 v{vT}, v{vT}, v{fin+4*t+3}")
                a(f"v_and_b32 v{vT}, s{sTMK}, v{vT}")
                a(f"v_cmp_ne_u32 vcc, 0, v{vT}")
                if n > 1:
                    a(f"s_cbranch_vccnz {sk}")
                    a(f"s_bitset0_b32 s{sPM}, {t}")
                    a(f"s_mov_b32 s{sPM+1+t}, 0x40000000")
                    a.label(sk)
                else:
                    a(f"s_cbranch_vccz {done}")
            if n > 1:
                a(f"s_cmp_eq_u32 s{sPM}, 0")
                a(f"s_cbranch_scc1 {done}")
        a(f"s_sub_u32 s{sCNT}, s{sCNT}, 1")
        a(f"s_cbranch_scc0 {top}")
        a.label(done)

    def ffn2_index():
        a(f"s_lshr_b32 s{sT1}, s{sLW}, 4")
        a(f"s_add_u32 s{sT1}, s{sT1}, 80")
        a(f"s_and_b32 s{sT2}, s{sLW}, 0x8f")
        a(f"s_cmp_eq_u32 s{sT2}, 9")
        a(f"s_cselect_b32 s{sKF}, s{sT1}, 255")
        a(f"s_sub_u32 s{sT1}, s{sLW}, 176")
        a(f"s_cmp_ge_u32 s{sLW}, 176")
        a(f"s_cselect_b32 s{sKF}, s{sT1}, s{sKF}")
        a(f"s_mov_b32 s{sT1}, s{sKF}")
        a(f"s_lshr_b32 s{sT4}, s{sT1}, 2")
        a(f"s_and_b32 s{sT5}, s{sT1}, 3")
        a(f"s_lshl_b32 s{sT3}, s{sT4}, 16")
        a(f"s_lshl_b32 s{sT1}, s{sT5}, 8")
        a(f"s_add_u32 s{sT3}, s{sT3}, s{sT1}")

    def wd_loads(vaddr):
        srd(a, SRD_C, sWD, 1376 * 1024)
        a(f"s_cmp_lt_u32 s{sKF}, 88")
        a(f"s_cselect_b32 s{SRD_C+2}, {1376*1024}, 0")
        for t in range(16):
            if t % 4 == 0 and t:
                a(f"s_add_u32 s{sT3}, s{sT3}, 4096")
            a(f"buffer_load_dwordx4 {R(TB+4*t)}, v{vaddr}, {SR(SRD_C)}, s{sT3} offen offset:{1024*(t%4)} {WPOL}")

    def dp_publish(voff):
        a(f"s_lshl_b32 s{sT0}, s{sKF}, 12")
        a(f"s_add_u32 s{sT0}, s{sT0}, {DPB + 168*4096}")
        publish(vACC, voff, sT0, 0)

    def ldswait(off, sleep, name):
        a.label(name)
        a(f"s_sleep {sleep}")
        a(f"ds_read_b32 v{vT}, v{vW} offset:{off}")
        a("s_waitcnt lgkmcnt(0)")
        a(f"v_cmp_eq_u32 vcc, 0, v{vT}")
        a(f"s_cbranch_vccnz {name}")

    a.label("L_A0")
    if EXP & 8:
        a("s_endpgm")
    a("s_setprio 3")
    pre_tag()
    a(f"v_lshlrev_b32 v{vVO}, 4, v{vLANE}")
    for r in range(4):
        a(f"v_mov_b32 v{vS+r}, -1")
    a(f"s_lshl_b32 s{sOFF}, s{sLW}, 12")
    a(f"v_lshlrev_b32 v{vA0}, 17, v{vG}")
    a(f"v_lshl_add_u32 v{vA0}, v{vJ}, 4, v{vA0}")
    a(f"s_lshl_b32 s{sT0}, s{sPID}, 19")
    a(f"s_lshl_b32 s{sT1}, s{sH}, 8")
    a(f"s_add_u32 s{sT0}, s{sT0}, s{sT1}")
    a("s_waitcnt lgkmcnt(0)")
    srd(a, SRD_A, sX, 2048)
    a(f"buffer_load_dwordx4 {R(vPB0)}, v{vVO}, {SR(SRD_A)}, 0 offen")
    a(f"buffer_load_dwordx4 {R(vPB1)}, v{vVO}, {SR(SRD_A)}, 0 offen offset:1024")
    srd(a, SRD_WS, sWS, WSZ)
    load_tag()
    a("s_mov_b64 exec, 0xffff")
    a(f"buffer_store_dwordx4 {R(vS)}, v{vVO}, {SR(SRD_WS)}, s{sOFF} offen offset:{CNT} sc1")
    a("s_mov_b64 exec, -1")
    srd(a, SRD_B, sWQ, 0x400000)
    for t in range(16):
        a(f"buffer_load_dwordx4 {R(TA+4*t)}, v{vA0}, {SR(SRD_B)}, s{sT0} offen {WPOL}")
        if t < 15:
            a(f"s_add_u32 s{sT0}, s{sT0}, 8192")
    if EARLY >= 2:
        a("s_barrier")
    masks()
    a("s_waitcnt vmcnt(17)")
    stamp(2)
    X = [TC + i for i in range(16)]
    for bb, src in ((0, vPB0), (1, vPB1)):
        for k in range(4):
            a(f"v_lshlrev_b32 v{X[bb*8+2*k]}, 16, v{src+k}")
            a(f"v_and_b32 v{X[bb*8+2*k+1]}, 0xffff0000, v{src+k}")
    S0, S1, Tm0, Tm1 = TC + 16, TC + 17, TC + 18, TC + 19
    Dv = [TC + 20 + i for i in range(16)]
    for bb, s in ((0, S0), (1, S1)):
        a(f"v_add_f32 v{s}, v{X[bb*8]}, v{X[bb*8+1]}")
    for k in range(2, 8):
        for bb, s in ((0, S0), (1, S1)):
            a(f"v_add_f32 v{s}, v{s}, v{X[bb*8+k]}")
    allreduce(a, [S0, S1], [Tm0, Tm1])
    a(f"v_mul_f32 v{S0}, 0x3b000000, v{S0}")
    a(f"v_mul_f32 v{S1}, 0x3b000000, v{S1}")
    V0, V1 = TC + 36, TC + 37
    for bb, s in ((0, S0), (1, S1)):
        for k in range(8):
            a(f"v_sub_f32 v{Dv[bb*8+k]}, v{X[bb*8+k]}, v{s}")
    for bb, v in ((0, V0), (1, V1)):
        a(f"v_mul_f32 v{v}, v{Dv[bb*8]}, v{Dv[bb*8]}")
    for k in range(1, 8):
        for bb, v in ((0, V0), (1, V1)):
            a(f"v_fmac_f32 v{v}, v{Dv[bb*8+k]}, v{Dv[bb*8+k]}")
    allreduce(a, [V0, V1], [Tm0, Tm1])
    a(f"v_mul_f32 v{V0}, 0x3b000000, v{V0}")
    a(f"v_mul_f32 v{V1}, 0x3b000000, v{V1}")
    rne(a, [S0, S1, V0, V1])
    a(f"v_add_f32 v{V0}, 0x3727c5ac, v{V0}")
    a(f"v_add_f32 v{V1}, 0x3727c5ac, v{V1}")
    rne(a, [V0, V1])
    a(f"v_sqrt_f32 v{V0}, v{V0}")
    a(f"v_sqrt_f32 v{V1}, v{V1}")
    rne(a, [V0, V1])
    a(f"v_rcp_f32 v{V0}, v{V0}")
    a(f"v_rcp_f32 v{V1}, v{V1}")
    for bb, s in ((0, S0), (1, S1)):
        for k in range(8):
            a(f"v_sub_f32 v{Dv[bb*8+k]}, v{X[bb*8+k]}, v{s}")
    rne(a, Dv)
    for bb, v in ((0, V0), (1, V1)):
        for k in range(8):
            a(f"v_mul_f32 v{Dv[bb*8+k]}, v{Dv[bb*8+k]}, v{v}")
    for d in Dv:
        a(f"v_cvt_pk_bf16_f32 v{d}, v{d}, v{d}")
    a(f"v_lshlrev_b32 v{vA1}, 5, v{vLANE}")
    for bb in range(2):
        for k in range(2):
            a(f"ds_write_b128 v{vA1}, {R(Dv[bb*8+4*k])} offset:{L_XN + bb*2048 + 16*k}")
    a(f"s_cmp_ge_u32 s{sLW}, 88")
    a(f"s_cselect_b32 s{sT0}, 88, 0")
    a(f"s_cselect_b32 s{SRD_C}, s{sWU}, s{sWG}")
    a(f"s_cselect_b32 s{SRD_C+1}, s{sWU+1}, s{sWG+1}")
    a(f"s_and_b32 s{SRD_C+1}, s{SRD_C+1}, 0xffff")
    a(f"s_sub_u32 s{sT0}, s{sLW}, s{sT0}")
    a(f"s_cmp_lt_u32 s{sLW}, 176")
    a(f"s_cselect_b32 s{SRD_C+2}, {512*2752}, 0")
    a(f"s_mov_b32 s{SRD_C+3}, 0x20000")
    a(f"s_lshr_b32 s{sT1}, s{sT0}, 3")
    a(f"s_and_b32 s{sT5}, s{sT0}, 7")
    a(f"s_mul_i32 s{sT3}, s{sT5}, {64*2752}")
    a(f"s_lshl_b32 s{sT4}, s{sT1}, 8")
    a(f"s_add_u32 s{sT3}, s{sT3}, s{sT4}")
    a(f"v_mul_u32_u24 v{vA0}, {16*2752}, v{vG}")
    a(f"v_lshl_add_u32 v{vA0}, v{vJ}, 4, v{vA0}")
    a(f"s_lshl_b32 s{sT4}, s{sT1}, 4")
    a(f"v_add_u32 v{vT}, s{sT4}, v{vJ}")
    a(f"v_cmp_gt_u32 vcc, 172, v{vT}")
    a(f"v_mov_b32 v{vU}, 0x40000000")
    a(f"v_cndmask_b32 v{vA0}, v{vU}, v{vA0}, vcc")
    for t in range(16):
        a(f"buffer_load_dwordx4 {R(TB+4*t)}, v{vA0}, {SR(SRD_C)}, s{sT3} offen {WPOL}")
        if t < 15:
            a(f"s_add_u32 s{sT3}, s{sT3}, 2752")
    a(f"v_lshrrev_b32 v{vT}, 3, v{vJ}")
    a(f"v_lshlrev_b32 v{vKO}, 11, v{vT}")
    a(f"v_lshl_add_u32 v{vKO}, v{vG}, 6, v{vKO}")
    a(f"s_lshl_b32 s{sT0}, s{sPID}, 8")
    a(f"v_add_u32 v{vA1}, s{sT0}, v{vKO}")
    a("s_waitcnt lgkmcnt(0)")
    make_tag()
    if EARLY == 1:
        a("s_barrier")
    tile_gemv(a, TA, vA1, L_XN, waits={0: 28, 4: 24, 8: 20, 12: 16})
    publish(vACC, vVO, sOFF, QP, fine=True)
    if EARLY in (0, 3):
        a("s_barrier")
    stamp(3)
    if DIAG == 3:
        a(f"s_memrealtime s[{sST+4}:{sST+5}]")
    a(f"s_cmp_ge_u32 s{sLW}, 176")
    a("s_cbranch_scc1 L_A0_noffn1")
    a(f"s_lshl_b32 s{sT0}, s{sT5}, 8")
    a(f"v_add_u32 v{vA1}, s{sT0}, v{vKO}")
    tile_gemv(a, TB, vA1, L_XN, waits={0: 1})
    publish(vACC, vVO, sOFF, GP)
    a.label("L_A0_noffn1")
    stamp(4)
    a("s_setprio 0")
    if LWD:
        ffn2_index()
        a(f"s_cmp_lt_u32 s{sKF}, 88")
        a("s_cbranch_scc1 L_A0_ffn2")
        a(f"s_cmp_ge_u32 s{sLW}, 32")
        a("s_cbranch_scc1 L_A0_nogen")
        a("s_barrier")
        a("s_branch L_A0_final")
        a.label("L_A0_ffn2")
        a(f"v_lshlrev_b32 v{vA0}, 14, v{vG}")
        a(f"v_lshl_add_u32 v{vA0}, v{vJ}, 4, v{vA0}")
        a(f"v_lshrrev_b32 v{vT}, 3, v{vJ}")
        a(f"v_lshlrev_b32 v{vA1}, 8, v{vT}")
        a(f"v_lshl_add_u32 v{vA1}, v{vG}, 6, v{vA1}")
        a(f"v_mov_b32 v{vW}, 0")
        ldswait(L_QF + 8, 64, "L_A0_w1")
        ldswait(L_QF + 4, WSL, "L_A0_w2")
        wd_loads(vA0)
        a("s_setprio 2")
        a("s_barrier")
        tile_gemv(a, TB, vA1, L_VEC0, waits={0: 12, 4: 8, 8: 4, 12: 0})
        dp_publish(vVO)
        a.label("L_A0_final")
    a(f"s_cmp_ge_u32 s{sLW}, 32")
    a("s_cbranch_scc1 L_A0_nogen")
    a(f"s_lshr_b32 s{sT4}, s{sLW}, 3")
    a(f"s_and_b32 s{sT5}, s{sLW}, 7")
    a(f"s_and_b32 s{sT0}, s{sT5}, 1")
    a(f"s_lshl_b32 s{sT0}, s{sT0}, 9")
    a(f"s_lshl_b32 s{sT1}, s{sT4}, 7")
    a(f"s_add_u32 s{sT0}, s{sT0}, s{sT1}")
    a(f"s_lshr_b32 s{sT1}, s{sT5}, 1")
    a(f"s_lshl_b32 s{sT1}, s{sT1}, 5")
    a(f"s_add_u32 s{sT0}, s{sT0}, s{sT1}")
    a(f"v_and_b32 v{vT}, 31, v{vLANE}")
    a(f"v_add_u32 v{vT}, s{sT0}, v{vT}")
    a(f"v_lshlrev_b32 v{vA2}, 1, v{vT}")
    a(f"buffer_load_ushort v{vP}, v{vA2}, {SR(SRD_A)}, 0 offen")
    a(f"v_lshrrev_b32 v{vT}, 3, v{vLANE}")
    a(f"v_lshlrev_b32 v{vA0}, 14, v{vT}")
    a(f"v_and_b32 v{vA1}, 3, v{vT}")
    a(f"v_and_b32 v{vT}, 7, v{vLANE}")
    a(f"v_lshl_add_u32 v{vA0}, v{vT}, 4, v{vA0}")
    a(f"s_lshl_b32 s{sT4}, s{sT4}, 12")
    a(f"s_lshl_b32 s{sT5}, s{sT5}, 7")
    a(f"s_add_u32 s{sT4}, s{sT4}, s{sT5}")
    a(f"s_add_u32 s{sT5}, s{sT4}, {DPB + 168*4096}")
    if LWD == 2:
        a(f"v_min_u32 v{vKO}, {5*16384 + 127}, v{vA0}")
        a(f"v_and_b32 v{vT}, 7, v{vLANE}")
        a(f"v_and_b32 v{vKO}, 0x1c000, v{vKO}")
        a(f"v_lshl_add_u32 v{vKO}, v{vT}, 4, v{vKO}")
        srd(a, SRD_B, sOUT, 2048)
        a(f"s_lshl_b32 s{sT4}, s{sLW}, 13")
        a(f"s_add_u32 s{sT4}, s{sT4}, {YPB:#x}")
        a("s_setprio 3")
        items = [(vA0, sT5, 0), (vA0, sT5, 8 * 16384), (vKO, sT5, 16 * 16384)] + [(vVO, sT4, 1024 * t) for t in range(8)]
        gatherP(TA, [TB, TC], 11, None, None, 0, 0, "yp", PGAP, items=items)
        stamp(7)
        D0, Y0 = TA, TA + 12
        a("s_mov_b32 exec_hi, 0xffff")
        for r in range(4):
            a(f"v_add_f32 v{D0+r}, v{D0+r}, v{D0+8+r}")
        a("s_mov_b32 exec_hi, -1")
        for r in range(4):
            a(f"v_add_f32 v{D0+r}, v{D0+r}, v{D0+4+r}")
        for (x, y) in ((0, 1), (2, 3), (4, 5), (6, 7), (0, 2), (4, 6), (0, 4)):
            for r in range(4):
                a(f"v_add_f32 v{Y0+4*x+r}, v{Y0+4*x+r}, v{Y0+4*y+r}")
        regs = [D0 + r for r in range(4)] + [Y0 + r for r in range(4)]
        tmps = [D0 + 4 + r for r in range(4)] + [Y0 + 4 + r for r in range(4)]
        for r in regs:
            a(f"v_add_f32_dpp v{r}, v{r}, v{r} row_ror:8 {DPPM}")
        for sw in ("v_permlane16_swap_b32", "v_permlane32_swap_b32"):
            for r, t in zip(regs, tmps):
                a(f"v_mov_b32 v{t}, v{r}")
            for r, t in zip(regs, tmps):
                a(f"{sw} v{r}, v{t}")
            for r, t in zip(regs, tmps):
                a(f"v_add_f32 v{r}, v{r}, v{t}")
        a("s_mov_b32 exec_hi, 0")
        for r in range(1, 4):
            a(f"s_mov_b32 exec_lo, {0xff << (8*r):#x}")
            a(f"v_mov_b32 v{D0}, v{D0+r}")
            a(f"v_mov_b32 v{Y0}, v{Y0+r}")
        a("s_mov_b32 exec_lo, -1")
        rne(a, [D0, Y0])
        a(f"v_mul_f32 v{vU}, {NLOG2E:#x}, v{D0}")
        a(f"v_exp_f32 v{vU}, v{vU}")
        a(f"v_lshlrev_b32 v{vP}, 16, v{vP}")
        a(f"v_add_f32 v{vU}, 1.0, v{vU}")
        a(f"v_rcp_f32 v{vU}, v{vU}")
        a(f"v_mul_f32 v{D0}, v{D0}, v{vU}")
        rne(a, [D0])
        a(f"v_mul_f32 v{Y0}, v{Y0}, v{D0}")
        rne(a, [Y0])
        a(f"v_add_f32 v{Y0}, v{Y0}, v{vP}")
        a(f"v_cvt_pk_bf16_f32 v{Y0}, v{Y0}, v{Y0}")
        a(f"buffer_store_short v{Y0}, v{vA2}, {SR(SRD_B)}, 0 offen")
        a("s_branch L_A0_stored")
    for r in range(4):
        a(f"v_mov_b32 v{TA+8+r}, 0")
    if not LWD:
        for _ in range(3):
            a(f"s_sleep {PSL}")
    gather(TA, 3, vA0, sT5, 8 * 16384, 0, 2 if LWD else PSL, "dp", lastmask=0xffff)
    stamp(5)
    if DIAG == 4:
        a(f"s_memrealtime s[{sST+4}:{sST+5}]")

    def reduce_select(dst, n):
        for t in range(1, n):
            for r in range(4):
                a(f"v_add_f32 v{TA+r}, v{TA+r}, v{TA+4*t+r}")
        regs = [TA + r for r in range(4)]
        tmps = [TA + 4 + r for r in range(4)]
        for r in regs:
            a(f"v_add_f32_dpp v{r}, v{r}, v{r} row_ror:8 {DPPM}")
        for sw in ("v_permlane16_swap_b32", "v_permlane32_swap_b32"):
            for r, t in zip(regs, tmps):
                a(f"v_mov_b32 v{t}, v{r}")
            for r, t in zip(regs, tmps):
                a(f"{sw} v{r}, v{t}")
            for r, t in zip(regs, tmps):
                a(f"v_add_f32 v{r}, v{r}, v{t}")
        a(f"v_cndmask_b32 v{dst}, v{TA}, v{TA+1}, s[{sSEL}:{sSEL+1}]")
        a(f"v_cndmask_b32 v{dst}, v{dst}, v{TA+2}, s[{sSEL+2}:{sSEL+3}]")
        a(f"v_cndmask_b32 v{dst}, v{dst}, v{TA+3}, s[{sSEL+4}:{sSEL+5}]")
    for r in range(1, 4):
        a(f"v_cmp_eq_u32 s[{sSEL+2*r-2}:{sSEL+2*r-1}], {r}, v{vA1}")
    reduce_select(vM, 3)
    rne(a, [vM])
    a(f"v_mul_f32 v{vU}, {NLOG2E:#x}, v{vM}")
    a(f"v_exp_f32 v{vU}, v{vU}")
    a(f"v_add_f32 v{vU}, 1.0, v{vU}")
    a(f"v_rcp_f32 v{vU}, v{vU}")
    a(f"v_mul_f32 v{vM}, v{vM}, v{vU}")
    rne(a, [vM])
    a(f"v_lshlrev_b32 v{vP}, 16, v{vP}")
    srd(a, SRD_B, sOUT, 2048)
    a(f"s_lshl_b32 s{sT4}, s{sLW}, 13")
    a(f"s_add_u32 s{sT4}, s{sT4}, {YPB:#x}")
    stamp(6)
    if DRY:
        a(f"s_mov_b32 s{sDRY}, 1")
        a("s_branch L_A0_dry0")
        a.label("L_A0_real")
        a(f"s_mov_b32 s{sDRY}, 0")
    a("s_setprio 3")
    if not LWD:
        a("s_barrier")
    if DIAG == 2:
        a(f"s_memrealtime s[{sST+4}:{sST+5}]")
    if PY:
        gatherP(TA, [TB + 32 * p for p in range(PY)], 8, vVO, sT4, 1024, 0, "yp", PGAP)
    else:
        gather(TA, 8, vVO, sT4, 1024, 0, YSL, "yp")
    stamp(7)
    if DRY:
        a.label("L_A0_dry0")
    reduce_select(vL, 8)
    rne(a, [vL])
    a(f"v_mul_f32 v{vL}, v{vL}, v{vM}")
    rne(a, [vL])
    a(f"v_add_f32 v{vL}, v{vL}, v{vP}")
    a(f"v_cvt_pk_bf16_f32 v{vL}, v{vL}, v{vL}")
    if DRY:
        a(f"s_cmp_lg_u32 s{sDRY}, 0")
        a("s_cbranch_scc1 L_A0_real")
    a("s_mov_b32 exec_hi, 0")
    a(f"buffer_store_short v{vL}, v{vA2}, {SR(SRD_B)}, 0 offen {OPOL}")
    a.label("L_A0_stored")
    a(f"s_cmp_lg_u32 s{sLW}, 0")
    a("s_cbranch_scc1 L_A0_nogen")
    a("s_mov_b64 exec, 1")
    a(f"v_mov_b32 v{vT}, s{sGEN}")
    a(f"v_mov_b32 v{vU}, {GEN:#x}")
    a(f"buffer_store_dword v{vT}, v{vU}, {SR(SRD_WS)}, 0 offen sc1")
    if DIAG:
        a(f"s_memrealtime s[{sST+2}:{sST+3}]")
        a("s_waitcnt lgkmcnt(0)")
        src = sST + 2 if DIAG == 1 else sST + 4
        a(f"s_sub_u32 s{sT0}, s{src}, s{sST}")
        if DIAG == 3:
            a(f"s_lshl_b32 s{sT0}, s{sT0}, 3")
        a(f"s_min_u32 s{sT0}, s{sT0}, 100000")
        a.label("L_diag")
        a(f"s_memrealtime s[{sST+6}:{sST+7}]")
        a("s_waitcnt lgkmcnt(0)")
        a(f"s_sub_u32 s{sT1}, s{sST+6}, s{sST+2}")
        a(f"s_cmp_lt_u32 s{sT1}, s{sT0}")
        a("s_cbranch_scc1 L_diag")
    a.label("L_A0_nogen")
    stamp_flush(7)
    a("s_endpgm")

    a.label("L_A1")
    if EXP & 8:
        a("s_endpgm")
    a("s_setprio 2")
    pre_tag()
    a(f"v_mov_b32 v{vKO}, 0")
    a(f"ds_write_b32 v{vKO}, v{vKO} offset:{L_QF}")
    a(f"ds_write_b32 v{vKO}, v{vKO} offset:{L_QF+4}")
    a(f"ds_write_b32 v{vKO}, v{vKO} offset:{L_QF+8}")
    masks()
    a(f"s_lshl_b32 s{sOFF}, s{sLW}, 12")
    a(f"v_lshlrev_b32 v{vA0}, 14, v{vG}")
    a(f"v_lshl_add_u32 v{vA0}, v{vJ}, 4, v{vA0}")
    a(f"s_lshl_b32 s{sT0}, s{sH}, 17")
    a(f"s_lshl_b32 s{sT1}, s{sB}, 16")
    a(f"s_add_u32 s{sT0}, s{sT0}, s{sT1}")
    a(f"s_lshl_b32 s{sT1}, s{sS}, 8")
    a(f"s_add_u32 s{sT0}, s{sT0}, s{sT1}")
    a(f"v_lshrrev_b32 v{vT}, 5, v{vLANE}")
    a(f"v_lshlrev_b32 v{vA1}, 12, v{vT}")
    a(f"v_bfe_u32 v{vT}, v{vLANE}, 3, 2")
    a(f"v_lshl_add_u32 v{vA1}, v{vT}, 8, v{vA1}")
    a(f"v_lshlrev_b32 v{vA2}, 6, v{vT}")
    a(f"v_and_b32 v{vT}, 7, v{vLANE}")
    a(f"v_lshl_add_u32 v{vA1}, v{vT}, 4, v{vA1}")
    a(f"v_lshl_add_u32 v{vA2}, v{vT}, 1, v{vA2}")
    ffn2_index()
    a("s_waitcnt lgkmcnt(0)")
    srd(a, SRD_WS, sWS, WSZ)
    load_tag()
    srd(a, SRD_B, sWO, 0x400000)
    if EARLY >= 2:
        a("s_barrier")
    a("s_waitcnt lgkmcnt(0)")
    make_tag()
    def wo_loads():
        for t in range(16):
            if t % 4 == 0 and t:
                a(f"s_add_u32 s{sWOF}, s{sWOF}, 4096")
            a(f"buffer_load_dwordx4 {R(TA+4*t)}, v{vWOA}, {SR(SRD_B)}, s{sWOF} offen offset:{1024*(t%4)} {WPOL}")
    a(f"s_mov_b32 s{sWOF}, s{sT0}")
    a(f"v_mov_b32 v{vWOA}, v{vA0}")
    if LWO == 0:
        wo_loads()
    if not LWD:
        wd_loads(vA0)
    a(f"s_lshl_b32 s{sT0}, s{sH}, 15")
    a(f"s_lshl_b32 s{sT1}, s{sB}, 7")
    a(f"s_add_u32 s{sT0}, s{sT0}, s{sT1}")
    if EARLY != 2:
        a("s_barrier")
    stamp(2, -1)
    if QSL:
        a(f"s_sleep {QSL}")
    gather(TC, 4, vA1, sT0, 8192, QP, 1, "qp", fine=True)
    stamp(3, -1)
    for t in range(1, 4):
        for r in range(4):
            a(f"v_add_f32 v{TC+r}, v{TC+r}, v{TC+4*t+r}")
    for r in range(4):
        a(f"v_mov_b32 v{TC+4+r}, v{TC+r}")
    for r in range(4):
        a(f"v_permlane32_swap_b32 v{TC+r}, v{TC+4+r}")
    for r in range(4):
        a(f"v_add_f32 v{TC+r}, v{TC+r}, v{TC+4+r}")
    for r in range(4):
        a(f"v_cvt_pk_bf16_f32 v{TC+r}, v{TC+r}, v{TC+r}")
    for r in range(4):
        a(f"ds_write_b16 v{vA2}, v{TC+r} offset:{L_QV + 16*r}")
    a(f"v_mov_b32 v{vT}, 1")
    a("s_waitcnt lgkmcnt(0)")
    a(f"ds_write_b32 v{vKO}, v{vT} offset:{L_QF}")
    a("s_setprio 0")
    a(f"v_lshrrev_b32 v{vT}, 3, v{vJ}")
    a(f"v_lshlrev_b32 v{vP}, 8, v{vT}")
    a(f"v_lshl_add_u32 v{vP}, v{vG}, 6, v{vP}")
    a(f"v_lshlrev_b32 v{vL}, 4, v{vLANE}")
    a(f"s_cmp_ge_u32 s{sKF}, 88")
    a("s_cbranch_scc1 L_A1_noffn2")
    a(f"v_lshrrev_b32 v{vT}, 5, v{vLANE}")
    a(f"v_mul_u32_u24 v{vA0}, {88*4096}, v{vT}")
    a(f"v_and_b32 v{vT}, 31, v{vLANE}")
    a(f"v_lshl_add_u32 v{vA0}, v{vT}, 4, v{vA0}")
    a(f"s_lshr_b32 s{sT0}, s{sT4}, 1")
    a(f"s_lshl_b32 s{sT0}, s{sT0}, 15")
    a(f"s_and_b32 s{sT1}, s{sT4}, 1")
    a(f"s_lshl_b32 s{sT1}, s{sT1}, 9")
    a(f"s_add_u32 s{sT0}, s{sT0}, s{sT1}")
    a(f"s_sleep {GSL}")
    gather(TC, 8, vA0, sT0, 4096, GP, 32, "gp")
    for t in range(1, 8):
        for r in range(4):
            a(f"v_add_f32 v{TC+r}, v{TC+r}, v{TC+4*t+r}")
    G = [TC + r for r in range(4)]
    Uu = [TC + 4 + r for r in range(4)]
    E = [TC + 8 + r for r in range(4)]
    rne(a, G)
    for r in range(4):
        a(f"v_mov_b32 v{Uu[r]}, v{G[r]}")
    for r in range(4):
        a(f"v_permlane32_swap_b32 v{G[r]}, v{Uu[r]}")
    a(f"s_mov_b32 s{sT0}, 0xbdd2d3e8")
    a(f"v_mov_b32 v{vU}, 0xc0135761")
    for r in range(4):
        a(f"v_mul_f32 v{E[r]}, v{G[r]}, v{G[r]}")
    for r in range(4):
        a(f"v_fma_f32 v{E[r]}, v{E[r]}, s{sT0}, v{vU}")
    for r in range(4):
        a(f"v_mul_f32 v{E[r]}, v{E[r]}, v{G[r]}")
    for r in range(4):
        a(f"v_exp_f32 v{E[r]}, v{E[r]}")
    for r in range(4):
        a(f"v_add_f32 v{E[r]}, 1.0, v{E[r]}")
    for r in range(4):
        a(f"v_rcp_f32 v{E[r]}, v{E[r]}")
    for r in range(4):
        a(f"v_mul_f32 v{G[r]}, v{G[r]}, v{E[r]}")
    rne(a, G)
    for r in range(4):
        a(f"v_mul_f32 v{G[r]}, v{G[r]}, v{Uu[r]}")
    for r in range(4):
        a(f"v_cvt_pk_bf16_f32 v{G[r]}, v{G[r]}, v{G[r]}")
    a(f"v_lshrrev_b32 v{vT}, 3, v{vJ}")
    a(f"v_lshlrev_b32 v{vA0}, 8, v{vT}")
    a(f"v_and_b32 v{vT}, 1, v{vG}")
    a(f"v_lshl_add_u32 v{vA0}, v{vT}, 7, v{vA0}")
    a(f"v_and_b32 v{vT}, 7, v{vJ}")
    a(f"v_lshl_add_u32 v{vA0}, v{vT}, 2, v{vA0}")
    for r in range(4):
        a(f"ds_write_b32 v{vA0}, v{G[r]} offset:{L_VEC0 + 32*r}")
    a(f"v_mov_b32 v{vT}, 1")
    a("s_waitcnt lgkmcnt(0)")
    if LWD:
        a(f"ds_write_b32 v{vKO}, v{vT} offset:{L_QF+8}")
    else:
        tile_gemv(a, TB, vP, L_VEC0)
        dp_publish(vL)
    a.label("L_A1_noffn2")
    stamp(7, -1)
    if EXP & 512:
        a(f"s_andn2_b32 s{sT0}, s{sLW}, 3")
        a(f"s_lshl_b32 s{sT0}, s{sT0}, 12")
        a(f"s_add_u32 s{sT0}, s{sT0}, {CNT}")
        a(f"v_mov_b32 v{vA0}, 0")
        a("s_mov_b64 exec, 1")
        a(f"s_mov_b32 s{sCNT}, {ANUM}")
        stamp(2, -1)
        a.label("L_exp512")
        a(f"v_mov_b32 v{vT}, 1")
        if EXP & 2048:
            a(f"s_mov_b32 s{sT2}, 1")
            a(f"s_atomic_add s{sT2}, s[{sWS}:{sWS+1}], s{sT0} glc")
            a("s_waitcnt lgkmcnt(0)")
        elif EXP & 1024:
            a(f"buffer_load_dword v{vT}, v{vA0}, {SR(SRD_WS)}, s{sT0} offen sc1")
        else:
            a(f"buffer_atomic_add v{vT}, v{vA0}, {SR(SRD_WS)}, s{sT0} offen sc0 sc1")
        a("s_waitcnt vmcnt(0)")
        a(f"s_sub_u32 s{sCNT}, s{sCNT}, 1")
        a(f"s_cmp_lg_u32 s{sCNT}, 0")
        a("s_cbranch_scc1 L_exp512")
        stamp(3, -1)
        a("s_mov_b64 exec, -1")
    a(f"v_and_b32 v{vT}, 31, v{vLANE}")
    a(f"v_lshlrev_b32 v{vVO}, 4, v{vT}")
    a(f"v_mov_b32 v{vKO}, 0")
    a(f"v_and_b32 v{vU}, 7, v{vLANE}")
    a(f"v_lshlrev_b32 v{vU}, 4, v{vU}")
    a(f"v_add_u32 v{vU}, {ML}, v{vU}")
    a(f"v_cmp_gt_u32 vcc, 32, v{vLANE}")
    a(f"s_mov_b64 s[{sEX}:{sEX+1}], vcc")
    a(f"s_lshl_b32 s{sT1}, s{sB}, 8")
    a(f"s_add_u32 s{sT1}, s{sT1}, {OP}")
    a(f"v_lshlrev_b32 v{vA1}, 4, v{vJ}")
    a(f"v_add_u32 v{vA1}, s{sT1}, v{vA1}")
    a(f"v_cndmask_b32 v{vA1}, v{vU}, v{vA1}, vcc")
    a(f"v_and_b32 v{vT}, 1, v{vG}")
    a(f"v_lshl_add_u32 v{vA1}, v{vT}, 14, v{vA1}")
    a(f"v_lshlrev_b32 v{vA2}, 8, v{vT}")
    a(f"v_bfe_u32 v{vT}, v{vLANE}, 3, 1")
    a(f"v_lshl_add_u32 v{vA2}, v{vT}, 7, v{vA2}")
    a(f"v_and_b32 v{vT}, 7, v{vLANE}")
    a(f"v_lshl_add_u32 v{vA2}, v{vT}, 2, v{vA2}")
    a(f"v_lshrrev_b32 v{vT}, 3, v{vLANE}")
    a(f"v_lshlrev_b32 v{vA0}, 13, v{vT}")
    a(f"v_and_b32 v{vT}, 7, v{vLANE}")
    a(f"v_lshl_add_u32 v{vA0}, v{vT}, 4, v{vA0}")
    a(f"s_lshl_b32 s{sT2}, s{sS}, 16")
    a(f"s_lshl_b32 s{sT3}, s{sH}, 8")
    a(f"s_add_u32 s{sT2}, s{sT2}, s{sT3}")
    a(f"s_lshl_b32 s{sT3}, s{sB}, 7")
    a(f"s_add_u32 s{sT2}, s{sT2}, s{sT3}")
    a(f"s_add_u32 s{sT2}, s{sT2}, {YPB:#x}")
    a(f"s_lshl_b32 s{sT0}, s{sH}, 15")
    if DRY:
        a(f"s_mov_b32 s{sDRY}, 1")
        a("s_branch L_A1_dry0")
        a.label("L_A1_real")
        a(f"s_mov_b32 s{sDRY}, 0")
    if LWO in (3, 4):
        a.label("L_A1_wait")
        a(f"s_sleep {WSL}")
        a(f"ds_read_b32 v{vT}, v{vKO} offset:{L_QF+4}")
        a("s_waitcnt lgkmcnt(0)")
        a(f"v_cmp_eq_u32 vcc, 0, v{vT}")
        a("s_cbranch_vccnz L_A1_wait")
        wo_loads()
    a("s_setprio 3")
    a("s_barrier")
    stamp(4, -1)
    if DRY:
        a.label("L_A1_dry0")
    if LWO == 1:
        wo_loads()
    MLr = TC
    a(f"ds_read_b128 {R(MLr)}, v{vKO} offset:{L_PML}")
    a(f"ds_read_b128 {R(MLr+4)}, v{vKO} offset:{L_PML+16}")
    for w in range(4):
        a(f"ds_read_b128 {R(TB+4*w)}, v{vVO} offset:{L_PART + 512*w}")

    def combine(ms, ls, F, outm, outl):
        a(f"v_max_f32 v{outm}, v{ms[0]}, v{ms[1]}")
        a(f"v_max3_f32 v{outm}, v{outm}, v{ms[2]}, v{ms[3]}")
        for w in range(4):
            a(f"v_sub_f32 v{F+w}, v{ms[w]}, v{outm}")
        for w in range(4):
            a(f"v_mul_f32 v{F+w}, s{sL2E}, v{F+w}")
        for w in range(4):
            a(f"v_exp_f32 v{F+w}, v{F+w}")
        a(f"v_mul_f32 v{outl}, v{F}, v{ls[0]}")
        for w in range(1, 4):
            a(f"v_fmac_f32 v{outl}, v{F+w}, v{ls[w]}")

    def combine_o(os_, F):
        for r in range(4):
            a(f"v_mul_f32 v{os_[0]+r}, v{F}, v{os_[0]+r}")
        for w in range(1, 4):
            for r in range(4):
                a(f"v_fmac_f32 v{os_[0]+r}, v{F+w}, v{os_[w]+r}")
    F = TC + 8
    a("s_waitcnt lgkmcnt(4)")
    combine([MLr + 2 * w for w in range(4)], [MLr + 2 * w + 1 for w in range(4)], F, vM, vMN)
    a("s_waitcnt lgkmcnt(0)")
    combine_o([TB + 4 * w for w in range(4)], F)
    for r in range(4):
        src = vM if r % 2 == 0 else vMN
        a(f"v_cndmask_b32 v{TB+r}, v{src}, v{TB+r}, s[{sEX}:{sEX+1}]")
    if DRY:
        a(f"s_cmp_lg_u32 s{sDRY}, 0")
        a("s_cbranch_scc1 L_A1_dry1")
    a("s_mov_b32 exec_hi, 0xff")
    publish(TB, vL, sOFF, OP)
    a("s_mov_b64 exec, -1")
    stamp(5, -1)
    if LWO == 2:
        wo_loads()
    GB = TB + 16
    if PP:
        gatherP(GB, [TC + 16 + 16 * p for p in range(PP)], 4, vA1, sT0, 4096, 0, "op", PGAP)
    else:
        gather(GB, 4, vA1, sT0, 4096, 0, OSL, "op")
    stamp(6, -1)
    if DRY:
        a.label("L_A1_dry1")
    for t in range(4):
        a(f"v_mov_b32 v{MLr+2*t}, v{GB+4*t}")
        a(f"v_mov_b32 v{MLr+2*t+1}, v{GB+4*t+1}")
    for t in range(4):
        a(f"v_permlane32_swap_b32 v{GB+4*t}, v{MLr+2*t}")
        a(f"v_permlane32_swap_b32 v{GB+4*t+1}, v{MLr+2*t+1}")
    combine([MLr + 2 * w for w in range(4)], [MLr + 2 * w + 1 for w in range(4)], F, vM, vMN)
    a(f"v_rcp_f32 v{vMN}, v{vMN}")
    combine_o([GB + 4 * w for w in range(4)], F)
    for r in range(4):
        a(f"v_mul_f32 v{GB+r}, v{GB+r}, v{vMN}")
    for r in range(4):
        a(f"v_cvt_pk_bf16_f32 v{GB+r}, v{GB+r}, v{GB+r}")
    a(f"s_mov_b64 exec, s[{sEX}:{sEX+1}]")
    for r in range(4):
        a(f"ds_write_b32 v{vA2}, v{GB+r} offset:{L_VEC1 + 32*r}")
    a("s_mov_b64 exec, -1")
    a("s_waitcnt lgkmcnt(0)")
    tile_gemv(a, TA, vP, L_VEC1)
    if DRY:
        a(f"s_cmp_lg_u32 s{sDRY}, 0")
        a("s_cbranch_scc1 L_A1_real")
    publish(vACC, vA0, sT2, 0)
    stamp_flush(7)
    a.label("L_end")
    a("s_endpgm")
    a.label("L_codeend")

    body = a.finish()
    hdr = open("cdna_kernels/" + NAME + ".s.ref").read().split("; @launch")[0]
    nv = 248
    txt = hdr + f"; @launch grid=(256,1,1) block=(384,1,1) lds={L_TOTAL + 4*NL*4096}\n"
    txt += DOC
    txt += '.amdgcn_target "amdgcn-amd-amdhsa--gfx950"\n.text\n'
    txt += f".globl {NAME}_kernel\n.p2align 8\n.type {NAME}_kernel,@function\n"
    txt += body
    txt += f""".section .rodata,"a"
.p2align 6
.amdhsa_kernel {NAME}_kernel
  .amdhsa_next_free_vgpr {nv}
  .amdhsa_next_free_sgpr 102
  .amdhsa_accum_offset {(nv+3)//4*4}
  .amdhsa_group_segment_fixed_size 0
  .amdhsa_kernarg_size 96
  .amdhsa_user_sgpr_count 2
  .amdhsa_user_sgpr_kernarg_segment_ptr 1
  .amdhsa_system_sgpr_workgroup_id_x 1
  .amdhsa_float_denorm_mode_32 3
.end_amdhsa_kernel
"""
    return txt


if __name__ == "__main__":
    out = sys.argv[1]
    kw = eval("dict(" + (sys.argv[2] if len(sys.argv) > 2 else "") + ")")
    open(out, "w").write(gen(**kw))
```

```python
import sys
sys.path.insert(0, "work")
from asmlib import Asm

DOC = """; ---------------------------------------------------------------------------------------------
; ---------------------------------------------------------------------------------------------
"""
NAME = "recurrent_scan__mha_block_cached__geglu_ffn__decode"

QP, GP, YP, OP, ML, CNT = 0, 1024, 2048, 3072, 3584, 3840
DPB = 0x100000
YPB = 0x100000
GEN = 0x140000
CNTB = 0x150000
WSZ = 0x200000
L_QF = 6464
L_KF = 6496
L_SC = 8192
L_XN, L_QV, L_PART, L_PML, L_VEC1, L_VEC0, L_TOTAL = 0, 4096, 4352, 6400, 6656, 7168, 16384

LOG2E = 0x3FB8AA3B
NLOG2E = 0xBFB8AA3B
SCALE = 0x3DB504F3

sX, sK, sV, sWQ, sWO, sBX, sWG, sWU, sWD, sOUT, sDBG, sWS = 4, 6, 8, 10, 12, 14, 16, 18, 20, 22, 24, 26
sH, sB, sS, sLW, sPID = 28, 29, 30, 31, 32
sL2E = 33
SRD_A, SRD_B, SRD_C, SRD_WS, SRD_D = 36, 40, 44, 48, 52
sT0, sT1, sT2, sT3, sT4, sT5 = 56, 57, 58, 59, 60, 61
sCNT = 62
sOFF = 63
sEX = 64
sIT = 66
sTAG, sGEN = 34, 35
sTMK = 67
sSEL = 96
sPM = 86
TBITS = 8
TMASK = (1 << TBITS) - 1
sST = 70
vLANE, vJ, vG = 1, 2, 3
vMASK = 4
vT, vU, vW, vP, vM, vMN, vL, vKO, vVO, vA0, vA1, vA2 = 8, 9, 10, 11, 12, 13, 14, 15, 16, 17, 18, 19
vS, vACC, vPB0, vPB1, vQB = 20, 24, 28, 32, 36
vWIN = 52
vTAG = 244
vWOA = 246
vE0, vE1 = 240, 241
sWOF = 68
sKF = 69
sDRY = 95
TA, TB, TC = 52, 116, 180


def srd(a, d, ptr, nbytes):
    a(f"s_mov_b32 s{d}, s{ptr}")
    a(f"s_and_b32 s{d+1}, s{ptr+1}, 0xffff")
    if isinstance(nbytes, int):
        a(f"s_mov_b32 s{d+2}, {nbytes:#x}")
    else:
        a(f"s_mov_b32 s{d+2}, {nbytes}")
    a(f"s_mov_b32 s{d+3}, 0x20000")


def R(b, n=4):
    return f"v[{b}:{b+n-1}]"


def SR(b, n=4):
    return f"s[{b}:{b+n-1}]"


DPPM = "row_mask:0xf bank_mask:0xf"


def allreduce(a, regs, tmps, op="v_add_f32", quad=True):
    steps = []
    if quad:
        steps += ["quad_perm:[1,0,3,2]", "quad_perm:[2,3,0,1]"]
    steps += ["row_ror:4", "row_ror:8"]
    for st in steps:
        for r in regs:
            a(f"{op}_dpp v{r}, v{r}, v{r} {st} {DPPM}")
    for sw in ("v_permlane16_swap_b32", "v_permlane32_swap_b32"):
        for r, t in zip(regs, tmps):
            a(f"v_mov_b32 v{t}, v{r}")
        for r, t in zip(regs, tmps):
            a(f"{sw} v{r}, v{t}")
        for r, t in zip(regs, tmps):
            a(f"{op} v{r}, v{r}, v{t}")


def rne(a, regs):
    for r in regs:
        a(f"v_cvt_pk_bf16_f32 v{r}, v{r}, v{r}")
    for r in regs:
        a(f"v_and_b32 v{r}, 0xffff0000, v{r}")


def tile_gemv(a, tbase, vaddr_lds, lds_off, waits=None):
    for k in range(4):
        a(f"ds_read_b128 {R(vQB+4*k)}, v{vaddr_lds} offset:{lds_off+16*k}")
    a("s_waitcnt lgkmcnt(0)")

    def build(t):
        pb = vPB0 if t % 2 == 0 else vPB1
        for r in range(4):
            a(f"v_and_b32 v{pb+r}, v{vQB+t}, v{vMASK+r}")
    build(0)
    for t in range(16):
        if t + 1 < 16:
            build(t + 1)
        pb = vPB0 if t % 2 == 0 else vPB1
        if waits and t in waits:
            a(f"s_waitcnt vmcnt({waits[t]})")
        c = "0" if t == 0 else R(vACC)
        a(f"v_mfma_f32_16x16x32_bf16 {R(vACC)}, {R(tbase+4*t)}, {R(pb)}, {c}")


def sanitize(a, base, n=4):
    for r in range(n):
        a(f"v_min_u32 v{base+r}, -2, v{base+r}")


def poll(a, issue, regs, sleep=0, name="poll"):
    top = a.newlabel(name)
    done = a.newlabel(name + "d")
    a(f"s_mov_b32 s{sCNT}, 0x40000")
    a.label(top)
    issue()
    a("s_waitcnt vmcnt(0)")
    rs = list(regs)
    a(f"v_max_u32 v{vT}, v{rs[0]}, v{rs[1]}" if len(rs) > 1 else f"v_mov_b32 v{vT}, v{rs[0]}")
    rest = rs[2:]
    while rest:
        if len(rest) >= 2:
            a(f"v_max3_u32 v{vT}, v{vT}, v{rest[0]}, v{rest[1]}")
            rest = rest[2:]
        else:
            a(f"v_max_u32 v{vT}, v{vT}, v{rest[0]}")
            rest = rest[1:]
    a(f"v_cmp_eq_u32 vcc, -1, v{vT}")
    a(f"s_cbranch_vccz {done}")
    a(f"s_sub_u32 s{sCNT}, s{sCNT}, 1")
    a(f"s_cbranch_scc1 {done}")
    if sleep:
        a(f"s_sleep {sleep}")
    a(f"s_branch {top}")
    a.label(done)


def gen(DD=1, STAMP=False, NSTAT=22, INFL=8, NL=4, EXP=0, SG=0, EARLY=3, PSL=64, QSL=12, CPF=4, RCL=0, ANUM=8, POL='nt', WPOL='nt', DBGST=0, GSL=64, PP=2, PGAP=8, ALPHA=0, YSL=0, OSL=0, PY=2, PAT=0, SCL=1, CPOS=0, LWO=4, WSL=4, EH=2, CLS=0, BETA2=0, DIAG=0, ROT=5, LINFL=0, LATEK=0, ILV=1, LWD=0, NP=6, FINE=1, PRE=1, CLX=1, OPOL='', CL2=0, OWN=0, VSEQ=0x9c, DRY=1, PROT=0, THR=0, CSP=512, DENSE=1, FLIP=0, ORD=0, F1L=1, EH2=0, W2L=0, EH0=0):
    a = Asm()
    BS = 10 if DENSE else 12
    B1 = 1 << BS
    GPB, OPB, DPX = (0x40000, 0x80000, 0xC0000) if DENSE else (GP, OP, DPB + 168 * 4096)
    assert not (DENSE and (LWD == 2 or not CSP))
    stamps = {"n": 0}

    def stamp(k, grp=0):
        if STAMP and (k < 2 or grp == -1 or grp == SG):
            a(f"s_memrealtime s[{sST+2*k}:{sST+2*k+1}]")

    def stamp_flush(nst):
        if not STAMP:
            return
        a(f"s_memrealtime s[{sST+2}:{sST+3}]")
        a("s_waitcnt lgkmcnt(0)")
        a("s_mov_b64 exec, -1")
        if DBGST:
            srd(a, SRD_D, sDBG, 256)
            a("s_mov_b64 exec, 1")
            a(f"s_min_u32 s{sT0}, s3, 2")
            a(f"s_mul_i32 s{sT0}, s{sT0}, 20")
            a("v_mov_b32 v17, 0")
            a(f"s_not_b32 s{sT1}, s{sST}")
            a(f"v_mov_b32 v20, s{sT1}")
            a(f"buffer_atomic_umax v20, v17, {SR(SRD_D)}, 0 offen sc1")
            for k in range(5):
                a(f"v_mov_b32 v{21+k}, s{sST+2*(k+1)}")
                a(f"buffer_atomic_umax v{21+k}, v17, {SR(SRD_D)}, s{sT0} offen offset:{4+4*k} sc1")
            return
        srd(a, SRD_D, sWS, 0x20000000)
        a(f"s_mul_i32 s{sT0}, s2, 6")
        a(f"s_add_u32 s{sT0}, s{sT0}, s3")
        a(f"s_lshl_b32 s{sT1}, s{sT0}, 6")
        a(f"s_lshl_b32 s{sT0}, s{sT0}, 4")
        a(f"s_add_u32 s{sT0}, s{sT0}, 0x10000000")
        a(f"s_add_u32 s{sT1}, s{sT1}, 0x11000000")
        a(f"s_getreg_b32 s{sT2}, hwreg(HW_REG_XCC_ID)")
        a(f"s_and_b32 s{sT2}, s{sT2}, 15")
        a(f"s_lshl_b32 s{sT2}, s{sT2}, 28")
        a(f"s_or_b32 s{sT2}, s{sST+1}, s{sT2}")
        a(f"v_mov_b32 v20, s{sST}")
        a(f"v_mov_b32 v21, s{sT2}")
        a(f"v_mov_b32 v22, s{sST+2}")
        a(f"v_mov_b32 v23, s{sST+3}")
        a("v_mov_b32 v17, 0")
        for k in range(8):
            a(f"v_mov_b32 v{24+k}, s{sST+2*k}")
        a(f"v_cmp_eq_u32 vcc, 0, v{vLANE}")
        a(f"s_and_saveexec_b64 s[{sEX}:{sEX+1}], vcc")
        a(f"buffer_store_dwordx4 v[20:23], v17, {SR(SRD_D)}, s{sT0} offen")
        a(f"buffer_store_dwordx4 v[24:27], v17, {SR(SRD_D)}, s{sT1} offen")
        a(f"buffer_store_dwordx4 v[28:31], v17, {SR(SRD_D)}, s{sT1} offen offset:16")

    a.label(f"{NAME}_kernel")
    a("s_cmp_ge_u32 s2, 256")
    a("s_cbranch_scc1 L_end")
    if STAMP:
        for k in range(8):
            a(f"s_mov_b64 s[{sST+2*k}:{sST+2*k+1}], 0")
    stamp(0)
    if DIAG:
        a(f"s_memrealtime s[{sST}:{sST+1}]")
    a("s_load_dwordx16 s[4:19], s[0:1], 0")
    a("s_load_dwordx8 s[20:27], s[0:1], 64")
    if ORD:
        a(f"s_getpc_b64 s[{sT0}:{sT1}]")
        a.label("L_pc")
        a(f"v_lshlrev_b32 v{vT}, 4, v0")
        for k in range(3):
            a(f"v_min_u32 v{vU}, L_codeend-L_pc-16, v{vT}")
            a(f"global_load_dwordx4 {R(228+4*k)}, v{vU}, s[{sT0}:{sT1}]")
            if k < 2:
                a(f"v_add_u32 v{vT}, 6144, v{vT}")
    a("v_lshrrev_b32 v2, 6, v0")
    a(f"v_and_b32 v{vLANE}, 63, v0")
    a("v_readfirstlane_b32 s3, v2")
    a(f"v_and_b32 v{vJ}, 15, v{vLANE}")
    a(f"v_lshrrev_b32 v{vG}, 4, v{vLANE}")
    a(f"s_bfe_u32 s{sH}, s2, 0x50002")
    a(f"s_lshr_b32 s{sB}, s2, 7")
    a(f"s_and_b32 s{sS}, s2, 3")
    a(f"s_lshl_b32 s{sPID}, s{sB}, 2")
    a(f"s_add_u32 s{sPID}, s{sPID}, s{sS}")
    a(f"s_lshl_b32 s{sLW}, s{sH}, 3")
    a(f"s_add_u32 s{sLW}, s{sLW}, s{sPID}")
    a(f"s_mov_b32 s{sL2E}, {LOG2E:#x}")
    if FLIP:
        a("s_waitcnt lgkmcnt(0)")
        a(f"s_add_u32 s{sWS}, s{sWS}, {FLIP}")
        a(f"s_addc_u32 s{sWS+1}, s{sWS+1}, 0")

    def headbase(d, t):
        if DENSE == 2:
            a(f"s_and_b32 s{t}, s{sH}, 1")
            a(f"s_lshl_b32 s{t}, s{t}, 12")
            a(f"s_lshr_b32 s{d}, s{sH}, 1")
            a(f"s_lshl_b32 s{d}, s{d}, 14")
            a(f"s_add_u32 s{d}, s{d}, s{t}")
        else:
            a(f"s_lshl_b32 s{d}, s{sH}, {BS+3}")

    def ownoff(d, t):
        if DENSE == 2:
            headbase(d, t)
            a(f"s_lshl_b32 s{t}, s{sB}, 13")
            a(f"s_add_u32 s{d}, s{d}, s{t}")
            a(f"s_lshl_b32 s{t}, s{sS}, 10")
            a(f"s_add_u32 s{d}, s{d}, s{t}")
        else:
            a(f"s_lshl_b32 s{d}, s{sLW}, {BS}")

    def masks():
        a(f"v_and_b32 v{vT}, 1, v{vLANE}")
        a(f"v_lshlrev_b32 v{vT}, 4, v{vT}")
        a(f"v_mov_b32 v{vU}, 0xffff")
        a(f"v_lshlrev_b32 v{vU}, v{vT}, v{vU}")
        a(f"v_bfe_u32 v{vT}, v{vLANE}, 1, 2")
        for r in range(4):
            a(f"v_cmp_eq_u32 vcc, {r}, v{vT}")
            a(f"v_cndmask_b32 v{vMASK+r}, 0, v{vU}, vcc")

    def flagpoll(nd, soff, vaddr, sleep, lane0):
        ftop = a.newlabel("flag")
        fdone = a.newlabel("flagd")
        a(f"s_mov_b32 s{sCNT}, 0x40000")
        a(f"s_mov_b32 s{sIT}, 0x01010101")
        if lane0:
            a("s_mov_b64 exec, 1")
        a.label(ftop)
        if nd == 2:
            a(f"buffer_load_dwordx2 v[{vT}:{vU}], v{vaddr}, {SR(SRD_D)}, {soff} offen sc1")
            a("s_waitcnt vmcnt(0)")
            a(f"v_and_b32 v{vT}, v{vT}, v{vU}")
        else:
            a(f"buffer_load_dword v{vT}, v{vaddr}, {SR(SRD_D)}, {soff} offen sc1")
            a("s_waitcnt vmcnt(0)")
        a(f"v_cmp_ne_u32 vcc, s{sIT}, v{vT}")
        a(f"s_cbranch_vccz {fdone}")
        a(f"s_sub_u32 s{sCNT}, s{sCNT}, 1")
        a(f"s_cbranch_scc1 {fdone}")
        a(f"s_sleep {sleep}")
        a(f"s_branch {ftop}")
        a.label(fdone)
        if lane0:
            a("s_mov_b64 exec, -1")

    if ORD:
        a("s_cmp_eq_u32 s3, 1")
        a("s_cbranch_scc1 L_A1")
        a("s_cmp_lg_u32 s3, 0")
        a("s_cbranch_scc1 L_S")
    else:
        a("s_cmp_eq_u32 s3, 0")
        a("s_cbranch_scc1 L_A0")
        a("s_cmp_eq_u32 s3, 1")
        a("s_cbranch_scc1 L_A1")
    a.label("L_S")

    if CPF and not ORD:
        a(f"s_getpc_b64 s[{sT0}:{sT1}]")
        a.label("L_pc")
        a(f"s_sub_u32 s{sT0}, s{sT0}, L_pc-{NAME}_kernel")
        a(f"s_subb_u32 s{sT1}, s{sT1}, 0")
        a(f"v_subrev_u32 v{vT}, 128, v0")
        a(f"v_lshlrev_b32 v{vT}, 4, v{vT}")
        for k in range(CPF):
            a(f"v_min_u32 v{vU}, L_codeend-{NAME}_kernel-16, v{vT}")
            a(f"global_load_dwordx4 {R(200+4*k)}, v{vU}, s[{sT0}:{sT1}]")
            a(f"v_add_u32 v{vT}, 4096, v{vT}")
    a(f"v_and_b32 v{vT}, 3, v{vLANE}")
    a(f"v_lshlrev_b32 v{vKO}, 4, v{vT}")
    a(f"v_bfe_u32 v{vT}, v{vLANE}, 2, 2")
    a(f"v_lshl_add_u32 v{vKO}, v{vT}, 8, v{vKO}")
    a(f"v_lshl_add_u32 v{vKO}, v{vG}, 6, v{vKO}")
    a(f"v_lshlrev_b32 v{vVO}, 4, v{vLANE}")
    a(f"s_lshl_b32 s{sT0}, s{sB}, 5")
    a(f"s_add_u32 s{sT0}, s{sT0}, s{sH}")
    a(f"s_lshl_b32 s{sOFF}, s{sT0}, 21")
    a(f"s_lshl_b32 s{sT0}, s{sS}, 2")
    a(f"s_add_u32 s{sT0}, s{sT0}, s3")
    a(f"s_sub_u32 s{sT0}, s{sT0}, 2")
    a(f"s_lshl_b32 s{sT0}, s{sT0}, 12")
    a(f"s_add_u32 s{sOFF}, s{sOFF}, s{sT0}")
    a("s_waitcnt lgkmcnt(0)")
    srd(a, SRD_A, sK, 0x8000000)
    srd(a, SRD_B, sV, 0x8000000)

    BAD = 0x40000000
    NSV = 32 - NP
    NDYN = 16 * NP
    assert NP % 2 == 0 and NL % 2 == 0
    BUF = [vWIN, vWIN + 16]
    BUFL = vWIN + 32
    SC = [vWIN + 48, vWIN + 52]
    PK = vWIN + 56
    vSW = [vWIN + 60, vWIN + 61, vWIN + 62]
    vSL, vSR, vCO, vSG, vTG = vWIN + 63, vWIN + 64, vWIN + 65, vWIN + 66, vWIN + 67
    SRD_X = SRD_C
    sBASE, sKI, sVI, sCA, sCP, sCV, sDYN, sSCB = 86, 87, 88, 67, 68, 69, 90, 91
    sUO = [94, 95]
    sRET = 92

    def loads(buf, voff, srd_, so):
        for m in range(4):
            a(f"buffer_load_dwordx4 {R(buf+4*m)}, v{voff}, {SR(srd_)}, s{so} offen offset:{1024*m} {POL}")

    def load1(buf, m, voff, srd_, so):
        a(f"buffer_load_dwordx4 {R(buf+4*m)}, v{voff}, {SR(srd_)}, s{so} offen offset:{1024*m} {POL}")

    def kbody(buf, vsw, refill):
        for m in range(4):
            c = "0" if m == 0 else R(vS)
            if refill and (FINE or m == 0):
                a(f"s_waitcnt vmcnt({7 if FINE else 4})")
            a(f"v_mfma_f32_16x16x32_bf16 {R(vS)}, {R(buf+4*m)}, {R(vQB+4*m)}, {c}")
            if refill and FINE:
                load1(buf, m, vCO, SRD_X, sOFF)
        if refill:
            if not FINE:
                loads(buf, vCO, SRD_X, sOFF)
            a(f"s_bfe_u32 s{sT0}, s{sOFF}, 0x50010")
            a(f"s_lshl_b32 s{sT0}, s{sT0}, 8")
            a(f"s_add_u32 s{sOFF}, s{sOFF}, 0x10000")
        a(f"v_mov_b32_dpp v{vT}, v{vS} quad_perm:[0,0,0,0] {DPPM}")
        for e in range(1, 4):
            a(f"v_add_f32_dpp v{vT}, v{vS+e}, v{vT} quad_perm:[{e},{e},{e},{e}] {DPPM}")
        rne(a, [vT])
        a(f"v_mul_f32 v{vT}, {SCALE:#x}, v{vT}")
        rne(a, [vT])
        a(f"v_max_f32 v{vM}, v{vM}, v{vT}")
        a(f"ds_write_b32 v{vsw}, v{vT} offset:{L_SC}")
        if refill:
            a(f"v_add_u32 v{vsw}, s{sT0}, v{vSL}")
        else:
            a(f"v_add_u32 v{vsw}, 256, v{vsw}")

    def pbody(sc):
        for m in range(4):
            a(f"v_fma_f32 v{sc+m}, v{sc+m}, s{sL2E}, v{vMN}")
        for m in range(4):
            a(f"v_exp_f32 v{sc+m}, v{sc+m}")
        for m in range(4):
            a(f"v_cvt_pk_bf16_f32 v{PK+m}, v{sc+m}, v{sc+m}")
        a(f"v_add_f32 v{sc}, v{sc}, v{sc+1}")
        a(f"v_add_f32 v{sc+2}, v{sc+2}, v{sc+3}")
        a(f"v_add_f32 v{vL}, v{vL}, v{sc}")
        a(f"v_add_f32 v{vL}, v{vL}, v{sc+2}")

    PBX = vWIN + 68

    PBS = [PBX, BUFL]

    def buildall(x=0):
        for m in range(4):
            for r in range(4):
                a(f"v_and_b32 v{PBS[x]+4*m+r}, v{PK+m}, v{vMASK+r}")

    def vbody(buf, so, cnt, x=0):
        for m in range(4):
            if FINE or m == 0:
                a(f"s_waitcnt vmcnt({cnt if FINE else cnt - 3})")
            a(f"v_mfma_f32_16x16x32_bf16 {R(vACC)}, {R(buf+4*m)}, {R(PBS[x]+4*m)}, {R(vACC)}")
            if FINE:
                load1(buf, m, vCO if x == 0 else vVO, SRD_X if x == 0 else SRD_B, so)
        if not FINE:
            loads(buf, vCO if x == 0 else vVO, SRD_X if x == 0 else SRD_B, so)

    def sclaim():
        if OWN:
            return sclaim_own()
        sk = a.newlabel("cl")
        if CL2:
            a(f"s_bitcmp0_b32 s{sCP}, 0")
            a(f"s_cbranch_scc1 {sk}")
        a(f"s_cmp_ge_i32 s{sCP}, {NDYN}")
        a(f"s_cbranch_scc1 {sk}")
        a(f"s_mov_b32 s{sCV}, {2 if CL2 else 1}")
        a(f"s_atomic_add s{sCV}, s[{sWS}:{sWS+1}], s{sCA} glc")
        a.label(sk)

    def dynnext():
        if OWN:
            return dynnext_own()
        a("s_waitcnt lgkmcnt(0)")
        a(f"s_add_u32 s{sCP}, s{sCV}, 1")
        if CL2:
            a(f"s_mov_b32 s{sCV}, s{sCP}")
        if PROT:
            a(f"s_add_u32 s{sT1}, s{sCP}, s{sGB}")
            a(f"s_sub_u32 s{sT2}, s{sT1}, {NDYN}")
            a(f"s_cselect_b32 s{sT1}, s{sT1}, s{sT2}")
            a(f"s_lshl_b32 s{sT1}, s{sT1}, 12")
        else:
            a(f"s_lshl_b32 s{sT1}, s{sCP}, 12")
        a(f"s_add_u32 s{sT1}, s{sT1}, s{sDYN}")
        a(f"s_cmp_lt_u32 s{sCP}, {NDYN}")
        a(f"s_cselect_b32 s{sUO[0]}, s{sT1}, {BAD:#x}")

    sVIC, sGB = 96, 97

    def sclaim_own():
        sk = a.newlabel("cl")
        a(f"s_cmp_ge_u32 s{sVIC}, 4")
        a(f"s_cbranch_scc1 {sk}")
        a(f"s_mov_b32 s{sCV}, 1")
        a(f"s_atomic_add s{sCV}, s[{sWS}:{sWS+1}], s{sCA} glc")
        a.label(sk)

    def dynnext_own():
        rt = a.newlabel("rt")
        ok = a.newlabel("ok")
        a.label(rt)
        a("s_waitcnt lgkmcnt(0)")
        a(f"s_add_u32 s{sCP}, s{sCV}, 1")
        a(f"s_lshr_b32 s{sT1}, s{sCP}, 2")
        a(f"s_lshl_b32 s{sT1}, s{sT1}, 16")
        a(f"s_and_b32 s{sT2}, s{sCP}, 3")
        a(f"s_lshl_b32 s{sT2}, s{sT2}, 12")
        a(f"s_add_u32 s{sT1}, s{sT1}, s{sT2}")
        a(f"s_add_u32 s{sUO[0]}, s{sT1}, s{sDYN}")
        a(f"s_cmp_lt_u32 s{sCP}, {4*NP}")
        a(f"s_cbranch_scc1 {ok}")
        a(f"s_mov_b32 s{sUO[0]}, {BAD:#x}")
        a(f"s_add_u32 s{sVIC}, s{sVIC}, 1")
        a(f"s_cmp_ge_u32 s{sVIC}, 4")
        a(f"s_cbranch_scc1 {ok}")
        a(f"s_lshl_b32 s{sT1}, s{sVIC}, 1")
        a(f"s_lshr_b32 s{sT1}, {VSEQ:#x}, s{sT1}")
        a(f"s_and_b32 s{sT1}, s{sT1}, 3")
        a(f"s_xor_b32 s{sT1}, s{sT1}, s{sS}")
        a(f"s_lshl_b32 s{sT2}, s{sT1}, 14")
        a(f"s_add_u32 s{sDYN}, s{sGB}, s{sT2}")
        a(f"s_andn2_b32 s{sCA}, s{sLW}, 3")
        a(f"s_add_u32 s{sCA}, s{sCA}, s{sT1}")
        a(f"s_lshl_b32 s{sCA}, s{sCA}, 12")
        a(f"s_add_u32 s{sCA}, s{sCA}, {CNT}")
        a(f"s_mov_b32 s{sCV}, 1")
        a(f"s_atomic_add s{sCV}, s[{sWS}:{sWS+1}], s{sCA} glc")
        a(f"s_branch {rt}")
        a.label(ok)

    sPA, sPV, sR16 = 98, 99, 100

    def pace(name, waited):
        if not THR:
            return
        if not waited:
            a("s_waitcnt lgkmcnt(0)")
        a.label(name)
        a(f"s_sub_i32 s{sT3}, s{sR16}, s{sPV}")
        a(f"s_cmp_le_i32 s{sT3}, {THR}")
        a(f"s_cbranch_scc1 {name}_go")
        a(f"s_add_u32 s{sCNT}, s{sCNT}, 1")
        a(f"s_cmp_gt_u32 s{sCNT}, 0x40000")
        a(f"s_cbranch_scc1 {name}_go")
        a(f"s_mov_b32 s{sPV}, 0")
        a(f"s_atomic_add s{sPV}, s[{sWS}:{sWS+1}], s{sPA} glc")
        a("s_waitcnt lgkmcnt(0)")
        a(f"s_branch {name}")
        a.label(name + "_go")
        a(f"s_add_u32 s{sR16}, s{sR16}, 16")
        a(f"s_mov_b32 s{sPV}, 1")
        a(f"s_atomic_add s{sPV}, s[{sWS}:{sWS+1}], s{sPA} glc")

    srd(a, SRD_X, sK, 0x8000000)
    a(f"s_mov_b32 s{sBASE}, s{sOFF}")
    a(f"s_sub_u32 s{sT4}, s3, 2")
    a(f"s_mul_i32 s{sT5}, s{sT4}, {NL*4096}")
    a(f"s_add_u32 s{sT5}, s{sT5}, {L_TOTAL}")
    a(f"v_add_u32 v{vA2}, s{sT5}, v{vVO}")
    a(f"v_mov_b32 v{vCO}, v{vKO}")
    a("s_barrier")
    if not EH0:
        loads(BUF[0], vKO, SRD_A, sOFF)
        a(f"s_add_u32 s{sOFF}, s{sOFF}, 0x10000")
    masks()
    if CSP:
        a(f"s_lshr_b32 s{sCA}, s{sLW}, 2")
        a(f"s_mul_i32 s{sCA}, s{sCA}, {CSP}")
        a(f"s_add_u32 s{sCA}, s{sCA}, {CNTB:#x}")
    else:
        a(f"s_andn2_b32 s{sCA}, s{sLW}, 3")
        a(f"s_lshl_b32 s{sCA}, s{sCA}, 12")
        a(f"s_add_u32 s{sCA}, s{sCA}, {CNT}")
    a(f"s_mov_b32 s{sCV}, 0")
    a(f"s_mov_b32 s{sCP}, -1")
    a(f"s_lshl_b32 s{sT0}, s{sB}, 5")
    a(f"s_add_u32 s{sT0}, s{sT0}, s{sH}")
    a(f"s_lshl_b32 s{sDYN}, s{sT0}, 21")
    a(f"s_add_u32 s{sDYN}, s{sDYN}, {16*NSV*4096}")
    if PROT:
        a(f"s_mul_i32 s{sGB}, s{sT0}, {PROT}")
        a(f"s_and_b32 s{sGB}, s{sGB}, 63")
        a(f"s_mul_i32 s{sGB}, s{sGB}, {NDYN}")
        a(f"s_lshr_b32 s{sGB}, s{sGB}, 6")
    if OWN:
        a(f"s_mov_b32 s{sGB}, s{sDYN}")
        a(f"s_lshl_b32 s{sT1}, s{sS}, 14")
        a(f"s_add_u32 s{sDYN}, s{sDYN}, s{sT1}")
        a(f"s_lshl_b32 s{sCA}, s{sLW}, 12")
        a(f"s_add_u32 s{sCA}, s{sCA}, {CNT}")
        a(f"s_mov_b32 s{sVIC}, 0")
    for r in range(4):
        a(f"v_mov_b32 v{vACC+r}, 0")
    a(f"v_mov_b32 v{vL}, 0")
    a(f"v_mov_b32 v{vM}, 0xff800000")
    a(f"v_and_b32 v{vT}, 3, v{vJ}")
    a(f"v_lshl_add_u32 v{vT}, v{vG}, 2, v{vT}")
    a(f"v_lshlrev_b32 v{vA0}, 4, v{vT}")
    a(f"v_lshrrev_b32 v{vA1}, 2, v{vJ}")
    a(f"v_lshlrev_b32 v{vE0}, 3, v{vG}")
    a(f"v_add_u32 v{vE0}, v{vE0}, v{vJ}")
    a(f"v_lshlrev_b32 v{vE0}, 4, v{vE0}")
    a(f"s_lshl_b32 s{sT1}, s{sT4}, 9")
    a(f"v_add_u32 v{vE0}, s{sT1}, v{vE0}")
    a(f"s_lshl_b32 s{sT1}, s{sT4}, 3")
    a(f"v_mov_b32 v{vE1}, s{sT1}")
    a(f"v_lshlrev_b32 v{vSG}, 4, v{vG}")
    a(f"s_lshl_b32 s{sT1}, s{sT4}, 6")
    a(f"v_add_u32 v{vSR}, s{sT1}, v{vSG}")
    a(f"v_lshl_add_u32 v{vSL}, v{vA1}, 2, v{vSR}")
    a(f"v_mov_b32 v{vSW[0]}, v{vSL}")
    a(f"v_add_u32 v{vSW[1]}, 256, v{vSL}")
    a(f"v_add_u32 v{vSW[2]}, 512, v{vSL}")
    if EH2:
        loads(BUF[1], vKO, SRD_A, sOFF)
    a("s_barrier")
    if EH0:
        loads(BUF[0], vKO, SRD_A, sOFF)
        a(f"s_add_u32 s{sOFF}, s{sOFF}, 0x10000")
    if not EH2:
        loads(BUF[1], vKO, SRD_A, sOFF)
    a(f"s_add_u32 s{sOFF}, s{sOFF}, 0x10000")
    a(f"s_mov_b32 s{sIT}, 0")
    a(f"s_mov_b32 s{sKI}, {NSV // 2}")
    a(f"v_mov_b32 v{vW}, 0")
    a.label("L_lpro")
    a(f"ds_read_b32 v{vT}, v{vW} offset:{L_QF}")
    a("s_waitcnt lgkmcnt(0)")
    a(f"v_cmp_ne_u32 vcc, 0, v{vT}")
    a("s_cbranch_vccnz L_qready")
    a(f"s_cmp_lt_u32 s{sIT}, {NL}")
    a("s_cbranch_scc1 L_lgo")
    a("s_sleep 1")
    a("s_branch L_lpro")
    a.label("L_lgo")
    for rep in range(2):
        a(f"s_mov_b32 m0, s{sT5}")
        a("s_waitcnt vmcnt(4)")
        for m in range(4):
            a(f"buffer_load_dwordx4 v{vKO}, {SR(SRD_A)}, s{sOFF} offen offset:{1024*m} {POL} lds")
        a(f"s_add_u32 s{sT5}, s{sT5}, 4096")
        a(f"s_add_u32 s{sOFF}, s{sOFF}, 0x10000")
    a(f"s_add_u32 s{sIT}, s{sIT}, 2")
    a(f"s_sub_u32 s{sKI}, s{sKI}, 1")
    a("s_branch L_lpro")
    a.label("L_qready")
    stamp(2, -1)
    a(f"ds_read_b128 {R(vS)}, v{vA0} offset:{L_QV}")
    a("s_waitcnt lgkmcnt(0)")
    for m in range(4):
        a(f"v_cmp_eq_u32 vcc, {m}, v{vA1}")
        for r in range(4):
            a(f"v_cndmask_b32 v{vQB+4*m+r}, 0, v{vS+r}, vcc")
    a(f"v_mov_b32 v{vA0}, 0")
    a(f"v_mov_b32 v{vA1}, 1")
    if THR:
        a(f"s_mov_b32 s{sCNT}, 0")
        a(f"s_add_u32 s{sPA}, s{sCA}, {256 if CSP else 128}")
        a(f"s_lshl_b32 s{sR16}, s{sIT}, 3")
        a(f"s_lshr_b32 s{sPV}, s{sIT}, 1")
        a(f"s_atomic_add s{sPV}, s[{sWS}:{sWS+1}], s{sPA} glc")
        a(f"s_branch L_kfirst")
    a.label("L_kloop")
    pace("L_kp", False)
    a.label("L_kfirst")
    a(f"s_sub_u32 s{sKI}, s{sKI}, 1")
    a(f"s_cmp_lg_u32 s{sKI}, 0")
    a("s_cbranch_scc1 L_kgo")
    a(f"s_mov_b32 s{SRD_X}, s{SRD_B}")
    a(f"s_mov_b32 s{SRD_X+1}, s{SRD_B+1}")
    a(f"s_mov_b32 s{sOFF}, s{sBASE}")
    a(f"v_mov_b32 v{vCO}, v{vVO}")
    a.label("L_kgo")
    for x in range(2):
        kbody(BUF[x], vSW[x], True)
    a(f"s_cmp_eq_u32 s{sIT}, 0")
    a("s_cbranch_scc1 L_knol")
    a("s_waitcnt vmcnt(8)")
    a.label("L_kl")
    for m in range(4):
        a(f"ds_read_b128 {R(BUFL+4*m)}, v{vA2} offset:{1024*m}")
    a(f"v_add_u32 v{vA2}, 0x1000, v{vA2}")
    a("s_waitcnt lgkmcnt(0)")
    kbody(BUFL, vSW[2], False)
    a(f"s_sub_u32 s{sIT}, s{sIT}, 1")
    a(f"s_bitcmp1_b32 s{sIT}, 0")
    a("s_cbranch_scc1 L_kl")
    a.label("L_knol")
    a(f"s_cmp_lg_u32 s{sKI}, 0")
    a("s_cbranch_scc1 L_kloop")
    stamp(5, -1)
    allreduce(a, [vM], [vW], op="v_max_f32", quad=False)
    a(f"v_mul_f32 v{vMN}, {NLOG2E:#x}, v{vM}")
    a(f"s_mov_b32 s{sVI}, {NSV // 2}")
    a.label("L_vloop")
    a(f"ds_read_b128 {R(SC[0])}, v{vSR} offset:{L_SC}")
    a(f"ds_read_b128 {R(SC[1])}, v{vSR} offset:{L_SC+256}")
    a(f"v_add_u32 v{vSR}, 512, v{vSR}")
    a(f"s_sub_u32 s{sVI}, s{sVI}, 1")
    a(f"s_mov_b32 s{sUO[0]}, s{sOFF}")
    a(f"s_add_u32 s{sUO[1]}, s{sOFF}, 0x10000")
    a(f"s_add_u32 s{sOFF}, s{sOFF}, 0x20000")
    a("s_waitcnt lgkmcnt(0)")
    pace("L_vp", True)
    for x in range(2):
        pbody(SC[x])
        buildall(x)
    a(f"s_cmp_lg_u32 s{sVI}, 0")
    a("s_cbranch_scc1 L_vnd")
    dynnext()
    a(f"s_mov_b32 s{sUO[1]}, s{sUO[0]}")
    a(f"s_mov_b32 s{SRD_X}, s{SRD_A}")
    a(f"s_mov_b32 s{SRD_X+1}, s{SRD_A+1}")
    a(f"v_mov_b32 v{vCO}, v{vKO}")
    a.label("L_vnd")
    for x in range(2):
        vbody(BUF[x], sUO[x], 7, x)
        if x == CLX:
            a(f"s_cmp_gt_u32 s{sVI}, 1")
            a("s_cbranch_scc1 L_vnc")
            sclaim()
            a.label("L_vnc")
    a(f"s_cmp_lg_u32 s{sVI}, 0")
    a("s_cbranch_scc1 L_vloop")
    a(f"v_mul_f32 v{vL}, 0x3e800000, v{vL}")
    stamp(6, -1)
    a.label("L_dloop")
    a(f"s_cmp_ge_u32 s{sUO[0]}, {BAD:#x}")
    a("s_cbranch_scc1 L_sdone")
    a("s_waitcnt vmcnt(4)")
    for m in range(4):
        c = "0" if m == 0 else R(vS)
        a(f"v_mfma_f32_16x16x32_bf16 {R(vS)}, {R(BUF[0]+4*m)}, {R(vQB+4*m)}, {c}")
    dynnext()
    loads(BUF[0], vKO, SRD_A, sUO[0])
    sclaim()
    a(f"v_mov_b32_dpp v{vT}, v{vS} quad_perm:[0,0,0,0] {DPPM}")
    for e in range(1, 4):
        a(f"v_add_f32_dpp v{vT}, v{vS+e}, v{vT} quad_perm:[{e},{e},{e},{e}] {DPPM}")
    rne(a, [vT])
    a(f"v_mul_f32 v{vT}, {SCALE:#x}, v{vT}")
    rne(a, [vT])
    a(f"v_cmp_gt_f32 vcc, v{vT}, v{vM}")
    a("s_cbranch_vccnz L_slow")
    a.label("L_back")
    a(f"v_fma_f32 v{vT}, v{vT}, s{sL2E}, v{vMN}")
    a(f"v_exp_f32 v{vT}, v{vT}")
    a(f"v_add_f32 v{vL}, v{vL}, v{vT}")
    a(f"v_cvt_pk_bf16_f32 v{vP}, v{vT}, v{vT}")
    for m in range(4):
        for r in range(4):
            a(f"v_and_b32_dpp v{PBX+4*m+r}, v{vP}, v{vMASK+r} row_newbcast:{4*m} {DPPM}")
    a("s_waitcnt vmcnt(4)")
    for m in range(4):
        a(f"v_mfma_f32_16x16x32_bf16 {R(vACC)}, {R(BUF[1]+4*m)}, {R(PBX+4*m)}, {R(vACC)}")
    loads(BUF[1], vVO, SRD_B, sUO[0])
    a("s_branch L_dloop")
    a.label("L_slow")
    a("s_nop 0")
    a(f"v_max_f32_dpp v{vU}, v{vT}, v{vT} row_ror:4 {DPPM}")
    a(f"v_max_f32_dpp v{vU}, v{vU}, v{vU} row_ror:8 {DPPM}")
    a(f"v_mov_b32 v{vW}, v{vU}")
    a(f"v_permlane16_swap_b32 v{vU}, v{vW}")
    a(f"v_max_f32 v{vU}, v{vU}, v{vW}")
    a(f"v_mov_b32 v{vW}, v{vU}")
    a(f"v_permlane32_swap_b32 v{vU}, v{vW}")
    a(f"v_max3_f32 v{vU}, v{vU}, v{vW}, v{vM}")
    a(f"v_sub_f32 v{vW}, v{vM}, v{vU}")
    a(f"v_mul_f32 v{vW}, s{sL2E}, v{vW}")
    a(f"v_exp_f32 v{vW}, v{vW}")
    a(f"v_mov_b32 v{vM}, v{vU}")
    a(f"v_mul_f32 v{vMN}, {NLOG2E:#x}, v{vU}")
    for r in range(4):
        a(f"v_mul_f32 v{vACC+r}, v{vACC+r}, v{vW}")
    a(f"v_mul_f32 v{vL}, v{vL}, v{vW}")
    a("s_branch L_back")
    a.label("L_sdone")
    a(f"ds_write_b32 v{vA0}, v{vA1} offset:{L_QF+4}")
    stamp(3, -1)
    a("s_mov_b32 exec_lo, 0x00ff00ff")
    a("s_mov_b32 exec_hi, 0x00ff00ff")
    a("s_nop 3")
    a(f"ds_write_b128 v{vE0}, {R(vACC)} offset:{L_PART}")
    a("s_mov_b64 exec, -1")
    allreduce(a, [vL], [vW], quad=False)
    a(f"v_mov_b32 v{vMN}, v{vL}")
    a(f"ds_write_b64 v{vE1}, v[{vM}:{vMN}] offset:{L_PML}")
    a("s_waitcnt lgkmcnt(0)")
    a("s_barrier")
    stamp_flush(4)
    a("s_endpgm")

    def load_tag():
        a(f"s_mov_b32 s{sT2}, {GEN:#x}")
        a(f"s_load_dword s{sTAG}, s[{sWS}:{sWS+1}], s{sT2}")

    def make_tag():
        a(f"s_add_u32 s{sGEN}, s{sTAG}, 1")
        a(f"s_mov_b32 s{sTMK}, 0xff")
        a(f"v_and_b32 v{vTAG}, s{sGEN}, v{vTAG}")
        a(f"v_and_b32 v{vTAG+1}, s{sGEN}, v{vTAG+1}")

    def pre_tag():
        a(f"v_mov_b32 v{vTAG}, 0xff")
        a(f"v_mov_b32 v{vTAG+1}, 7")

    def publish(src, voff, soff, off, fine=False):
        mk, tg = ("7", vTAG + 1) if fine else (f"s{sTMK}", vTAG)
        for r in range(4):
            a(f"v_bfi_b32 v{src+r}, {mk}, v{tg}, v{src+r}")
        a(f"buffer_store_dwordx4 {R(src)}, v{voff}, {SR(SRD_WS)}, s{soff} offen offset:{off} sc1")

    def gather(dst, n, voff, soff, step, off, sleep, name, lanes="-1", fine=False, lastmask=None):
        mk, tg = ("7", vTAG + 1) if fine else (f"s{sTMK}", vTAG)
        top = a.newlabel(name)
        done = a.newlabel(name + "d")
        a(f"s_mov_b32 s{sCNT}, 0x40000")
        a(f"s_mov_b32 s{sPM}, {(1 << n) - 1}")
        if lanes != "-1":
            a(f"s_mov_b64 exec, {lanes}")
        a.label(top)
        if n > 1:
            a(f"s_mov_b32 s{sT1}, s{soff}")
        for t in range(n):
            sk = a.newlabel(name + "s")
            if n > 1:
                a(f"s_bitcmp1_b32 s{sPM}, {t}")
                a(f"s_cbranch_scc0 {sk}")
            if lastmask and t == n - 1:
                a(f"s_mov_b32 exec_hi, {lastmask:#x}")
            a(f"buffer_load_dwordx4 {R(dst+4*t)}, v{voff}, {SR(SRD_WS)}, s{sT1 if n > 1 else soff} offen offset:{off} sc1")
            if lastmask and t == n - 1:
                a("s_mov_b32 exec_hi, -1")
            a.label(sk)
            if t < n - 1:
                a(f"s_add_u32 s{sT1}, s{sT1}, {step[t] if isinstance(step, list) else step}")
        a("s_waitcnt vmcnt(0)")
        for t in range(n):
            d = dst + 4 * t
            sk = a.newlabel(name + "c")
            if n > 1:
                a(f"s_bitcmp1_b32 s{sPM}, {t}")
                a(f"s_cbranch_scc0 {sk}")
            if lastmask and t == n - 1:
                a(f"s_mov_b32 exec_hi, {lastmask:#x}")
            for r in range(4):
                a(f"v_xor_b32 v{d+r}, v{d+r}, v{tg}")
            a(f"v_or3_b32 v{vT}, v{d}, v{d+1}, v{d+2}")
            a(f"v_or_b32 v{vT}, v{vT}, v{d+3}")
            a(f"v_and_b32 v{vT}, {mk}, v{vT}")
            a(f"v_cmp_ne_u32 vcc, 0, v{vT}")
            if lastmask and t == n - 1:
                a("s_mov_b32 exec_hi, -1")
            if n > 1:
                a(f"s_cbranch_vccnz {sk}")
                a(f"s_bitset0_b32 s{sPM}, {t}")
                a.label(sk)
        if n > 1:
            a(f"s_cmp_eq_u32 s{sPM}, 0")
            a(f"s_cbranch_scc1 {done}")
        else:
            a(f"s_cbranch_vccz {done}")
        a(f"s_sub_u32 s{sCNT}, s{sCNT}, 1")
        a(f"s_cbranch_scc1 {done}")
        if sleep:
            a(f"s_sleep {sleep}")
        a(f"s_branch {top}")
        a.label(done)
        if lanes != "-1":
            a("s_mov_b64 exec, -1")

    def gatherP(fin, bufs, n, voff, soff, step, off, name, gap, items=None):
        P = len(bufs)
        if items is None:
            items = [(voff, soff, t * step) for t in range(n)]
        n = len(items)
        top = a.newlabel(name)
        done = a.newlabel(name + "d")
        a(f"s_mov_b32 s{sCNT}, 0x40000")
        a(f"s_mov_b32 s{sPM}, {(1 << n) - 1}")
        for t, (vo, so, add) in enumerate(items):
            a(f"s_add_u32 s{sPM+1+t}, s{so}, {add}")

        def issue(bf):
            for t, (vo, so, add) in enumerate(items):
                a(f"buffer_load_dwordx4 {R(bf+4*t)}, v{vo}, {SR(SRD_WS)}, s{sPM+1+t} offen offset:{off} sc1")
        for p in range(P - 1):
            issue(bufs[p])
            a(f"s_sleep {gap}")
        a.label(top)
        for p in range(P):
            issue(bufs[(p + P - 1) % P])
            a(f"s_waitcnt vmcnt({n*(P-1)})")
            bf = bufs[p]
            for t in range(n):
                d = bf + 4 * t
                sk = a.newlabel(name + "c")
                if n > 1:
                    a(f"s_bitcmp1_b32 s{sPM}, {t}")
                    a(f"s_cbranch_scc0 {sk}")
                for r in range(4):
                    a(f"v_xor_b32 v{fin+4*t+r}, v{d+r}, v{vTAG}")
                a(f"v_or3_b32 v{vT}, v{fin+4*t}, v{fin+4*t+1}, v{fin+4*t+2}")
                a(f"v_or_b32 v{vT}, v{vT}, v{fin+4*t+3}")
                a(f"v_and_b32 v{vT}, s{sTMK}, v{vT}")
                a(f"v_cmp_ne_u32 vcc, 0, v{vT}")
                if n > 1:
                    a(f"s_cbranch_vccnz {sk}")
                    a(f"s_bitset0_b32 s{sPM}, {t}")
                    a(f"s_mov_b32 s{sPM+1+t}, 0x40000000")
                    a.label(sk)
                else:
                    a(f"s_cbranch_vccz {done}")
            if n > 1:
                a(f"s_cmp_eq_u32 s{sPM}, 0")
                a(f"s_cbranch_scc1 {done}")
        a(f"s_sub_u32 s{sCNT}, s{sCNT}, 1")
        a(f"s_cbranch_scc0 {top}")
        a.label(done)

    def ffn2_index():
        a(f"s_lshr_b32 s{sT1}, s{sLW}, 4")
        a(f"s_add_u32 s{sT1}, s{sT1}, 80")
        a(f"s_and_b32 s{sT2}, s{sLW}, 0x8f")
        a(f"s_cmp_eq_u32 s{sT2}, 9")
        a(f"s_cselect_b32 s{sKF}, s{sT1}, 255")
        a(f"s_sub_u32 s{sT1}, s{sLW}, 176")
        a(f"s_cmp_ge_u32 s{sLW}, 176")
        a(f"s_cselect_b32 s{sKF}, s{sT1}, s{sKF}")
        a(f"s_mov_b32 s{sT1}, s{sKF}")
        a(f"s_lshr_b32 s{sT4}, s{sT1}, 2")
        a(f"s_and_b32 s{sT5}, s{sT1}, 3")
        a(f"s_lshl_b32 s{sT3}, s{sT4}, 16")
        a(f"s_lshl_b32 s{sT1}, s{sT5}, 8")
        a(f"s_add_u32 s{sT3}, s{sT3}, s{sT1}")

    def wd_loads(vaddr):
        srd(a, SRD_C, sWD, 1376 * 1024)
        a(f"s_cmp_lt_u32 s{sKF}, 88")
        a(f"s_cselect_b32 s{SRD_C+2}, {1376*1024}, 0")
        for t in range(16):
            if t % 4 == 0 and t:
                a(f"s_add_u32 s{sT3}, s{sT3}, 4096")
            a(f"buffer_load_dwordx4 {R(TB+4*t)}, v{vaddr}, {SR(SRD_C)}, s{sT3} offen offset:{1024*(t%4)} {WPOL}")

    def dp_publish(voff):
        a(f"s_lshl_b32 s{sT0}, s{sKF}, {BS}")
        a(f"s_add_u32 s{sT0}, s{sT0}, {DPX}")
        publish(vACC, voff, sT0, 0)

    def ldswait(off, sleep, name):
        a.label(name)
        a(f"s_sleep {sleep}")
        a(f"ds_read_b32 v{vT}, v{vW} offset:{off}")
        a("s_waitcnt lgkmcnt(0)")
        a(f"v_cmp_eq_u32 vcc, 0, v{vT}")
        a(f"s_cbranch_vccnz {name}")

    a.label("L_A0")
    if EXP & 8:
        a("s_endpgm")
    a("s_setprio 3")
    pre_tag()
    a(f"v_lshlrev_b32 v{vVO}, 4, v{vLANE}")
    for r in range(4):
        a(f"v_mov_b32 v{vS+r}, -1")
    ownoff(sOFF, sT0)
    a(f"v_lshlrev_b32 v{vA0}, 17, v{vG}")
    a(f"v_lshl_add_u32 v{vA0}, v{vJ}, 4, v{vA0}")
    a(f"s_lshl_b32 s{sT0}, s{sPID}, 19")
    a(f"s_lshl_b32 s{sT1}, s{sH}, 8")
    a(f"s_add_u32 s{sT0}, s{sT0}, s{sT1}")
    a("s_waitcnt lgkmcnt(0)")
    srd(a, SRD_A, sX, 2048)
    a(f"buffer_load_dwordx4 {R(vPB0)}, v{vVO}, {SR(SRD_A)}, 0 offen")
    a(f"buffer_load_dwordx4 {R(vPB1)}, v{vVO}, {SR(SRD_A)}, 0 offen offset:1024")
    srd(a, SRD_WS, sWS, WSZ)
    load_tag()
    if CSP:
        a(f"s_lshr_b32 s{sT3}, s{sLW}, 2")
        a(f"s_mul_i32 s{sT3}, s{sT3}, {CSP}")
        a(f"s_add_u32 s{sT3}, s{sT3}, {CNTB:#x}")
        a(f"s_mov_b64 exec, {'0xff00ff' if THR else '0xff'}")
        a(f"buffer_store_dwordx4 {R(vS)}, v{vVO}, {SR(SRD_WS)}, s{sT3} offen sc1")
    else:
        a("s_mov_b64 exec, 0xffff")
        a(f"buffer_store_dwordx4 {R(vS)}, v{vVO}, {SR(SRD_WS)}, s{sOFF} offen offset:{CNT} sc1")
    a("s_mov_b64 exec, -1")
    srd(a, SRD_B, sWQ, 0x400000)
    for t in range(16):
        a(f"buffer_load_dwordx4 {R(TA+4*t)}, v{vA0}, {SR(SRD_B)}, s{sT0} offen {WPOL}")
        if t < 15:
            a(f"s_add_u32 s{sT0}, s{sT0}, 8192")
    if EARLY >= 2:
        a("s_barrier")
    masks()
    a("s_waitcnt vmcnt(17)")
    stamp(2)
    X = [TC + i for i in range(16)]
    for bb, src in ((0, vPB0), (1, vPB1)):
        for k in range(4):
            a(f"v_lshlrev_b32 v{X[bb*8+2*k]}, 16, v{src+k}")
            a(f"v_and_b32 v{X[bb*8+2*k+1]}, 0xffff0000, v{src+k}")
    S0, S1, Tm0, Tm1 = TC + 16, TC + 17, TC + 18, TC + 19
    Dv = [TC + 20 + i for i in range(16)]
    for bb, s in ((0, S0), (1, S1)):
        a(f"v_add_f32 v{s}, v{X[bb*8]}, v{X[bb*8+1]}")
    for k in range(2, 8):
        for bb, s in ((0, S0), (1, S1)):
            a(f"v_add_f32 v{s}, v{s}, v{X[bb*8+k]}")
    allreduce(a, [S0, S1], [Tm0, Tm1])
    a(f"v_mul_f32 v{S0}, 0x3b000000, v{S0}")
    a(f"v_mul_f32 v{S1}, 0x3b000000, v{S1}")
    V0, V1 = TC + 36, TC + 37
    for bb, s in ((0, S0), (1, S1)):
        for k in range(8):
            a(f"v_sub_f32 v{Dv[bb*8+k]}, v{X[bb*8+k]}, v{s}")
    for bb, v in ((0, V0), (1, V1)):
        a(f"v_mul_f32 v{v}, v{Dv[bb*8]}, v{Dv[bb*8]}")
    for k in range(1, 8):
        for bb, v in ((0, V0), (1, V1)):
            a(f"v_fmac_f32 v{v}, v{Dv[bb*8+k]}, v{Dv[bb*8+k]}")
    allreduce(a, [V0, V1], [Tm0, Tm1])
    a(f"v_mul_f32 v{V0}, 0x3b000000, v{V0}")
    a(f"v_mul_f32 v{V1}, 0x3b000000, v{V1}")
    rne(a, [S0, S1, V0, V1])
    a(f"v_add_f32 v{V0}, 0x3727c5ac, v{V0}")
    a(f"v_add_f32 v{V1}, 0x3727c5ac, v{V1}")
    rne(a, [V0, V1])
    a(f"v_sqrt_f32 v{V0}, v{V0}")
    a(f"v_sqrt_f32 v{V1}, v{V1}")
    rne(a, [V0, V1])
    a(f"v_rcp_f32 v{V0}, v{V0}")
    a(f"v_rcp_f32 v{V1}, v{V1}")
    for bb, s in ((0, S0), (1, S1)):
        for k in range(8):
            a(f"v_sub_f32 v{Dv[bb*8+k]}, v{X[bb*8+k]}, v{s}")
    rne(a, Dv)
    for bb, v in ((0, V0), (1, V1)):
        for k in range(8):
            a(f"v_mul_f32 v{Dv[bb*8+k]}, v{Dv[bb*8+k]}, v{v}")
    for d in Dv:
        a(f"v_cvt_pk_bf16_f32 v{d}, v{d}, v{d}")
    a(f"v_lshlrev_b32 v{vA1}, 5, v{vLANE}")
    for bb in range(2):
        for k in range(2):
            a(f"ds_write_b128 v{vA1}, {R(Dv[bb*8+4*k])} offset:{L_XN + bb*2048 + 16*k}")
    def ffn1_loads():
        a(f"s_cmp_ge_u32 s{sLW}, 88")
        a(f"s_cselect_b32 s{sT0}, 88, 0")
        a(f"s_cselect_b32 s{SRD_C}, s{sWU}, s{sWG}")
        a(f"s_cselect_b32 s{SRD_C+1}, s{sWU+1}, s{sWG+1}")
        a(f"s_and_b32 s{SRD_C+1}, s{SRD_C+1}, 0xffff")
        a(f"s_sub_u32 s{sT0}, s{sLW}, s{sT0}")
        a(f"s_cmp_lt_u32 s{sLW}, 176")
        a(f"s_cselect_b32 s{SRD_C+2}, {512*2752}, 0")
        a(f"s_mov_b32 s{SRD_C+3}, 0x20000")
        a(f"s_lshr_b32 s{sT1}, s{sT0}, 3")
        a(f"s_and_b32 s{sT5}, s{sT0}, 7")
        a(f"s_mul_i32 s{sT3}, s{sT5}, {64*2752}")
        a(f"s_lshl_b32 s{sT4}, s{sT1}, 8")
        a(f"s_add_u32 s{sT3}, s{sT3}, s{sT4}")
        a(f"v_mul_u32_u24 v{vA0}, {16*2752}, v{vG}")
        a(f"v_lshl_add_u32 v{vA0}, v{vJ}, 4, v{vA0}")
        a(f"s_lshl_b32 s{sT4}, s{sT1}, 4")
        a(f"v_add_u32 v{vT}, s{sT4}, v{vJ}")
        a(f"v_cmp_gt_u32 vcc, 172, v{vT}")
        a(f"v_mov_b32 v{vU}, 0x40000000")
        a(f"v_cndmask_b32 v{vA0}, v{vU}, v{vA0}, vcc")
        for t in range(16):
            a(f"buffer_load_dwordx4 {R(TB+4*t)}, v{vA0}, {SR(SRD_C)}, s{sT3} offen {WPOL}")
            if t < 15:
                a(f"s_add_u32 s{sT3}, s{sT3}, 2752")
    if not F1L:
        ffn1_loads()
    a(f"v_lshrrev_b32 v{vT}, 3, v{vJ}")
    a(f"v_lshlrev_b32 v{vKO}, 11, v{vT}")
    a(f"v_lshl_add_u32 v{vKO}, v{vG}, 6, v{vKO}")
    a(f"s_lshl_b32 s{sT0}, s{sPID}, 8")
    a(f"v_add_u32 v{vA1}, s{sT0}, v{vKO}")
    a("s_waitcnt lgkmcnt(0)")
    make_tag()
    if EARLY == 1:
        a("s_barrier")
    tile_gemv(a, TA, vA1, L_XN, waits={0: 12, 4: 8, 8: 4, 12: 0} if F1L else {0: 28, 4: 24, 8: 20, 12: 16})
    publish(vACC, vVO, sOFF, QP, fine=True)
    if EARLY in (0, 3):
        a("s_barrier")
    stamp(3)
    if DIAG == 3:
        a(f"s_memrealtime s[{sST+4}:{sST+5}]")
    if F1L:
        ffn1_loads()
    a(f"s_cmp_ge_u32 s{sLW}, 176")
    a("s_cbranch_scc1 L_A0_noffn1")
    a(f"s_lshl_b32 s{sT0}, s{sT5}, 8")
    a(f"v_add_u32 v{vA1}, s{sT0}, v{vKO}")
    tile_gemv(a, TB, vA1, L_XN, waits={0: 0 if F1L else 1})
    a(f"s_lshl_b32 s{sT0}, s{sLW}, {BS}")
    a(f"s_add_u32 s{sT0}, s{sT0}, {GPB}")
    publish(vACC, vVO, sT0, 0)
    a.label("L_A0_noffn1")
    stamp(4)
    a("s_setprio 0")
    if LWD:
        ffn2_index()
        a(f"s_cmp_lt_u32 s{sKF}, 88")
        a("s_cbranch_scc1 L_A0_ffn2")
        a(f"s_cmp_ge_u32 s{sLW}, 32")
        a("s_cbranch_scc1 L_A0_nogen")
        a("s_barrier")
        a("s_branch L_A0_final")
        a.label("L_A0_ffn2")
        a(f"v_lshlrev_b32 v{vA0}, 14, v{vG}")
        a(f"v_lshl_add_u32 v{vA0}, v{vJ}, 4, v{vA0}")
        a(f"v_lshrrev_b32 v{vT}, 3, v{vJ}")
        a(f"v_lshlrev_b32 v{vA1}, 8, v{vT}")
        a(f"v_lshl_add_u32 v{vA1}, v{vG}, 6, v{vA1}")
        a(f"v_mov_b32 v{vW}, 0")
        ldswait(L_QF + 8, 64, "L_A0_w1")
        ldswait(L_QF + 4, WSL, "L_A0_w2")
        wd_loads(vA0)
        a("s_setprio 2")
        a("s_barrier")
        tile_gemv(a, TB, vA1, L_VEC0, waits={0: 12, 4: 8, 8: 4, 12: 0})
        dp_publish(vVO)
        a.label("L_A0_final")
    a(f"s_cmp_ge_u32 s{sLW}, 32")
    a("s_cbranch_scc1 L_A0_nogen")
    a(f"s_lshr_b32 s{sT4}, s{sLW}, 3")
    a(f"s_and_b32 s{sT5}, s{sLW}, 7")
    a(f"s_and_b32 s{sT0}, s{sT5}, 1")
    a(f"s_lshl_b32 s{sT0}, s{sT0}, 9")
    a(f"s_lshl_b32 s{sT1}, s{sT4}, 7")
    a(f"s_add_u32 s{sT0}, s{sT0}, s{sT1}")
    a(f"s_lshr_b32 s{sT1}, s{sT5}, 1")
    a(f"s_lshl_b32 s{sT1}, s{sT1}, 5")
    a(f"s_add_u32 s{sT0}, s{sT0}, s{sT1}")
    a(f"v_and_b32 v{vT}, 31, v{vLANE}")
    a(f"v_add_u32 v{vT}, s{sT0}, v{vT}")
    a(f"v_lshlrev_b32 v{vA2}, 1, v{vT}")
    a(f"buffer_load_ushort v{vP}, v{vA2}, {SR(SRD_A)}, 0 offen")
    a(f"v_lshrrev_b32 v{vT}, 3, v{vLANE}")
    a(f"v_lshlrev_b32 v{vA0}, {BS+2}, v{vT}")
    a(f"v_and_b32 v{vA1}, 3, v{vT}")
    a(f"v_and_b32 v{vT}, 7, v{vLANE}")
    a(f"v_lshl_add_u32 v{vA0}, v{vT}, 4, v{vA0}")
    a(f"s_lshl_b32 s{sT4}, s{sT4}, {BS}")
    a(f"s_lshl_b32 s{sT5}, s{sT5}, 7")
    a(f"s_add_u32 s{sT4}, s{sT4}, s{sT5}")
    a(f"s_add_u32 s{sT5}, s{sT4}, {DPX}")
    if LWD == 2:
        a(f"v_min_u32 v{vKO}, {5*16384 + 127}, v{vA0}")
        a(f"v_and_b32 v{vT}, 7, v{vLANE}")
        a(f"v_and_b32 v{vKO}, 0x1c000, v{vKO}")
        a(f"v_lshl_add_u32 v{vKO}, v{vT}, 4, v{vKO}")
        srd(a, SRD_B, sOUT, 2048)
        a(f"s_lshl_b32 s{sT4}, s{sLW}, 13")
        a(f"s_add_u32 s{sT4}, s{sT4}, {YPB:#x}")
        a("s_setprio 3")
        items = [(vA0, sT5, 0), (vA0, sT5, 8 * 16384), (vKO, sT5, 16 * 16384)] + [(vVO, sT4, 1024 * t) for t in range(8)]
        gatherP(TA, [TB, TC], 11, None, None, 0, 0, "yp", PGAP, items=items)
        stamp(7)
        D0, Y0 = TA, TA + 12
        a("s_mov_b32 exec_hi, 0xffff")
        for r in range(4):
            a(f"v_add_f32 v{D0+r}, v{D0+r}, v{D0+8+r}")
        a("s_mov_b32 exec_hi, -1")
        for r in range(4):
            a(f"v_add_f32 v{D0+r}, v{D0+r}, v{D0+4+r}")
        for (x, y) in ((0, 1), (2, 3), (4, 5), (6, 7), (0, 2), (4, 6), (0, 4)):
            for r in range(4):
                a(f"v_add_f32 v{Y0+4*x+r}, v{Y0+4*x+r}, v{Y0+4*y+r}")
        regs = [D0 + r for r in range(4)] + [Y0 + r for r in range(4)]
        tmps = [D0 + 4 + r for r in range(4)] + [Y0 + 4 + r for r in range(4)]
        for r in regs:
            a(f"v_add_f32_dpp v{r}, v{r}, v{r} row_ror:8 {DPPM}")
        for sw in ("v_permlane16_swap_b32", "v_permlane32_swap_b32"):
            for r, t in zip(regs, tmps):
                a(f"v_mov_b32 v{t}, v{r}")
            for r, t in zip(regs, tmps):
                a(f"{sw} v{r}, v{t}")
            for r, t in zip(regs, tmps):
                a(f"v_add_f32 v{r}, v{r}, v{t}")
        a("s_mov_b32 exec_hi, 0")
        for r in range(1, 4):
            a(f"s_mov_b32 exec_lo, {0xff << (8*r):#x}")
            a(f"v_mov_b32 v{D0}, v{D0+r}")
            a(f"v_mov_b32 v{Y0}, v{Y0+r}")
        a("s_mov_b32 exec_lo, -1")
        rne(a, [D0, Y0])
        a(f"v_mul_f32 v{vU}, {NLOG2E:#x}, v{D0}")
        a(f"v_exp_f32 v{vU}, v{vU}")
        a(f"v_lshlrev_b32 v{vP}, 16, v{vP}")
        a(f"v_add_f32 v{vU}, 1.0, v{vU}")
        a(f"v_rcp_f32 v{vU}, v{vU}")
        a(f"v_mul_f32 v{D0}, v{D0}, v{vU}")
        rne(a, [D0])
        a(f"v_mul_f32 v{Y0}, v{Y0}, v{D0}")
        rne(a, [Y0])
        a(f"v_add_f32 v{Y0}, v{Y0}, v{vP}")
        a(f"v_cvt_pk_bf16_f32 v{Y0}, v{Y0}, v{Y0}")
        a(f"buffer_store_short v{Y0}, v{vA2}, {SR(SRD_B)}, 0 offen")
        a("s_branch L_A0_stored")
    for r in range(4):
        a(f"v_mov_b32 v{TA+8+r}, 0")
    if not LWD:
        for _ in range(3):
            a(f"s_sleep {PSL}")
    gather(TA, 3, vA0, sT5, 32 * B1, 0, 2 if LWD else PSL, "dp", lastmask=0xffff)
    stamp(5)
    if DIAG == 4:
        a(f"s_memrealtime s[{sST+4}:{sST+5}]")

    def reduce_select(dst, n):
        for t in range(1, n):
            for r in range(4):
                a(f"v_add_f32 v{TA+r}, v{TA+r}, v{TA+4*t+r}")
        regs = [TA + r for r in range(4)]
        tmps = [TA + 4 + r for r in range(4)]
        for r in regs:
            a(f"v_add_f32_dpp v{r}, v{r}, v{r} row_ror:8 {DPPM}")
        for sw in ("v_permlane16_swap_b32", "v_permlane32_swap_b32"):
            for r, t in zip(regs, tmps):
                a(f"v_mov_b32 v{t}, v{r}")
            for r, t in zip(regs, tmps):
                a(f"{sw} v{r}, v{t}")
            for r, t in zip(regs, tmps):
                a(f"v_add_f32 v{r}, v{r}, v{t}")
        a(f"v_cndmask_b32 v{dst}, v{TA}, v{TA+1}, s[{sSEL}:{sSEL+1}]")
        a(f"v_cndmask_b32 v{dst}, v{dst}, v{TA+2}, s[{sSEL+2}:{sSEL+3}]")
        a(f"v_cndmask_b32 v{dst}, v{dst}, v{TA+3}, s[{sSEL+4}:{sSEL+5}]")
    for r in range(1, 4):
        a(f"v_cmp_eq_u32 s[{sSEL+2*r-2}:{sSEL+2*r-1}], {r}, v{vA1}")
    reduce_select(vM, 3)
    rne(a, [vM])
    a(f"v_mul_f32 v{vU}, {NLOG2E:#x}, v{vM}")
    a(f"v_exp_f32 v{vU}, v{vU}")
    a(f"v_add_f32 v{vU}, 1.0, v{vU}")
    a(f"v_rcp_f32 v{vU}, v{vU}")
    a(f"v_mul_f32 v{vM}, v{vM}, v{vU}")
    rne(a, [vM])
    a(f"v_lshlrev_b32 v{vP}, 16, v{vP}")
    srd(a, SRD_B, sOUT, 2048)
    a(f"s_lshl_b32 s{sT4}, s{sLW}, 13")
    a(f"s_add_u32 s{sT4}, s{sT4}, {YPB:#x}")
    stamp(6)
    if DRY:
        a(f"s_mov_b32 s{sDRY}, 1")
        a("s_branch L_A0_dry0")
        a.label("L_A0_real")
        a(f"s_mov_b32 s{sDRY}, 0")
    a("s_setprio 3")
    if not LWD:
        a("s_barrier")
    if DIAG == 2:
        a(f"s_memrealtime s[{sST+4}:{sST+5}]")
    if PY:
        gatherP(TA, [TB + 32 * p for p in range(PY)], 8, vVO, sT4, 1024, 0, "yp", PGAP)
    else:
        gather(TA, 8, vVO, sT4, 1024, 0, YSL, "yp")
    stamp(7)
    if DRY:
        a.label("L_A0_dry0")
    reduce_select(vL, 8)
    rne(a, [vL])
    a(f"v_mul_f32 v{vL}, v{vL}, v{vM}")
    rne(a, [vL])
    a(f"v_add_f32 v{vL}, v{vL}, v{vP}")
    a(f"v_cvt_pk_bf16_f32 v{vL}, v{vL}, v{vL}")
    if DRY:
        a(f"s_cmp_lg_u32 s{sDRY}, 0")
        a("s_cbranch_scc1 L_A0_real")
    a("s_mov_b32 exec_hi, 0")
    a(f"buffer_store_short v{vL}, v{vA2}, {SR(SRD_B)}, 0 offen {OPOL}")
    a.label("L_A0_stored")
    a(f"s_cmp_lg_u32 s{sLW}, 0")
    a("s_cbranch_scc1 L_A0_nogen")
    a("s_mov_b64 exec, 1")
    a(f"v_mov_b32 v{vT}, s{sGEN}")
    a(f"v_mov_b32 v{vU}, {GEN:#x}")
    a(f"buffer_store_dword v{vT}, v{vU}, {SR(SRD_WS)}, 0 offen sc1")
    if DIAG:
        a(f"s_memrealtime s[{sST+2}:{sST+3}]")
        a("s_waitcnt lgkmcnt(0)")
        src = sST + 2 if DIAG == 1 else sST + 4
        a(f"s_sub_u32 s{sT0}, s{src}, s{sST}")
        if DIAG == 3:
            a(f"s_lshl_b32 s{sT0}, s{sT0}, 3")
        a(f"s_min_u32 s{sT0}, s{sT0}, 100000")
        a.label("L_diag")
        a(f"s_memrealtime s[{sST+6}:{sST+7}]")
        a("s_waitcnt lgkmcnt(0)")
        a(f"s_sub_u32 s{sT1}, s{sST+6}, s{sST+2}")
        a(f"s_cmp_lt_u32 s{sT1}, s{sT0}")
        a("s_cbranch_scc1 L_diag")
    a.label("L_A0_nogen")
    stamp_flush(7)
    a("s_endpgm")

    a.label("L_A1")
    if EXP & 8:
        a("s_endpgm")
    a("s_setprio 2")
    pre_tag()
    a(f"v_mov_b32 v{vKO}, 0")
    a(f"ds_write_b32 v{vKO}, v{vKO} offset:{L_QF}")
    a(f"ds_write_b32 v{vKO}, v{vKO} offset:{L_QF+4}")
    a(f"ds_write_b32 v{vKO}, v{vKO} offset:{L_QF+8}")
    masks()
    ownoff(sOFF, sT0)
    a(f"s_add_u32 s{sOFF}, s{sOFF}, {OPB}")
    a(f"v_lshlrev_b32 v{vA0}, 14, v{vG}")
    a(f"v_lshl_add_u32 v{vA0}, v{vJ}, 4, v{vA0}")
    a(f"s_lshl_b32 s{sT0}, s{sH}, 17")
    a(f"s_lshl_b32 s{sT1}, s{sB}, 16")
    a(f"s_add_u32 s{sT0}, s{sT0}, s{sT1}")
    a(f"s_lshl_b32 s{sT1}, s{sS}, 8")
    a(f"s_add_u32 s{sT0}, s{sT0}, s{sT1}")
    a(f"v_lshrrev_b32 v{vT}, 5, v{vLANE}")
    a(f"v_lshlrev_b32 v{vA1}, {BS}, v{vT}")
    a(f"v_bfe_u32 v{vT}, v{vLANE}, 3, 2")
    a(f"v_lshl_add_u32 v{vA1}, v{vT}, 8, v{vA1}")
    a(f"v_lshlrev_b32 v{vA2}, 6, v{vT}")
    a(f"v_and_b32 v{vT}, 7, v{vLANE}")
    a(f"v_lshl_add_u32 v{vA1}, v{vT}, 4, v{vA1}")
    a(f"v_lshl_add_u32 v{vA2}, v{vT}, 1, v{vA2}")
    ffn2_index()
    a("s_waitcnt lgkmcnt(0)")
    srd(a, SRD_WS, sWS, WSZ)
    load_tag()
    srd(a, SRD_B, sWO, 0x400000)
    if EARLY >= 2:
        a("s_barrier")
    a("s_waitcnt lgkmcnt(0)")
    make_tag()
    def wo_loads():
        for t in range(16):
            if t % 4 == 0 and t:
                a(f"s_add_u32 s{sWOF}, s{sWOF}, 4096")
            a(f"buffer_load_dwordx4 {R(TA+4*t)}, v{vWOA}, {SR(SRD_B)}, s{sWOF} offen offset:{1024*(t%4)} {WPOL}")
    a(f"s_mov_b32 s{sWOF}, s{sT0}")
    a(f"v_mov_b32 v{vWOA}, v{vA0}")
    if LWO == 0:
        wo_loads()
    if not LWD and not W2L:
        wd_loads(vA0)
    headbase(sT0, sT1)
    a(f"s_lshl_b32 s{sT1}, s{sB}, 7")
    a(f"s_add_u32 s{sT0}, s{sT0}, s{sT1}")
    if EARLY != 2:
        a("s_barrier")
    stamp(2, -1)
    if QSL:
        a(f"s_sleep {QSL}")
    gather(TC, 4, vA1, sT0, [2048, 6144, 2048] if DENSE == 2 else 2 * B1, QP, 1, "qp", fine=True)
    stamp(3, -1)
    for t in range(1, 4):
        for r in range(4):
            a(f"v_add_f32 v{TC+r}, v{TC+r}, v{TC+4*t+r}")
    for r in range(4):
        a(f"v_mov_b32 v{TC+4+r}, v{TC+r}")
    for r in range(4):
        a(f"v_permlane32_swap_b32 v{TC+r}, v{TC+4+r}")
    for r in range(4):
        a(f"v_add_f32 v{TC+r}, v{TC+r}, v{TC+4+r}")
    for r in range(4):
        a(f"v_cvt_pk_bf16_f32 v{TC+r}, v{TC+r}, v{TC+r}")
    for r in range(4):
        a(f"ds_write_b16 v{vA2}, v{TC+r} offset:{L_QV + 16*r}")
    a(f"v_mov_b32 v{vT}, 1")
    a("s_waitcnt lgkmcnt(0)")
    a(f"ds_write_b32 v{vKO}, v{vT} offset:{L_QF}")
    a("s_setprio 0")
    if W2L:
        wd_loads(vWOA)
    a(f"v_lshrrev_b32 v{vT}, 3, v{vJ}")
    a(f"v_lshlrev_b32 v{vP}, 8, v{vT}")
    a(f"v_lshl_add_u32 v{vP}, v{vG}, 6, v{vP}")
    a(f"v_lshlrev_b32 v{vL}, 4, v{vLANE}")
    a(f"s_cmp_ge_u32 s{sKF}, 88")
    a("s_cbranch_scc1 L_A1_noffn2")
    a(f"v_lshrrev_b32 v{vT}, 5, v{vLANE}")
    a(f"v_mul_u32_u24 v{vA0}, {88*B1}, v{vT}")
    a(f"v_and_b32 v{vT}, 31, v{vLANE}")
    a(f"v_lshl_add_u32 v{vA0}, v{vT}, 4, v{vA0}")
    a(f"s_lshr_b32 s{sT0}, s{sT4}, 1")
    a(f"s_lshl_b32 s{sT0}, s{sT0}, {BS+3}")
    a(f"s_add_u32 s{sT0}, s{sT0}, {GPB}")
    a(f"s_and_b32 s{sT1}, s{sT4}, 1")
    a(f"s_lshl_b32 s{sT1}, s{sT1}, 9")
    a(f"s_add_u32 s{sT0}, s{sT0}, s{sT1}")
    a(f"s_sleep {GSL}")
    gather(TC, 8, vA0, sT0, B1, 0, 32, "gp")
    for t in range(1, 8):
        for r in range(4):
            a(f"v_add_f32 v{TC+r}, v{TC+r}, v{TC+4*t+r}")
    G = [TC + r for r in range(4)]
    Uu = [TC + 4 + r for r in range(4)]
    E = [TC + 8 + r for r in range(4)]
    rne(a, G)
    for r in range(4):
        a(f"v_mov_b32 v{Uu[r]}, v{G[r]}")
    for r in range(4):
        a(f"v_permlane32_swap_b32 v{G[r]}, v{Uu[r]}")
    a(f"s_mov_b32 s{sT0}, 0xbdd2d3e8")
    a(f"v_mov_b32 v{vU}, 0xc0135761")
    for r in range(4):
        a(f"v_mul_f32 v{E[r]}, v{G[r]}, v{G[r]}")
    for r in range(4):
        a(f"v_fma_f32 v{E[r]}, v{E[r]}, s{sT0}, v{vU}")
    for r in range(4):
        a(f"v_mul_f32 v{E[r]}, v{E[r]}, v{G[r]}")
    for r in range(4):
        a(f"v_exp_f32 v{E[r]}, v{E[r]}")
    for r in range(4):
        a(f"v_add_f32 v{E[r]}, 1.0, v{E[r]}")
    for r in range(4):
        a(f"v_rcp_f32 v{E[r]}, v{E[r]}")
    for r in range(4):
        a(f"v_mul_f32 v{G[r]}, v{G[r]}, v{E[r]}")
    rne(a, G)
    for r in range(4):
        a(f"v_mul_f32 v{G[r]}, v{G[r]}, v{Uu[r]}")
    for r in range(4):
        a(f"v_cvt_pk_bf16_f32 v{G[r]}, v{G[r]}, v{G[r]}")
    a(f"v_lshrrev_b32 v{vT}, 3, v{vJ}")
    a(f"v_lshlrev_b32 v{vA0}, 8, v{vT}")
    a(f"v_and_b32 v{vT}, 1, v{vG}")
    a(f"v_lshl_add_u32 v{vA0}, v{vT}, 7, v{vA0}")
    a(f"v_and_b32 v{vT}, 7, v{vJ}")
    a(f"v_lshl_add_u32 v{vA0}, v{vT}, 2, v{vA0}")
    for r in range(4):
        a(f"ds_write_b32 v{vA0}, v{G[r]} offset:{L_VEC0 + 32*r}")
    a(f"v_mov_b32 v{vT}, 1")
    a("s_waitcnt lgkmcnt(0)")
    if LWD:
        a(f"ds_write_b32 v{vKO}, v{vT} offset:{L_QF+8}")
    else:
        tile_gemv(a, TB, vP, L_VEC0)
        dp_publish(vL)
    a.label("L_A1_noffn2")
    stamp(7, -1)
    if EXP & 512:
        a(f"s_andn2_b32 s{sT0}, s{sLW}, 3")
        a(f"s_lshl_b32 s{sT0}, s{sT0}, 12")
        a(f"s_add_u32 s{sT0}, s{sT0}, {CNT}")
        a(f"v_mov_b32 v{vA0}, 0")
        a("s_mov_b64 exec, 1")
        a(f"s_mov_b32 s{sCNT}, {ANUM}")
        stamp(2, -1)
        a.label("L_exp512")
        a(f"v_mov_b32 v{vT}, 1")
        if EXP & 2048:
            a(f"s_mov_b32 s{sT2}, 1")
            a(f"s_atomic_add s{sT2}, s[{sWS}:{sWS+1}], s{sT0} glc")
            a("s_waitcnt lgkmcnt(0)")
        elif EXP & 1024:
            a(f"buffer_load_dword v{vT}, v{vA0}, {SR(SRD_WS)}, s{sT0} offen sc1")
        else:
            a(f"buffer_atomic_add v{vT}, v{vA0}, {SR(SRD_WS)}, s{sT0} offen sc0 sc1")
        a("s_waitcnt vmcnt(0)")
        a(f"s_sub_u32 s{sCNT}, s{sCNT}, 1")
        a(f"s_cmp_lg_u32 s{sCNT}, 0")
        a("s_cbranch_scc1 L_exp512")
        stamp(3, -1)
        a("s_mov_b64 exec, -1")
    a(f"v_and_b32 v{vT}, 31, v{vLANE}")
    a(f"v_lshlrev_b32 v{vVO}, 4, v{vT}")
    a(f"v_mov_b32 v{vKO}, 0")
    a(f"v_and_b32 v{vU}, 7, v{vLANE}")
    a(f"v_lshlrev_b32 v{vU}, 4, v{vU}")
    a(f"v_add_u32 v{vU}, 512, v{vU}")
    a(f"v_cmp_gt_u32 vcc, 32, v{vLANE}")
    a(f"s_mov_b64 s[{sEX}:{sEX+1}], vcc")
    a(f"s_lshl_b32 s{sT1}, s{sB}, 8")
    a(f"v_lshlrev_b32 v{vA1}, 4, v{vJ}")
    a(f"v_add_u32 v{vA1}, s{sT1}, v{vA1}")
    a(f"v_cndmask_b32 v{vA1}, v{vU}, v{vA1}, vcc")
    a(f"v_and_b32 v{vT}, 1, v{vG}")
    a(f"v_lshl_add_u32 v{vA1}, v{vT}, {13 if DENSE == 2 else BS+2}, v{vA1}")
    a(f"v_lshlrev_b32 v{vA2}, 8, v{vT}")
    a(f"v_bfe_u32 v{vT}, v{vLANE}, 3, 1")
    a(f"v_lshl_add_u32 v{vA2}, v{vT}, 7, v{vA2}")
    a(f"v_and_b32 v{vT}, 7, v{vLANE}")
    a(f"v_lshl_add_u32 v{vA2}, v{vT}, 2, v{vA2}")
    a(f"v_lshrrev_b32 v{vT}, 3, v{vLANE}")
    a(f"v_lshlrev_b32 v{vA0}, 13, v{vT}")
    a(f"v_and_b32 v{vT}, 7, v{vLANE}")
    a(f"v_lshl_add_u32 v{vA0}, v{vT}, 4, v{vA0}")
    a(f"s_lshl_b32 s{sT2}, s{sS}, 16")
    a(f"s_lshl_b32 s{sT3}, s{sH}, 8")
    a(f"s_add_u32 s{sT2}, s{sT2}, s{sT3}")
    a(f"s_lshl_b32 s{sT3}, s{sB}, 7")
    a(f"s_add_u32 s{sT2}, s{sT2}, s{sT3}")
    a(f"s_add_u32 s{sT2}, s{sT2}, {YPB:#x}")
    headbase(sT0, sT3)
    a(f"s_add_u32 s{sT0}, s{sT0}, {OPB}")
    if DRY:
        a(f"s_mov_b32 s{sDRY}, 1")
        a("s_branch L_A1_dry0")
        a.label("L_A1_real")
        a(f"s_mov_b32 s{sDRY}, 0")
    if LWO in (3, 4):
        a.label("L_A1_wait")
        a(f"s_sleep {WSL}")
        a(f"ds_read_b32 v{vT}, v{vKO} offset:{L_QF+4}")
        a("s_waitcnt lgkmcnt(0)")
        a(f"v_cmp_eq_u32 vcc, 0, v{vT}")
        a("s_cbranch_vccnz L_A1_wait")
        wo_loads()
    a("s_setprio 3")
    a("s_barrier")
    stamp(4, -1)
    if DRY:
        a.label("L_A1_dry0")
    if LWO == 1:
        wo_loads()
    MLr = TC
    a(f"ds_read_b128 {R(MLr)}, v{vKO} offset:{L_PML}")
    a(f"ds_read_b128 {R(MLr+4)}, v{vKO} offset:{L_PML+16}")
    for w in range(4):
        a(f"ds_read_b128 {R(TB+4*w)}, v{vVO} offset:{L_PART + 512*w}")

    def combine(ms, ls, F, outm, outl):
        a(f"v_max_f32 v{outm}, v{ms[0]}, v{ms[1]}")
        a(f"v_max3_f32 v{outm}, v{outm}, v{ms[2]}, v{ms[3]}")
        for w in range(4):
            a(f"v_sub_f32 v{F+w}, v{ms[w]}, v{outm}")
        for w in range(4):
            a(f"v_mul_f32 v{F+w}, s{sL2E}, v{F+w}")
        for w in range(4):
            a(f"v_exp_f32 v{F+w}, v{F+w}")
        a(f"v_mul_f32 v{outl}, v{F}, v{ls[0]}")
        for w in range(1, 4):
            a(f"v_fmac_f32 v{outl}, v{F+w}, v{ls[w]}")

    def combine_o(os_, F):
        for r in range(4):
            a(f"v_mul_f32 v{os_[0]+r}, v{F}, v{os_[0]+r}")
        for w in range(1, 4):
            for r in range(4):
                a(f"v_fmac_f32 v{os_[0]+r}, v{F+w}, v{os_[w]+r}")
    F = TC + 8
    a("s_waitcnt lgkmcnt(4)")
    combine([MLr + 2 * w for w in range(4)], [MLr + 2 * w + 1 for w in range(4)], F, vM, vMN)
    a("s_waitcnt lgkmcnt(0)")
    combine_o([TB + 4 * w for w in range(4)], F)
    for r in range(4):
        src = vM if r % 2 == 0 else vMN
        a(f"v_cndmask_b32 v{TB+r}, v{src}, v{TB+r}, s[{sEX}:{sEX+1}]")
    if DRY:
        a(f"s_cmp_lg_u32 s{sDRY}, 0")
        a("s_cbranch_scc1 L_A1_dry1")
    a("s_mov_b32 exec_hi, 0xff")
    publish(TB, vL, sOFF, 0)
    a("s_mov_b64 exec, -1")
    stamp(5, -1)
    if LWO == 2:
        wo_loads()
    GB = TB + 16
    if PP:
        gatherP(GB, [TC + 16 + 16 * p for p in range(PP)], 4, vA1, sT0, B1, 0, "op", PGAP)
    else:
        gather(GB, 4, vA1, sT0, B1, 0, OSL, "op")
    stamp(6, -1)
    if DRY:
        a.label("L_A1_dry1")
    for t in range(4):
        a(f"v_mov_b32 v{MLr+2*t}, v{GB+4*t}")
        a(f"v_mov_b32 v{MLr+2*t+1}, v{GB+4*t+1}")
    for t in range(4):
        a(f"v_permlane32_swap_b32 v{GB+4*t}, v{MLr+2*t}")
        a(f"v_permlane32_swap_b32 v{GB+4*t+1}, v{MLr+2*t+1}")
    combine([MLr + 2 * w for w in range(4)], [MLr + 2 * w + 1 for w in range(4)], F, vM, vMN)
    a(f"v_rcp_f32 v{vMN}, v{vMN}")
    combine_o([GB + 4 * w for w in range(4)], F)
    for r in range(4):
        a(f"v_mul_f32 v{GB+r}, v{GB+r}, v{vMN}")
    for r in range(4):
        a(f"v_cvt_pk_bf16_f32 v{GB+r}, v{GB+r}, v{GB+r}")
    a(f"s_mov_b64 exec, s[{sEX}:{sEX+1}]")
    for r in range(4):
        a(f"ds_write_b32 v{vA2}, v{GB+r} offset:{L_VEC1 + 32*r}")
    a("s_mov_b64 exec, -1")
    a("s_waitcnt lgkmcnt(0)")
    tile_gemv(a, TA, vP, L_VEC1)
    if DRY:
        a(f"s_cmp_lg_u32 s{sDRY}, 0")
        a("s_cbranch_scc1 L_A1_real")
    publish(vACC, vA0, sT2, 0)
    stamp_flush(7)
    a.label("L_end")
    a("s_endpgm")
    a.label("L_codeend")

    if ORD:
        iS, iA0, iA1 = a.lines.index("L_S:"), a.lines.index("L_A0:"), a.lines.index("L_A1:")
        a.lines = a.lines[:iS] + a.lines[iA0:iA1] + a.lines[iS:iA0] + a.lines[iA1:]
    body = a.finish()
    hdr = open("cdna_kernels/" + NAME + ".s.ref").read().split("; @launch")[0]
    nv = 248
    txt = hdr + f"; @launch grid=(256,1,1) block=(384,1,1) lds={L_TOTAL + 4*NL*4096}\n"
    txt += DOC
    txt += '.amdgcn_target "amdgcn-amd-amdhsa--gfx950"\n.text\n'
    txt += f".globl {NAME}_kernel\n.p2align 8\n.type {NAME}_kernel,@function\n"
    txt += body
    txt += f""".section .rodata,"a"
.p2align 6
.amdhsa_kernel {NAME}_kernel
  .amdhsa_next_free_vgpr {nv}
  .amdhsa_next_free_sgpr 102
  .amdhsa_accum_offset {(nv+3)//4*4}
  .amdhsa_group_segment_fixed_size 0
  .amdhsa_kernarg_size 96
  .amdhsa_user_sgpr_count 2
  .amdhsa_user_sgpr_kernarg_segment_ptr 1
  .amdhsa_system_sgpr_workgroup_id_x 1
  .amdhsa_float_denorm_mode_32 3
.end_amdhsa_kernel
"""
    return txt


if __name__ == "__main__":
    out = sys.argv[1]
    kw = eval("dict(" + (sys.argv[2] if len(sys.argv) > 2 else "") + ")")
    open(out, "w").write(gen(**kw))
```

```python
import sys
sys.path.insert(0, "work")
from asmlib import Asm

DOC = """; ---------------------------------------------------------------------------------------------
; ---------------------------------------------------------------------------------------------
"""
NAME = "recurrent_scan__mha_block_cached__geglu_ffn__decode"

QP, GP, YP, OP, ML, CNT = 0, 1024, 2048, 3072, 3584, 3840
DPB = 0x100000
YPB = 0x100000
GEN = 0x140000
CNTB = 0x150000
WSZ = 0x200000
L_QF = 6464
L_KF = 6496
L_SC = 8192
L_XN, L_QV, L_PART, L_PML, L_VEC1, L_VEC0, L_TOTAL = 0, 4096, 4352, 6400, 6656, 7168, 16384

LOG2E = 0x3FB8AA3B
NLOG2E = 0xBFB8AA3B
SCALE = 0x3DB504F3

sX, sK, sV, sWQ, sWO, sBX, sWG, sWU, sWD, sOUT, sDBG, sWS = 4, 6, 8, 10, 12, 14, 16, 18, 20, 22, 24, 26
sH, sB, sS, sLW, sPID = 28, 29, 30, 31, 32
sL2E = 33
SRD_A, SRD_B, SRD_C, SRD_WS, SRD_D = 36, 40, 44, 48, 52
sT0, sT1, sT2, sT3, sT4, sT5 = 56, 57, 58, 59, 60, 61
sCNT = 62
sOFF = 63
sEX = 64
sIT = 66
sTAG, sGEN = 34, 35
sTMK = 67
sSEL = 96
sPM = 86
TBITS = 8
TMASK = (1 << TBITS) - 1
sST = 70
vLANE, vJ, vG = 1, 2, 3
vMASK = 4
vT, vU, vW, vP, vM, vMN, vL, vKO, vVO, vA0, vA1, vA2 = 8, 9, 10, 11, 12, 13, 14, 15, 16, 17, 18, 19
vS, vACC, vPB0, vPB1, vQB = 20, 24, 28, 32, 36
vWIN = 52
vTAG = 244
vWOA = 246
vE0, vE1 = 240, 241
sWOF = 68
sKF = 69
sDRY = 95
TA, TB, TC = 52, 116, 180


def srd(a, d, ptr, nbytes):
    a(f"s_mov_b32 s{d}, s{ptr}")
    a(f"s_and_b32 s{d+1}, s{ptr+1}, 0xffff")
    if isinstance(nbytes, int):
        a(f"s_mov_b32 s{d+2}, {nbytes:#x}")
    else:
        a(f"s_mov_b32 s{d+2}, {nbytes}")
    a(f"s_mov_b32 s{d+3}, 0x20000")


def R(b, n=4):
    return f"v[{b}:{b+n-1}]"


def SR(b, n=4):
    return f"s[{b}:{b+n-1}]"


DPPM = "row_mask:0xf bank_mask:0xf"


def allreduce(a, regs, tmps, op="v_add_f32", quad=True):
    steps = []
    if quad:
        steps += ["quad_perm:[1,0,3,2]", "quad_perm:[2,3,0,1]"]
    steps += ["row_ror:4", "row_ror:8"]
    for st in steps:
        for r in regs:
            a(f"{op}_dpp v{r}, v{r}, v{r} {st} {DPPM}")
    for sw in ("v_permlane16_swap_b32", "v_permlane32_swap_b32"):
        for r, t in zip(regs, tmps):
            a(f"v_mov_b32 v{t}, v{r}")
        for r, t in zip(regs, tmps):
            a(f"{sw} v{r}, v{t}")
        for r, t in zip(regs, tmps):
            a(f"{op} v{r}, v{r}, v{t}")


def rne(a, regs):
    for r in regs:
        a(f"v_cvt_pk_bf16_f32 v{r}, v{r}, v{r}")
    for r in regs:
        a(f"v_and_b32 v{r}, 0xffff0000, v{r}")


def tile_gemv(a, tbase, vaddr_lds, lds_off, waits=None):
    for k in range(4):
        a(f"ds_read_b128 {R(vQB+4*k)}, v{vaddr_lds} offset:{lds_off+16*k}")
    a("s_waitcnt lgkmcnt(0)")

    def build(t):
        pb = vPB0 if t % 2 == 0 else vPB1
        for r in range(4):
            a(f"v_and_b32 v{pb+r}, v{vQB+t}, v{vMASK+r}")
    build(0)
    for t in range(16):
        if t + 1 < 16:
            build(t + 1)
        pb = vPB0 if t % 2 == 0 else vPB1
        if waits and t in waits:
            a(f"s_waitcnt vmcnt({waits[t]})")
        c = "0" if t == 0 else R(vACC)
        a(f"v_mfma_f32_16x16x32_bf16 {R(vACC)}, {R(tbase+4*t)}, {R(pb)}, {c}")


def sanitize(a, base, n=4):
    for r in range(n):
        a(f"v_min_u32 v{base+r}, -2, v{base+r}")


def poll(a, issue, regs, sleep=0, name="poll"):
    top = a.newlabel(name)
    done = a.newlabel(name + "d")
    a(f"s_mov_b32 s{sCNT}, 0x40000")
    a.label(top)
    issue()
    a("s_waitcnt vmcnt(0)")
    rs = list(regs)
    a(f"v_max_u32 v{vT}, v{rs[0]}, v{rs[1]}" if len(rs) > 1 else f"v_mov_b32 v{vT}, v{rs[0]}")
    rest = rs[2:]
    while rest:
        if len(rest) >= 2:
            a(f"v_max3_u32 v{vT}, v{vT}, v{rest[0]}, v{rest[1]}")
            rest = rest[2:]
        else:
            a(f"v_max_u32 v{vT}, v{vT}, v{rest[0]}")
            rest = rest[1:]
    a(f"v_cmp_eq_u32 vcc, -1, v{vT}")
    a(f"s_cbranch_vccz {done}")
    a(f"s_sub_u32 s{sCNT}, s{sCNT}, 1")
    a(f"s_cbranch_scc1 {done}")
    if sleep:
        a(f"s_sleep {sleep}")
    a(f"s_branch {top}")
    a.label(done)


def gen(DD=1, STAMP=False, NSTAT=22, INFL=8, NL=4, EXP=0, SG=0, EARLY=3, PSL=64, QSL=12, CPF=4, RCL=0, ANUM=8, POL='nt', WPOL='nt', DBGST=0, GSL=64, PP=2, PGAP=8, ALPHA=0, YSL=0, OSL=0, PY=2, PAT=0, SCL=1, CPOS=0, LWO=4, WSL=4, EH=2, CLS=0, BETA2=0, DIAG=0, ROT=5, LINFL=0, LATEK=0, ILV=1, LWD=0, NP=6, FINE=1, PRE=1, CLX=1, OPOL='', CL2=0, OWN=0, VSEQ=0x9c, DRY=1, PROT=0, THR=0, CSP=512, DENSE=1, FLIP=0, ORD=0, F1L=1, EH2=0, W2L=0, EH0=0):
    a = Asm()
    BS = 10 if DENSE else 12
    B1 = 1 << BS
    GPB, OPB, DPX = (0x40000, 0x80000, 0xC0000) if DENSE else (GP, OP, DPB + 168 * 4096)
    assert not (DENSE and (LWD == 2 or not CSP))
    stamps = {"n": 0}

    def stamp(k, grp=0):
        if STAMP and (k < 2 or grp == -1 or grp == SG):
            a(f"s_memrealtime s[{sST+2*k}:{sST+2*k+1}]")

    def stamp_flush(nst):
        if not STAMP:
            return
        a(f"s_memrealtime s[{sST+2}:{sST+3}]")
        a("s_waitcnt lgkmcnt(0)")
        a("s_mov_b64 exec, -1")
        if DBGST:
            srd(a, SRD_D, sDBG, 256)
            a("s_mov_b64 exec, 1")
            a(f"s_min_u32 s{sT0}, s3, 2")
            a(f"s_mul_i32 s{sT0}, s{sT0}, 20")
            a("v_mov_b32 v17, 0")
            a(f"s_not_b32 s{sT1}, s{sST}")
            a(f"v_mov_b32 v20, s{sT1}")
            a(f"buffer_atomic_umax v20, v17, {SR(SRD_D)}, 0 offen sc1")
            for k in range(5):
                a(f"v_mov_b32 v{21+k}, s{sST+2*(k+1)}")
                a(f"buffer_atomic_umax v{21+k}, v17, {SR(SRD_D)}, s{sT0} offen offset:{4+4*k} sc1")
            return
        srd(a, SRD_D, sWS, 0x20000000)
        a(f"s_mul_i32 s{sT0}, s2, 6")
        a(f"s_add_u32 s{sT0}, s{sT0}, s3")
        a(f"s_lshl_b32 s{sT1}, s{sT0}, 6")
        a(f"s_lshl_b32 s{sT0}, s{sT0}, 4")
        a(f"s_add_u32 s{sT0}, s{sT0}, 0x10000000")
        a(f"s_add_u32 s{sT1}, s{sT1}, 0x11000000")
        a(f"s_getreg_b32 s{sT2}, hwreg(HW_REG_XCC_ID)")
        a(f"s_and_b32 s{sT2}, s{sT2}, 15")
        a(f"s_lshl_b32 s{sT2}, s{sT2}, 28")
        a(f"s_or_b32 s{sT2}, s{sST+1}, s{sT2}")
        a(f"v_mov_b32 v20, s{sST}")
        a(f"v_mov_b32 v21, s{sT2}")
        a(f"v_mov_b32 v22, s{sST+2}")
        a(f"v_mov_b32 v23, s{sST+3}")
        a("v_mov_b32 v17, 0")
        for k in range(8):
            a(f"v_mov_b32 v{24+k}, s{sST+2*k}")
        a(f"v_cmp_eq_u32 vcc, 0, v{vLANE}")
        a(f"s_and_saveexec_b64 s[{sEX}:{sEX+1}], vcc")
        a(f"buffer_store_dwordx4 v[20:23], v17, {SR(SRD_D)}, s{sT0} offen")
        a(f"buffer_store_dwordx4 v[24:27], v17, {SR(SRD_D)}, s{sT1} offen")
        a(f"buffer_store_dwordx4 v[28:31], v17, {SR(SRD_D)}, s{sT1} offen offset:16")

    a.label(f"{NAME}_kernel")
    a("s_cmp_ge_u32 s2, 256")
    a("s_cbranch_scc1 L_end")
    if STAMP:
        for k in range(8):
            a(f"s_mov_b64 s[{sST+2*k}:{sST+2*k+1}], 0")
    stamp(0)
    if DIAG:
        a(f"s_memrealtime s[{sST}:{sST+1}]")
    a("s_load_dwordx16 s[4:19], s[0:1], 0")
    a("s_load_dwordx8 s[20:27], s[0:1], 64")
    if ORD:
        a(f"s_getpc_b64 s[{sT0}:{sT1}]")
        a.label("L_pc")
        a(f"v_lshlrev_b32 v{vT}, 4, v0")
        for k in range(3):
            a(f"v_min_u32 v{vU}, L_codeend-L_pc-16, v{vT}")
            a(f"global_load_dwordx4 {R(228+4*k)}, v{vU}, s[{sT0}:{sT1}]")
            if k < 2:
                a(f"v_add_u32 v{vT}, 6144, v{vT}")
    a("v_lshrrev_b32 v2, 6, v0")
    a(f"v_and_b32 v{vLANE}, 63, v0")
    a("v_readfirstlane_b32 s3, v2")
    a(f"v_and_b32 v{vJ}, 15, v{vLANE}")
    a(f"v_lshrrev_b32 v{vG}, 4, v{vLANE}")
    a(f"s_bfe_u32 s{sH}, s2, 0x50002")
    a(f"s_lshr_b32 s{sB}, s2, 7")
    a(f"s_and_b32 s{sS}, s2, 3")
    a(f"s_lshl_b32 s{sPID}, s{sB}, 2")
    a(f"s_add_u32 s{sPID}, s{sPID}, s{sS}")
    a(f"s_lshl_b32 s{sLW}, s{sH}, 3")
    a(f"s_add_u32 s{sLW}, s{sLW}, s{sPID}")
    a(f"s_mov_b32 s{sL2E}, {LOG2E:#x}")
    if FLIP:
        a("s_waitcnt lgkmcnt(0)")
        a(f"s_add_u32 s{sWS}, s{sWS}, {FLIP}")
        a(f"s_addc_u32 s{sWS+1}, s{sWS+1}, 0")

    def headbase(d, t):
        if DENSE == 2:
            a(f"s_and_b32 s{t}, s{sH}, 1")
            a(f"s_lshl_b32 s{t}, s{t}, 12")
            a(f"s_lshr_b32 s{d}, s{sH}, 1")
            a(f"s_lshl_b32 s{d}, s{d}, 14")
            a(f"s_add_u32 s{d}, s{d}, s{t}")
        else:
            a(f"s_lshl_b32 s{d}, s{sH}, {BS+3}")

    def ownoff(d, t):
        if DENSE == 2:
            headbase(d, t)
            a(f"s_lshl_b32 s{t}, s{sB}, 13")
            a(f"s_add_u32 s{d}, s{d}, s{t}")
            a(f"s_lshl_b32 s{t}, s{sS}, 10")
            a(f"s_add_u32 s{d}, s{d}, s{t}")
        else:
            a(f"s_lshl_b32 s{d}, s{sLW}, {BS}")

    def masks():
        a(f"v_and_b32 v{vT}, 1, v{vLANE}")
        a(f"v_lshlrev_b32 v{vT}, 4, v{vT}")
        a(f"v_mov_b32 v{vU}, 0xffff")
        a(f"v_lshlrev_b32 v{vU}, v{vT}, v{vU}")
        a(f"v_bfe_u32 v{vT}, v{vLANE}, 1, 2")
        for r in range(4):
            a(f"v_cmp_eq_u32 vcc, {r}, v{vT}")
            a(f"v_cndmask_b32 v{vMASK+r}, 0, v{vU}, vcc")

    def flagpoll(nd, soff, vaddr, sleep, lane0):
        ftop = a.newlabel("flag")
        fdone = a.newlabel("flagd")
        a(f"s_mov_b32 s{sCNT}, 0x40000")
        a(f"s_mov_b32 s{sIT}, 0x01010101")
        if lane0:
            a("s_mov_b64 exec, 1")
        a.label(ftop)
        if nd == 2:
            a(f"buffer_load_dwordx2 v[{vT}:{vU}], v{vaddr}, {SR(SRD_D)}, {soff} offen sc1")
            a("s_waitcnt vmcnt(0)")
            a(f"v_and_b32 v{vT}, v{vT}, v{vU}")
        else:
            a(f"buffer_load_dword v{vT}, v{vaddr}, {SR(SRD_D)}, {soff} offen sc1")
            a("s_waitcnt vmcnt(0)")
        a(f"v_cmp_ne_u32 vcc, s{sIT}, v{vT}")
        a(f"s_cbranch_vccz {fdone}")
        a(f"s_sub_u32 s{sCNT}, s{sCNT}, 1")
        a(f"s_cbranch_scc1 {fdone}")
        a(f"s_sleep {sleep}")
        a(f"s_branch {ftop}")
        a.label(fdone)
        if lane0:
            a("s_mov_b64 exec, -1")

    if ORD:
        a("s_cmp_eq_u32 s3, 1")
        a("s_cbranch_scc1 L_A1")
        a("s_cmp_lg_u32 s3, 0")
        a("s_cbranch_scc1 L_S")
    else:
        a("s_cmp_eq_u32 s3, 0")
        a("s_cbranch_scc1 L_A0")
        a("s_cmp_eq_u32 s3, 1")
        a("s_cbranch_scc1 L_A1")
    a.label("L_S")

    if CPF and not ORD:
        a(f"s_getpc_b64 s[{sT0}:{sT1}]")
        a.label("L_pc")
        a(f"s_sub_u32 s{sT0}, s{sT0}, L_pc-{NAME}_kernel")
        a(f"s_subb_u32 s{sT1}, s{sT1}, 0")
        a(f"v_subrev_u32 v{vT}, 128, v0")
        a(f"v_lshlrev_b32 v{vT}, 4, v{vT}")
        for k in range(CPF):
            a(f"v_min_u32 v{vU}, L_codeend-{NAME}_kernel-16, v{vT}")
            a(f"global_load_dwordx4 {R(200+4*k)}, v{vU}, s[{sT0}:{sT1}]")
            a(f"v_add_u32 v{vT}, 4096, v{vT}")
    a(f"v_and_b32 v{vT}, 3, v{vLANE}")
    a(f"v_lshlrev_b32 v{vKO}, 4, v{vT}")
    a(f"v_bfe_u32 v{vT}, v{vLANE}, 2, 2")
    a(f"v_lshl_add_u32 v{vKO}, v{vT}, 8, v{vKO}")
    a(f"v_lshl_add_u32 v{vKO}, v{vG}, 6, v{vKO}")
    a(f"v_lshlrev_b32 v{vVO}, 4, v{vLANE}")
    a(f"s_lshl_b32 s{sT0}, s{sB}, 5")
    a(f"s_add_u32 s{sT0}, s{sT0}, s{sH}")
    a(f"s_lshl_b32 s{sOFF}, s{sT0}, 21")
    a(f"s_lshl_b32 s{sT0}, s{sS}, 2")
    a(f"s_add_u32 s{sT0}, s{sT0}, s3")
    a(f"s_sub_u32 s{sT0}, s{sT0}, 2")
    a(f"s_lshl_b32 s{sT0}, s{sT0}, 12")
    a(f"s_add_u32 s{sOFF}, s{sOFF}, s{sT0}")
    a("s_waitcnt lgkmcnt(0)")
    srd(a, SRD_A, sK, 0x8000000)
    srd(a, SRD_B, sV, 0x8000000)

    BAD = 0x40000000
    NSV = 32 - NP
    NDYN = 16 * NP
    assert NP % 2 == 0 and NL % 2 == 0
    BUF = [vWIN, vWIN + 16]
    BUFL = vWIN + 32
    SC = [vWIN + 48, vWIN + 52]
    PK = vWIN + 56
    vSW = [vWIN + 60, vWIN + 61, vWIN + 62]
    vSL, vSR, vCO, vSG, vTG = vWIN + 63, vWIN + 64, vWIN + 65, vWIN + 66, vWIN + 67
    SRD_X = SRD_C
    sBASE, sKI, sVI, sCA, sCP, sCV, sDYN, sSCB = 86, 87, 88, 67, 68, 69, 90, 91
    sUO = [94, 95]
    sRET = 92

    def loads(buf, voff, srd_, so):
        for m in range(4):
            a(f"buffer_load_dwordx4 {R(buf+4*m)}, v{voff}, {SR(srd_)}, s{so} offen offset:{1024*m} {POL}")

    def load1(buf, m, voff, srd_, so):
        a(f"buffer_load_dwordx4 {R(buf+4*m)}, v{voff}, {SR(srd_)}, s{so} offen offset:{1024*m} {POL}")

    def kbody(buf, vsw, refill):
        for m in range(4):
            c = "0" if m == 0 else R(vS)
            if refill and (FINE or m == 0):
                a(f"s_waitcnt vmcnt({7 if FINE else 4})")
            a(f"v_mfma_f32_16x16x32_bf16 {R(vS)}, {R(buf+4*m)}, {R(vQB+4*m)}, {c}")
            if refill and FINE:
                load1(buf, m, vCO, SRD_X, sOFF)
        if refill:
            if not FINE:
                loads(buf, vCO, SRD_X, sOFF)
            a(f"s_bfe_u32 s{sT0}, s{sOFF}, 0x50010")
            a(f"s_lshl_b32 s{sT0}, s{sT0}, 8")
            a(f"s_add_u32 s{sOFF}, s{sOFF}, 0x10000")
        a(f"v_mov_b32_dpp v{vT}, v{vS} quad_perm:[0,0,0,0] {DPPM}")
        for e in range(1, 4):
            a(f"v_add_f32_dpp v{vT}, v{vS+e}, v{vT} quad_perm:[{e},{e},{e},{e}] {DPPM}")
        rne(a, [vT])
        a(f"v_mul_f32 v{vT}, {SCALE:#x}, v{vT}")
        rne(a, [vT])
        a(f"v_max_f32 v{vM}, v{vM}, v{vT}")
        a(f"ds_write_b32 v{vsw}, v{vT} offset:{L_SC}")
        if refill:
            a(f"v_add_u32 v{vsw}, s{sT0}, v{vSL}")
        else:
            a(f"v_add_u32 v{vsw}, 256, v{vsw}")

    def pbody(sc):
        for m in range(4):
            a(f"v_fma_f32 v{sc+m}, v{sc+m}, s{sL2E}, v{vMN}")
        for m in range(4):
            a(f"v_exp_f32 v{sc+m}, v{sc+m}")
        for m in range(4):
            a(f"v_cvt_pk_bf16_f32 v{PK+m}, v{sc+m}, v{sc+m}")
        a(f"v_add_f32 v{sc}, v{sc}, v{sc+1}")
        a(f"v_add_f32 v{sc+2}, v{sc+2}, v{sc+3}")
        a(f"v_add_f32 v{vL}, v{vL}, v{sc}")
        a(f"v_add_f32 v{vL}, v{vL}, v{sc+2}")

    PBX = vWIN + 68

    PBS = [PBX, BUFL]

    def buildall(x=0):
        for m in range(4):
            for r in range(4):
                a(f"v_and_b32 v{PBS[x]+4*m+r}, v{PK+m}, v{vMASK+r}")

    def vbody(buf, so, cnt, x=0):
        for m in range(4):
            if FINE or m == 0:
                a(f"s_waitcnt vmcnt({cnt if FINE else cnt - 3})")
            a(f"v_mfma_f32_16x16x32_bf16 {R(vACC)}, {R(buf+4*m)}, {R(PBS[x]+4*m)}, {R(vACC)}")
            if FINE:
                load1(buf, m, vCO if x == 0 else vVO, SRD_X if x == 0 else SRD_B, so)
        if not FINE:
            loads(buf, vCO if x == 0 else vVO, SRD_X if x == 0 else SRD_B, so)

    def sclaim():
        if OWN:
            return sclaim_own()
        sk = a.newlabel("cl")
        if CL2:
            a(f"s_bitcmp0_b32 s{sCP}, 0")
            a(f"s_cbranch_scc1 {sk}")
        a(f"s_cmp_ge_i32 s{sCP}, {NDYN}")
        a(f"s_cbranch_scc1 {sk}")
        a(f"s_mov_b32 s{sCV}, {2 if CL2 else 1}")
        a(f"s_atomic_add s{sCV}, s[{sWS}:{sWS+1}], s{sCA} glc")
        a.label(sk)

    def dynnext():
        if OWN:
            return dynnext_own()
        a("s_waitcnt lgkmcnt(0)")
        a(f"s_add_u32 s{sCP}, s{sCV}, 1")
        if CL2:
            a(f"s_mov_b32 s{sCV}, s{sCP}")
        if PROT:
            a(f"s_add_u32 s{sT1}, s{sCP}, s{sGB}")
            a(f"s_sub_u32 s{sT2}, s{sT1}, {NDYN}")
            a(f"s_cselect_b32 s{sT1}, s{sT1}, s{sT2}")
            a(f"s_lshl_b32 s{sT1}, s{sT1}, 12")
        else:
            a(f"s_lshl_b32 s{sT1}, s{sCP}, 12")
        a(f"s_add_u32 s{sT1}, s{sT1}, s{sDYN}")
        a(f"s_cmp_lt_u32 s{sCP}, {NDYN}")
        a(f"s_cselect_b32 s{sUO[0]}, s{sT1}, {BAD:#x}")

    sVIC, sGB = 96, 97

    def sclaim_own():
        sk = a.newlabel("cl")
        a(f"s_cmp_ge_u32 s{sVIC}, 4")
        a(f"s_cbranch_scc1 {sk}")
        a(f"s_mov_b32 s{sCV}, 1")
        a(f"s_atomic_add s{sCV}, s[{sWS}:{sWS+1}], s{sCA} glc")
        a.label(sk)

    def dynnext_own():
        rt = a.newlabel("rt")
        ok = a.newlabel("ok")
        a.label(rt)
        a("s_waitcnt lgkmcnt(0)")
        a(f"s_add_u32 s{sCP}, s{sCV}, 1")
        a(f"s_lshr_b32 s{sT1}, s{sCP}, 2")
        a(f"s_lshl_b32 s{sT1}, s{sT1}, 16")
        a(f"s_and_b32 s{sT2}, s{sCP}, 3")
        a(f"s_lshl_b32 s{sT2}, s{sT2}, 12")
        a(f"s_add_u32 s{sT1}, s{sT1}, s{sT2}")
        a(f"s_add_u32 s{sUO[0]}, s{sT1}, s{sDYN}")
        a(f"s_cmp_lt_u32 s{sCP}, {4*NP}")
        a(f"s_cbranch_scc1 {ok}")
        a(f"s_mov_b32 s{sUO[0]}, {BAD:#x}")
        a(f"s_add_u32 s{sVIC}, s{sVIC}, 1")
        a(f"s_cmp_ge_u32 s{sVIC}, 4")
        a(f"s_cbranch_scc1 {ok}")
        a(f"s_lshl_b32 s{sT1}, s{sVIC}, 1")
        a(f"s_lshr_b32 s{sT1}, {VSEQ:#x}, s{sT1}")
        a(f"s_and_b32 s{sT1}, s{sT1}, 3")
        a(f"s_xor_b32 s{sT1}, s{sT1}, s{sS}")
        a(f"s_lshl_b32 s{sT2}, s{sT1}, 14")
        a(f"s_add_u32 s{sDYN}, s{sGB}, s{sT2}")
        a(f"s_andn2_b32 s{sCA}, s{sLW}, 3")
        a(f"s_add_u32 s{sCA}, s{sCA}, s{sT1}")
        a(f"s_lshl_b32 s{sCA}, s{sCA}, 12")
        a(f"s_add_u32 s{sCA}, s{sCA}, {CNT}")
        a(f"s_mov_b32 s{sCV}, 1")
        a(f"s_atomic_add s{sCV}, s[{sWS}:{sWS+1}], s{sCA} glc")
        a(f"s_branch {rt}")
        a.label(ok)

    sPA, sPV, sR16 = 98, 99, 100

    def pace(name, waited):
        if not THR:
            return
        if not waited:
            a("s_waitcnt lgkmcnt(0)")
        a.label(name)
        a(f"s_sub_i32 s{sT3}, s{sR16}, s{sPV}")
        a(f"s_cmp_le_i32 s{sT3}, {THR}")
        a(f"s_cbranch_scc1 {name}_go")
        a(f"s_add_u32 s{sCNT}, s{sCNT}, 1")
        a(f"s_cmp_gt_u32 s{sCNT}, 0x40000")
        a(f"s_cbranch_scc1 {name}_go")
        a(f"s_mov_b32 s{sPV}, 0")
        a(f"s_atomic_add s{sPV}, s[{sWS}:{sWS+1}], s{sPA} glc")
        a("s_waitcnt lgkmcnt(0)")
        a(f"s_branch {name}")
        a.label(name + "_go")
        a(f"s_add_u32 s{sR16}, s{sR16}, 16")
        a(f"s_mov_b32 s{sPV}, 1")
        a(f"s_atomic_add s{sPV}, s[{sWS}:{sWS+1}], s{sPA} glc")

    srd(a, SRD_X, sK, 0x8000000)
    a(f"s_mov_b32 s{sBASE}, s{sOFF}")
    a(f"s_sub_u32 s{sT4}, s3, 2")
    a(f"s_mul_i32 s{sT5}, s{sT4}, {NL*4096}")
    a(f"s_add_u32 s{sT5}, s{sT5}, {L_TOTAL}")
    a(f"v_add_u32 v{vA2}, s{sT5}, v{vVO}")
    a(f"v_mov_b32 v{vCO}, v{vKO}")
    a("s_barrier")
    if not EH0:
        loads(BUF[0], vKO, SRD_A, sOFF)
        a(f"s_add_u32 s{sOFF}, s{sOFF}, 0x10000")
    masks()
    if CSP:
        a(f"s_lshr_b32 s{sCA}, s{sLW}, 2")
        a(f"s_mul_i32 s{sCA}, s{sCA}, {CSP}")
        a(f"s_add_u32 s{sCA}, s{sCA}, {CNTB:#x}")
    else:
        a(f"s_andn2_b32 s{sCA}, s{sLW}, 3")
        a(f"s_lshl_b32 s{sCA}, s{sCA}, 12")
        a(f"s_add_u32 s{sCA}, s{sCA}, {CNT}")
    a(f"s_mov_b32 s{sCV}, 0")
    a(f"s_mov_b32 s{sCP}, -1")
    a(f"s_lshl_b32 s{sT0}, s{sB}, 5")
    a(f"s_add_u32 s{sT0}, s{sT0}, s{sH}")
    a(f"s_lshl_b32 s{sDYN}, s{sT0}, 21")
    a(f"s_add_u32 s{sDYN}, s{sDYN}, {16*NSV*4096}")
    if PROT:
        a(f"s_mul_i32 s{sGB}, s{sT0}, {PROT}")
        a(f"s_and_b32 s{sGB}, s{sGB}, 63")
        a(f"s_mul_i32 s{sGB}, s{sGB}, {NDYN}")
        a(f"s_lshr_b32 s{sGB}, s{sGB}, 6")
    if OWN:
        a(f"s_mov_b32 s{sGB}, s{sDYN}")
        a(f"s_lshl_b32 s{sT1}, s{sS}, 14")
        a(f"s_add_u32 s{sDYN}, s{sDYN}, s{sT1}")
        a(f"s_lshl_b32 s{sCA}, s{sLW}, 12")
        a(f"s_add_u32 s{sCA}, s{sCA}, {CNT}")
        a(f"s_mov_b32 s{sVIC}, 0")
    for r in range(4):
        a(f"v_mov_b32 v{vACC+r}, 0")
    a(f"v_mov_b32 v{vL}, 0")
    a(f"v_mov_b32 v{vM}, 0xff800000")
    a(f"v_and_b32 v{vT}, 3, v{vJ}")
    a(f"v_lshl_add_u32 v{vT}, v{vG}, 2, v{vT}")
    a(f"v_lshlrev_b32 v{vA0}, 4, v{vT}")
    a(f"v_lshrrev_b32 v{vA1}, 2, v{vJ}")
    a(f"v_lshlrev_b32 v{vE0}, 3, v{vG}")
    a(f"v_add_u32 v{vE0}, v{vE0}, v{vJ}")
    a(f"v_lshlrev_b32 v{vE0}, 4, v{vE0}")
    a(f"s_lshl_b32 s{sT1}, s{sT4}, 9")
    a(f"v_add_u32 v{vE0}, s{sT1}, v{vE0}")
    a(f"s_lshl_b32 s{sT1}, s{sT4}, 3")
    a(f"v_mov_b32 v{vE1}, s{sT1}")
    a(f"v_lshlrev_b32 v{vSG}, 4, v{vG}")
    a(f"s_lshl_b32 s{sT1}, s{sT4}, 6")
    a(f"v_add_u32 v{vSR}, s{sT1}, v{vSG}")
    a(f"v_lshl_add_u32 v{vSL}, v{vA1}, 2, v{vSR}")
    a(f"v_mov_b32 v{vSW[0]}, v{vSL}")
    a(f"v_add_u32 v{vSW[1]}, 256, v{vSL}")
    a(f"v_add_u32 v{vSW[2]}, 512, v{vSL}")
    if EH2:
        loads(BUF[1], vKO, SRD_A, sOFF)
    a("s_barrier")
    if EH0:
        loads(BUF[0], vKO, SRD_A, sOFF)
        a(f"s_add_u32 s{sOFF}, s{sOFF}, 0x10000")
    if not EH2:
        loads(BUF[1], vKO, SRD_A, sOFF)
    a(f"s_add_u32 s{sOFF}, s{sOFF}, 0x10000")
    a(f"s_mov_b32 s{sIT}, 0")
    a(f"s_mov_b32 s{sKI}, {NSV // 2}")
    a(f"v_mov_b32 v{vW}, 0")
    a.label("L_lpro")
    a(f"ds_read_b32 v{vT}, v{vW} offset:{L_QF}")
    a("s_waitcnt lgkmcnt(0)")
    a(f"v_cmp_ne_u32 vcc, 0, v{vT}")
    a("s_cbranch_vccnz L_qready")
    a(f"s_cmp_lt_u32 s{sIT}, {NL}")
    a("s_cbranch_scc1 L_lgo")
    a("s_sleep 1")
    a("s_branch L_lpro")
    a.label("L_lgo")
    for rep in range(2):
        a(f"s_mov_b32 m0, s{sT5}")
        a("s_waitcnt vmcnt(4)")
        for m in range(4):
            a(f"buffer_load_dwordx4 v{vKO}, {SR(SRD_A)}, s{sOFF} offen offset:{1024*m} {POL} lds")
        a(f"s_add_u32 s{sT5}, s{sT5}, 4096")
        a(f"s_add_u32 s{sOFF}, s{sOFF}, 0x10000")
    a(f"s_add_u32 s{sIT}, s{sIT}, 2")
    a(f"s_sub_u32 s{sKI}, s{sKI}, 1")
    a("s_branch L_lpro")
    a.label("L_qready")
    stamp(2, -1)
    a(f"ds_read_b128 {R(vS)}, v{vA0} offset:{L_QV}")
    a("s_waitcnt lgkmcnt(0)")
    for m in range(4):
        a(f"v_cmp_eq_u32 vcc, {m}, v{vA1}")
        for r in range(4):
            a(f"v_cndmask_b32 v{vQB+4*m+r}, 0, v{vS+r}, vcc")
    a(f"v_mov_b32 v{vA0}, 0")
    a(f"v_mov_b32 v{vA1}, 1")
    if THR:
        a(f"s_mov_b32 s{sCNT}, 0")
        a(f"s_add_u32 s{sPA}, s{sCA}, {256 if CSP else 128}")
        a(f"s_lshl_b32 s{sR16}, s{sIT}, 3")
        a(f"s_lshr_b32 s{sPV}, s{sIT}, 1")
        a(f"s_atomic_add s{sPV}, s[{sWS}:{sWS+1}], s{sPA} glc")
        a(f"s_branch L_kfirst")
    a.label("L_kloop")
    pace("L_kp", False)
    a.label("L_kfirst")
    a(f"s_sub_u32 s{sKI}, s{sKI}, 1")
    a(f"s_cmp_lg_u32 s{sKI}, 0")
    a("s_cbranch_scc1 L_kgo")
    a(f"s_mov_b32 s{SRD_X}, s{SRD_B}")
    a(f"s_mov_b32 s{SRD_X+1}, s{SRD_B+1}")
    a(f"s_mov_b32 s{sOFF}, s{sBASE}")
    a(f"v_mov_b32 v{vCO}, v{vVO}")
    a.label("L_kgo")
    for x in range(2):
        kbody(BUF[x], vSW[x], True)
    a(f"s_cmp_eq_u32 s{sIT}, 0")
    a("s_cbranch_scc1 L_knol")
    a("s_waitcnt vmcnt(8)")
    a.label("L_kl")
    for m in range(4):
        a(f"ds_read_b128 {R(BUFL+4*m)}, v{vA2} offset:{1024*m}")
    a(f"v_add_u32 v{vA2}, 0x1000, v{vA2}")
    a("s_waitcnt lgkmcnt(0)")
    kbody(BUFL, vSW[2], False)
    a(f"s_sub_u32 s{sIT}, s{sIT}, 1")
    a(f"s_bitcmp1_b32 s{sIT}, 0")
    a("s_cbranch_scc1 L_kl")
    a.label("L_knol")
    a(f"s_cmp_lg_u32 s{sKI}, 0")
    a("s_cbranch_scc1 L_kloop")
    stamp(5, -1)
    allreduce(a, [vM], [vW], op="v_max_f32", quad=False)
    a(f"v_mul_f32 v{vMN}, {NLOG2E:#x}, v{vM}")
    a(f"s_mov_b32 s{sVI}, {NSV // 2}")
    a.label("L_vloop")
    a(f"ds_read_b128 {R(SC[0])}, v{vSR} offset:{L_SC}")
    a(f"ds_read_b128 {R(SC[1])}, v{vSR} offset:{L_SC+256}")
    a(f"v_add_u32 v{vSR}, 512, v{vSR}")
    a(f"s_sub_u32 s{sVI}, s{sVI}, 1")
    a(f"s_mov_b32 s{sUO[0]}, s{sOFF}")
    a(f"s_add_u32 s{sUO[1]}, s{sOFF}, 0x10000")
    a(f"s_add_u32 s{sOFF}, s{sOFF}, 0x20000")
    a("s_waitcnt lgkmcnt(0)")
    pace("L_vp", True)
    for x in range(2):
        pbody(SC[x])
        buildall(x)
    a(f"s_cmp_lg_u32 s{sVI}, 0")
    a("s_cbranch_scc1 L_vnd")
    dynnext()
    a(f"s_mov_b32 s{sUO[1]}, s{sUO[0]}")
    a(f"s_mov_b32 s{SRD_X}, s{SRD_A}")
    a(f"s_mov_b32 s{SRD_X+1}, s{SRD_A+1}")
    a(f"v_mov_b32 v{vCO}, v{vKO}")
    a.label("L_vnd")
    for x in range(2):
        vbody(BUF[x], sUO[x], 7, x)
        if x == CLX:
            a(f"s_cmp_gt_u32 s{sVI}, 1")
            a("s_cbranch_scc1 L_vnc")
            sclaim()
            a.label("L_vnc")
    a(f"s_cmp_lg_u32 s{sVI}, 0")
    a("s_cbranch_scc1 L_vloop")
    a(f"v_mul_f32 v{vL}, 0x3e800000, v{vL}")
    stamp(6, -1)
    a.label("L_dloop")
    a(f"s_cmp_ge_u32 s{sUO[0]}, {BAD:#x}")
    a("s_cbranch_scc1 L_sdone")
    a("s_waitcnt vmcnt(4)")
    for m in range(4):
        c = "0" if m == 0 else R(vS)
        a(f"v_mfma_f32_16x16x32_bf16 {R(vS)}, {R(BUF[0]+4*m)}, {R(vQB+4*m)}, {c}")
    dynnext()
    loads(BUF[0], vKO, SRD_A, sUO[0])
    sclaim()
    a(f"v_mov_b32_dpp v{vT}, v{vS} quad_perm:[0,0,0,0] {DPPM}")
    for e in range(1, 4):
        a(f"v_add_f32_dpp v{vT}, v{vS+e}, v{vT} quad_perm:[{e},{e},{e},{e}] {DPPM}")
    rne(a, [vT])
    a(f"v_mul_f32 v{vT}, {SCALE:#x}, v{vT}")
    rne(a, [vT])
    a(f"v_cmp_gt_f32 vcc, v{vT}, v{vM}")
    a("s_cbranch_vccnz L_slow")
    a.label("L_back")
    a(f"v_fma_f32 v{vT}, v{vT}, s{sL2E}, v{vMN}")
    a(f"v_exp_f32 v{vT}, v{vT}")
    a(f"v_add_f32 v{vL}, v{vL}, v{vT}")
    a(f"v_cvt_pk_bf16_f32 v{vP}, v{vT}, v{vT}")
    for m in range(4):
        for r in range(4):
            a(f"v_and_b32_dpp v{PBX+4*m+r}, v{vP}, v{vMASK+r} row_newbcast:{4*m} {DPPM}")
    a("s_waitcnt vmcnt(4)")
    for m in range(4):
        a(f"v_mfma_f32_16x16x32_bf16 {R(vACC)}, {R(BUF[1]+4*m)}, {R(PBX+4*m)}, {R(vACC)}")
    loads(BUF[1], vVO, SRD_B, sUO[0])
    a("s_branch L_dloop")
    a.label("L_slow")
    a("s_nop 0")
    a(f"v_max_f32_dpp v{vU}, v{vT}, v{vT} row_ror:4 {DPPM}")
    a(f"v_max_f32_dpp v{vU}, v{vU}, v{vU} row_ror:8 {DPPM}")
    a(f"v_mov_b32 v{vW}, v{vU}")
    a(f"v_permlane16_swap_b32 v{vU}, v{vW}")
    a(f"v_max_f32 v{vU}, v{vU}, v{vW}")
    a(f"v_mov_b32 v{vW}, v{vU}")
    a(f"v_permlane32_swap_b32 v{vU}, v{vW}")
    a(f"v_max3_f32 v{vU}, v{vU}, v{vW}, v{vM}")
    a(f"v_sub_f32 v{vW}, v{vM}, v{vU}")
    a(f"v_mul_f32 v{vW}, s{sL2E}, v{vW}")
    a(f"v_exp_f32 v{vW}, v{vW}")
    a(f"v_mov_b32 v{vM}, v{vU}")
    a(f"v_mul_f32 v{vMN}, {NLOG2E:#x}, v{vU}")
    for r in range(4):
        a(f"v_mul_f32 v{vACC+r}, v{vACC+r}, v{vW}")
    a(f"v_mul_f32 v{vL}, v{vL}, v{vW}")
    a("s_branch L_back")
    a.label("L_sdone")
    a(f"ds_write_b32 v{vA0}, v{vA1} offset:{L_QF+4}")
    stamp(3, -1)
    a("s_mov_b32 exec_lo, 0x00ff00ff")
    a("s_mov_b32 exec_hi, 0x00ff00ff")
    a("s_nop 3")
    a(f"ds_write_b128 v{vE0}, {R(vACC)} offset:{L_PART}")
    a("s_mov_b64 exec, -1")
    allreduce(a, [vL], [vW], quad=False)
    a(f"v_mov_b32 v{vMN}, v{vL}")
    a(f"ds_write_b64 v{vE1}, v[{vM}:{vMN}] offset:{L_PML}")
    a("s_waitcnt lgkmcnt(0)")
    a("s_barrier")
    stamp_flush(4)
    a("s_endpgm")

    def load_tag():
        a(f"s_mov_b32 s{sT2}, {GEN:#x}")
        a(f"s_load_dword s{sTAG}, s[{sWS}:{sWS+1}], s{sT2}")

    def make_tag():
        a(f"s_add_u32 s{sGEN}, s{sTAG}, 1")
        a(f"v_and_b32 v{vTAG+1}, s{sGEN}, v{vTAG+1}")

    def pre_tag():
        a(f"v_mov_b32 v{vTAG+1}, 7")

    def publish(src, voff, soff, off, fine=True):
        mk, tg = ("7", vTAG + 1) if fine else (f"s{sTMK}", vTAG)
        for r in range(4):
            a(f"v_bfi_b32 v{src+r}, {mk}, v{tg}, v{src+r}")
        a(f"buffer_store_dwordx4 {R(src)}, v{voff}, {SR(SRD_WS)}, s{soff} offen offset:{off} sc1")

    def gather(dst, n, voff, soff, step, off, sleep, name, lanes="-1", fine=True, lastmask=None):
        mk, tg = ("7", vTAG + 1) if fine else (f"s{sTMK}", vTAG)
        top = a.newlabel(name)
        done = a.newlabel(name + "d")
        a(f"s_mov_b32 s{sCNT}, 0x40000")
        a(f"s_mov_b32 s{sPM}, {(1 << n) - 1}")
        if lanes != "-1":
            a(f"s_mov_b64 exec, {lanes}")
        a.label(top)
        if n > 1:
            a(f"s_mov_b32 s{sT1}, s{soff}")
        for t in range(n):
            sk = a.newlabel(name + "s")
            if n > 1:
                a(f"s_bitcmp1_b32 s{sPM}, {t}")
                a(f"s_cbranch_scc0 {sk}")
            if lastmask and t == n - 1:
                a(f"s_mov_b32 exec_hi, {lastmask:#x}")
            a(f"buffer_load_dwordx4 {R(dst+4*t)}, v{voff}, {SR(SRD_WS)}, s{sT1 if n > 1 else soff} offen offset:{off} sc1")
            if lastmask and t == n - 1:
                a("s_mov_b32 exec_hi, -1")
            a.label(sk)
            if t < n - 1:
                a(f"s_add_u32 s{sT1}, s{sT1}, {step[t] if isinstance(step, list) else step}")
        a("s_waitcnt vmcnt(0)")
        for t in range(n):
            d = dst + 4 * t
            sk = a.newlabel(name + "c")
            if n > 1:
                a(f"s_bitcmp1_b32 s{sPM}, {t}")
                a(f"s_cbranch_scc0 {sk}")
            if lastmask and t == n - 1:
                a(f"s_mov_b32 exec_hi, {lastmask:#x}")
            for r in range(4):
                a(f"v_xor_b32 v{d+r}, v{d+r}, v{tg}")
            a(f"v_or3_b32 v{vT}, v{d}, v{d+1}, v{d+2}")
            a(f"v_or_b32 v{vT}, v{vT}, v{d+3}")
            a(f"v_and_b32 v{vT}, {mk}, v{vT}")
            a(f"v_cmp_ne_u32 vcc, 0, v{vT}")
            if lastmask and t == n - 1:
                a("s_mov_b32 exec_hi, -1")
            if n > 1:
                a(f"s_cbranch_vccnz {sk}")
                a(f"s_bitset0_b32 s{sPM}, {t}")
                a.label(sk)
        if n > 1:
            a(f"s_cmp_eq_u32 s{sPM}, 0")
            a(f"s_cbranch_scc1 {done}")
        else:
            a(f"s_cbranch_vccz {done}")
        a(f"s_sub_u32 s{sCNT}, s{sCNT}, 1")
        a(f"s_cbranch_scc1 {done}")
        if sleep:
            a(f"s_sleep {sleep}")
        a(f"s_branch {top}")
        a.label(done)
        if lanes != "-1":
            a("s_mov_b64 exec, -1")

    def gatherP(fin, bufs, n, voff, soff, step, off, name, gap, items=None):
        P = len(bufs)
        if items is None:
            items = [(voff, soff, t * step) for t in range(n)]
        n = len(items)
        top = a.newlabel(name)
        done = a.newlabel(name + "d")
        a(f"s_mov_b32 s{sCNT}, 0x40000")
        a(f"s_mov_b32 s{sPM}, {(1 << n) - 1}")
        for t, (vo, so, add) in enumerate(items):
            a(f"s_add_u32 s{sPM+1+t}, s{so}, {add}")

        def issue(bf):
            for t, (vo, so, add) in enumerate(items):
                a(f"buffer_load_dwordx4 {R(bf+4*t)}, v{vo}, {SR(SRD_WS)}, s{sPM+1+t} offen offset:{off} sc1")
        for p in range(P - 1):
            issue(bufs[p])
            a(f"s_sleep {gap}")
        a.label(top)
        for p in range(P):
            issue(bufs[(p + P - 1) % P])
            a(f"s_waitcnt vmcnt({n*(P-1)})")
            bf = bufs[p]
            for t in range(n):
                d = bf + 4 * t
                sk = a.newlabel(name + "c")
                if n > 1:
                    a(f"s_bitcmp1_b32 s{sPM}, {t}")
                    a(f"s_cbranch_scc0 {sk}")
                for r in range(4):
                    a(f"v_xor_b32 v{fin+4*t+r}, v{d+r}, v{vTAG+1}")
                a(f"v_or3_b32 v{vT}, v{fin+4*t}, v{fin+4*t+1}, v{fin+4*t+2}")
                a(f"v_or_b32 v{vT}, v{vT}, v{fin+4*t+3}")
                a(f"v_and_b32 v{vT}, 7, v{vT}")
                a(f"v_cmp_ne_u32 vcc, 0, v{vT}")
                if n > 1:
                    a(f"s_cbranch_vccnz {sk}")
                    a(f"s_bitset0_b32 s{sPM}, {t}")
                    a(f"s_mov_b32 s{sPM+1+t}, 0x40000000")
                    a.label(sk)
                else:
                    a(f"s_cbranch_vccz {done}")
            if n > 1:
                a(f"s_cmp_eq_u32 s{sPM}, 0")
                a(f"s_cbranch_scc1 {done}")
        a(f"s_sub_u32 s{sCNT}, s{sCNT}, 1")
        a(f"s_cbranch_scc0 {top}")
        a.label(done)

    def ffn2_index():
        a(f"s_lshr_b32 s{sT1}, s{sLW}, 4")
        a(f"s_add_u32 s{sT1}, s{sT1}, 80")
        a(f"s_and_b32 s{sT2}, s{sLW}, 0x8f")
        a(f"s_cmp_eq_u32 s{sT2}, 9")
        a(f"s_cselect_b32 s{sKF}, s{sT1}, 255")
        a(f"s_sub_u32 s{sT1}, s{sLW}, 176")
        a(f"s_cmp_ge_u32 s{sLW}, 176")
        a(f"s_cselect_b32 s{sKF}, s{sT1}, s{sKF}")
        a(f"s_mov_b32 s{sT1}, s{sKF}")
        a(f"s_lshr_b32 s{sT4}, s{sT1}, 2")
        a(f"s_and_b32 s{sT5}, s{sT1}, 3")
        a(f"s_lshl_b32 s{sT3}, s{sT4}, 16")
        a(f"s_lshl_b32 s{sT1}, s{sT5}, 8")
        a(f"s_add_u32 s{sT3}, s{sT3}, s{sT1}")

    def wd_loads(vaddr):
        srd(a, SRD_C, sWD, 1376 * 1024)
        a(f"s_cmp_lt_u32 s{sKF}, 88")
        a(f"s_cselect_b32 s{SRD_C+2}, {1376*1024}, 0")
        for t in range(16):
            if t % 4 == 0 and t:
                a(f"s_add_u32 s{sT3}, s{sT3}, 4096")
            a(f"buffer_load_dwordx4 {R(TB+4*t)}, v{vaddr}, {SR(SRD_C)}, s{sT3} offen offset:{1024*(t%4)} {WPOL}")

    def dp_publish(voff):
        a(f"s_lshl_b32 s{sT0}, s{sKF}, {BS}")
        a(f"s_add_u32 s{sT0}, s{sT0}, {DPX}")
        publish(vACC, voff, sT0, 0)

    def ldswait(off, sleep, name):
        a.label(name)
        a(f"s_sleep {sleep}")
        a(f"ds_read_b32 v{vT}, v{vW} offset:{off}")
        a("s_waitcnt lgkmcnt(0)")
        a(f"v_cmp_eq_u32 vcc, 0, v{vT}")
        a(f"s_cbranch_vccnz {name}")

    a.label("L_A0")
    if EXP & 8:
        a("s_endpgm")
    a("s_setprio 3")
    pre_tag()
    a(f"v_lshlrev_b32 v{vVO}, 4, v{vLANE}")
    for r in range(4):
        a(f"v_mov_b32 v{vS+r}, -1")
    ownoff(sOFF, sT0)
    a(f"v_lshlrev_b32 v{vA0}, 17, v{vG}")
    a(f"v_lshl_add_u32 v{vA0}, v{vJ}, 4, v{vA0}")
    a(f"s_lshl_b32 s{sT0}, s{sPID}, 19")
    a(f"s_lshl_b32 s{sT1}, s{sH}, 8")
    a(f"s_add_u32 s{sT0}, s{sT0}, s{sT1}")
    a("s_waitcnt lgkmcnt(0)")
    srd(a, SRD_A, sX, 2048)
    a(f"buffer_load_dwordx4 {R(vPB0)}, v{vVO}, {SR(SRD_A)}, 0 offen")
    a(f"buffer_load_dwordx4 {R(vPB1)}, v{vVO}, {SR(SRD_A)}, 0 offen offset:1024")
    srd(a, SRD_WS, sWS, WSZ)
    load_tag()
    if CSP:
        a(f"s_lshr_b32 s{sT3}, s{sLW}, 2")
        a(f"s_mul_i32 s{sT3}, s{sT3}, {CSP}")
        a(f"s_add_u32 s{sT3}, s{sT3}, {CNTB:#x}")
        a(f"s_mov_b64 exec, {'0xff00ff' if THR else '0xff'}")
        a(f"buffer_store_dwordx4 {R(vS)}, v{vVO}, {SR(SRD_WS)}, s{sT3} offen sc1")
    else:
        a("s_mov_b64 exec, 0xffff")
        a(f"buffer_store_dwordx4 {R(vS)}, v{vVO}, {SR(SRD_WS)}, s{sOFF} offen offset:{CNT} sc1")
    a("s_mov_b64 exec, -1")
    srd(a, SRD_B, sWQ, 0x400000)
    for t in range(16):
        a(f"buffer_load_dwordx4 {R(TA+4*t)}, v{vA0}, {SR(SRD_B)}, s{sT0} offen {WPOL}")
        if t < 15:
            a(f"s_add_u32 s{sT0}, s{sT0}, 8192")
    if EARLY >= 2:
        a("s_barrier")
    masks()
    a("s_waitcnt vmcnt(17)")
    stamp(2)
    X = [TC + i for i in range(16)]
    for bb, src in ((0, vPB0), (1, vPB1)):
        for k in range(4):
            a(f"v_lshlrev_b32 v{X[bb*8+2*k]}, 16, v{src+k}")
            a(f"v_and_b32 v{X[bb*8+2*k+1]}, 0xffff0000, v{src+k}")
    S0, S1, Tm0, Tm1 = TC + 16, TC + 17, TC + 18, TC + 19
    Dv = [TC + 20 + i for i in range(16)]
    for bb, s in ((0, S0), (1, S1)):
        a(f"v_add_f32 v{s}, v{X[bb*8]}, v{X[bb*8+1]}")
    for k in range(2, 8):
        for bb, s in ((0, S0), (1, S1)):
            a(f"v_add_f32 v{s}, v{s}, v{X[bb*8+k]}")
    allreduce(a, [S0, S1], [Tm0, Tm1])
    a(f"v_mul_f32 v{S0}, 0x3b000000, v{S0}")
    a(f"v_mul_f32 v{S1}, 0x3b000000, v{S1}")
    V0, V1 = TC + 36, TC + 37
    for bb, s in ((0, S0), (1, S1)):
        for k in range(8):
            a(f"v_sub_f32 v{Dv[bb*8+k]}, v{X[bb*8+k]}, v{s}")
    for bb, v in ((0, V0), (1, V1)):
        a(f"v_mul_f32 v{v}, v{Dv[bb*8]}, v{Dv[bb*8]}")
    for k in range(1, 8):
        for bb, v in ((0, V0), (1, V1)):
            a(f"v_fmac_f32 v{v}, v{Dv[bb*8+k]}, v{Dv[bb*8+k]}")
    allreduce(a, [V0, V1], [Tm0, Tm1])
    a(f"v_mul_f32 v{V0}, 0x3b000000, v{V0}")
    a(f"v_mul_f32 v{V1}, 0x3b000000, v{V1}")
    rne(a, [S0, S1, V0, V1])
    a(f"v_add_f32 v{V0}, 0x3727c5ac, v{V0}")
    a(f"v_add_f32 v{V1}, 0x3727c5ac, v{V1}")
    rne(a, [V0, V1])
    a(f"v_sqrt_f32 v{V0}, v{V0}")
    a(f"v_sqrt_f32 v{V1}, v{V1}")
    rne(a, [V0, V1])
    a(f"v_rcp_f32 v{V0}, v{V0}")
    a(f"v_rcp_f32 v{V1}, v{V1}")
    for bb, s in ((0, S0), (1, S1)):
        for k in range(8):
            a(f"v_sub_f32 v{Dv[bb*8+k]}, v{X[bb*8+k]}, v{s}")
    rne(a, Dv)
    for bb, v in ((0, V0), (1, V1)):
        for k in range(8):
            a(f"v_mul_f32 v{Dv[bb*8+k]}, v{Dv[bb*8+k]}, v{v}")
    for d in Dv:
        a(f"v_cvt_pk_bf16_f32 v{d}, v{d}, v{d}")
    a(f"v_lshlrev_b32 v{vA1}, 5, v{vLANE}")
    for bb in range(2):
        for k in range(2):
            a(f"ds_write_b128 v{vA1}, {R(Dv[bb*8+4*k])} offset:{L_XN + bb*2048 + 16*k}")
    def ffn1_loads():
        a(f"s_cmp_ge_u32 s{sLW}, 88")
        a(f"s_cselect_b32 s{sT0}, 88, 0")
        a(f"s_cselect_b32 s{SRD_C}, s{sWU}, s{sWG}")
        a(f"s_cselect_b32 s{SRD_C+1}, s{sWU+1}, s{sWG+1}")
        a(f"s_and_b32 s{SRD_C+1}, s{SRD_C+1}, 0xffff")
        a(f"s_sub_u32 s{sT0}, s{sLW}, s{sT0}")
        a(f"s_cmp_lt_u32 s{sLW}, 176")
        a(f"s_cselect_b32 s{SRD_C+2}, {512*2752}, 0")
        a(f"s_mov_b32 s{SRD_C+3}, 0x20000")
        a(f"s_lshr_b32 s{sT1}, s{sT0}, 3")
        a(f"s_and_b32 s{sT5}, s{sT0}, 7")
        a(f"s_mul_i32 s{sT3}, s{sT5}, {64*2752}")
        a(f"s_lshl_b32 s{sT4}, s{sT1}, 8")
        a(f"s_add_u32 s{sT3}, s{sT3}, s{sT4}")
        a(f"v_mul_u32_u24 v{vA0}, {16*2752}, v{vG}")
        a(f"v_lshl_add_u32 v{vA0}, v{vJ}, 4, v{vA0}")
        a(f"s_lshl_b32 s{sT4}, s{sT1}, 4")
        a(f"v_add_u32 v{vT}, s{sT4}, v{vJ}")
        a(f"v_cmp_gt_u32 vcc, 172, v{vT}")
        a(f"v_mov_b32 v{vU}, 0x40000000")
        a(f"v_cndmask_b32 v{vA0}, v{vU}, v{vA0}, vcc")
        for t in range(16):
            a(f"buffer_load_dwordx4 {R(TB+4*t)}, v{vA0}, {SR(SRD_C)}, s{sT3} offen {WPOL}")
            if t < 15:
                a(f"s_add_u32 s{sT3}, s{sT3}, 2752")
    if not F1L:
        ffn1_loads()
    a(f"v_lshrrev_b32 v{vT}, 3, v{vJ}")
    a(f"v_lshlrev_b32 v{vKO}, 11, v{vT}")
    a(f"v_lshl_add_u32 v{vKO}, v{vG}, 6, v{vKO}")
    a(f"s_lshl_b32 s{sT0}, s{sPID}, 8")
    a(f"v_add_u32 v{vA1}, s{sT0}, v{vKO}")
    a("s_waitcnt lgkmcnt(0)")
    make_tag()
    if EARLY == 1:
        a("s_barrier")
    tile_gemv(a, TA, vA1, L_XN, waits={0: 12, 4: 8, 8: 4, 12: 0} if F1L else {0: 28, 4: 24, 8: 20, 12: 16})
    publish(vACC, vVO, sOFF, QP, fine=True)
    if EARLY in (0, 3):
        a("s_barrier")
    stamp(3)
    if DIAG == 3:
        a(f"s_memrealtime s[{sST+4}:{sST+5}]")
    if F1L:
        ffn1_loads()
    a(f"s_cmp_ge_u32 s{sLW}, 176")
    a("s_cbranch_scc1 L_A0_noffn1")
    a(f"s_lshl_b32 s{sT0}, s{sT5}, 8")
    a(f"v_add_u32 v{vA1}, s{sT0}, v{vKO}")
    tile_gemv(a, TB, vA1, L_XN, waits={0: 0 if F1L else 1})
    a(f"s_lshl_b32 s{sT0}, s{sLW}, {BS}")
    a(f"s_add_u32 s{sT0}, s{sT0}, {GPB}")
    publish(vACC, vVO, sT0, 0)
    a.label("L_A0_noffn1")
    stamp(4)
    a("s_setprio 0")
    if LWD:
        ffn2_index()
        a(f"s_cmp_lt_u32 s{sKF}, 88")
        a("s_cbranch_scc1 L_A0_ffn2")
        a(f"s_cmp_ge_u32 s{sLW}, 32")
        a("s_cbranch_scc1 L_A0_nogen")
        a("s_barrier")
        a("s_branch L_A0_final")
        a.label("L_A0_ffn2")
        a(f"v_lshlrev_b32 v{vA0}, 14, v{vG}")
        a(f"v_lshl_add_u32 v{vA0}, v{vJ}, 4, v{vA0}")
        a(f"v_lshrrev_b32 v{vT}, 3, v{vJ}")
        a(f"v_lshlrev_b32 v{vA1}, 8, v{vT}")
        a(f"v_lshl_add_u32 v{vA1}, v{vG}, 6, v{vA1}")
        a(f"v_mov_b32 v{vW}, 0")
        ldswait(L_QF + 8, 64, "L_A0_w1")
        ldswait(L_QF + 4, WSL, "L_A0_w2")
        wd_loads(vA0)
        a("s_setprio 2")
        a("s_barrier")
        tile_gemv(a, TB, vA1, L_VEC0, waits={0: 12, 4: 8, 8: 4, 12: 0})
        dp_publish(vVO)
        a.label("L_A0_final")
    a(f"s_cmp_ge_u32 s{sLW}, 32")
    a("s_cbranch_scc1 L_A0_nogen")
    a(f"s_lshr_b32 s{sT4}, s{sLW}, 3")
    a(f"s_and_b32 s{sT5}, s{sLW}, 7")
    a(f"s_and_b32 s{sT0}, s{sT5}, 1")
    a(f"s_lshl_b32 s{sT0}, s{sT0}, 9")
    a(f"s_lshl_b32 s{sT1}, s{sT4}, 7")
    a(f"s_add_u32 s{sT0}, s{sT0}, s{sT1}")
    a(f"s_lshr_b32 s{sT1}, s{sT5}, 1")
    a(f"s_lshl_b32 s{sT1}, s{sT1}, 5")
    a(f"s_add_u32 s{sT0}, s{sT0}, s{sT1}")
    a(f"v_and_b32 v{vT}, 31, v{vLANE}")
    a(f"v_add_u32 v{vT}, s{sT0}, v{vT}")
    a(f"v_lshlrev_b32 v{vA2}, 1, v{vT}")
    a(f"buffer_load_ushort v{vP}, v{vA2}, {SR(SRD_A)}, 0 offen")
    a(f"v_lshrrev_b32 v{vT}, 3, v{vLANE}")
    a(f"v_lshlrev_b32 v{vA0}, {BS+2}, v{vT}")
    a(f"v_and_b32 v{vA1}, 3, v{vT}")
    a(f"v_and_b32 v{vT}, 7, v{vLANE}")
    a(f"v_lshl_add_u32 v{vA0}, v{vT}, 4, v{vA0}")
    a(f"s_lshl_b32 s{sT4}, s{sT4}, {BS}")
    a(f"s_lshl_b32 s{sT5}, s{sT5}, 7")
    a(f"s_add_u32 s{sT4}, s{sT4}, s{sT5}")
    a(f"s_add_u32 s{sT5}, s{sT4}, {DPX}")
    if LWD == 2:
        a(f"v_min_u32 v{vKO}, {5*16384 + 127}, v{vA0}")
        a(f"v_and_b32 v{vT}, 7, v{vLANE}")
        a(f"v_and_b32 v{vKO}, 0x1c000, v{vKO}")
        a(f"v_lshl_add_u32 v{vKO}, v{vT}, 4, v{vKO}")
        srd(a, SRD_B, sOUT, 2048)
        a(f"s_lshl_b32 s{sT4}, s{sLW}, 13")
        a(f"s_add_u32 s{sT4}, s{sT4}, {YPB:#x}")
        a("s_setprio 3")
        items = [(vA0, sT5, 0), (vA0, sT5, 8 * 16384), (vKO, sT5, 16 * 16384)] + [(vVO, sT4, 1024 * t) for t in range(8)]
        gatherP(TA, [TB, TC], 11, None, None, 0, 0, "yp", PGAP, items=items)
        stamp(7)
        D0, Y0 = TA, TA + 12
        a("s_mov_b32 exec_hi, 0xffff")
        for r in range(4):
            a(f"v_add_f32 v{D0+r}, v{D0+r}, v{D0+8+r}")
        a("s_mov_b32 exec_hi, -1")
        for r in range(4):
            a(f"v_add_f32 v{D0+r}, v{D0+r}, v{D0+4+r}")
        for (x, y) in ((0, 1), (2, 3), (4, 5), (6, 7), (0, 2), (4, 6), (0, 4)):
            for r in range(4):
                a(f"v_add_f32 v{Y0+4*x+r}, v{Y0+4*x+r}, v{Y0+4*y+r}")
        regs = [D0 + r for r in range(4)] + [Y0 + r for r in range(4)]
        tmps = [D0 + 4 + r for r in range(4)] + [Y0 + 4 + r for r in range(4)]
        for r in regs:
            a(f"v_add_f32_dpp v{r}, v{r}, v{r} row_ror:8 {DPPM}")
        for sw in ("v_permlane16_swap_b32", "v_permlane32_swap_b32"):
            for r, t in zip(regs, tmps):
                a(f"v_mov_b32 v{t}, v{r}")
            for r, t in zip(regs, tmps):
                a(f"{sw} v{r}, v{t}")
            for r, t in zip(regs, tmps):
                a(f"v_add_f32 v{r}, v{r}, v{t}")
        a("s_mov_b32 exec_hi, 0")
        for r in range(1, 4):
            a(f"s_mov_b32 exec_lo, {0xff << (8*r):#x}")
            a(f"v_mov_b32 v{D0}, v{D0+r}")
            a(f"v_mov_b32 v{Y0}, v{Y0+r}")
        a("s_mov_b32 exec_lo, -1")
        rne(a, [D0, Y0])
        a(f"v_mul_f32 v{vU}, {NLOG2E:#x}, v{D0}")
        a(f"v_exp_f32 v{vU}, v{vU}")
        a(f"v_lshlrev_b32 v{vP}, 16, v{vP}")
        a(f"v_add_f32 v{vU}, 1.0, v{vU}")
        a(f"v_rcp_f32 v{vU}, v{vU}")
        a(f"v_mul_f32 v{D0}, v{D0}, v{vU}")
        rne(a, [D0])
        a(f"v_mul_f32 v{Y0}, v{Y0}, v{D0}")
        rne(a, [Y0])
        a(f"v_add_f32 v{Y0}, v{Y0}, v{vP}")
        a(f"v_cvt_pk_bf16_f32 v{Y0}, v{Y0}, v{Y0}")
        a(f"buffer_store_short v{Y0}, v{vA2}, {SR(SRD_B)}, 0 offen")
        a("s_branch L_A0_stored")
    for r in range(4):
        a(f"v_mov_b32 v{TA+8+r}, 0")
    if not LWD:
        for _ in range(3):
            a(f"s_sleep {PSL}")
    gather(TA, 3, vA0, sT5, 32 * B1, 0, 2 if LWD else PSL, "dp", lastmask=0xffff)
    stamp(5)
    if DIAG == 4:
        a(f"s_memrealtime s[{sST+4}:{sST+5}]")

    def reduce_select(dst, n):
        for t in range(1, n):
            for r in range(4):
                a(f"v_add_f32 v{TA+r}, v{TA+r}, v{TA+4*t+r}")
        regs = [TA + r for r in range(4)]
        tmps = [TA + 4 + r for r in range(4)]
        for r in regs:
            a(f"v_add_f32_dpp v{r}, v{r}, v{r} row_ror:8 {DPPM}")
        for sw in ("v_permlane16_swap_b32", "v_permlane32_swap_b32"):
            for r, t in zip(regs, tmps):
                a(f"v_mov_b32 v{t}, v{r}")
            for r, t in zip(regs, tmps):
                a(f"{sw} v{r}, v{t}")
            for r, t in zip(regs, tmps):
                a(f"v_add_f32 v{r}, v{r}, v{t}")
        a(f"v_cndmask_b32 v{dst}, v{TA}, v{TA+1}, s[{sSEL}:{sSEL+1}]")
        a(f"v_cndmask_b32 v{dst}, v{dst}, v{TA+2}, s[{sSEL+2}:{sSEL+3}]")
        a(f"v_cndmask_b32 v{dst}, v{dst}, v{TA+3}, s[{sSEL+4}:{sSEL+5}]")
    for r in range(1, 4):
        a(f"v_cmp_eq_u32 s[{sSEL+2*r-2}:{sSEL+2*r-1}], {r}, v{vA1}")
    reduce_select(vM, 3)
    rne(a, [vM])
    a(f"v_mul_f32 v{vU}, {NLOG2E:#x}, v{vM}")
    a(f"v_exp_f32 v{vU}, v{vU}")
    a(f"v_add_f32 v{vU}, 1.0, v{vU}")
    a(f"v_rcp_f32 v{vU}, v{vU}")
    a(f"v_mul_f32 v{vM}, v{vM}, v{vU}")
    rne(a, [vM])
    a(f"v_lshlrev_b32 v{vP}, 16, v{vP}")
    srd(a, SRD_B, sOUT, 2048)
    a(f"s_lshl_b32 s{sT4}, s{sLW}, 13")
    a(f"s_add_u32 s{sT4}, s{sT4}, {YPB:#x}")
    stamp(6)
    if DRY:
        a(f"s_mov_b32 s{sDRY}, 1")
        a("s_branch L_A0_dry0")
        a.label("L_A0_real")
        a(f"s_mov_b32 s{sDRY}, 0")
    a("s_setprio 3")
    if not LWD:
        a("s_barrier")
    if DIAG == 2:
        a(f"s_memrealtime s[{sST+4}:{sST+5}]")
    if PY:
        gatherP(TA, [TB + 32 * p for p in range(PY)], 8, vVO, sT4, 1024, 0, "yp", PGAP)
    else:
        gather(TA, 8, vVO, sT4, 1024, 0, YSL, "yp")
    stamp(7)
    if DRY:
        a.label("L_A0_dry0")
    reduce_select(vL, 8)
    rne(a, [vL])
    a(f"v_mul_f32 v{vL}, v{vL}, v{vM}")
    rne(a, [vL])
    a(f"v_add_f32 v{vL}, v{vL}, v{vP}")
    a(f"v_cvt_pk_bf16_f32 v{vL}, v{vL}, v{vL}")
    if DRY:
        a(f"s_cmp_lg_u32 s{sDRY}, 0")
        a("s_cbranch_scc1 L_A0_real")
    a("s_mov_b32 exec_hi, 0")
    a(f"buffer_store_short v{vL}, v{vA2}, {SR(SRD_B)}, 0 offen {OPOL}")
    a.label("L_A0_stored")
    a(f"s_cmp_lg_u32 s{sLW}, 0")
    a("s_cbranch_scc1 L_A0_nogen")
    a("s_mov_b64 exec, 1")
    a(f"v_mov_b32 v{vT}, s{sGEN}")
    a(f"v_mov_b32 v{vU}, {GEN:#x}")
    a(f"buffer_store_dword v{vT}, v{vU}, {SR(SRD_WS)}, 0 offen sc1")
    if DIAG:
        a(f"s_memrealtime s[{sST+2}:{sST+3}]")
        a("s_waitcnt lgkmcnt(0)")
        src = sST + 2 if DIAG == 1 else sST + 4
        a(f"s_sub_u32 s{sT0}, s{src}, s{sST}")
        if DIAG == 3:
            a(f"s_lshl_b32 s{sT0}, s{sT0}, 3")
        a(f"s_min_u32 s{sT0}, s{sT0}, 100000")
        a.label("L_diag")
        a(f"s_memrealtime s[{sST+6}:{sST+7}]")
        a("s_waitcnt lgkmcnt(0)")
        a(f"s_sub_u32 s{sT1}, s{sST+6}, s{sST+2}")
        a(f"s_cmp_lt_u32 s{sT1}, s{sT0}")
        a("s_cbranch_scc1 L_diag")
    a.label("L_A0_nogen")
    stamp_flush(7)
    a("s_endpgm")

    a.label("L_A1")
    if EXP & 8:
        a("s_endpgm")
    a("s_setprio 2")
    pre_tag()
    a(f"v_mov_b32 v{vKO}, 0")
    a(f"ds_write_b32 v{vKO}, v{vKO} offset:{L_QF}")
    a(f"ds_write_b32 v{vKO}, v{vKO} offset:{L_QF+4}")
    a(f"ds_write_b32 v{vKO}, v{vKO} offset:{L_QF+8}")
    masks()
    ownoff(sOFF, sT0)
    a(f"s_add_u32 s{sOFF}, s{sOFF}, {OPB}")
    a(f"v_lshlrev_b32 v{vA0}, 14, v{vG}")
    a(f"v_lshl_add_u32 v{vA0}, v{vJ}, 4, v{vA0}")
    a(f"s_lshl_b32 s{sT0}, s{sH}, 17")
    a(f"s_lshl_b32 s{sT1}, s{sB}, 16")
    a(f"s_add_u32 s{sT0}, s{sT0}, s{sT1}")
    a(f"s_lshl_b32 s{sT1}, s{sS}, 8")
    a(f"s_add_u32 s{sT0}, s{sT0}, s{sT1}")
    a(f"v_lshrrev_b32 v{vT}, 5, v{vLANE}")
    a(f"v_lshlrev_b32 v{vA1}, {BS}, v{vT}")
    a(f"v_bfe_u32 v{vT}, v{vLANE}, 3, 2")
    a(f"v_lshl_add_u32 v{vA1}, v{vT}, 8, v{vA1}")
    a(f"v_lshlrev_b32 v{vA2}, 6, v{vT}")
    a(f"v_and_b32 v{vT}, 7, v{vLANE}")
    a(f"v_lshl_add_u32 v{vA1}, v{vT}, 4, v{vA1}")
    a(f"v_lshl_add_u32 v{vA2}, v{vT}, 1, v{vA2}")
    ffn2_index()
    a("s_waitcnt lgkmcnt(0)")
    srd(a, SRD_WS, sWS, WSZ)
    load_tag()
    srd(a, SRD_B, sWO, 0x400000)
    if EARLY >= 2:
        a("s_barrier")
    a("s_waitcnt lgkmcnt(0)")
    make_tag()
    def wo_loads():
        for t in range(16):
            if t % 4 == 0 and t:
                a(f"s_add_u32 s{sWOF}, s{sWOF}, 4096")
            a(f"buffer_load_dwordx4 {R(TA+4*t)}, v{vWOA}, {SR(SRD_B)}, s{sWOF} offen offset:{1024*(t%4)} {WPOL}")
    a(f"s_mov_b32 s{sWOF}, s{sT0}")
    a(f"v_mov_b32 v{vWOA}, v{vA0}")
    if LWO == 0:
        wo_loads()
    if not LWD and not W2L:
        wd_loads(vA0)
    headbase(sT0, sT1)
    a(f"s_lshl_b32 s{sT1}, s{sB}, 7")
    a(f"s_add_u32 s{sT0}, s{sT0}, s{sT1}")
    if EARLY != 2:
        a("s_barrier")
    stamp(2, -1)
    if QSL:
        a(f"s_sleep {QSL}")
    gather(TC, 4, vA1, sT0, [2048, 6144, 2048] if DENSE == 2 else 2 * B1, QP, 1, "qp", fine=True)
    stamp(3, -1)
    for t in range(1, 4):
        for r in range(4):
            a(f"v_add_f32 v{TC+r}, v{TC+r}, v{TC+4*t+r}")
    for r in range(4):
        a(f"v_mov_b32 v{TC+4+r}, v{TC+r}")
    for r in range(4):
        a(f"v_permlane32_swap_b32 v{TC+r}, v{TC+4+r}")
    for r in range(4):
        a(f"v_add_f32 v{TC+r}, v{TC+r}, v{TC+4+r}")
    for r in range(4):
        a(f"v_cvt_pk_bf16_f32 v{TC+r}, v{TC+r}, v{TC+r}")
    for r in range(4):
        a(f"ds_write_b16 v{vA2}, v{TC+r} offset:{L_QV + 16*r}")
    a(f"v_mov_b32 v{vT}, 1")
    a("s_waitcnt lgkmcnt(0)")
    a(f"ds_write_b32 v{vKO}, v{vT} offset:{L_QF}")
    a("s_setprio 0")
    if W2L:
        wd_loads(vWOA)
    a(f"v_lshrrev_b32 v{vT}, 3, v{vJ}")
    a(f"v_lshlrev_b32 v{vP}, 8, v{vT}")
    a(f"v_lshl_add_u32 v{vP}, v{vG}, 6, v{vP}")
    a(f"v_lshlrev_b32 v{vL}, 4, v{vLANE}")
    a(f"s_cmp_ge_u32 s{sKF}, 88")
    a("s_cbranch_scc1 L_A1_noffn2")
    a(f"v_lshrrev_b32 v{vT}, 5, v{vLANE}")
    a(f"v_mul_u32_u24 v{vA0}, {88*B1}, v{vT}")
    a(f"v_and_b32 v{vT}, 31, v{vLANE}")
    a(f"v_lshl_add_u32 v{vA0}, v{vT}, 4, v{vA0}")
    a(f"s_lshr_b32 s{sT0}, s{sT4}, 1")
    a(f"s_lshl_b32 s{sT0}, s{sT0}, {BS+3}")
    a(f"s_add_u32 s{sT0}, s{sT0}, {GPB}")
    a(f"s_and_b32 s{sT1}, s{sT4}, 1")
    a(f"s_lshl_b32 s{sT1}, s{sT1}, 9")
    a(f"s_add_u32 s{sT0}, s{sT0}, s{sT1}")
    a(f"s_sleep {GSL}")
    gather(TC, 8, vA0, sT0, B1, 0, 32, "gp")
    for t in range(1, 8):
        for r in range(4):
            a(f"v_add_f32 v{TC+r}, v{TC+r}, v{TC+4*t+r}")
    G = [TC + r for r in range(4)]
    Uu = [TC + 4 + r for r in range(4)]
    E = [TC + 8 + r for r in range(4)]
    rne(a, G)
    for r in range(4):
        a(f"v_mov_b32 v{Uu[r]}, v{G[r]}")
    for r in range(4):
        a(f"v_permlane32_swap_b32 v{G[r]}, v{Uu[r]}")
    a(f"s_mov_b32 s{sT0}, 0xbdd2d3e8")
    a(f"v_mov_b32 v{vU}, 0xc0135761")
    for r in range(4):
        a(f"v_mul_f32 v{E[r]}, v{G[r]}, v{G[r]}")
    for r in range(4):
        a(f"v_fma_f32 v{E[r]}, v{E[r]}, s{sT0}, v{vU}")
    for r in range(4):
        a(f"v_mul_f32 v{E[r]}, v{E[r]}, v{G[r]}")
    for r in range(4):
        a(f"v_exp_f32 v{E[r]}, v{E[r]}")
    for r in range(4):
        a(f"v_add_f32 v{E[r]}, 1.0, v{E[r]}")
    for r in range(4):
        a(f"v_rcp_f32 v{E[r]}, v{E[r]}")
    for r in range(4):
        a(f"v_mul_f32 v{G[r]}, v{G[r]}, v{E[r]}")
    rne(a, G)
    for r in range(4):
        a(f"v_mul_f32 v{G[r]}, v{G[r]}, v{Uu[r]}")
    for r in range(4):
        a(f"v_cvt_pk_bf16_f32 v{G[r]}, v{G[r]}, v{G[r]}")
    a(f"v_lshrrev_b32 v{vT}, 3, v{vJ}")
    a(f"v_lshlrev_b32 v{vA0}, 8, v{vT}")
    a(f"v_and_b32 v{vT}, 1, v{vG}")
    a(f"v_lshl_add_u32 v{vA0}, v{vT}, 7, v{vA0}")
    a(f"v_and_b32 v{vT}, 7, v{vJ}")
    a(f"v_lshl_add_u32 v{vA0}, v{vT}, 2, v{vA0}")
    for r in range(4):
        a(f"ds_write_b32 v{vA0}, v{G[r]} offset:{L_VEC0 + 32*r}")
    a(f"v_mov_b32 v{vT}, 1")
    a("s_waitcnt lgkmcnt(0)")
    if LWD:
        a(f"ds_write_b32 v{vKO}, v{vT} offset:{L_QF+8}")
    else:
        tile_gemv(a, TB, vP, L_VEC0)
        dp_publish(vL)
    a.label("L_A1_noffn2")
    stamp(7, -1)
    if EXP & 512:
        a(f"s_andn2_b32 s{sT0}, s{sLW}, 3")
        a(f"s_lshl_b32 s{sT0}, s{sT0}, 12")
        a(f"s_add_u32 s{sT0}, s{sT0}, {CNT}")
        a(f"v_mov_b32 v{vA0}, 0")
        a("s_mov_b64 exec, 1")
        a(f"s_mov_b32 s{sCNT}, {ANUM}")
        stamp(2, -1)
        a.label("L_exp512")
        a(f"v_mov_b32 v{vT}, 1")
        if EXP & 2048:
            a(f"s_mov_b32 s{sT2}, 1")
            a(f"s_atomic_add s{sT2}, s[{sWS}:{sWS+1}], s{sT0} glc")
            a("s_waitcnt lgkmcnt(0)")
        elif EXP & 1024:
            a(f"buffer_load_dword v{vT}, v{vA0}, {SR(SRD_WS)}, s{sT0} offen sc1")
        else:
            a(f"buffer_atomic_add v{vT}, v{vA0}, {SR(SRD_WS)}, s{sT0} offen sc0 sc1")
        a("s_waitcnt vmcnt(0)")
        a(f"s_sub_u32 s{sCNT}, s{sCNT}, 1")
        a(f"s_cmp_lg_u32 s{sCNT}, 0")
        a("s_cbranch_scc1 L_exp512")
        stamp(3, -1)
        a("s_mov_b64 exec, -1")
    a(f"v_and_b32 v{vT}, 31, v{vLANE}")
    a(f"v_lshlrev_b32 v{vVO}, 4, v{vT}")
    a(f"v_mov_b32 v{vKO}, 0")
    a(f"v_and_b32 v{vU}, 7, v{vLANE}")
    a(f"v_lshlrev_b32 v{vU}, 4, v{vU}")
    a(f"v_add_u32 v{vU}, 512, v{vU}")
    a(f"v_cmp_gt_u32 vcc, 32, v{vLANE}")
    a(f"s_mov_b64 s[{sEX}:{sEX+1}], vcc")
    a(f"s_lshl_b32 s{sT1}, s{sB}, 8")
    a(f"v_lshlrev_b32 v{vA1}, 4, v{vJ}")
    a(f"v_add_u32 v{vA1}, s{sT1}, v{vA1}")
    a(f"v_cndmask_b32 v{vA1}, v{vU}, v{vA1}, vcc")
    a(f"v_and_b32 v{vT}, 1, v{vG}")
    a(f"v_lshl_add_u32 v{vA1}, v{vT}, {13 if DENSE == 2 else BS+2}, v{vA1}")
    a(f"v_lshlrev_b32 v{vA2}, 8, v{vT}")
    a(f"v_bfe_u32 v{vT}, v{vLANE}, 3, 1")
    a(f"v_lshl_add_u32 v{vA2}, v{vT}, 7, v{vA2}")
    a(f"v_and_b32 v{vT}, 7, v{vLANE}")
    a(f"v_lshl_add_u32 v{vA2}, v{vT}, 2, v{vA2}")
    a(f"v_lshrrev_b32 v{vT}, 3, v{vLANE}")
    a(f"v_lshlrev_b32 v{vA0}, 13, v{vT}")
    a(f"v_and_b32 v{vT}, 7, v{vLANE}")
    a(f"v_lshl_add_u32 v{vA0}, v{vT}, 4, v{vA0}")
    a(f"s_lshl_b32 s{sT2}, s{sS}, 16")
    a(f"s_lshl_b32 s{sT3}, s{sH}, 8")
    a(f"s_add_u32 s{sT2}, s{sT2}, s{sT3}")
    a(f"s_lshl_b32 s{sT3}, s{sB}, 7")
    a(f"s_add_u32 s{sT2}, s{sT2}, s{sT3}")
    a(f"s_add_u32 s{sT2}, s{sT2}, {YPB:#x}")
    headbase(sT0, sT3)
    a(f"s_add_u32 s{sT0}, s{sT0}, {OPB}")
    if DRY:
        a(f"s_mov_b32 s{sDRY}, 1")
        a("s_branch L_A1_dry0")
        a.label("L_A1_real")
        a(f"s_mov_b32 s{sDRY}, 0")
    if LWO in (3, 4):
        a.label("L_A1_wait")
        a(f"s_sleep {WSL}")
        a(f"ds_read_b32 v{vT}, v{vKO} offset:{L_QF+4}")
        a("s_waitcnt lgkmcnt(0)")
        a(f"v_cmp_eq_u32 vcc, 0, v{vT}")
        a("s_cbranch_vccnz L_A1_wait")
        wo_loads()
    a("s_setprio 3")
    a("s_barrier")
    stamp(4, -1)
    if DRY:
        a.label("L_A1_dry0")
    if LWO == 1:
        wo_loads()
    MLr = TC
    a(f"ds_read_b128 {R(MLr)}, v{vKO} offset:{L_PML}")
    a(f"ds_read_b128 {R(MLr+4)}, v{vKO} offset:{L_PML+16}")
    for w in range(4):
        a(f"ds_read_b128 {R(TB+4*w)}, v{vVO} offset:{L_PART + 512*w}")

    def combine(ms, ls, F, outm, outl):
        a(f"v_max_f32 v{outm}, v{ms[0]}, v{ms[1]}")
        a(f"v_max3_f32 v{outm}, v{outm}, v{ms[2]}, v{ms[3]}")
        for w in range(4):
            a(f"v_sub_f32 v{F+w}, v{ms[w]}, v{outm}")
        for w in range(4):
            a(f"v_mul_f32 v{F+w}, s{sL2E}, v{F+w}")
        for w in range(4):
            a(f"v_exp_f32 v{F+w}, v{F+w}")
        a(f"v_mul_f32 v{outl}, v{F}, v{ls[0]}")
        for w in range(1, 4):
            a(f"v_fmac_f32 v{outl}, v{F+w}, v{ls[w]}")

    def combine_o(os_, F):
        for r in range(4):
            a(f"v_mul_f32 v{os_[0]+r}, v{F}, v{os_[0]+r}")
        for w in range(1, 4):
            for r in range(4):
                a(f"v_fmac_f32 v{os_[0]+r}, v{F+w}, v{os_[w]+r}")
    F = TC + 8
    a("s_waitcnt lgkmcnt(4)")
    combine([MLr + 2 * w for w in range(4)], [MLr + 2 * w + 1 for w in range(4)], F, vM, vMN)
    a("s_waitcnt lgkmcnt(0)")
    combine_o([TB + 4 * w for w in range(4)], F)
    for r in range(4):
        src = vM if r % 2 == 0 else vMN
        a(f"v_cndmask_b32 v{TB+r}, v{src}, v{TB+r}, s[{sEX}:{sEX+1}]")
    if DRY:
        a(f"s_cmp_lg_u32 s{sDRY}, 0")
        a("s_cbranch_scc1 L_A1_dry1")
    a("s_mov_b32 exec_hi, 0xff")
    publish(TB, vL, sOFF, 0)
    a("s_mov_b64 exec, -1")
    stamp(5, -1)
    if LWO == 2:
        wo_loads()
    GB = TB + 16
    if PP:
        gatherP(GB, [TC + 16 + 16 * p for p in range(PP)], 4, vA1, sT0, B1, 0, "op", PGAP)
    else:
        gather(GB, 4, vA1, sT0, B1, 0, OSL, "op")
    stamp(6, -1)
    if DRY:
        a.label("L_A1_dry1")
    for t in range(4):
        a(f"v_mov_b32 v{MLr+2*t}, v{GB+4*t}")
        a(f"v_mov_b32 v{MLr+2*t+1}, v{GB+4*t+1}")
    for t in range(4):
        a(f"v_permlane32_swap_b32 v{GB+4*t}, v{MLr+2*t}")
        a(f"v_permlane32_swap_b32 v{GB+4*t+1}, v{MLr+2*t+1}")
    combine([MLr + 2 * w for w in range(4)], [MLr + 2 * w + 1 for w in range(4)], F, vM, vMN)
    a(f"v_rcp_f32 v{vMN}, v{vMN}")
    combine_o([GB + 4 * w for w in range(4)], F)
    for r in range(4):
        a(f"v_mul_f32 v{GB+r}, v{GB+r}, v{vMN}")
    for r in range(4):
        a(f"v_cvt_pk_bf16_f32 v{GB+r}, v{GB+r}, v{GB+r}")
    a(f"s_mov_b64 exec, s[{sEX}:{sEX+1}]")
    for r in range(4):
        a(f"ds_write_b32 v{vA2}, v{GB+r} offset:{L_VEC1 + 32*r}")
    a("s_mov_b64 exec, -1")
    a("s_waitcnt lgkmcnt(0)")
    tile_gemv(a, TA, vP, L_VEC1)
    if DRY:
        a(f"s_cmp_lg_u32 s{sDRY}, 0")
        a("s_cbranch_scc1 L_A1_real")
    publish(vACC, vA0, sT2, 0)
    stamp_flush(7)
    a.label("L_end")
    a("s_endpgm")
    a.label("L_codeend")

    if ORD:
        iS, iA0, iA1 = a.lines.index("L_S:"), a.lines.index("L_A0:"), a.lines.index("L_A1:")
        a.lines = a.lines[:iS] + a.lines[iA0:iA1] + a.lines[iS:iA0] + a.lines[iA1:]
    body = a.finish()
    hdr = open("cdna_kernels/" + NAME + ".s.ref").read().split("; @launch")[0]
    nv = 248
    txt = hdr + f"; @launch grid=(256,1,1) block=(384,1,1) lds={L_TOTAL + 4*NL*4096}\n"
    txt += DOC
    txt += '.amdgcn_target "amdgcn-amd-amdhsa--gfx950"\n.text\n'
    txt += f".globl {NAME}_kernel\n.p2align 8\n.type {NAME}_kernel,@function\n"
    txt += body
    txt += f""".section .rodata,"a"
.p2align 6
.amdhsa_kernel {NAME}_kernel
  .amdhsa_next_free_vgpr {nv}
  .amdhsa_next_free_sgpr 102
  .amdhsa_accum_offset {(nv+3)//4*4}
  .amdhsa_group_segment_fixed_size 0
  .amdhsa_kernarg_size 96
  .amdhsa_user_sgpr_count 2
  .amdhsa_user_sgpr_kernarg_segment_ptr 1
  .amdhsa_system_sgpr_workgroup_id_x 1
  .amdhsa_float_denorm_mode_32 3
.end_amdhsa_kernel
"""
    return txt


if __name__ == "__main__":
    out = sys.argv[1]
    kw = eval("dict(" + (sys.argv[2] if len(sys.argv) > 2 else "") + ")")
    open(out, "w").write(gen(**kw))
```
